```python
import torch

def _softmax(x, axis=-1):
    return torch.softmax(x, dim=axis)
def _gelu(x):
    return torch.nn.functional.gelu(x, approximate="tanh")
def _silu(x):
    return torch.nn.functional.silu(x)
def _sigmoid(x):
    return torch.sigmoid(x)
def _layernorm(x, axis=-1, eps=1e-5):
    m = x.mean(dim=axis, keepdim=True)
    v = x.var(dim=axis, keepdim=True, unbiased=False)
    return (x - m) / torch.sqrt(v + eps)
def _scatter_add(tgt, idx, src, axis=0):
    return tgt.clone().index_add_(axis, idx, src)
def _segment_sum(src, seg, n):
    out = torch.zeros((n,) + src.shape[1:], dtype=src.dtype)
    return out.index_add_(0, seg, src)
def _pad(x, pw):
    flat = tuple(v for pair in reversed(pw) for v in pair)
    return torch.nn.functional.pad(x, flat)

kernel_name = 'gated_mix__grouped_kv_mqa__dense_activation_gelu__prompt'

def setup_inputs():

    _w = (lambda a: (lambda t: t.to(torch.bfloat16) if t.is_floating_point() else t)(torch.as_tensor(a)))
    def _A_setup():
        B, S, D, H = 1, 2048, 576, 32
        Dh = D // H
        return {
            "x": _w((lambda *s: torch.randn(*s, dtype=torch.bfloat16) * 0.05)(B, S, D)),
            "wq": _w((lambda *s: torch.randn(*s, dtype=torch.bfloat16) * 0.8)(D, H * Dh)),
            "wk": _w((lambda *s: torch.randn(*s, dtype=torch.bfloat16) * 0.8)(D, Dh)),
            "wv": _w((lambda *s: torch.randn(*s, dtype=torch.bfloat16) * 0.05)(D, Dh)),
            "wo": _w((lambda *s: torch.randn(*s, dtype=torch.bfloat16) * 0.05)(H * Dh, D)),
        }
    _A_in = _A_setup()

    def _B_setup():
        B, S, D, F = 1, 2048, 576, 4608
        return {
            "x": _w((lambda *s: torch.randn(*s, dtype=torch.bfloat16) * 0.05)(B, S, D)),
            "w1": _w((lambda *s: torch.randn(*s, dtype=torch.bfloat16) * 3.2)(D, F) * (D ** -0.5)),
            "b1": _w((lambda *s: torch.randn(*s, dtype=torch.bfloat16) * 3.2)(F) * 0.01),
            "w2": _w((lambda *s: torch.randn(*s, dtype=torch.bfloat16) * 0.05)(F, D) * (F ** -0.5)),
            "b2": _w((lambda *s: torch.randn(*s, dtype=torch.bfloat16) * 0.1)(D) * 0.01),
        }
    _B_in = _B_setup()

    return {
        "A_x": _A_in["x"],
        "A_wq": _A_in["wq"],
        "A_wk": _A_in["wk"],
        "A_wv": _A_in["wv"],
        "A_wo": _A_in["wo"],
        "B_x": _B_in["x"],
        "B_w1": _B_in["w1"],
        "B_b1": _B_in["b1"],
        "B_w2": _B_in["w2"],
        "B_b2": _B_in["b2"],
        "gate_w": _w((lambda *s: torch.randn(*s, dtype=torch.bfloat16) * 0.05)(576) * 16.0),
    }

def reference(A_x, A_wq, A_wk, A_wv, A_wo, B_x, B_w1, B_b1, B_w2, B_b2, gate_w):
    def _A_ref(x, wq, wk, wv, wo):
        B, S, D = x.shape
        H = 32
        Dh = D // H
        q = (lambda x, *d: x.permute(*d))((x @ wq).reshape(B, S, H, Dh), 0, 2, 1, 3)
        k = x @ wk
        v = x @ wv
        scores = torch.einsum("bhqd,bkd->bhqk", q, k) * (Dh ** -0.5)
        p = _softmax(scores, axis=-1)
        o = torch.einsum("bhqk,bkd->bhqd", p, v)
        return (lambda x, *d: x.permute(*d))(o, 0, 2, 1, 3).reshape(B, S, H * Dh) @ wo

    def _B_ref(x, w1, b1, w2, b2):
        h = torch.einsum("bsd,df->bsf", x, w1) + b1
        h = _gelu(h)
        return torch.einsum("bsf,fd->bsd", h, w2) + b2

    x = A_x
    g = _sigmoid((x * gate_w).sum(-1, keepdims=True))
    a = _A_ref(x, A_wq, A_wk, A_wv, A_wo)
    b = _B_ref(x, B_w1, B_b1, B_w2, B_b2)
    return g * a + (1 - g) * b
```

```python
import re

_RE_RANGE = re.compile(r"^([vsa])\[(\d+):(\d+)\]$")
_RE_ONE = re.compile(r"^([vsa])(\d+)$")
TRANS = ("v_exp_", "v_log_", "v_rcp_", "v_rsq_", "v_sqrt_", "v_sin_", "v_cos_")


def regs(op):
    op = op.strip()
    if op.startswith("-"):
        op = op[1:]
    if op.startswith("abs(") or op.startswith("neg("):
        op = op[4:-1]
    if op.startswith("|"):
        op = op[1:-1]
    m = _RE_RANGE.match(op)
    if m:
        return {(m.group(1), i) for i in range(int(m.group(2)), int(m.group(3)) + 1)}
    m = _RE_ONE.match(op)
    if m:
        return {(m.group(1), int(m.group(2)))}
    if op in ("vcc", "vcc_lo", "vcc_hi"):
        return {("s", "vcc")}
    if op in ("exec", "exec_lo", "exec_hi"):
        return {("s", "exec")}
    if op == "m0":
        return {("s", "m0")}
    return set()


def vr(a, n=1):
    return f"v{a}" if n == 1 else f"v[{a}:{a + n - 1}]"


def sr(a, n=1):
    return f"s{a}" if n == 1 else f"s[{a}:{a + n - 1}]"


class I:
    def __init__(self, text, tag=None, need=(), off=None, pseudo=None, needregs=()):
        self.text = text
        self.tag = tag
        self.need = list(need)
        self.off = off
        self.pseudo = pseudo
        self.needregs = set(needregs)
        if pseudo is None:
            self.parse()

    def parse(self):
        t = self.text.split(";")[0].strip()
        mn, _, rest = t.partition(" ")
        self.mn = mn
        ops = [o.strip() for o in rest.split(",")] if rest.strip() else []
        mods = ""
        if ops:
            last = ops[-1].split()
            ops[-1] = last[0] if last else ""
            mods = " ".join(last[1:])
        self.ops, self.mods = ops, mods
        R, W = set(), set()
        self.cls = "other"
        self.passes = 0
        self.srcC = set()
        self.srcAB = set()
        self.wide_store = set()
        self.lds_dma = False
        if mn.startswith("v_mfma") or mn.startswith("v_smfmac"):
            self.cls = "mfma"
            self.passes = 4 if "16x16" in mn else 8
            if "_2b_" in mn:
                self.passes = 16
            W = regs(ops[0])
            self.srcAB = regs(ops[1]) | regs(ops[2])
            if mn.startswith("v_smfmac"):
                self.srcC = set(W)
                self.srcAB |= regs(ops[3])
            else:
                self.srcC = regs(ops[3])
            R = self.srcAB | self.srcC
        elif mn.startswith("v_"):
            self.cls = "valu"
            W = regs(ops[0]) if ops else set()
            k = 1
            if "_co_" in mn or mn.startswith("v_mad_u64"):
                W |= regs(ops[1])
                k = 2
            for o in ops[k:]:
                R |= regs(o)
            if "swap" in mn:
                W |= regs(ops[1])
                R |= regs(ops[0])
            if mn.startswith(("v_fmac", "v_dot2c", "v_writelane")) or "dpp" in mn:
                R |= regs(ops[0])
            if mn.startswith("v_cmpx"):
                W |= {("s", "exec")}
        elif mn.startswith("ds_"):
            self.cls = "ds"
            if mn.startswith("ds_read"):
                W = regs(ops[0])
                R = regs(ops[1])
                self.addr = ops[1]
            else:
                for o in ops:
                    R |= regs(o)
                self.addr = ops[0]
        elif mn.startswith(("buffer_", "global_")):
            self.cls = "vm"
            self.lds_dma = "lds" in mods.split() or "_lds_" in mn
            if "load" in mn and not self.lds_dma:
                W = regs(ops[0])
                for o in ops[1:]:
                    R |= regs(o)
            else:
                for o in ops:
                    R |= regs(o)
                if "atomic" in mn and "sc0" in mods.split():
                    W = regs(ops[0])
                if "store_dwordx4" in mn or "store_dwordx3" in mn:
                    self.wide_store = regs(ops[0] if mn.startswith("buffer_") else ops[1])
            if self.lds_dma:
                R |= {("s", "m0")}
        elif mn.startswith("s_"):
            self.cls = "salu"
            if mn.startswith(("s_cmp", "s_waitcnt", "s_nop", "s_barrier", "s_cbranch", "s_branch", "s_setprio",
                              "s_sleep", "s_endpgm", "s_bitcmp")):
                for o in ops:
                    R |= regs(o)
            else:
                if ops:
                    W = regs(ops[0])
                for o in ops[1:]:
                    R |= regs(o)
                if "saveexec" in mn:
                    W |= {("s", "exec")}
        self.R, self.W = R, W
        self.trans = mn.startswith(TRANS)


def label(name):
    return I(name + ":", pseudo="label")


def raw(text):
    return I(text, pseudo="raw")


def barrier(need=(), drain_lds=True):
    i = I("s_barrier", pseudo="barrier", need=need)
    i.drain = drain_lds
    return i


def wait(need=(), needregs=(), all_vm=False, all_ds=False):
    i = I("", pseudo="wait", need=need, needregs=needregs)
    i.all_vm, i.all_ds = all_vm, all_ds
    return i


def opt_begin():
    return I("", pseudo="opt_begin")


def opt_end():
    return I("", pseudo="opt_end")


def setbase(reg, base=0):
    i = I("", pseudo="setbase")
    i.reg, i.base = reg, base
    return i


def _need_states(p, c):
    n = 0
    pv = {r for r in p.W if r[0] != "s"}
    ps = {r for r in p.W if r[0] == "s"}
    if p.cls == "valu":
        if c.cls == "mfma" and pv & c.R:
            n = max(n, 2)
        if c.cls == "mfma" and ("s", "exec") in ps:
            n = max(n, 4)
        if c.cls == "valu":
            if p.trans and not c.trans and pv & (c.R | c.W):
                n = max(n, 1)
            if c.mn.startswith(("v_readfirstlane", "v_readlane")) and pv & c.R:
                n = max(n, 1)
            if ("dpp" in c.mn or "permlane" in c.mn) and pv & c.R:
                n = max(n, 2)
            if ps & c.R:
                n = max(n, 4 if c.mn.startswith(("v_readlane", "v_writelane")) else 2)
            if p.mn.startswith("v_dot") and pv & (c.R | c.W):
                n = max(n, 3)
        if p.mn.startswith("v_dot") and c.cls in ("mfma", "vm", "ds") and pv & c.R:
            n = max(n, 3)
        if c.cls == "vm" and ps & c.R:
            n = max(n, 5)
        if c.cls == "salu" and ps & c.R:
            n = max(n, 1)
        if p.trans and c.cls in ("vm", "ds") and pv & c.R:
            n = max(n, 1)
    if p.cls == "mfma":
        long_ = {4: 8, 8: 12, 16: 20}[p.passes]
        if c.cls == "mfma":
            if pv & c.srcAB:
                n = max(n, long_)
            if pv & c.srcC and not (pv == c.srcC and p.passes == c.passes):
                n = max(n, long_ - 2)
            if pv & c.W and not (pv == c.W and p.passes == c.passes):
                n = max(n, long_ - 2)
        elif pv & (c.R | c.W):
            n = max(n, long_)
        if c.cls in ("valu", "ds", "vm") and p.srcC & c.W:
            n = max(n, p.passes - 1)
    if p.cls == "vm" and p.wide_store and p.wide_store & c.W:
        n = max(n, 2)
    if p.cls == "salu" and ("s", "m0") in ps and c.cls == "vm" and c.lds_dma:
        n = max(n, 1)
    return n


class Fin:
    def __init__(self):
        self.out = []
        self.ds = []
        self.vm = []
        self.hist = []
        self.base = {}
        self.stack = []
        self.seen = set()
        self.stats = {"nop": 0, "wait": 0, "rebase": 0}

    def _emit(self, text, states=1, ins=None):
        self.out.append("    " + text)
        for h in self.hist:
            h[1] += states
        self.hist = [h for h in self.hist if h[1] < 24]
        if ins is not None and (ins.W or ins.cls in ("mfma", "vm")):
            self.hist.append([ins, 0])

    def _count(self, fifo, idx):
        depth = len(self.stack)
        return sum(1 for e in fifo[idx + 1:] if not e[2])

    def _waits(self, tags, rset, is_ds_load=False, wset=frozenset(), all_vm=False, all_ds=False):
        for t in tags:
            assert t in self.seen, f"wait for unknown tag {t}"
        parts = []
        for name, fifo, mx, allf in (("vmcnt", self.vm, 63, all_vm), ("lgkmcnt", self.ds, 15, all_ds)):
            idx = -1
            for i, e in enumerate(fifo):
                hit = allf or (e[0] is not None and e[0] in tags) or (e[1] & rset)
                if not hit and (e[1] & wset) and not (name == "lgkmcnt" and is_ds_load):
                    hit = True
                if hit:
                    idx = i
            if idx >= 0:
                n = min(self._count(fifo, idx), mx)
                parts.append(f"{name}({n})")
                del fifo[: idx + 1]
        if parts:
            self.stats["wait"] += 1
            self._emit("s_waitcnt " + " ".join(parts))

    def _hazard(self, ins):
        n = 0
        for p, st in self.hist:
            n = max(n, _need_states(p, ins) - st)
        while n > 0:
            k = min(n, 16)
            self.stats["nop"] += k
            self._emit(f"s_nop {k - 1}", states=k)
            n -= k

    def add(self, ins):
        ps = ins.pseudo
        if ps == "label":
            self.out.append(ins.text)
            return
        if ps == "raw":
            for line in ins.text.strip("\n").split("\n"):
                self.out.append(line)
            return
        if ps == "setbase":
            self.base[ins.reg] = ins.base
            return
        if ps == "copybase":
            self.base[ins.dst] = self.base[ins.src]
            assert self.base[ins.src] % 8192 == 0
            return
        if ps == "wait":
            self._waits(ins.need, ins.needregs, all_vm=ins.all_vm, all_ds=ins.all_ds)
            return
        if ps == "barrier":
            self._waits(ins.need, set(), all_ds=ins.drain)
            self._emit("s_barrier")
            return
        if ps == "opt_begin":
            self.stack.append(([list(e) for e in self.ds], [list(e) for e in self.vm],
                               [list(h) for h in self.hist], dict(self.base), self.ds + self.vm))
            return
        if ps == "opt_end":
            ds0, vm0, h0, b0, keep = self.stack.pop()
            ids = set(map(id, keep))
            self.ds = ds0 + [[e[0], e[1], True] for e in self.ds if id(e) not in ids]
            self.vm = vm0 + [[e[0], e[1], True] for e in self.vm if id(e) not in ids]
            known = {id(h[0]) for h in h0}
            self.hist = h0 + [h for h in self.hist if id(h[0]) not in known]
            for k, v in b0.items():
                assert self.base.get(k) == v, f"address register {k} re-based inside an optional block"
            return
        text = ins.text
        if ins.off is not None:
            b = self.base[ins.addr]
            span = getattr(ins, "span", 0)
            if not (0 <= ins.off - b <= 65535 - span):
                nb = getattr(ins, "rebase_to", None)
                if nb is None:
                    nb = ins.off & ~1023
                self.stats["rebase"] += 1
                self.add(I(f"v_add_u32 {ins.addr}, {(nb - b) & 0xFFFFFFFF:#x}, {ins.addr}"))
                self.base[ins.addr] = b = nb
            if ins.off - b:
                text += f" offset:{ins.off - b}"
        is_ds_load = ins.cls == "ds" and bool(ins.W)
        self._waits(ins.need, {r for r in ins.R if r[0] != "s"} | ins.needregs, is_ds_load,
                    {r for r in ins.W if r[0] != "s"})
        self._hazard(ins)
        states = 1
        if ins.mn == "s_nop":
            states = int(ins.ops[0], 0) + 1
        self._emit(text, states, ins)
        if ins.tag is not None:
            self.seen.add(ins.tag)
        if ins.cls == "ds":
            self.ds.append([ins.tag, set(ins.W), False])
        elif ins.cls == "vm":
            self.vm.append([ins.tag, set(ins.W), False])
            assert len(self.vm) <= 63 + 40


def flat(x):
    for e in x:
        if isinstance(e, (list, tuple)):
            yield from flat(e)
        elif isinstance(e, str):
            for line in e.strip().split("\n"):
                line = line.strip()
                if line:
                    yield I(line)
        else:
            yield e


def finalize(prog):
    f = Fin()
    for ins in flat(prog):
        f.add(ins)
    return "\n".join(f.out) + "\n", f.stats
```

```python
import math
import struct
import sys

from asmlib import I, barrier, finalize, label, opt_begin, opt_end, raw, setbase, vr, wait

NAME = "gated_mix__grouped_kv_mqa__dense_activation_gelu__prompt"
KB = 1024
U = 8192

DEFAULTS = dict(
    b=4,
    diag=0,
    burst=9,
    lead=10,
    gx=8,
    kvsig=2,
    kvpoll=4,
    b1tile=16,
    poll2=34,
    pst="sc1",
    thr=40.0,
    force_slow=0,
)


def f32(x):
    return "0x%08x" % struct.unpack("<I", struct.pack("<f", x))[0]


WS_KV, WS_KN, WS_WO, WS_O, WS_P, WS_DIAG, WS_SIZE = 0, 147456, 0x40000, 0x100000, 0x400000, 0x3000000, 0x4000000
XREG = [11 * U, 0, 13 * U, 15 * U, 17 * U]
EX1, EX2, EX2H = 13 * U, 14 * U, 16 * U
QSCR, WOSCR, MISC = 136 * KB, 148 * KB, 152 * KB
L_B1, L_GATE, L_GT = MISC, MISC + 2048, MISC + 4096
L_STG, L_N9 = 40 * KB, 50 * KB


def ring(n):
    return ((n + 2) % 13) * U


sX, sW1, sW2, sWS, sDBG, sOUT, sWO, sB1, sB2, sG = (f"s[{a}:{a + 3}]" for a in range(32, 72, 4))
s_w, s_p, s_hf, s_tt, s_j = "s72", "s73", "s74", "s75", "s76"
s_xo, s_m, s_w1o, s_who, s_whmax = "s77", "s78", "s79", "s80", "s81"
s_w2a, s_w2b, s_mb, s_kb, s_pst, s_oun = "s82", "s83", "s84", "s85", "s86", "s87"
s_t0, s_t1, s_d0, s_d1 = "s88", "s89", "s90", "s91"
s_msk, s_slow = "s[92:93]", "s[94:95]"
s_t2 = "s3"

L16, C0, AW, ABIAS, DW1, AWH, DWH, AQ, AGATE, TMP = 0, 1, 2, 4, 5, 6, 7, 8, 11, 12
DQ, SQ, DW2, AEXW, LANE, ABH = 16, 18, 20, 21, 22, 23
AEXR, QN2 = 5, 23
ABUF, ACC, HOWN, HH, XO = 24, 40, 72, 104, 112
RQBUF, AQ2, HOTH = 184, 220, 224
GADDR, GACC, GP, T = 112, 120, 152, 168
QM, QRA, QRB, KM, KR, IDX, VA, VB = 40, 44, 46, 48, 52, 54, 56, 60
SREG, OREG, PREG, WREG = 64, 24, 100, 172
AK, AV, AR = 2, 3, 4


def X(ks, t):
    return XO + 72 * t + 4 * ks


LOG2E = math.log2(math.e)
GC0 = -2.0 * LOG2E * math.sqrt(2.0 / math.pi)
GC1 = GC0 * 0.044715
QSCALE = LOG2E / math.sqrt(18.0)


def ds(text, off, **kw):
    return I(text, off=off, **kw)


def mf16(d, a, b, c=None):
    c = vr(d, 4) if c is None else c
    return I(f"v_mfma_f32_16x16x32_bf16 {vr(d, 4)}, {vr(a, 4)}, {vr(b, 4)}, {c}")


class Gen:
    def __init__(self, **kw):
        self.o = dict(DEFAULTS)
        self.o.update(kw)
        self.nl = 0
        self.nts = 0
        self.tsnames = []

    def lab(self, s):
        self.nl += 1
        return f"L_{s}_{self.nl}"

    def ts(self, name):
        if not self.o["diag"]:
            return []
        k = self.nts
        self.nts += 1
        assert k < 14
        self.tsnames.append(name)
        return [raw(f"    s_memrealtime s[{4 + 2 * k}:{5 + 2 * k}]")]

    def cond(self, cmp, body):
        l = self.lab("skip")
        return [cmp, f"s_cbranch_scc0 {l}", opt_begin(), body, opt_end(), label(l)]

    def spin(self, load, reg, cmp_neq):
        lo, ld = self.lab("ok"), self.lab("spin")
        return [cmp_neq, "s_cmp_eq_u64 vcc, 0", f"s_cbranch_scc1 {lo}", opt_begin(),
                raw(f"""    s_mov_b32 {s_t2}, 0x8000
{ld}:
    s_sleep 2
    {load}
    s_waitcnt vmcnt(0)
    {cmp_neq}
    s_nop 1
    s_cmp_eq_u64 vcc, 0
    s_cbranch_scc1 {lo}
    s_sub_u32 {s_t2}, {s_t2}, 1
    s_cmp_lg_u32 {s_t2}, 0
    s_cbranch_scc1 {ld}"""), opt_end(), label(lo)]

    def prologue(self):
        b = self.o["b"]
        nb, lb = 16 // b, b.bit_length() - 1
        t = HOWN + 5
        l3, l7, g, tok, r, c4, w1 = (f"v{t + i}" for i in range(7))
        a, bb, cc = f"v{t + 7}", f"v{t + 8}", f"v{t + 9}"
        DX = HOWN + 4
        p = []
        if self.o["diag"]:
            p += [raw("    s_memrealtime s[96:97]\n    s_memtime s[98:99]")]
        p += [f"""
    s_cmp_ge_u32 s2, 256
    s_cbranch_scc1 L_end""", raw("""    s_load_dwordx16 s[4:19], s[0:1], 0
    s_load_dwordx8 s[20:27], s[0:1], 64
    s_load_dwordx4 s[28:31], s[0:1], 96"""), f"""
    v_lshrrev_b32 {a}, 6, v0
    v_and_b32 v{LANE}, 63, v0
    v_readfirstlane_b32 {s_w}, {a}
    v_lshlrev_b32 v{t + 10}, 1, v0
    v_lshlrev_b32 v{t + 11}, 2, v0
    v_lshrrev_b32 {l3}, 3, v{LANE}
    v_and_b32 {l7}, 7, v{LANE}
    v_lshrrev_b32 {g}, 4, v{LANE}
    v_and_b32 {w1}, 1, {a}
    v_lshlrev_b32 {w1}, 2, {w1}
    s_and_b32 {s_t0}, s2, {nb - 1}
    s_lshl_b32 {s_j}, {s_t0}, {lb}
    s_lshr_b32 {s_t0}, s2, 3
    s_and_b32 {s_t1}, {s_t0}, {b - 1}
    s_add_u32 {s_j}, {s_j}, {s_t1}
    s_lshr_b32 {s_tt}, {s_t0}, {lb}
    s_and_b32 {s_t0}, s2, 7
    s_lshr_b32 {s_t0}, {s_t0}, {nb.bit_length() - 1}
    s_mul_i32 {s_t0}, {s_t0}, {32 // b}
    s_add_u32 {s_tt}, {s_tt}, {s_t0}
    s_and_b32 {s_p}, {s_w}, 3
    s_lshr_b32 {s_hf}, {s_w}, 2
    s_lshl_b32 {s_m}, {s_w}, 10
    s_lshl_b32 {s_t0}, {s_tt}, 4
    s_add_u32 {s_t0}, {s_t0}, {s_w}
    s_mul_i32 {s_xo}, {s_t0}, {8 * 1152}
    s_and_b32 {s_t1}, {s_j}, 1
    s_mul_i32 {s_t0}, {s_j}, 576
    s_lshl_b32 {s_t2}, {s_t1}, 6
    s_add_u32 {s_w1o}, {s_t0}, {s_t2}
    s_mul_i32 {s_t2}, {s_w}, {8 * 9216}
    s_add_u32 {s_w1o}, {s_w1o}, {s_t2}
    v_add_u32 {a}, {w1}, {g}
    v_xor_b32 {a}, {a}, {l7}
    v_lshlrev_b32 {a}, 4, {a}
    v_mul_u32_u24 {bb}, 1152, {l3}
    v_add_u32 v{DX}, {a}, {bb}
    v_and_b32 {a}, 1, {g}
    v_lshl_add_u32 {a}, {a}, 1, {w1}
    v_xor_b32 {cc}, {a}, {l7}
    v_lshlrev_b32 {a}, 4, {cc}
    v_mul_u32_u24 v{DW1}, 9216, {l3}
    v_add_u32 v{DW1}, {a}, v{DW1}
    s_mov_b32 s34, {2048 * 1152}
    s_mov_b32 s35, 0x20000
    s_mov_b32 s38, {576 * 9216}
    s_mov_b32 s39, 0x20000
    s_mov_b32 s62, 9216
    s_mov_b32 s63, 0x20000
    s_mov_b32 s70, 1152
    s_mov_b32 s71, 0x20000""", raw("    s_waitcnt lgkmcnt(0)"), """
    s_mov_b32 s32, s4
    s_mov_b32 s33, s5
    s_mov_b32 s36, s16
    s_mov_b32 s37, s17
    s_mov_b32 s60, s18
    s_mov_b32 s61, s19
    s_mov_b32 s68, s24
    s_mov_b32 s69, s25""",
              I(f"buffer_load_ushort v{t + 14}, v{t + 10}, {sB1}, {s_t0} offen"),
              I(f"buffer_load_dword v{t + 15}, v{t + 11}, {sG}, 0 offen")]
        q = [f"""
    s_mov_b32 s40, s20
    s_mov_b32 s41, s21
    s_mov_b32 s42, {4608 * 1152}
    s_mov_b32 s43, 0x20000
    s_mov_b32 s44, s30
    s_mov_b32 s45, s31
    s_mov_b32 s46, {WS_SIZE:#x}
    s_mov_b32 s47, 0x20000
    s_mov_b32 s48, s28
    s_mov_b32 s49, s29
    s_mov_b32 s50, 256
    s_mov_b32 s51, 0x20000
    s_mov_b32 s52, s26
    s_mov_b32 s53, s27
    s_mov_b32 s54, {2048 * 1152}
    s_mov_b32 s55, 0x20000
    s_mov_b32 s56, s12
    s_mov_b32 s57, s13
    s_mov_b32 s58, {576 * 1152}
    s_mov_b32 s59, 0x20000
    s_mov_b32 s64, s22
    s_mov_b32 s65, s23
    s_mov_b32 s66, 1152
    s_mov_b32 s67, 0x20000
    s_and_b32 {s_t1}, {s_j}, 1
    s_mul_i32 {s_t0}, {s_j}, 576
    s_xor_b32 {s_t2}, {s_t1}, 1
    s_lshl_b32 {s_t2}, {s_t2}, 9
    s_add_u32 {s_t0}, {s_t0}, {s_t2}
    s_add_u32 {s_whmax}, {s_t0}, {560 * 9216}
    s_mul_i32 {s_who}, {s_w}, {16 * 9216}
    s_add_u32 {s_who}, {s_who}, {s_t0}
    s_mul_i32 {s_t0}, {s_j}, {288 * 1152}
    s_mul_i32 {s_w2a}, {s_w}, {8 * 1152}
    s_add_u32 {s_w2a}, {s_w2a}, {s_t0}
    s_mul_i32 {s_t0}, {s_hf}, {(128 - 288 * 1152) & 0xFFFFFFFF:#x}
    s_add_u32 {s_w2b}, {s_w2a}, {s_t0}
    s_mul_i32 {s_t0}, {s_hf}, {108 * KB}
    s_sub_u32 {s_mb}, {s_m}, {s_t0}
    s_mul_i32 {s_t0}, {s_hf}, {144 * KB}
    s_sub_u32 {s_kb}, {s_m}, {s_t0}
    s_lshl_b32 {s_t0}, {s_tt}, 2
    s_add_u32 {s_t0}, {s_t0}, {s_p}
    s_mul_i32 {s_pst}, {s_t0}, {36 * 16384}
    s_lshl_b32 {s_t2}, {s_hf}, 15
    s_add_u32 {s_pst}, {s_pst}, {s_t2}
    s_lshl_b32 {s_t2}, {s_j}, 10
    s_add_u32 {s_pst}, {s_pst}, {s_t2}
    s_add_u32 {s_pst}, {s_pst}, {WS_P:#x}
    s_lshl_b32 {s_t0}, {s_t0}, 4
    s_add_u32 {s_t0}, {s_t0}, {s_j}
    s_lshl_b32 {s_t0}, {s_t0}, 1
    s_add_u32 {s_t0}, {s_t0}, {s_hf}
    s_mul_i32 {s_oun}, {s_t0}, 1280
    s_add_u32 {s_oun}, {s_oun}, {WS_O:#x}
    v_and_b32 {tok}, 15, v{LANE}
    v_bfe_u32 {r}, v{LANE}, 2, 2
    v_and_b32 {c4}, 3, v{LANE}
    v_lshlrev_b32 v{L16}, 4, v{LANE}
    v_mov_b32 v{C0}, {f32(GC0)}
    v_add_u32 v{AEXW}, {s_m}, v{L16}
    v_lshlrev_b32 v{AGATE}, 4, {g}
    s_add_u32 {s_t0}, {s_t1}, {s_hf}
    s_lshl_b32 {s_t0}, {s_t0}, 7
    v_add_u32 v{ABIAS}, {s_t0}, v{AGATE}
    s_xor_b32 {s_t0}, {s_t1}, 1
    s_lshl_b32 {s_t0}, {s_t0}, 4
    s_add_u32 {s_t0}, {s_t0}, {s_hf}
    s_lshl_b32 {s_t0}, {s_t0}, 6
    v_add_u32 v{ABH}, {s_t0}, v{AGATE}
    v_lshlrev_b32 {a}, 1, {g}
    v_xor_b32 {a}, {a}, {l7}
    v_lshl_add_u32 v{DW2}, {a}, 4, {bb}
    v_lshrrev_b32 {a}, 5, v{LANE}
    v_lshlrev_b32 {a}, 1, {a}
    v_xor_b32 {a}, {a}, {c4}
    v_lshrrev_b32 v{DWH}, 2, v{LANE}
    v_mul_u32_u24 v{DWH}, 9216, v{DWH}
    v_lshl_add_u32 v{DWH}, {a}, 4, v{DWH}""",
             f"""
    v_lshrrev_b32 {a}, 1, {tok}
    v_xor_b32 {a}, {a}, {g}
    v_lshlrev_b32 {a}, 4, {a}
    v_lshl_add_u32 {a}, {tok}, 7, {a}
    s_lshl_b32 {s_t0}, {s_p}, 1
    s_add_u32 {s_t0}, {s_t0}, {s_hf}
    s_lshl_b32 {s_t0}, {s_t0}, 11
    s_add_u32 {s_t0}, {s_t0}, {XREG[0]}
    v_add_u32 v{HOWN}, {s_t0}, {a}
    v_xor_b32 v{HOWN + 1}, 64, v{HOWN}
    v_xor_b32 v{HOWN + 2}, 0x800, v{HOWN}
    v_xor_b32 v{HOWN + 3}, 0x840, v{HOWN}""", [setbase(f"v{HOWN + i}", XREG[0]) for i in range(4)],
             f"""
    v_mov_b32 v{t + 12}, {l3}
    v_lshrrev_b32 {a}, 1, {r}
    v_and_b32 {l3}, 1, {g}
    v_lshl_add_u32 {l3}, {l3}, 1, {a}
    v_lshlrev_b32 {l3}, 5, {l3}
    v_lshl_add_u32 {l7}, {g}, 3, {r}
    v_lshlrev_b32 {w1}, 3, {c4}
    s_lshl_b32 {s_t0}, {s_hf}, 6
    v_add_u32 {a}, {s_t0}, {w1}
    v_xor_b32 {a}, {a}, {l3}
    v_lshl_add_u32 v{AW}, {l7}, 7, {a}
    v_xor_b32 v{AW + 1}, 32, v{AW}
    v_and_b32 {a}, 1, {g}
    v_xor_b32 {a}, {s_hf}, {a}
    v_lshl_add_u32 {a}, {a}, 5, {w1}
    v_lshl_add_u32 v{AWH}, {l7}, 6, {a}
    s_lshl_b32 {s_t0}, {s_t1}, 3
    v_add_u32 {a}, {s_t0}, {w1}
    v_xor_b32 v{AQ}, {a}, {l3}
    v_lshl_add_u32 v{AQ}, {l7}, 7, v{AQ}
    v_add_u32 {a}, 32, {a}
    v_xor_b32 v{AQ + 1}, {a}, {l3}
    v_lshl_add_u32 v{AQ + 1}, {l7}, 7, v{AQ + 1}
    v_add_u32 {a}, 72, {w1}
    s_add_u32 {s_t2}, {s_t0}, 64
    v_mov_b32 {bb}, {s_t2}
    v_cmp_eq_u32 vcc, 0, {c4}
    v_cndmask_b32 {a}, {a}, {bb}, vcc
    s_sub_u32 {s_t2}, 104, {s_t0}
    v_mov_b32 {bb}, {s_t2}
    v_cmp_eq_u32 vcc, 3, {c4}
    v_cndmask_b32 {a}, {a}, {bb}, vcc
    v_xor_b32 {a}, {a}, {l3}
    v_lshl_add_u32 v{AQ + 2}, {l7}, 7, {a}""",
             [setbase(f"v{x}", 0) for x in (AW, AW + 1, AWH, AQ, AQ + 1, AQ + 2, ABIAS, ABH, AGATE, AEXW)],
             f"""
    s_lshl_b32 {s_t0}, {s_w}, 3
    v_add_u32 {l7}, {s_t0}, v{t + 12}
    s_mul_i32 {s_t0}, {s_j}, 72
    s_and_b32 {s_t0}, {s_t0}, 0xfffffff0
    v_mul_u32_u24 {a}, 1152, {l7}
    v_lshl_add_u32 {a}, {cc}, 4, {a}
    v_add_u32 {a}, {s_t0}, {a}
    s_lshl_b32 {s_t0}, {s_t1}, 4
    v_mov_b32 {bb}, {s_t0}
    v_cmp_eq_u32 vcc, 5, {cc}
    v_cndmask_b32 {bb}, 20, {bb}, vcc
    v_mad_u32_u24 {bb}, {l7}, 36, {bb}
    s_bitcmp1_b32 {s_j}, 1
    s_cselect_b32 s8, s10, s8
    s_cselect_b32 s9, s11, s9
    v_cmp_gt_u32 vcc, 5, {cc}
    v_cndmask_b32 v{SQ}, {bb}, {a}, vcc
    v_mov_b32 v{SQ + 1}, 0
    v_mov_b32 {a}, s6
    v_mov_b32 {bb}, s8
    v_cndmask_b32 v{DQ}, {bb}, {a}, vcc
    v_mov_b32 {a}, s7
    v_mov_b32 {bb}, s9
    v_cndmask_b32 v{DQ + 1}, {bb}, {a}, vcc
    v_lshl_add_u64 {vr(DQ, 2)}, {vr(SQ, 2)}, 0, {vr(DQ, 2)}
    v_mov_b32 {a}, {64 * 1152}
    v_mov_b32 {bb}, {64 * 36}
    v_cndmask_b32 v{SQ}, {bb}, {a}, vcc
    s_mov_b32 s92, 0x10001000
    s_mov_b32 s93, 0x10001000
    v_lshlrev_b32 v{t + 14}, 16, v{t + 14}
    v_add_u32 v{t + 11}, {MISC}, v{t + 11}
    ds_write_b32 v{t + 11}, v{t + 14}
    ds_write_b32 v{t + 11}, v{t + 15} offset:2048"""]
        return p, q

    def pieces(self):
        P = []
        DX = HOWN + 4

        def add(code, tag, lo, nblk, use0, use1, extra=(), **kw):
            P.append(dict(code=code, tag=tag, blocks=set(range(lo // KB, lo // KB + nblk)) | set(extra),
                          use0=use0, use1=use1, **kw))

        def w1(n):
            r, c = divmod(n, 9)
            st = f"x{c}" if r == 0 else f"r{r}_{c // 3}"
            add([f"s_add_u32 m0, {s_m}, {ring(n)}", f"s_add_u32 {s_d0}, {s_w1o}, {64 * c * 9216 + 128 * r}",
                 I(f"buffer_load_dwordx4 v{DW1}, {sW1}, {s_d0} offen lds", tag=f"w{n}")], f"w{n}", ring(n), 8, st, st)

        for c in range(9):
            for a in range(2):
                lo = XREG[c % 5] + a * U
                add([f"s_add_u32 m0, {s_m}, {lo}", f"s_add_u32 {s_d0}, {s_xo}, {64 * a * 1152 + 128 * c}",
                     I(f"buffer_load_dwordx4 v{DX}, {sX}, {s_d0} offen lds", tag=f"x{c}{a}")],
                    f"x{c}{a}", lo, 8, f"x{c}", f"x{c}")
            w1(c)
        for n in range(9, 36):
            w1(n)
        for u in range(5):
            n = 36 + u
            st = "h0" if u < 2 else "h1"
            code = [f"s_add_u32 m0, {s_m}, {ring(n)}", f"s_add_u32 {s_d0}, {s_who}, {128 * u * 9216}"]
            if u == 4:
                code.append(f"s_min_u32 {s_d0}, {s_d0}, {s_whmax}")
            code.append(I(f"buffer_load_dwordx4 v{DWH}, {sW1}, {s_d0} offen lds", tag=f"w{n}"))
            add(code, f"w{n}", ring(n), 8, st, st)
        for c in range(9):
            n = 41 + c
            code = [f"s_add_u32 m0, {s_m}, {ring(n)}",
                    I(f"global_load_lds_dwordx4 {vr(DQ, 2)}, off", tag=f"w{n}")]
            if c < 8:
                code.append(f"v_lshl_add_u64 {vr(DQ, 2)}, {vr(SQ, 2)}, 0, {vr(DQ, 2)}")
            add(code, f"w{n}", ring(n), 8, f"q{c // 3}", f"q{c // 3}")
        for u in range(41):
            R, rb = divmod(8 * u, 36)
            pos = (8 * u) % 108
            wrap = rb == 32
            code = [f"s_add_u32 m0, {s_mb if pos == 104 else s_m}, {pos * KB}",
                    f"s_add_u32 {s_d0}, {s_w2b if wrap else s_w2a}, {8 * rb * 1152 + 128 * R}",
                    I(f"buffer_load_dwordx4 v{DW2}, {sW2}, {s_d0} offen lds", tag=f"g{u}")]
            if u == 40:
                code = self.cond(f"s_cmp_eq_u32 {s_hf}, 0", code)
                add(code, f"g{u}", pos * KB, 4, "g8", "g8")
            elif wrap:
                add(code, f"g{u}", pos * KB, 4, f"g{R}", f"g{R}" if R else "gx", size=1,
                    second=(set(range((pos + 4) % 108, (pos + 4) % 108 + 4)), f"g{R + 1}"))
            else:
                add(code, f"g{u}", pos * KB, 8, f"g{R}", f"g{R}" if R else "gx")
        for u in range(18):
            pos = (108 + 8 * u) % 144
            base = s_kb if pos == 140 else s_m
            code = [f"s_add_u32 m0, {base}, {pos * KB}", f"s_add_u32 {s_d0}, {base}, {WS_KV + pos * KB}",
                    I(f"buffer_load_dwordx4 v{L16}, {sWS}, {s_d0} offen sc1 lds", tag=f"kv{u}")]
            first = "a0" if 8 * u < 9 * math.ceil((self.o["b1tile"] + 2) / 4) else "a1"
            P.append(dict(code=code, tag=f"kv{u}", blocks={(pos + i) % 144 for i in range(8)}, use0=first, use1="end",
                          notbefore=f"g{self.o['kvpoll'] + 1}"))
        return P

    def plan(self, steps, P, others):
        idx = {s: i for i, s in enumerate(steps)}
        users = []
        for q in P:
            users.append((q["blocks"], idx[q["use0"]], idx[q["use1"]]))
            if "second" in q:
                users.append((q["second"][0], idx[q["second"][1]], idx[q["second"][1]]))
        for lo, n, a, b in others:
            users.append((set(range(lo // KB, (lo + n + KB - 1) // KB)), idx[a], idx[b]))
        for i, (bl, a, b) in enumerate(users):
            for bl2, a2, b2 in users[:i]:
                assert not (bl & bl2) or b < a2 or b2 < a, ("LDS overlap", steps[a], steps[a2], sorted(bl & bl2))

        def earliest(bl, a):
            return max([b2 + 1 for bl2, a2, b2 in users if bl & bl2 and b2 < a], default=-1)

        cur = -1
        for k, q in enumerate(P):
            e = earliest(q["blocks"], idx[q["use0"]])
            if "second" in q:
                e = max(e, earliest(q["second"][0], idx[q["second"][1]]))
            if "notbefore" in q:
                e = max(e, idx[q["notbefore"]])
            cur = max(cur, e)
            while True:
                ahead = sum(1 for z in P[:k] if idx[z["use0"]] > cur and not z["tag"].startswith("kv"))
                lim = self.o["burst"] if cur < idx["x5"] else self.o["lead"]
                here = sum(1 for z in P[:k] if z["issue"] == cur)
                if q["tag"].startswith("kv"):
                    if here < 7 or cur >= idx["a0"]:
                        break
                elif ahead < lim:
                    break
                cur += 1
            q["issue"] = cur
            assert cur < idx[q["use0"]], (q["tag"], steps[cur])
        for q in P:
            bl = q["blocks"] | (q["second"][0] if "second" in q else set())
            for lo, n, a, b in others:
                o = set(range(lo // KB, (lo + n + KB - 1) // KB))
                if bl & o and idx[a] <= idx[q["use0"]]:
                    assert idx[b] < q["issue"], (q["tag"], a, b)

    def gelu_quad(self, src, dst):
        o = []
        tt = [f"v{TMP + i}" for i in range(4)]
        xs = [f"v{src + i}" for i in range(4)]
        for h in (0, 2):
            pr = list(zip(tt[h:h + 2], xs[h:h + 2]))
            o += [f"v_mul_f32 {t}, {x}, {x}" for t, x in pr]
            o += [f"v_fmamk_f32 {t}, {t}, {f32(GC1)}, v{C0}" for t, x in pr]
            o += [f"v_mul_f32 {t}, {t}, {x}" for t, x in pr]
            o += [f"v_exp_f32 {t}, {t}" for t, x in pr]
            o += [f"v_add_f32 {t}, 1.0, {t}" for t, x in pr]
            o += [f"v_rcp_f32 {t}, {t}" for t, x in pr]
            o += [f"v_mul_f32 {t}, {t}, {x}" for t, x in pr]
            o.append(f"v_cvt_pk_bf16_f32 v{dst + h // 2}, {pr[0][0]}, {pr[1][0]}")
        return o

    def bias(self, r, tt2, t):
        if r < 4:
            return ds(f"ds_read_b128 {vr(ACC + 16 * (r & 1) + 8 * tt2 + 4 * t, 4)}, v{ABIAS}", L_B1 + 256 * r + 64 * tt2)
        return ds(f"ds_read_b128 {vr(ACC + 4 * t, 4)}, v{ABH}", L_B1)

    def q_epilogue(self):
        a0, a1, a2 = ACC + 8, ACC + 12, AQ2
        tok, g, row, sc, aS = (f"v{56 + i}" for i in range(5))
        x0, x1 = "v61", "v62"
        o = [f"""
    v_and_b32 {tok}, 15, v{LANE}
    v_lshrrev_b32 {g}, 4, v{LANE}
    s_mul_i32 {s_t0}, {s_w}, 1536
    s_add_u32 {s_t0}, {s_t0}, {QSCR}
    v_mul_u32_u24 {row}, 96, {tok}
    v_add_u32 {row}, {s_t0}, {row}
    v_lshl_add_u32 {aS}, {g}, 3, {row}
    v_mov_b32 {sc}, {f32(QSCALE)}"""]
        o += [f"v_mul_f32 v{a0 + i}, v{a0 + i}, {sc}" for i in range(8)]
        o += [f"v_cmp_eq_u32 vcc, 0, {g}"]
        o += [f"v_cvt_pk_bf16_f32 v{T + 2 + i}, v{a0 + 2 * i}, v{a0 + 2 * i + 1}" for i in range(4)]
        o += [f"v_cndmask_b32 {sc}, 1.0, {sc}, vcc"]
        o += [f"v_mul_f32 v{a2 + i}, v{a2 + i}, {sc}" for i in range(4)]
        o += [f"v_cvt_pk_bf16_f32 v{T + 6 + i}, v{a2 + 2 * i}, v{a2 + 2 * i + 1}" for i in range(2)]
        o += [f"""
    ds_write_b64 {aS}, {vr(T + 2, 2)}
    ds_write_b64 {aS}, {vr(T + 4, 2)} offset:32
    ds_write_b64 {aS}, {vr(T + 6, 2)} offset:64
    v_and_b32 {x0}, 1, {g}
    v_mad_u32_u24 {x0}, {x0}, 36, {row}
    v_lshrrev_b32 {x1}, 1, {g}
    v_lshl_add_u32 {x1}, {x1}, 4, {x0}
    ds_read2_b32 {vr(QM, 2)}, {x1} offset0:0 offset1:1
    ds_read2_b32 {vr(QM + 2, 2)}, {x1} offset0:2 offset1:3
    ds_read_b32 v{QRA}, {x0} offset:32
    v_mul_f32 v{T + 8}, {f32(-LOG2E)}, v{a2}
    v_exp_f32 v{T + 8}, v{T + 8}
    s_lshl_b32 {s_t0}, {s_p}, 1
    s_add_u32 {s_t0}, {s_t0}, {s_hf}
    s_lshl_b32 {s_t0}, {s_t0}, 6
    s_add_u32 {s_t0}, {s_t0}, {L_GT}
    v_add_f32 v{T + 8}, 1.0, v{T + 8}
    v_rcp_f32 v{T + 8}, v{T + 8}
    v_lshl_add_u32 v{T + 9}, {tok}, 2, {s_t0}""",
              ["s_mov_b32 exec_lo, 0", "s_mov_b32 exec_hi, 0xffff0000", f"ds_write_b32 v{T + 9}, v{T + 8}",
               "s_mov_b64 exec, -1"],
              f"""
    v_mov_b32 v{QN2}, 0
    v_dot2_f32_bf16 v{QN2}, v{QM}, v{QM}, v{QN2}
    v_dot2_f32_bf16 v{QN2}, v{QM + 1}, v{QM + 1}, v{QN2}
    v_dot2_f32_bf16 v{QN2}, v{QM + 2}, v{QM + 2}, v{QN2}
    v_dot2_f32_bf16 v{QN2}, v{QM + 3}, v{QM + 3}, v{QN2}
    v_mov_b32 v{T + 10}, v{QN2}
    v_permlane32_swap_b32 v{T + 10}, v{QN2}
    v_add_f32 v{QN2}, v{QN2}, v{T + 10}
    v_dot2_f32_bf16 v{QN2}, v{QRA}, v{QRA}, v{QN2}
    v_cmp_gt_u32 vcc, 32, v{LANE}
    v_mov_b32 v{T + 10}, 0
    v_cndmask_b32 v{QRB}, v{QRA}, v{T + 10}, vcc
    v_cndmask_b32 v{QRA}, 0, v{QRA}, vcc"""]
        kblk = [f"""
    ds_read_b64 {vr(T + 10, 2)}, {row} offset:72
    ds_read_b64 {vr(T + 12, 2)}, {row} offset:80
    ds_read_b32 v{T + 14}, {row} offset:92
    s_mul_i32 {s_t0}, {s_tt}, 9216
    s_lshl_b32 {s_t1}, {s_p}, 1
    s_add_u32 {s_t1}, {s_t1}, {s_j}
    s_lshl_b32 {s_t1}, {s_t1}, 1
    s_add_u32 {s_t1}, {s_t1}, {s_hf}
    s_lshl_b32 {s_t1}, {s_t1}, 8
    s_add_u32 {s_t1}, {s_t1}, {s_t0}
    v_lshlrev_b32 {x0}, 3, {g}
    v_lshl_add_u32 {x0}, {tok}, 4, {x0}
    v_subrev_u32 {x0}, 8, {x0}
    s_mov_b32 exec_lo, 0xffff0000
    s_mov_b32 exec_hi, 0x0000ffff""",
                I(f"buffer_store_dwordx2 {vr(T + 6, 2)}, {x0}, {sWS}, {s_t1} offen sc1", tag="kvst"),
                "s_mov_b64 exec, -1",
                self.cond(f"s_cmp_eq_u32 {s_j}, 0", [f"""
    s_lshl_b32 {s_t1}, {s_p}, 1
    s_add_u32 {s_t1}, {s_t1}, {s_hf}
    s_lshl_b32 {s_t1}, {s_t1}, 6
    s_add_u32 {s_t1}, {s_t1}, {s_t0}
    s_add_u32 {s_t1}, {s_t1}, 8704
    v_lshlrev_b32 {x0}, 2, {tok}
    s_mov_b32 exec_lo, 0
    s_mov_b32 exec_hi, 0xffff0000""",
                    I(f"buffer_store_dword v{T + 7}, {x0}, {sWS}, {s_t1} offen sc1", tag="kvst"),
                    "s_mov_b64 exec, -1"]),
                f"""
    s_sub_u32 {s_t1}, {s_j}, 1
    v_and_b32 v{T + 14}, {s_t1}, v{T + 14}
    v_mov_b32 {x1}, 0"""]
        kblk += [f"v_dot2_f32_bf16 {x1}, v{T + 10 + i}, v{T + 10 + i}, {x1}" for i in range(5)]
        kblk += [f"v_max_f32_dpp {x1}, {x1}, {x1} row_ror:{n} row_mask:0xf bank_mask:0xf" for n in (8, 4, 2, 1)]
        kblk += [f"""
    s_lshl_b32 {s_t1}, {s_j}, 4
    s_add_u32 {s_t1}, {s_t1}, {s_tt}
    s_lshl_b32 {s_t1}, {s_t1}, 3
    s_add_u32 {s_t1}, {s_t1}, {s_w}
    s_lshl_b32 {s_t1}, {s_t1}, 2
    s_add_u32 {s_t1}, {s_t1}, {WS_KN}
    s_mov_b64 exec, 1""",
                 I(f"buffer_store_dword {x1}, v{L16}, {sWS}, {s_t1} offen sc1", tag="kvst"),
                 "s_mov_b64 exec, -1"]
        vblk = [f"""
    s_mul_i32 {s_t0}, {s_w}, 1536
    s_add_u32 {s_t0}, {s_t0}, {QSCR + 72}
    v_and_b32 {x0}, 3, v{LANE}
    v_min_u32 {x0}, 2, {x0}
    v_lshl_add_u32 {x0}, {x0}, 3, {s_t0}
    v_lshrrev_b32 {x1}, 2, v{LANE}
    v_mul_u32_u24 {x1}, 96, {x1}
    v_add_u32 {x0}, {x0}, {x1}
    ds_read_b64_tr_b16 {vr(T + 10, 2)}, {x0}
    s_and_b32 {s_t1}, {s_j}, 1
    s_lshl_b32 {s_t0}, {s_t1}, 3
    v_add_u32 {x0}, {s_t0}, {tok}
    v_add_u32 {x1}, 6, {tok}
    v_cmp_gt_u32 vcc, 8, {tok}
    v_cndmask_b32 {x0}, {x1}, {x0}, vcc
    v_and_b32 {x1}, 1, {g}
    v_lshlrev_b32 {x1}, 3, {x1}
    v_lshl_add_u32 {x0}, {x0}, 4, {x1}
    v_lshrrev_b32 {x1}, 1, {g}
    v_mul_u32_u24 {x1}, 288, {x1}
    v_add_u32 {x0}, {x0}, {x1}
    s_mul_i32 {s_t0}, {s_tt}, 9216
    s_lshl_b32 {s_t2}, {s_p}, 1
    s_add_u32 {s_t2}, {s_t2}, {s_hf}
    s_mul_i32 {s_t2}, {s_t2}, 576
    s_add_u32 {s_t0}, {s_t0}, {s_t2}
    s_add_u32 {s_t0}, {s_t0}, {WS_KV + 4096}
    s_mov_b32 {s_t2}, 0x0cff0cff
    s_cmp_eq_u32 {s_t1}, 0
    s_cselect_b32 {s_t2}, {s_t2}, 0x00ff00ff
    s_mov_b32 exec_lo, {s_t2}
    s_mov_b32 exec_hi, {s_t2}""",
                I(f"buffer_store_dwordx2 {vr(T + 10, 2)}, {x0}, {sWS}, {s_t0} offen sc1", tag="kvst"),
                "s_mov_b64 exec, -1"]
        tail = [self.cond(f"s_cmp_lt_u32 {s_j}, 2", kblk),
                [f"s_lshr_b32 {s_t0}, {s_j}, 1", self.cond(f"s_cmp_eq_u32 {s_t0}, 1", vblk)]]
        return o, tail

    def wo_job(self):
        x0, x1, x2 = f"v{T}", f"v{T + 1}", f"v{T + 2}"
        sel = f"""
    s_cmp_lt_u32 {s_j}, 9
    s_cselect_b32 {s_t0}, 11, 9
    s_cmp_lt_u32 {s_tt}, {s_t0}
    s_cselect_b32 {s_t0}, 1, 0
    s_andn2_b32 {s_t0}, {s_t0}, {s_hf}"""
        main = f"""
    v_lshrrev_b32 {x0}, 5, v{LANE}
    v_bfe_u32 {x1}, v{LANE}, 3, 2
    v_mad_u32_u24 {x0}, {x0}, 18, {x1}
    s_mul_i32 {s_t0}, {s_j}, 36
    s_lshl_b32 {s_t1}, {s_w}, 2
    s_add_u32 {s_t0}, {s_t0}, {s_t1}
    s_mul_i32 {s_t0}, {s_t0}, 1152
    s_lshl_b32 {s_t1}, {s_tt}, 7
    s_add_u32 {s_d1}, {s_t0}, {s_t1}"""
        rest = f"""
    v_lshrrev_b32 {x0}, 5, v{LANE}
    v_bfe_u32 {x1}, v{LANE}, 4, 1
    v_lshl_add_u32 {x0}, {x0}, 2, {x1}
    v_bfe_u32 {x1}, v{LANE}, 3, 1
    v_mad_u32_u24 {x0}, {x0}, 18, {x1}
    s_sub_u32 {s_t0}, {s_tt}, 9
    s_lshl_b32 {s_t0}, {s_t0}, 1
    s_and_b32 {s_t1}, {s_w}, 1
    s_add_u32 {s_t0}, {s_t0}, {s_t1}
    s_lshl_b32 {s_t0}, {s_t0}, 3
    s_and_b32 {s_t1}, {s_w}, 2
    s_add_u32 {s_t0}, {s_t0}, {s_t1}
    s_mul_i32 {s_t0}, {s_t0}, 18
    s_add_u32 {s_t0}, {s_t0}, 16
    s_mul_i32 {s_t0}, {s_t0}, 1152
    s_lshl_b32 {s_t1}, {s_j}, 7
    s_add_u32 {s_d1}, {s_t0}, {s_t1}"""
        part1 = [sel, self.cond(f"s_cmp_eq_u32 {s_t0}, 1", [
            main, self.cond(f"s_cmp_ge_u32 {s_tt}, 9", [rest]), f"""
    v_lshrrev_b32 {x1}, 4, v{LANE}
    v_lshlrev_b32 {x1}, 1, {x1}
    v_and_b32 {x2}, 7, v{LANE}
    v_xor_b32 {x1}, {x1}, {x2}
    v_mul_u32_u24 {x0}, 1152, {x0}
    v_lshl_add_u32 {x0}, {x1}, 4, {x0}
    s_add_u32 m0, {s_m}, {WOSCR}""",
            I(f"buffer_load_dwordx4 {x0}, {sWO}, {s_d1} offen lds", tag="wodma")])]
        part2 = [sel, self.cond(f"s_cmp_eq_u32 {s_t0}, 1", [f"""
    v_bfe_u32 {x0}, v{LANE}, 3, 2
    v_xor_b32 {x0}, {s_w}, {x0}
    v_lshlrev_b32 {x0}, 5, {x0}
    v_and_b32 {x1}, 3, v{LANE}
    v_lshl_add_u32 {x0}, {x1}, 3, {x0}
    v_lshrrev_b32 {x1}, 2, v{LANE}
    v_lshl_add_u32 {x0}, {x1}, 7, {x0}
    v_add_u32 {x0}, {WOSCR}, {x0}
    ds_read_b64_tr_b16 {vr(T + 4, 2)}, {x0}
    ds_read_b64_tr_b16 {vr(T + 6, 2)}, {x0} offset:2048
    s_add_u32 {s_t0}, {s_tt}, 7
    s_cmp_ge_u32 {s_tt}, 9
    s_cselect_b32 {s_t0}, {s_t0}, {s_j}
    s_cselect_b32 {s_t1}, {s_j}, {s_tt}
    s_lshl_b32 {s_t1}, {s_t1}, 2
    s_add_u32 {s_t1}, {s_t1}, {s_w}
    s_mul_i32 {s_t1}, {s_t1}, 18
    s_add_u32 {s_t0}, {s_t0}, {s_t1}
    s_lshl_b32 {s_t0}, {s_t0}, 10
    s_add_u32 {s_t0}, {s_t0}, {WS_WO:#x}""",
            I(f"buffer_store_dwordx4 {vr(T + 4, 4)}, v{L16}, {sWS}, {s_t0} offen sc1", tag="wost")])]
        return part1, part2

    def signal(self, cmp, soff):
        return self.cond(cmp, [f"v_mov_b32 v{TMP}, 1", "s_mov_b64 exec, 1",
                               I(f"buffer_atomic_add v{TMP}, v{L16}, {sDBG}, {soff} offen"), "s_mov_b64 exec, -1"])

    def shift_setup(self):
        x = f"v{T}"
        o = [f"v_max3_f32 {x}, {x}, v{T + 1}, v{T + 2}", f"v_max_f32 {x}, {x}, v{T + 3}"]
        o += [f"v_max_f32_dpp {x}, {x}, {x} row_ror:{n} row_mask:0xf bank_mask:0xf" for n in (8, 4, 2, 1)]
        o += [[f"""
    v_readlane_b32 {s_t0}, {x}, 0
    v_readlane_b32 {s_t1}, {x}, 16
    v_readlane_b32 {s_t2}, {x}, 32
    v_readlane_b32 {s_d1}, {x}, 48
    s_max_u32 {s_t0}, {s_t0}, {s_t1}
    s_max_u32 {s_t2}, {s_t2}, {s_d1}
    v_mov_b32 {x}, {s_t0}
    v_add_f32 {x}, {s_t2}, {x}"""], f"""
    v_mul_f32 {x}, {x}, v{QN2}
    v_sqrt_f32 {x}, {x}
    v_mov_b32 v{T + 1}, {f32(0.01)}
    v_fmamk_f32 {x}, {x}, {f32(1.02)}, v{T + 1}
    v_mov_b32 v{T + 1}, {f32(self.o['thr'] if not self.o['force_slow'] else -1.0)}
    v_cmp_nle_f32 {s_slow}, {x}, v{T + 1}
    v_mov_b32 v{T + 1}, 0
    v_cvt_pk_bf16_f32 {x}, -{x}, v{T + 1}
    v_cmp_gt_u32 vcc, 32, v{LANE}
    v_cndmask_b32 v{QRA + 1}, 0, {x}, vcc
    v_cndmask_b32 v{QRB + 1}, {x}, v{T + 1}, vcc
    v_mov_b32 v{KR + 1}, 0x3f80
    v_mov_b32 v{IDX}, 0xdddddddd
    v_and_b32 {x}, 27, v{LANE}
    v_cmp_eq_u32 vcc, 18, {x}
    v_mov_b32 {x}, 0x3f803f80"""]
        o += [f"v_cndmask_b32 v{VA + i}, 0, {x}, vcc" for i in range(8)]
        o += [f"""
    v_mov_b32 v{AK}, v{L16}
    v_lshlrev_b32 v{AR}, 2, v{LANE}
    v_and_b32 {x}, 31, v{LANE}
    v_lshrrev_b32 v{AV}, 5, v{LANE}
    v_mul_u32_u24 v{AV}, 288, v{AV}
    v_lshl_add_u32 v{AV}, {x}, 4, v{AV}
    s_mov_b32 s92, 0x3ffff
    s_mov_b32 s93, 0x3ffff""", [setbase(f"v{AK}"), setbase(f"v{AV}"), setbase(f"v{AR}")]]
        return o

    def ffn(self):
        o = self.o
        ops = []

        def tr(buf, i, areg, off):
            return ds(f"ds_read_b64_tr_b16 {vr(buf + 2 * i, 2)}, v{areg}", off)

        nring = [0]

        def nb():
            nring[0] += 1
            return ABUF + 4 * ((nring[0] - 1) % 4)

        for r in range(4):
            for ks in range(18):
                for tt2 in range(2):
                    buf = nb()
                    base = ring(9 * r + ks // 2) + 4096 * (ks & 1)
                    op = dict(buf=buf, rd=[tr(buf, i, AW + tt2, base + 512 * i) for i in range(2)],
                              mf=[mf16(ACC + 16 * (r & 1) + 8 * tt2 + 4 * t, buf, X(ks, t)) for t in range(2)],
                              name=("r", r, ks, tt2), rate=1)
                    if tt2 == 0 and r == 0 and ks % 2 == 0:
                        c = ks // 2
                        op["step"] = f"x{c}"
                        op["pre"] = [ds(f"ds_read_b128 {vr(X(ks + k, t), 4)}, v{HOWN + 2 * t + k}", XREG[c % 5])
                                     for k in range(2) for t in range(2)]
                        if c < 2:
                            op["pre"] = [self.bias(c, a, t) for a in range(2) for t in range(2)] + op["pre"]
                    if tt2 == 0 and r > 0 and ks % 6 == 0:
                        op["step"] = f"r{r}_{ks // 6}"
                    ops.append(op)
        h0 = len(ops)
        for ks in range(18):
            buf = nb()
            base = ring(36 + ks // 4) + 2048 * (ks & 3)
            op = dict(buf=buf, rd=[tr(buf, i, AWH, base + 256 * i) for i in range(2)],
                      mf=[mf16(ACC + 4 * t, buf, X(ks, t)) for t in range(2)], name=("h", 0, ks, 0), rate=1)
            if ks in (0, 8):
                op["step"] = f"h{ks // 8}"
            ops.append(op)
        n = 0
        for ks in range(18):
            for a in range(3):
                buf = RQBUF + 4 * (n % 9)
                base = ring(41 + ks // 2) + 4096 * (ks & 1)
                rd = [tr(buf, i, AQ + a, base + 512 * i) for i in range(2)]
                if a == 2:
                    rd[1] = [rd[1], f"s_mov_b64 exec, {s_msk}",
                             ds(f"ds_read_b128 {vr(buf, 4)}, v{AGATE}", L_GATE + 64 * ks), "s_mov_b64 exec, -1"]
                d = (ACC + 8, ACC + 12, AQ2)[a]
                op = dict(buf=buf, rd=rd, mf=[mf16(d, buf, X(ks, 0), "0" if ks == 0 else None)],
                          name=("q", 0, ks, a), rate=2, after=h0 + 14 if n < 9 else 0)
                if a == 0 and ks % 6 == 0:
                    op["step"] = f"q{ks // 6}"
                ops.append(op)
                n += 1
        g0 = len(ops)
        for R in range(9):
            for s in range(9):
                for tt2 in range(2):
                    buf = nb()
                    base = 36 * KB * (R % 3)
                    if s < 8:
                        rd = [tr(buf, i, GADDR + 2 * (s // 4) + tt2, base + 8192 * (s % 4) + 2048 * i) for i in range(2)]
                        hb = (HOWN, HOTH)[s // 4] + 8 * (s % 4)
                    else:
                        rd = [tr(buf, i, GADDR + 4 + 2 * i + tt2, base) for i in range(2)]
                        hb = HH
                    for x in rd:
                        x.rebase_to = base
                    op = dict(buf=buf, rd=rd, name=("g", R, s, tt2), rate=1, after=g0 - 6 if R == 0 else 0,
                              mf=[mf16(GACC + 16 * (R & 1) + 8 * tt2 + 4 * t, buf, hb + 4 * t, "0" if s == 0 else None)
                                  for t in range(2)])
                    if s == 0 and tt2 == 0:
                        op["step"] = f"g{R}"
                    if R == 0 and 2 * s + tt2 == o["gx"]:
                        op["step"] = "gx"
                    ops.append(op)

        G = [dict(m=[], mem=[], valu=[])]
        bar, first = {}, {}
        last_user = {}
        prev = []
        for k, op in enumerate(ops):
            prev.append(last_user.get(op["buf"], -1))
            last_user[op["buf"]] = k
        ro, rr = 0, 0

        def issue_one():
            nonlocal ro, rr
            op = ops[ro]
            if rr == 0 and "step" in op:
                b = barrier()
                bar[op["step"]] = (len(G) - 1, b)
                G[-1]["mem"].append(b)
            if rr == 0:
                G[-1]["mem"] += op.get("pre", [])
            G[-1]["mem"].append(op["rd"][rr])
            rr += 1
            if rr == len(op["rd"]):
                ro, rr = ro + 1, 0

        while ro < 3:
            issue_one()
        for k, op in enumerate(ops):
            while ro <= k:
                issue_one()
            first[op["name"]] = len(G)
            for mi, m in enumerate(op["mf"]):
                G.append(dict(m=[m], mem=[], valu=[]))
                done = k if mi == len(op["mf"]) - 1 else k - 1
                cnt = 0
                while ro < len(ops) and cnt < max(op["rate"], ops[ro]["rate"]) and prev[ro] <= k - 1 + (op["rate"] > 1) \
                        and prev[ro] <= done + 0 and ops[ro].get("after", -1) <= done:
                    issue_one()
                    cnt += 1
        NG = len(G)

        def spread(items, lo, hi, key="valu"):
            items = [x for e in items for x in (e.strip().split("\n") if isinstance(e, str) else [e])]
            assert lo < hi <= NG, (lo, hi)
            for i, it in enumerate(items):
                G[lo + (i * (hi - lo)) // len(items)][key].append(it)

        steps = [s for s, _ in sorted(bar.items(), key=lambda kv: kv[1][0])] + ["a0", "a1", "end"]
        B = {s: v[0] for s, v in bar.items()}
        B["a0"] = NG

        def stepof(gi):
            return [s for s in steps[:-3] if B[s] <= gi][-1]

        others = []
        for r in range(4):
            items = []
            for t in range(2):
                for tt2 in range(2):
                    items += self.gelu_quad(ACC + 16 * (r & 1) + 8 * tt2 + 4 * t, HOWN + 8 * r + 4 * t + 2 * tt2)
                    if r < 2 or (r == 2 and tt2 == 0):
                        items.append(self.bias(r + 2, tt2, t))
                if r < 3:
                    items.append(ds(f"ds_write_b128 v{AEXW}, {vr(HOWN + 8 * r + 4 * t, 4)}", EX1 + U * (2 * r + t)))
            if r < 3:
                lo = first[("r", r + 1, 0, 0)] + 3
                hi = (first[("r", r + 2, 0, 0)] if r < 2 else first[("h", 0, 0, 0)]) - 4
                others.append((EX1 + 2 * U * r, 2 * U, stepof(lo), "q0"))
            else:
                lo, hi = first[("h", 0, 0, 0)] + 3, B["q2"] - 3
            spread(items, lo, hi)
        q0 = first[("q", 0, 0, 0)]
        assert q0 + 1 < B["q1"] - 1
        spread([f"v_xor_b32 v{AEXR}, 0x1000, v{AEXW}", self.copybase(AEXR, AEXW)], q0 - 2, q0 - 1)
        spread([ds(f"ds_read_b128 {vr(HOTH + 8 * r + 4 * t, 4)}, v{AEXR}", EX1 + U * (2 * r + 1 - t))
                for r in range(3) for t in range(2)], q0, B["q1"], "mem")
        spread([ds(f"ds_write_b128 v{AEXW}, {vr(HOWN + 24 + 4 * t, 4)}", EX2 + U * t) for t in range(2)],
               B["q2"] - 3, B["q2"] - 1)
        assert B["q2"] - 3 > B["q1"]
        spread([ds(f"ds_read_b128 {vr(HOTH + 24 + 4 * t, 4)}, v{AEXR}", EX2 + U * (1 - t)) for t in range(2)],
               B["q2"] + 1, B["q2"] + 3, "mem")
        others.append((EX2, 2 * U, "q1", "q2"))
        a, bb, cc = f"v{GACC}", f"v{GACC + 1}", f"v{GACC + 2}"
        ga = [f"""
    v_bfe_u32 {a}, v{LANE}, 3, 2
    s_lshl_b32 {s_t0}, {s_hf}, 1
    v_xor_b32 {a}, {s_t0}, {a}
    v_lshlrev_b32 {a}, 5, {a}
    v_and_b32 {bb}, 3, v{LANE}
    v_lshl_add_u32 {a}, {bb}, 3, {a}
    v_lshrrev_b32 {bb}, 2, v{LANE}
    v_lshl_add_u32 {a}, {bb}, 7, {a}
    v_xor_b32 {bb}, 32, {a}
    s_and_b32 {s_t1}, {s_j}, 1
    s_add_u32 {s_t0}, {s_t1}, {s_hf}
    s_lshl_b32 {s_t0}, {s_t0}, 12
    v_add_u32 v{GADDR}, {s_t0}, {a}
    v_add_u32 v{GADDR + 1}, {s_t0}, {bb}
    s_sub_u32 {s_t0}, {s_t1}, {s_hf}
    s_add_u32 {s_t0}, {s_t0}, 1
    s_lshl_b32 {s_t0}, {s_t0}, 12
    v_add_u32 v{GADDR + 2}, {s_t0}, {a}
    v_add_u32 v{GADDR + 3}, {s_t0}, {bb}
    s_xor_b32 {s_t1}, {s_t1}, 1
    s_lshl_b32 {s_t1}, {s_t1}, 4
    s_add_u32 {s_t0}, {s_t1}, {s_hf}
    s_lshl_b32 {s_t0}, {s_t0}, 11
    v_add_u32 v{GADDR + 4}, {s_t0}, {a}
    v_add_u32 v{GADDR + 5}, {s_t0}, {bb}
    v_xor_b32 v{GADDR + 6}, 0x800, v{GADDR + 4}
    v_xor_b32 v{GADDR + 7}, 0x800, v{GADDR + 5}""", [setbase(f"v{GADDR + i}") for i in range(8)]]
        spread(ga, max(first[("q", 0, 3, 0)], B["q2"] - 2), B["g0"])
        items = []
        for t in range(2):
            items += self.gelu_quad(ACC + 4 * t, HH + 4 * t)
            items.append(ds(f"ds_write_b64 v{AEXW}, {vr(HH + 4 * t, 2)}", EX2H + 8 * t))
        spread(items, B["q2"] - 1, B["gx"] - 1)
        spread([ds(f"ds_read_b64 {vr(HH + 4 * t + 2, 2)}, v{AEXR}", EX2H + 8 * (1 - t)) for t in range(2)],
               B["gx"] + 1, B["gx"] + 3, "mem")
        others.append((EX2H, U, "q1", "gx"))
        qe, qtail = self.q_epilogue()
        lo = max(B["gx"], first[("g", 0, 1, 0)])
        mid = first[("g", 1, 3, 0)]
        spread(qe, lo, mid)
        spread(qtail, mid, mid + 2)
        assert mid + 2 < B["g2"]
        others.append((QSCR, 12 * KB, "gx", "g1"))
        epi = []
        for R in range(9):
            items = []
            for tt2 in range(2):
                d = GP + 8 * (R & 1) + 4 * tt2
                s = GACC + 16 * (R & 1) + 8 * tt2
                items += [f"v_cvt_pk_bf16_f32 v{d + i}, v{s + 2 * i}, v{s + 2 * i + 1}" for i in range(4)]
                items.append([f"s_add_u32 {s_d1}, {s_pst}, {(4 * R + tt2) * 16384}",
                              I(f"buffer_store_dwordx4 {vr(d, 4)}, v{L16}, {sWS}, {s_d1} offen {o['pst']}", tag="pst")])
            if R < 8:
                f = first[("g", R + 1, 0, 0)]
                spread(items, f + 16, f + 32)
            else:
                epi = items
        spread([[f"v_mov_b32 v{GP + 8}, 0", "s_mov_b64 exec, 1",
                 I(f"buffer_store_dword v{GP + 8}, v{L16}, {sWS}, {s_oun} offen offset:1152 sc1", tag="frst"),
                 "s_mov_b64 exec, -1"]], first[("g", 0, 1, 0)], first[("g", 0, 1, 0)] + 1)
        w1, w2 = self.wo_job()
        spread([w1], B["g2"] + 6, B["g2"] + 7)
        spread([w2], B["g5"] + 6, B["g5"] + 7)
        others.append((WOSCR, 4 * KB, "g2", "g5"))
        extra = {"g5": ["wodma"], f"g{o['kvsig']}": ["kvst"]}
        sg = B[f"g{o['kvsig']}"]
        spread([[f"s_lshr_b32 {s_t0}, {s_j}, 2", f"s_or_b32 {s_t0}, {s_t0}, {s_w}",
                 self.signal(f"s_cmp_eq_u32 {s_t0}, 0", "0")]], sg + 1, sg + 2)
        pl = B[f"g{o['kvpoll']}"]
        load = f"buffer_load_dword v{T + 8}, v{T + 9}, {sDBG}, 0 offen sc1"
        spread([[f"v_mov_b32 v{T + 9}, 0", load]], pl + 1, pl + 2)
        nx = B[f"g{o['kvpoll'] + 1}"]
        spread([self.spin(load, T + 8, f"v_cmp_ne_u32 vcc, 64, v{T + 8}")], nx - 2, nx - 1)
        spread([[f"s_mov_b32 {s_d1}, {WS_KN}",
                 I(f"buffer_load_dwordx4 {vr(T, 4)}, v{L16}, {sWS}, {s_d1} offen sc1")]], B["g6"] + 1, B["g6"] + 2)
        spread(self.shift_setup(), B["g8"] - 6, B["g8"] + 18)

        P = self.pieces()
        self.plan(steps, P, others)
        pre_dma, a0_dma = [], []
        for si in range(-1, len(steps)):
            mine = [q["code"] for q in P if q["issue"] == si]
            if not mine:
                continue
            if si < 0:
                pre_dma = mine
            elif steps[si] == "a0":
                a0_dma = mine
            else:
                spread(mine, B[steps[si]] + 1, B[steps[si + 1]], "mem")
        for s, (gi, b) in bar.items():
            b.need = [q["tag"] for q in P if q["use0"] == s] + extra.get(s, [])
        self.need_a0 = [q["tag"] for q in P if q["use0"] == "a0"]
        self.need_a1 = [q["tag"] for q in P if q["use0"] == "a1"]
        self.planinfo = [(q["tag"], steps[q["issue"]] if q["issue"] >= 0 else "pre", q["use0"]) for q in P]
        for nm, s in (("x0", "x0"), ("r1", "r1_0"), ("r2", "r2_0"), ("h", "h0"), ("g0", "g0"), ("g4", "g4")):
            i = G[B[s]]["mem"].index(bar[s][1])
            G[B[s]]["mem"][i + 1:i + 1] = self.ts(nm)
        body = [[g["m"], g["mem"], g["valu"]] for g in G]
        return pre_dma, body, a0_dma, epi

    def copybase(self, dst, src):
        i = I("", pseudo="copybase")
        i.dst, i.src = f"v{dst}", f"v{src}"
        return i

    def kv_off(self, t):
        base = 9216 * ((12 + t // 4) % 16)
        return base, t & 3

    def k_reads(self, t):
        base, q = self.kv_off(t)
        o = [ds(f"ds_read_b128 {vr(KM, 4)}, v{AK}", base + 1024 * q)]
        if q % 2 == 0:
            o.append(ds(f"ds_read_b32 v{KR}, v{AR}", base + 8704 + 128 * q))
        return o

    def v_reads(self, t):
        base, q = self.kv_off(t)
        a = ds(f"ds_read_b128 {vr(VA, 4)}, v{AV}", base + 4096 + 1152 * q)
        a.span = 576
        return [f"s_mov_b64 exec, {s_msk}", a, ds(f"ds_read_b128 {vr(VB, 4)}, v{AV}", base + 4096 + 1152 * q + 576),
                "s_mov_b64 exec, -1"]

    def qk(self, t):
        s = SREG + 16 * (t & 1)
        return (I(f"v_mfma_f32_32x32x8_bf16 {vr(s, 16)}, {vr(KR, 2)}, {vr(QRB if t & 1 else QRA, 2)}, 0",
                  needregs={("v", KM)}),
                I(f"v_mfma_f32_32x32x16_bf16 {vr(s, 16)}, {vr(KM, 4)}, {vr(QM, 4)}, {vr(s, 16)}"))

    def pv(self, t):
        s = SREG + 16 * (t & 1)
        return (I(f"v_smfmac_f32_32x32x32_bf16 {vr(OREG, 16)}, {vr(VA, 4)}, {vr(s, 8)}, v{IDX}", needregs={("v", VB)}),
                I(f"v_smfmac_f32_32x32x32_bf16 {vr(OREG, 16)}, {vr(VB, 4)}, {vr(s + 8, 8)}, v{IDX}"))

    def bg_setup(self):
        return f"""
    s_lshr_b32 {s_t2}, {s_j}, 2
    s_mul_i32 {s_t2}, {s_t2}, 9
    s_and_b32 {s_t0}, {s_j}, 3
    s_lshl_b32 {s_t1}, {s_tt}, 2
    s_add_u32 {s_t0}, {s_t0}, {s_t1}
    s_mul_i32 {s_t0}, {s_t0}, 36
    s_add_u32 {s_t0}, {s_t0}, {s_t2}
    s_lshl_b32 {s_t0}, {s_t0}, 14
    s_add_u32 {s_t0}, {s_t0}, {WS_P:#x}
    s_lshl_b32 {s_t1}, {s_w}, 11
    s_add_u32 {s_w1o}, {s_t0}, {s_t1}
    s_add_u32 {s_w1o}, {s_w1o}, {8 * 16384}
    s_lshl_b32 {s_xo}, {s_w}, 14
    s_add_u32 {s_xo}, {s_xo}, {s_t0}
    s_mul_i32 {s_t0}, {s_t2}, {18 * KB}
    s_add_u32 {s_t0}, {s_t0}, {WS_WO:#x}
    s_mul_i32 {s_who}, {s_w}, {18 * KB}
    s_add_u32 {s_who}, {s_who}, {s_t0}
    s_add_u32 {s_t0}, {s_t0}, {8 * 18 * KB}
    s_add_u32 {s_whmax}, {s_t0}, {s_t1}
    s_and_b32 {s_t1}, {s_w}, 1
    s_lshl_b32 {s_t1}, {s_t1}, 10
    s_add_u32 {s_w2a}, {s_t0}, {s_t1}
    s_add_u32 {s_w2a}, {s_w2a}, {16 * KB}"""

    def bg_loads(self):
        o = []

        def ld(reg, sbase, off):
            pre = []
            so = sbase
            if off >= 4096:
                so = s_d0
                if off % 4096 == 0:
                    pre = [f"s_add_u32 {s_d0}, {sbase}, {off}"]
            oo = f" offset:{off % 4096}" if off % 4096 else ""
            o.append(pre + [I(f"buffer_load_dwordx4 {vr(reg, 4)}, v{L16}, {sWS}, {so} offen{oo} sc1")])

        for k in range(18):
            ld(WREG + 4 * k, s_who, KB * k)
        for k in range(2):
            ld(WREG + 72 + 4 * k, s_whmax, KB * k)
        ld(WREG + 80, s_w2a, 0)
        for k in range(16):
            ld(PREG + 4 * k, s_xo, KB * k)
        for k in range(2):
            ld(PREG + 64 + 4 * k, s_w1o, KB * k)
        return o

    def poll2(self):
        load = f"buffer_load_dword v{TMP + 1}, v{TMP + 2}, {sDBG}, 0 offen offset:128 sc1"
        a = [f"v_and_b32 v{TMP + 2}, 15, v{LANE}", f"v_lshlrev_b32 v{TMP + 2}, 2, v{TMP + 2}", load]
        return a, self.spin(load, TMP + 1, f"v_cmp_ne_u32 vcc, 16, v{TMP + 1}")

    def gsignal(self):
        return [f"s_lshl_b32 {s_d1}, {s_tt}, 2", f"s_add_u32 {s_d1}, {s_d1}, 128",
                self.signal(f"s_cmp_eq_u32 {s_w}, 0", s_d1)]

    def attention(self):
        o = self.o
        p = []
        pa, pb = self.poll2()
        loads = self.bg_loads()
        t0 = o["poll2"] + 3
        per = -(-len(loads) // (62 - t0))
        p += self.k_reads(0)
        p += list(self.qk(0))
        p += self.k_reads(1)
        for t in range(64):
            e = [f"v_exp_f32 v{SREG + 16 * (t & 1) + i}, v{SREG + 16 * (t & 1) + i}" for i in range(16)]
            extra = []
            if t == o["b1tile"]:
                p += [barrier(need=self.need_a1 + ["pst", "wost", "frst"], drain_lds=False), self.gsignal(), self.ts("b1")]
            if t == o["poll2"] - 1:
                extra.append(self.bg_setup())
            if t == o["poll2"]:
                extra.append(pa)
            if t == o["poll2"] + 2:
                extra.append(pb)
            if t >= t0:
                extra += loads[(t - t0) * per:(t - t0 + 1) * per]
            p += e[0:2]
            if t > 0:
                p.append(self.pv(t - 1)[1])
            p += self.v_reads(t)
            p += e[2:5]
            if t < 63:
                p.append(self.qk(t + 1)[0])
            p += e[5:9]
            if t < 63:
                p.append(self.qk(t + 1)[1])
            if t < 62:
                p += self.k_reads(t + 2)
            p += e[9:12]
            p.append(self.pv(t)[0])
            p += extra
            p += e[12:16]
        p.append(self.pv(63)[1])
        return p

    def slow_path(self):
        S = SREG
        mx, ak, av, ar = f"v{TMP}", f"v{AK}", f"v{AV}", f"v{AR}"

        def qk(q):
            o = f"    ds_read_b128 {vr(KM, 4)}, {ak} offset:{1024 * q}\n"
            o += f"    ds_read_b32 v{KR}, {ar} offset:{8704 + 256 * (q >> 1)}\n"
            o += "    s_waitcnt lgkmcnt(0)\n"
            o += "    " + self.qk(q)[0].text.replace(vr(S + 16, 16), vr(S, 16)) + "\n"
            o += "    " + self.qk(0)[1].text + "\n    s_nop 15\n"
            return o

        adv = f"""    v_add_u32 {ak}, 9216, {ak}
    v_add_u32 {av}, 9216, {av}
    v_add_u32 {ar}, 9216, {ar}
    s_sub_u32 {s_t0}, {s_t0}, 1
    s_cmp_lg_u32 {s_t0}, 0
"""
        s = f"""    v_mov_b32 v{QRA + 1}, 0
    v_mov_b32 v{QRB + 1}, 0
    v_mov_b32 {mx}, 0xff800000
    s_mov_b32 {s_t0}, 16
L_slow1:
"""
        for q in range(4):
            s += qk(q)
            for i in range(8):
                s += f"    v_max3_f32 {mx}, {mx}, v{S + 2 * i}, v{S + 2 * i + 1}\n"
        s += adv + f"""    s_cbranch_scc1 L_slow1
    v_mov_b32 v{TMP + 1}, {mx}
    s_nop 1
    v_permlane32_swap_b32 v{TMP + 1}, {mx}
    s_nop 1
    v_max_f32 {mx}, {mx}, v{TMP + 1}
    v_subrev_u32 {ak}, {16 * 9216}, {ak}
    v_subrev_u32 {av}, {16 * 9216}, {av}
    v_subrev_u32 {ar}, {16 * 9216}, {ar}
    s_mov_b32 {s_t0}, 16
L_slow2:
"""
        for q in range(4):
            s += f"""    s_mov_b64 exec, {s_msk}
    ds_read_b128 {vr(VA, 4)}, {av} offset:{4096 + 1152 * q}
    ds_read_b128 {vr(VB, 4)}, {av} offset:{4096 + 1152 * q + 576}
    s_mov_b64 exec, -1
"""
            s += qk(q)
            for i in range(16):
                s += f"    v_sub_f32 v{S + i}, v{S + i}, {mx}\n"
            for i in range(16):
                s += f"    v_exp_f32 v{S + i}, v{S + i}\n"
            s += "    s_nop 1\n    " + self.pv(0)[0].text + "\n    " + self.pv(0)[1].text + "\n    s_nop 3\n"
        s += adv + "    s_cbranch_scc1 L_slow2\n"
        pa, pb = self.poll2()
        return [label("L_slow"), raw("    s_waitcnt vmcnt(0) lgkmcnt(0)\n    s_barrier"), self.gsignal(), raw(s),
                self.bg_setup(), pa, pb, self.bg_loads(),
                raw("    s_waitcnt vmcnt(0) lgkmcnt(0)\n    s_nop 15\n    s_branch L_att_done")]

    def final(self):
        O = OREG
        tok, g, x0, x1 = "v12", "v13", "v14", "v15"
        SEL, BIA, BI9, GG = 16, 96, 4, 2
        AB, AA, NB_, NA = 64, 72, 80, 88
        BB = 40
        p = [f"""
    v_and_b32 {tok}, 15, v{LANE}
    v_lshrrev_b32 {g}, 4, v{LANE}
    v_lshlrev_b32 {x0}, 3, {tok}
    v_lshl_add_u32 {x0}, {g}, 2, {x0}
    v_rcp_f32 v{O + 10}, v{O + 10}"""]
        p += [f"v_mul_f32 v{O + i}, v{O + i}, v{O + 10}" for i in range(10)]
        p += [f"v_cvt_pk_bf16_f32 v{O + 12 + i}, v{O + 2 * i}, v{O + 2 * i + 1}" for i in range(4)]
        p += [I(f"buffer_store_dwordx4 {vr(O + 12, 4)}, v{L16}, {sWS}, {s_oun} offen sc1", tag="ost"),
              f"v_cvt_pk_bf16_f32 v{O + 11}, v{O + 8}, v{O + 9}",
              "s_mov_b32 exec_hi, 0",
              I(f"buffer_store_dword v{O + 11}, {x0}, {sWS}, {s_oun} offen offset:1024 sc1", tag="ost"),
              "s_mov_b64 exec, -1"]
        p += [f"""
    s_lshr_b32 {s_t2}, {s_j}, 2
    s_mul_i32 {s_t0}, {s_t2}, 288
    s_lshl_b32 {s_t1}, {s_w}, 5
    s_add_u32 {s_t1}, {s_t1}, {s_t0}
    v_lshlrev_b32 {x1}, 3, {g}""",
              I(f"buffer_load_dwordx2 {vr(BIA + 2, 2)}, {x1}, {sB2}, {s_t1} offen"),
              I(f"buffer_load_dwordx2 {vr(BI9 + 2, 2)}, {x1}, {sB2}, {s_t0} offen offset:256"), f"""
    s_and_b32 {s_t1}, {s_j}, 3
    s_lshl_b32 {s_t1}, {s_t1}, 7
    s_add_u32 {s_t1}, {s_t1}, {L_GT}
    v_lshl_add_u32 {x0}, {tok}, 2, {s_t1}
    ds_read2_b32 {vr(GG, 2)}, {x0} offset0:0 offset1:16
    v_and_b32 {x0}, 1, {tok}
    v_lshlrev_b32 {x0}, 4, {x0}
    v_mov_b32 {x1}, 0x3f80
    v_lshlrev_b32 {x0}, {x0}, {x1}
    v_lshrrev_b32 {x1}, 1, {tok}
    v_lshlrev_b32 v8, 1, {g}
    v_cmp_eq_u32 vcc, v8, {x1}
    v_cndmask_b32 v{SEL + 2}, 0, {x0}, vcc
    v_add_u32 v8, 1, v8
    v_cmp_eq_u32 vcc, v8, {x1}
    v_cndmask_b32 v{SEL + 3}, 0, {x0}, vcc
    v_mov_b32 v{SEL}, 0
    v_mov_b32 v{SEL + 1}, 0
    v_mov_b32 v{SEL + 4}, 0
    v_mov_b32 v{SEL + 5}, 0
    v_mov_b32 v9, 1""",
              wait(need=["ost"]), "s_mov_b64 exec, 1",
              I(f"buffer_store_dword v9, v{L16}, {sWS}, {s_oun} offen offset:1152 sc1"), "s_mov_b64 exec, -1",
              self.ts("oflag")]
        load = f"buffer_load_dword v10, v11, {sWS}, {s_d1} offen offset:1152 sc1"
        p += [f"""
    s_and_b32 {s_t0}, {s_j}, 3
    s_lshl_b32 {s_t1}, {s_tt}, 2
    s_add_u32 {s_t0}, {s_t0}, {s_t1}
    s_lshl_b32 {s_t0}, {s_t0}, 3
    s_add_u32 {s_t0}, {s_t0}, {s_w}
    s_mul_i32 {s_d1}, {s_t0}, 5120
    s_add_u32 {s_d1}, {s_d1}, {WS_O:#x}
    v_and_b32 v11, 3, v{LANE}
    v_mul_u32_u24 v11, 1280, v11
    s_cmp_eq_u32 {s_w}, 0
    s_cselect_b32 {s_t0}, -1, 0
    v_and_b32 v{BI9 + 2}, {s_t0}, v{BI9 + 2}
    v_and_b32 v{BI9 + 3}, {s_t0}, v{BI9 + 3}"""]
        for b in (BIA, BI9):
            p += [f"""
    v_lshlrev_b32 v{b}, 16, v{b + 2}
    v_and_b32 v{b + 1}, 0xffff0000, v{b + 2}
    v_lshlrev_b32 v{b + 2}, 16, v{b + 3}
    v_and_b32 v{b + 3}, 0xffff0000, v{b + 3}"""]
        sums = []
        for k in range(18):
            acc, c = (AB, BIA) if k < 16 else (NB_, BI9)
            for h in range(2):
                sums.append(mf16(acc + 4 * h, SEL + 2 - 2 * h, PREG + 4 * k, vr(c, 4) if k in (0, 16) else None))
        p += sums[:24]
        p += [barrier(), load, sums[24:], self.spin(load, 10, "v_cmp_ne_u32 vcc, 1, v10"), self.ts("opoll"),
              f"s_mul_i32 {s_t0}, {s_w}, 5120", f"s_mov_b32 m0, {s_t0}"]
        for k in range(4):
            oo = f" offset:{KB * k}" if k else ""
            p.append(I(f"buffer_load_dwordx4 v{L16}, {sWS}, {s_d1} offen{oo} sc1 lds", tag="odma"))
        p += [f"s_add_u32 m0, {s_t0}, 4096", f"s_add_u32 {s_d1}, {s_d1}, 4096",
              I(f"buffer_load_dwordx4 v{L16}, {sWS}, {s_d1} offen sc1 lds", tag="odma")]
        a9, ar, ast, an9 = "v8", "v9", "v10", "v11"
        p += [f"""
    s_lshr_b32 {s_t2}, {s_j}, 2
    s_add_u32 {s_t1}, {s_t2}, {s_w}""",
              self.cond(f"s_bitcmp1_b32 {s_t1}, 1", [f"v_swap_b32 v{AB + i}, v{AB + 4 + i}" for i in range(4)]),
              self.cond(f"s_bitcmp1_b32 {s_t2}, 1", [f"v_swap_b32 v{NB_ + i}, v{NB_ + 4 + i}" for i in range(4)]),
              f"""
    v_add_u32 {a9}, {s_t0}, v{L16}
    v_mul_u32_u24 {ar}, 5120, {g}
    v_lshl_add_u32 {ar}, {tok}, 3, {ar}
    v_mul_u32_u24 {ast}, 272, {tok}
    v_lshl_add_u32 {ast}, {g}, 3, {ast}
    s_lshl_b32 {s_t1}, {s_w}, 5
    v_add_u32 {ast}, {s_t1}, {ast}
    v_lshlrev_b32 {an9}, 6, {tok}
    v_lshl_add_u32 {an9}, {g}, 4, {an9}
    s_lshl_b32 {s_t1}, {s_w}, 11
    v_add_u32 {an9}, {s_t1}, {an9}""", barrier(need=["odma"]), self.ts("oland")]
        seq = []
        for k in range(2):
            for t in range(2):
                seq.append((lambda b, k=k, t=t: [f"ds_read_b128 {vr(b, 4)}, {a9} offset:{2560 * k + 1280 * t}"],
                            lambda b, k=k, t=t: [mf16(NA + 4 * t, WREG + 72 + 4 * k, b, "0" if k == 0 else None)]))
        for u in range(2):
            for t in range(2):
                seq.append((lambda b, u=u, t=t: [
                    f"ds_read_b64 {vr(b + 2 * i, 2)}, {ar} offset:{20480 * u + 1280 * t + 2560 * i + 1024}" for i in range(2)],
                    lambda b, u=u, t=t: [mf16(AA + 4 * t, WREG + 64 + 4 * u, b, "0" if u == 0 else None),
                                         self.cond(f"s_cmp_eq_u32 {s_w}, {u}", [mf16(NA + 4 * t, WREG + 80, b)])]))
        for k in range(16):
            for t in range(2):
                seq.append((lambda b, k=k, t=t: [f"ds_read_b128 {vr(b, 4)}, v{L16} offset:{2560 * k + 1280 * t}"],
                            lambda b, k=k, t=t: [mf16(AA + 4 * t, WREG + 4 * k, b)]))
        NBUF = 6
        n9 = []
        for t in range(2):
            n9 += [f"v_sub_f32 v{NA + 4 * t + i}, v{NA + 4 * t + i}, v{NB_ + 4 * t + i}" for i in range(4)]
            n9 += [f"v_fmac_f32 v{NB_ + 4 * t + i}, v{NA + 4 * t + i}, v{GG + t}" for i in range(4)]
            n9.append(f"ds_write_b128 {an9}, {vr(NB_ + 4 * t, 4)} offset:{L_N9 + 1024 * t}")
        for i in range(NBUF):
            p += seq[i][0](BB + 4 * i)
        for i in range(len(seq)):
            p += seq[i][1](BB + 4 * (i % NBUF))
            if i + NBUF < len(seq):
                p += seq[i + NBUF][0](BB + 4 * (i % NBUF))
            if 14 <= i < 14 + len(n9):
                p.append(n9[i - 14])
        for t in range(2):
            p += [f"v_sub_f32 v{AA + 4 * t + i}, v{AA + 4 * t + i}, v{AB + 4 * t + i}" for i in range(4)]
            p += [f"v_fmac_f32 v{AB + 4 * t + i}, v{AA + 4 * t + i}, v{GG + t}" for i in range(4)]
            p += [f"v_cvt_pk_bf16_f32 v{AA + 4 * t + i}, v{AB + 4 * t + 2 * i}, v{AB + 4 * t + 2 * i + 1}" for i in range(2)]
            p.append(f"ds_write_b64 {ast}, {vr(AA + 4 * t, 2)} offset:{L_STG + 16 * 272 * t}")
        p += [f"""
    s_lshl_b32 {s_t1}, {s_w}, 2
    v_add_u32 {x0}, {s_t1}, {g}
    v_mul_u32_u24 {ast}, 272, {x0}
    v_lshl_add_u32 {ast}, {tok}, 4, {ast}
    s_lshl_b32 {s_t1}, {s_w}, 8
    s_add_u32 {s_t1}, {s_t1}, {L_N9}
    v_lshl_add_u32 {an9}, v{LANE}, 2, {s_t1}
    v_mul_u32_u24 {x0}, 1152, {x0}
    v_lshl_add_u32 {x1}, {tok}, 1, {x0}
    v_lshl_add_u32 {x0}, {tok}, 4, {x0}
    s_and_b32 {s_t0}, {s_j}, 3
    s_lshl_b32 {s_t1}, {s_tt}, 2
    s_add_u32 {s_t0}, {s_t0}, {s_t1}
    s_mul_i32 {s_t0}, {s_t0}, {32 * 1152}
    s_mul_i32 {s_t1}, {s_t2}, 288
    s_add_u32 {s_t0}, {s_t0}, {s_t1}""", barrier(), f"ds_read_b128 {vr(BB, 4)}, {ast} offset:{L_STG}"]
        p += [f"ds_read2st64_b32 {vr(BB + 4 + 2 * i, 2)}, {an9} offset0:{16 * i} offset1:{16 * i + 8}" for i in range(4)]
        p += [I(f"buffer_store_dwordx4 {vr(BB, 4)}, {x0}, {sOUT}, {s_t0} offen")]
        p += [f"v_add_f32 v{BB + 4 + 2 * i}, v{BB + 4 + 2 * i}, v{BB + 5 + 2 * i}" for i in range(4)]
        p += [f"""
    v_add_f32 v{BB + 4}, v{BB + 4}, v{BB + 6}
    v_add_f32 v{BB + 8}, v{BB + 8}, v{BB + 10}
    v_add_f32 v{BB + 4}, v{BB + 4}, v{BB + 8}
    v_cvt_pk_bf16_f32 v{BB + 4}, v{BB + 4}, v{BB + 4}""",
              I(f"buffer_store_short v{BB + 4}, {x1}, {sOUT}, {s_t0} offen offset:256")]
        return p

    def diag_dump(self):
        if not self.o["diag"]:
            return []
        s = "    s_waitcnt vmcnt(0)\n"
        p = [raw(s), self.ts("end")]
        s = f"""    s_memtime s[100:101]
    s_waitcnt lgkmcnt(0)
    s_sub_u32 s100, s100, s98
    s_lshl_b32 {s_t0}, s2, 3
    s_add_u32 {s_t0}, {s_t0}, {s_w}
    s_lshl_b32 {s_t0}, {s_t0}, 6
    s_add_u32 {s_t0}, {s_t0}, {WS_DIAG:#x}
    s_mov_b64 exec, 1
"""
        srcs = ["s96", "s100"] + [f"s{4 + 2 * k}" for k in range(self.nts)]
        for i, r in enumerate(srcs):
            s += f"    v_mov_b32 v1, {r}\n    buffer_store_dword v1, v{L16}, {sWS}, {s_t0} offen offset:{4 * i}\n"
        return p + [raw(s)]

    def build(self):
        p0, p1 = self.prologue()
        pre_dma, body, a0_dma, epi = self.ffn()
        prog = [p0, pre_dma, p1, body,
                barrier(need=self.need_a0), self.ts("a0"), a0_dma,
                [f"v_mov_b32 v{OREG + i}, 0" for i in range(16)], epi,
                f"s_cmp_lg_u64 {s_slow}, 0", "s_cbranch_scc1 L_slow",
                self.attention(), label("L_att_done"), self.ts("aend"), self.final(), self.diag_dump(),
                label("L_end"), "s_endpgm"]
        text, stats = finalize(prog)
        text2, _ = finalize(self.slow_path())
        self.stats = stats
        ref = open(f"cdna_kernels/{NAME}.s.ref").read().split("\n")
        head = [l for l in ref if l.startswith(";") and "@launch" not in l and "Override launch" not in l
                and "grid=ceil" not in l]
        out = "\n".join(head) + f"""
; @launch grid=(256,1,1) block=(512,1,1) lds=163840
; Generated by gen/gen.py. One workgroup per CU: 128 tokens x (288 hidden units, 2 heads).
.amdgcn_target "amdgcn-amd-amdhsa--gfx950"
.text
.globl {NAME}_kernel
.p2align 8
.type {NAME}_kernel,@function
{NAME}_kernel:
{text}{text2}
.section .rodata,"a"
.p2align 6
.amdhsa_kernel {NAME}_kernel
  .amdhsa_next_free_vgpr 256
  .amdhsa_next_free_sgpr 102
  .amdhsa_accum_offset 256
  .amdhsa_group_segment_fixed_size 0
  .amdhsa_kernarg_size 112
  .amdhsa_user_sgpr_count 2
  .amdhsa_user_sgpr_kernarg_segment_ptr 1
  .amdhsa_system_sgpr_workgroup_id_x 1
.end_amdhsa_kernel
"""
        return out


def parse_opts(args):
    kw = {}
    for a in args:
        k, v = a.split("=", 1)
        d = DEFAULTS[k]
        kw[k] = type(d)(v)
    return kw


if __name__ == "__main__":
    out = sys.argv[1]
    g = Gen(**parse_opts(sys.argv[2:]))
    open(out, "w").write(g.build())
    print(g.stats, g.tsnames)
```

```python
import math
import struct
import sys

from asmlib import I, barrier, finalize, label, opt_begin, opt_end, raw, setbase, vr, wait

NAME = "gated_mix__grouped_kv_mqa__dense_activation_gelu__prompt"
KB = 1024
U = 8192

DEFAULTS = dict(
    b=4,
    diag=0,
    burst=9,
    lead=10,
    gx=8,
    kvsig=2,
    kvpoll=4,
    b1tile=16,
    poll2=34,
    pst="sc1",
    thr=40.0,
    force_slow=0,
    wb=0,
    wsoff=0,
    x_nodma=0, x_nogelu=0, x_nobar=0, x_nost=0, x_fast=0,
)


def f32(x):
    return "0x%08x" % struct.unpack("<I", struct.pack("<f", x))[0]


WS_KV, WS_KN, WS_WO, WS_O, WS_P, WS_DIAG, WS_SIZE = 0, 147456, 0x40000, 0x100000, 0x400000, 0x3000000, 0x4000000
XREG = [11 * U, 0, 13 * U, 15 * U, 17 * U]
EX1, EX2, EX2H = 13 * U, 14 * U, 16 * U
QSCR, WOSCR, MISC = 136 * KB, 148 * KB, 152 * KB
L_B1, L_GATE, L_GT = MISC, MISC + 2048, MISC + 4096
L_STG, L_N9 = 40 * KB, 50 * KB


def ring(n):
    return ((n + 2) % 13) * U


sX, sW1, sW2, sWS, sDBG, sOUT, sWO, sB1, sB2, sG = (f"s[{a}:{a + 3}]" for a in range(32, 72, 4))
s_w, s_p, s_hf, s_tt, s_j = "s72", "s73", "s74", "s75", "s76"
s_xo, s_m, s_w1o, s_who, s_whmax = "s77", "s78", "s79", "s80", "s81"
s_w2a, s_w2b, s_mb, s_kb, s_pst, s_oun = "s82", "s83", "s84", "s85", "s86", "s87"
s_t0, s_t1, s_d0, s_d1 = "s88", "s89", "s90", "s91"
s_msk, s_slow = "s[92:93]", "s[94:95]"
s_t2 = "s3"

L16, C0, AW, ABIAS, DW1, AWH, DWH, AQ, AGATE, TMP = 0, 1, 2, 4, 5, 6, 7, 8, 11, 12
DQ, SQ, DW2, AEXW, LANE, ABH = 16, 18, 20, 21, 22, 23
AEXR, QN2 = 5, 23
ABUF, ACC, HOWN, HH, XO = 24, 40, 72, 104, 112
RQBUF, AQ2, HOTH = 184, 220, 224
GADDR, GACC, GP, T = 112, 120, 152, 168
QM, QRA, QRB, KM, KR, IDX, VA, VB = 40, 44, 46, 48, 52, 54, 56, 60
SREG, OREG, PREG, WREG = 64, 24, 100, 172
AK, AV, AR = 2, 3, 4


def X(ks, t):
    return XO + 72 * t + 4 * ks


LOG2E = math.log2(math.e)
GC0 = -2.0 * LOG2E * math.sqrt(2.0 / math.pi)
GC1 = GC0 * 0.044715
QSCALE = LOG2E / math.sqrt(18.0)


def ds(text, off, **kw):
    return I(text, off=off, **kw)


def mf16(d, a, b, c=None):
    c = vr(d, 4) if c is None else c
    return I(f"v_mfma_f32_16x16x32_bf16 {vr(d, 4)}, {vr(a, 4)}, {vr(b, 4)}, {c}")


class Gen:
    def __init__(self, **kw):
        self.o = dict(DEFAULTS)
        self.o.update(kw)
        self.nl = 0
        self.nts = 0
        self.tsnames = []

    def lab(self, s):
        self.nl += 1
        return f"L_{s}_{self.nl}"

    def ts(self, name):
        if not self.o["diag"]:
            return []
        k = self.nts
        self.nts += 1
        assert k < 14
        self.tsnames.append(name)
        op = "s_memtime" if self.o["diag"] == 2 else "s_memrealtime"
        return [raw(f"    {op} s[{4 + 2 * k}:{5 + 2 * k}]")]

    def cond(self, cmp, body):
        l = self.lab("skip")
        return [cmp, f"s_cbranch_scc0 {l}", opt_begin(), body, opt_end(), label(l)]

    def spin(self, load, reg, cmp_neq):
        lo, ld = self.lab("ok"), self.lab("spin")
        return [cmp_neq, "s_cmp_eq_u64 vcc, 0", f"s_cbranch_scc1 {lo}", opt_begin(),
                raw(f"""    s_mov_b32 {s_t2}, 0x8000
{ld}:
    s_sleep 2
    {load}
    s_waitcnt vmcnt(0)
    {cmp_neq}
    s_nop 1
    s_cmp_eq_u64 vcc, 0
    s_cbranch_scc1 {lo}
    s_sub_u32 {s_t2}, {s_t2}, 1
    s_cmp_lg_u32 {s_t2}, 0
    s_cbranch_scc1 {ld}"""), opt_end(), label(lo)]

    def prologue(self):
        b = self.o["b"]
        nb, lb = 16 // b, b.bit_length() - 1
        t = HOWN + 5
        l3, l7, g, tok, r, c4, w1 = (f"v{t + i}" for i in range(7))
        a, bb, cc = f"v{t + 7}", f"v{t + 8}", f"v{t + 9}"
        DX = HOWN + 4
        p = []
        if self.o["diag"]:
            p += [raw("    s_memrealtime s[96:97]\n    s_memtime s[98:99]")]
        p += [f"""
    s_cmp_ge_u32 s2, 256
    s_cbranch_scc1 L_end""", raw("""    s_load_dwordx16 s[4:19], s[0:1], 0
    s_load_dwordx8 s[20:27], s[0:1], 64
    s_load_dwordx4 s[28:31], s[0:1], 96"""), f"""
    v_lshrrev_b32 {a}, 6, v0
    v_and_b32 v{LANE}, 63, v0
    v_readfirstlane_b32 {s_w}, {a}
    v_lshlrev_b32 v{t + 10}, 1, v0
    v_lshlrev_b32 v{t + 11}, 2, v0
    v_lshrrev_b32 {l3}, 3, v{LANE}
    v_and_b32 {l7}, 7, v{LANE}
    v_lshrrev_b32 {g}, 4, v{LANE}
    v_and_b32 {w1}, 1, {a}
    v_lshlrev_b32 {w1}, 2, {w1}
    s_and_b32 {s_t0}, s2, {nb - 1}
    s_lshl_b32 {s_j}, {s_t0}, {lb}
    s_lshr_b32 {s_t0}, s2, 3
    s_and_b32 {s_t1}, {s_t0}, {b - 1}
    s_add_u32 {s_j}, {s_j}, {s_t1}
    s_lshr_b32 {s_tt}, {s_t0}, {lb}
    s_and_b32 {s_t0}, s2, 7
    s_lshr_b32 {s_t0}, {s_t0}, {nb.bit_length() - 1}
    s_mul_i32 {s_t0}, {s_t0}, {32 // b}
    s_add_u32 {s_tt}, {s_tt}, {s_t0}
    s_and_b32 {s_p}, {s_w}, 3
    s_lshr_b32 {s_hf}, {s_w}, 2
    s_lshl_b32 {s_m}, {s_w}, 10
    s_lshl_b32 {s_t0}, {s_tt}, 4
    s_add_u32 {s_t0}, {s_t0}, {s_w}
    s_mul_i32 {s_xo}, {s_t0}, {8 * 1152}
    s_and_b32 {s_t1}, {s_j}, 1
    s_mul_i32 {s_t0}, {s_j}, 576
    s_lshl_b32 {s_t2}, {s_t1}, 6
    s_add_u32 {s_w1o}, {s_t0}, {s_t2}
    s_mul_i32 {s_t2}, {s_w}, {8 * 9216}
    s_add_u32 {s_w1o}, {s_w1o}, {s_t2}
    v_add_u32 {a}, {w1}, {g}
    v_xor_b32 {a}, {a}, {l7}
    v_lshlrev_b32 {a}, 4, {a}
    v_mul_u32_u24 {bb}, 1152, {l3}
    v_add_u32 v{DX}, {a}, {bb}
    v_and_b32 {a}, 1, {g}
    v_lshl_add_u32 {a}, {a}, 1, {w1}
    v_xor_b32 {cc}, {a}, {l7}
    v_lshlrev_b32 {a}, 4, {cc}
    v_mul_u32_u24 v{DW1}, 9216, {l3}
    v_add_u32 v{DW1}, {a}, v{DW1}
    s_mov_b32 s34, {2048 * 1152}
    s_mov_b32 s35, 0x20000
    s_mov_b32 s38, {576 * 9216}
    s_mov_b32 s39, 0x20000
    s_mov_b32 s62, 9216
    s_mov_b32 s63, 0x20000
    s_mov_b32 s70, 1152
    s_mov_b32 s71, 0x20000""", raw("    s_waitcnt lgkmcnt(0)"), """
    s_mov_b32 s32, s4
    s_mov_b32 s33, s5
    s_mov_b32 s36, s16
    s_mov_b32 s37, s17
    s_mov_b32 s60, s18
    s_mov_b32 s61, s19
    s_mov_b32 s68, s24
    s_mov_b32 s69, s25""",
              I(f"buffer_load_ushort v{t + 14}, v{t + 10}, {sB1}, {s_t0} offen"),
              I(f"buffer_load_dword v{t + 15}, v{t + 11}, {sG}, 0 offen")]
        q = [f"""
    s_mov_b32 s40, s20
    s_mov_b32 s41, s21
    s_mov_b32 s42, {4608 * 1152}
    s_mov_b32 s43, 0x20000
    s_add_u32 s44, s30, {self.o['wsoff'] << 20:#x}
    s_addc_u32 s45, s31, 0
    s_mov_b32 s46, {WS_SIZE:#x}
    s_mov_b32 s47, 0x20000
    s_mov_b32 s48, s28
    s_mov_b32 s49, s29
    s_mov_b32 s50, 256
    s_mov_b32 s51, 0x20000
    s_mov_b32 s52, s26
    s_mov_b32 s53, s27
    s_mov_b32 s54, {2048 * 1152}
    s_mov_b32 s55, 0x20000
    s_mov_b32 s56, s12
    s_mov_b32 s57, s13
    s_mov_b32 s58, {576 * 1152}
    s_mov_b32 s59, 0x20000
    s_mov_b32 s64, s22
    s_mov_b32 s65, s23
    s_mov_b32 s66, 1152
    s_mov_b32 s67, 0x20000
    s_and_b32 {s_t1}, {s_j}, 1
    s_mul_i32 {s_t0}, {s_j}, 576
    s_xor_b32 {s_t2}, {s_t1}, 1
    s_lshl_b32 {s_t2}, {s_t2}, 9
    s_add_u32 {s_t0}, {s_t0}, {s_t2}
    s_add_u32 {s_whmax}, {s_t0}, {560 * 9216}
    s_mul_i32 {s_who}, {s_w}, {16 * 9216}
    s_add_u32 {s_who}, {s_who}, {s_t0}
    s_mul_i32 {s_t0}, {s_j}, {288 * 1152}
    s_mul_i32 {s_w2a}, {s_w}, {8 * 1152}
    s_add_u32 {s_w2a}, {s_w2a}, {s_t0}
    s_mul_i32 {s_t0}, {s_hf}, {(128 - 288 * 1152) & 0xFFFFFFFF:#x}
    s_add_u32 {s_w2b}, {s_w2a}, {s_t0}
    s_mul_i32 {s_t0}, {s_hf}, {108 * KB}
    s_sub_u32 {s_mb}, {s_m}, {s_t0}
    s_mul_i32 {s_t0}, {s_hf}, {144 * KB}
    s_sub_u32 {s_kb}, {s_m}, {s_t0}
    s_lshl_b32 {s_t0}, {s_tt}, 2
    s_add_u32 {s_t0}, {s_t0}, {s_p}
    s_mul_i32 {s_pst}, {s_t0}, {36 * 16384}
    s_lshl_b32 {s_t2}, {s_hf}, 15
    s_add_u32 {s_pst}, {s_pst}, {s_t2}
    s_lshl_b32 {s_t2}, {s_j}, 10
    s_add_u32 {s_pst}, {s_pst}, {s_t2}
    s_add_u32 {s_pst}, {s_pst}, {WS_P:#x}
    s_lshl_b32 {s_t0}, {s_t0}, 4
    s_add_u32 {s_t0}, {s_t0}, {s_j}
    s_lshl_b32 {s_t0}, {s_t0}, 1
    s_add_u32 {s_t0}, {s_t0}, {s_hf}
    s_mul_i32 {s_oun}, {s_t0}, 1280
    s_add_u32 {s_oun}, {s_oun}, {WS_O:#x}
    v_and_b32 {tok}, 15, v{LANE}
    v_bfe_u32 {r}, v{LANE}, 2, 2
    v_and_b32 {c4}, 3, v{LANE}
    v_lshlrev_b32 v{L16}, 4, v{LANE}
    v_mov_b32 v{C0}, {f32(GC0)}
    v_add_u32 v{AEXW}, {s_m}, v{L16}
    v_lshlrev_b32 v{AGATE}, 4, {g}
    s_add_u32 {s_t0}, {s_t1}, {s_hf}
    s_lshl_b32 {s_t0}, {s_t0}, 7
    v_add_u32 v{ABIAS}, {s_t0}, v{AGATE}
    s_xor_b32 {s_t0}, {s_t1}, 1
    s_lshl_b32 {s_t0}, {s_t0}, 4
    s_add_u32 {s_t0}, {s_t0}, {s_hf}
    s_lshl_b32 {s_t0}, {s_t0}, 6
    v_add_u32 v{ABH}, {s_t0}, v{AGATE}
    v_lshlrev_b32 {a}, 1, {g}
    v_xor_b32 {a}, {a}, {l7}
    v_lshl_add_u32 v{DW2}, {a}, 4, {bb}
    v_lshrrev_b32 {a}, 5, v{LANE}
    v_lshlrev_b32 {a}, 1, {a}
    v_xor_b32 {a}, {a}, {c4}
    v_lshrrev_b32 v{DWH}, 2, v{LANE}
    v_mul_u32_u24 v{DWH}, 9216, v{DWH}
    v_lshl_add_u32 v{DWH}, {a}, 4, v{DWH}""",
             f"""
    v_lshrrev_b32 {a}, 1, {tok}
    v_xor_b32 {a}, {a}, {g}
    v_lshlrev_b32 {a}, 4, {a}
    v_lshl_add_u32 {a}, {tok}, 7, {a}
    s_lshl_b32 {s_t0}, {s_p}, 1
    s_add_u32 {s_t0}, {s_t0}, {s_hf}
    s_lshl_b32 {s_t0}, {s_t0}, 11
    s_add_u32 {s_t0}, {s_t0}, {XREG[0]}
    v_add_u32 v{HOWN}, {s_t0}, {a}
    v_xor_b32 v{HOWN + 1}, 64, v{HOWN}
    v_xor_b32 v{HOWN + 2}, 0x800, v{HOWN}
    v_xor_b32 v{HOWN + 3}, 0x840, v{HOWN}""", [setbase(f"v{HOWN + i}", XREG[0]) for i in range(4)],
             f"""
    v_mov_b32 v{t + 12}, {l3}
    v_lshrrev_b32 {a}, 1, {r}
    v_and_b32 {l3}, 1, {g}
    v_lshl_add_u32 {l3}, {l3}, 1, {a}
    v_lshlrev_b32 {l3}, 5, {l3}
    v_lshl_add_u32 {l7}, {g}, 3, {r}
    v_lshlrev_b32 {w1}, 3, {c4}
    s_lshl_b32 {s_t0}, {s_hf}, 6
    v_add_u32 {a}, {s_t0}, {w1}
    v_xor_b32 {a}, {a}, {l3}
    v_lshl_add_u32 v{AW}, {l7}, 7, {a}
    v_xor_b32 v{AW + 1}, 32, v{AW}
    v_and_b32 {a}, 1, {g}
    v_xor_b32 {a}, {s_hf}, {a}
    v_lshl_add_u32 {a}, {a}, 5, {w1}
    v_lshl_add_u32 v{AWH}, {l7}, 6, {a}
    s_lshl_b32 {s_t0}, {s_t1}, 3
    v_add_u32 {a}, {s_t0}, {w1}
    v_xor_b32 v{AQ}, {a}, {l3}
    v_lshl_add_u32 v{AQ}, {l7}, 7, v{AQ}
    v_add_u32 {a}, 32, {a}
    v_xor_b32 v{AQ + 1}, {a}, {l3}
    v_lshl_add_u32 v{AQ + 1}, {l7}, 7, v{AQ + 1}
    v_add_u32 {a}, 72, {w1}
    s_add_u32 {s_t2}, {s_t0}, 64
    v_mov_b32 {bb}, {s_t2}
    v_cmp_eq_u32 vcc, 0, {c4}
    v_cndmask_b32 {a}, {a}, {bb}, vcc
    s_sub_u32 {s_t2}, 104, {s_t0}
    v_mov_b32 {bb}, {s_t2}
    v_cmp_eq_u32 vcc, 3, {c4}
    v_cndmask_b32 {a}, {a}, {bb}, vcc
    v_xor_b32 {a}, {a}, {l3}
    v_lshl_add_u32 v{AQ + 2}, {l7}, 7, {a}""",
             [setbase(f"v{x}", 0) for x in (AW, AW + 1, AWH, AQ, AQ + 1, AQ + 2, ABIAS, ABH, AGATE, AEXW)],
             f"""
    s_lshl_b32 {s_t0}, {s_w}, 3
    v_add_u32 {l7}, {s_t0}, v{t + 12}
    s_mul_i32 {s_t0}, {s_j}, 72
    s_and_b32 {s_t0}, {s_t0}, 0xfffffff0
    v_mul_u32_u24 {a}, 1152, {l7}
    v_lshl_add_u32 {a}, {cc}, 4, {a}
    v_add_u32 {a}, {s_t0}, {a}
    s_lshl_b32 {s_t0}, {s_t1}, 4
    v_mov_b32 {bb}, {s_t0}
    v_cmp_eq_u32 vcc, 5, {cc}
    v_cndmask_b32 {bb}, 20, {bb}, vcc
    v_mad_u32_u24 {bb}, {l7}, 36, {bb}
    s_bitcmp1_b32 {s_j}, 1
    s_cselect_b32 s8, s10, s8
    s_cselect_b32 s9, s11, s9
    v_cmp_gt_u32 vcc, 5, {cc}
    v_cndmask_b32 v{SQ}, {bb}, {a}, vcc
    v_mov_b32 v{SQ + 1}, 0
    v_mov_b32 {a}, s6
    v_mov_b32 {bb}, s8
    v_cndmask_b32 v{DQ}, {bb}, {a}, vcc
    v_mov_b32 {a}, s7
    v_mov_b32 {bb}, s9
    v_cndmask_b32 v{DQ + 1}, {bb}, {a}, vcc
    v_lshl_add_u64 {vr(DQ, 2)}, {vr(SQ, 2)}, 0, {vr(DQ, 2)}
    v_mov_b32 {a}, {64 * 1152}
    v_mov_b32 {bb}, {64 * 36}
    v_cndmask_b32 v{SQ}, {bb}, {a}, vcc
    s_mov_b32 s92, 0x10001000
    s_mov_b32 s93, 0x10001000
    v_lshlrev_b32 v{t + 14}, 16, v{t + 14}
    v_add_u32 v{t + 11}, {MISC}, v{t + 11}
    ds_write_b32 v{t + 11}, v{t + 14}
    ds_write_b32 v{t + 11}, v{t + 15} offset:2048"""]
        return p, q

    def pieces(self):
        P = []
        DX = HOWN + 4

        def add(code, tag, lo, nblk, use0, use1, extra=(), **kw):
            P.append(dict(code=code, tag=tag, blocks=set(range(lo // KB, lo // KB + nblk)) | set(extra),
                          use0=use0, use1=use1, **kw))

        def w1(n):
            r, c = divmod(n, 9)
            st = f"x{c}" if r == 0 else f"r{r}_{c // 3}"
            add([f"s_add_u32 m0, {s_m}, {ring(n)}", f"s_add_u32 {s_d0}, {s_w1o}, {64 * c * 9216 + 128 * r}",
                 I(f"buffer_load_dwordx4 v{DW1}, {sW1}, {s_d0} offen lds", tag=f"w{n}")], f"w{n}", ring(n), 8, st, st)

        for c in range(9):
            for a in range(2):
                lo = XREG[c % 5] + a * U
                add([f"s_add_u32 m0, {s_m}, {lo}", f"s_add_u32 {s_d0}, {s_xo}, {64 * a * 1152 + 128 * c}",
                     I(f"buffer_load_dwordx4 v{DX}, {sX}, {s_d0} offen lds", tag=f"x{c}{a}")],
                    f"x{c}{a}", lo, 8, f"x{c}", f"x{c}")
            w1(c)
        for n in range(9, 36):
            w1(n)
        for u in range(5):
            n = 36 + u
            st = "h0" if u < 2 else "h1"
            code = [f"s_add_u32 m0, {s_m}, {ring(n)}", f"s_add_u32 {s_d0}, {s_who}, {128 * u * 9216}"]
            if u == 4:
                code.append(f"s_min_u32 {s_d0}, {s_d0}, {s_whmax}")
            code.append(I(f"buffer_load_dwordx4 v{DWH}, {sW1}, {s_d0} offen lds", tag=f"w{n}"))
            add(code, f"w{n}", ring(n), 8, st, st)
        for c in range(9):
            n = 41 + c
            code = [f"s_add_u32 m0, {s_m}, {ring(n)}",
                    I(f"global_load_lds_dwordx4 {vr(DQ, 2)}, off", tag=f"w{n}")]
            if c < 8:
                code.append(f"v_lshl_add_u64 {vr(DQ, 2)}, {vr(SQ, 2)}, 0, {vr(DQ, 2)}")
            add(code, f"w{n}", ring(n), 8, f"q{c // 3}", f"q{c // 3}")
        for u in range(41):
            R, rb = divmod(8 * u, 36)
            pos = (8 * u) % 108
            wrap = rb == 32
            code = [f"s_add_u32 m0, {s_mb if pos == 104 else s_m}, {pos * KB}",
                    f"s_add_u32 {s_d0}, {s_w2b if wrap else s_w2a}, {8 * rb * 1152 + 128 * R}",
                    I(f"buffer_load_dwordx4 v{DW2}, {sW2}, {s_d0} offen lds", tag=f"g{u}")]
            if u == 40:
                code = self.cond(f"s_cmp_eq_u32 {s_hf}, 0", code)
                add(code, f"g{u}", pos * KB, 4, "g8", "g8")
            elif wrap:
                add(code, f"g{u}", pos * KB, 4, f"g{R}", f"g{R}" if R else "gx", size=1,
                    second=(set(range((pos + 4) % 108, (pos + 4) % 108 + 4)), f"g{R + 1}"))
            else:
                add(code, f"g{u}", pos * KB, 8, f"g{R}", f"g{R}" if R else "gx")
        for u in range(18):
            pos = (108 + 8 * u) % 144
            base = s_kb if pos == 140 else s_m
            code = [f"s_add_u32 m0, {base}, {pos * KB}", f"s_add_u32 {s_d0}, {base}, {WS_KV + pos * KB}",
                    I(f"buffer_load_dwordx4 v{L16}, {sWS}, {s_d0} offen sc1 lds", tag=f"kv{u}")]
            first = "a0" if 8 * u < 9 * math.ceil((self.o["b1tile"] + 2) / 4) else "a1"
            P.append(dict(code=code, tag=f"kv{u}", blocks={(pos + i) % 144 for i in range(8)}, use0=first, use1="end",
                          notbefore=f"g{self.o['kvpoll'] + 1}"))
        return P

    def plan(self, steps, P, others):
        idx = {s: i for i, s in enumerate(steps)}
        users = []
        for q in P:
            users.append((q["blocks"], idx[q["use0"]], idx[q["use1"]]))
            if "second" in q:
                users.append((q["second"][0], idx[q["second"][1]], idx[q["second"][1]]))
        for lo, n, a, b in others:
            users.append((set(range(lo // KB, (lo + n + KB - 1) // KB)), idx[a], idx[b]))
        for i, (bl, a, b) in enumerate(users):
            for bl2, a2, b2 in users[:i]:
                assert not (bl & bl2) or b < a2 or b2 < a, ("LDS overlap", steps[a], steps[a2], sorted(bl & bl2))

        def earliest(bl, a):
            return max([b2 + 1 for bl2, a2, b2 in users if bl & bl2 and b2 < a], default=-1)

        cur = -1
        for k, q in enumerate(P):
            e = earliest(q["blocks"], idx[q["use0"]])
            if "second" in q:
                e = max(e, earliest(q["second"][0], idx[q["second"][1]]))
            if "notbefore" in q:
                e = max(e, idx[q["notbefore"]])
            cur = max(cur, e)
            while True:
                ahead = sum(1 for z in P[:k] if idx[z["use0"]] > cur and not z["tag"].startswith("kv"))
                lim = self.o["burst"] if cur < idx["x5"] else self.o["lead"]
                here = sum(1 for z in P[:k] if z["issue"] == cur)
                if q["tag"].startswith("kv"):
                    if here < 7 or cur >= idx["a0"]:
                        break
                elif ahead < lim:
                    break
                cur += 1
            q["issue"] = cur
            assert cur < idx[q["use0"]], (q["tag"], steps[cur])
        for q in P:
            bl = q["blocks"] | (q["second"][0] if "second" in q else set())
            for lo, n, a, b in others:
                o = set(range(lo // KB, (lo + n + KB - 1) // KB))
                if bl & o and idx[a] <= idx[q["use0"]]:
                    assert idx[b] < q["issue"], (q["tag"], a, b)

    def gelu_quad(self, src, dst):
        o = []
        tt = [f"v{TMP + i}" for i in range(4)]
        xs = [f"v{src + i}" for i in range(4)]
        for h in (0, 2):
            pr = list(zip(tt[h:h + 2], xs[h:h + 2]))
            o += [f"v_mul_f32 {t}, {x}, {x}" for t, x in pr]
            o += [f"v_fmamk_f32 {t}, {t}, {f32(GC1)}, v{C0}" for t, x in pr]
            o += [f"v_mul_f32 {t}, {t}, {x}" for t, x in pr]
            o += [f"v_exp_f32 {t}, {t}" for t, x in pr]
            o += [f"v_add_f32 {t}, 1.0, {t}" for t, x in pr]
            o += [f"v_rcp_f32 {t}, {t}" for t, x in pr]
            o += [f"v_mul_f32 {t}, {t}, {x}" for t, x in pr]
            o.append(f"v_cvt_pk_bf16_f32 v{dst + h // 2}, {pr[0][0]}, {pr[1][0]}")
        return o

    def bias(self, r, tt2, t):
        if r < 4:
            return ds(f"ds_read_b128 {vr(ACC + 16 * (r & 1) + 8 * tt2 + 4 * t, 4)}, v{ABIAS}", L_B1 + 256 * r + 64 * tt2)
        return ds(f"ds_read_b128 {vr(ACC + 4 * t, 4)}, v{ABH}", L_B1)

    def q_epilogue(self):
        a0, a1, a2 = ACC + 8, ACC + 12, AQ2
        tok, g, row, sc, aS = (f"v{56 + i}" for i in range(5))
        x0, x1 = "v61", "v62"
        o = [f"""
    v_and_b32 {tok}, 15, v{LANE}
    v_lshrrev_b32 {g}, 4, v{LANE}
    s_mul_i32 {s_t0}, {s_w}, 1536
    s_add_u32 {s_t0}, {s_t0}, {QSCR}
    v_mul_u32_u24 {row}, 96, {tok}
    v_add_u32 {row}, {s_t0}, {row}
    v_lshl_add_u32 {aS}, {g}, 3, {row}
    v_mov_b32 {sc}, {f32(QSCALE)}"""]
        o += [f"v_mul_f32 v{a0 + i}, v{a0 + i}, {sc}" for i in range(8)]
        o += [f"v_cmp_eq_u32 vcc, 0, {g}"]
        o += [f"v_cvt_pk_bf16_f32 v{T + 2 + i}, v{a0 + 2 * i}, v{a0 + 2 * i + 1}" for i in range(4)]
        o += [f"v_cndmask_b32 {sc}, 1.0, {sc}, vcc"]
        o += [f"v_mul_f32 v{a2 + i}, v{a2 + i}, {sc}" for i in range(4)]
        o += [f"v_cvt_pk_bf16_f32 v{T + 6 + i}, v{a2 + 2 * i}, v{a2 + 2 * i + 1}" for i in range(2)]
        o += [f"""
    ds_write_b64 {aS}, {vr(T + 2, 2)}
    ds_write_b64 {aS}, {vr(T + 4, 2)} offset:32
    ds_write_b64 {aS}, {vr(T + 6, 2)} offset:64
    v_and_b32 {x0}, 1, {g}
    v_mad_u32_u24 {x0}, {x0}, 36, {row}
    v_lshrrev_b32 {x1}, 1, {g}
    v_lshl_add_u32 {x1}, {x1}, 4, {x0}
    ds_read2_b32 {vr(QM, 2)}, {x1} offset0:0 offset1:1
    ds_read2_b32 {vr(QM + 2, 2)}, {x1} offset0:2 offset1:3
    ds_read_b32 v{QRA}, {x0} offset:32
    v_mul_f32 v{T + 8}, {f32(-LOG2E)}, v{a2}
    v_exp_f32 v{T + 8}, v{T + 8}
    s_lshl_b32 {s_t0}, {s_p}, 1
    s_add_u32 {s_t0}, {s_t0}, {s_hf}
    s_lshl_b32 {s_t0}, {s_t0}, 6
    s_add_u32 {s_t0}, {s_t0}, {L_GT}
    v_add_f32 v{T + 8}, 1.0, v{T + 8}
    v_rcp_f32 v{T + 8}, v{T + 8}
    v_lshl_add_u32 v{T + 9}, {tok}, 2, {s_t0}""",
              ["s_mov_b32 exec_lo, 0", "s_mov_b32 exec_hi, 0xffff0000", f"ds_write_b32 v{T + 9}, v{T + 8}",
               "s_mov_b64 exec, -1"],
              f"""
    v_mov_b32 v{QN2}, 0
    v_dot2_f32_bf16 v{QN2}, v{QM}, v{QM}, v{QN2}
    v_dot2_f32_bf16 v{QN2}, v{QM + 1}, v{QM + 1}, v{QN2}
    v_dot2_f32_bf16 v{QN2}, v{QM + 2}, v{QM + 2}, v{QN2}
    v_dot2_f32_bf16 v{QN2}, v{QM + 3}, v{QM + 3}, v{QN2}
    v_mov_b32 v{T + 10}, v{QN2}
    v_permlane32_swap_b32 v{T + 10}, v{QN2}
    v_add_f32 v{QN2}, v{QN2}, v{T + 10}
    v_dot2_f32_bf16 v{QN2}, v{QRA}, v{QRA}, v{QN2}
    v_cmp_gt_u32 vcc, 32, v{LANE}
    v_mov_b32 v{T + 10}, 0
    v_cndmask_b32 v{QRB}, v{QRA}, v{T + 10}, vcc
    v_cndmask_b32 v{QRA}, 0, v{QRA}, vcc"""]
        kblk = [f"""
    ds_read_b64 {vr(T + 10, 2)}, {row} offset:72
    ds_read_b64 {vr(T + 12, 2)}, {row} offset:80
    ds_read_b32 v{T + 14}, {row} offset:92
    s_mul_i32 {s_t0}, {s_tt}, 9216
    s_lshl_b32 {s_t1}, {s_p}, 1
    s_add_u32 {s_t1}, {s_t1}, {s_j}
    s_lshl_b32 {s_t1}, {s_t1}, 1
    s_add_u32 {s_t1}, {s_t1}, {s_hf}
    s_lshl_b32 {s_t1}, {s_t1}, 8
    s_add_u32 {s_t1}, {s_t1}, {s_t0}
    v_lshlrev_b32 {x0}, 3, {g}
    v_lshl_add_u32 {x0}, {tok}, 4, {x0}
    v_subrev_u32 {x0}, 8, {x0}
    s_mov_b32 exec_lo, 0xffff0000
    s_mov_b32 exec_hi, 0x0000ffff""",
                I(f"buffer_store_dwordx2 {vr(T + 6, 2)}, {x0}, {sWS}, {s_t1} offen sc1", tag="kvst"),
                "s_mov_b64 exec, -1",
                self.cond(f"s_cmp_eq_u32 {s_j}, 0", [f"""
    s_lshl_b32 {s_t1}, {s_p}, 1
    s_add_u32 {s_t1}, {s_t1}, {s_hf}
    s_lshl_b32 {s_t1}, {s_t1}, 6
    s_add_u32 {s_t1}, {s_t1}, {s_t0}
    s_add_u32 {s_t1}, {s_t1}, 8704
    v_lshlrev_b32 {x0}, 2, {tok}
    s_mov_b32 exec_lo, 0
    s_mov_b32 exec_hi, 0xffff0000""",
                    I(f"buffer_store_dword v{T + 7}, {x0}, {sWS}, {s_t1} offen sc1", tag="kvst"),
                    "s_mov_b64 exec, -1"]),
                f"""
    s_sub_u32 {s_t1}, {s_j}, 1
    v_and_b32 v{T + 14}, {s_t1}, v{T + 14}
    v_mov_b32 {x1}, 0"""]
        kblk += [f"v_dot2_f32_bf16 {x1}, v{T + 10 + i}, v{T + 10 + i}, {x1}" for i in range(5)]
        kblk += [f"v_max_f32_dpp {x1}, {x1}, {x1} row_ror:{n} row_mask:0xf bank_mask:0xf" for n in (8, 4, 2, 1)]
        kblk += [f"""
    s_lshl_b32 {s_t1}, {s_j}, 4
    s_add_u32 {s_t1}, {s_t1}, {s_tt}
    s_lshl_b32 {s_t1}, {s_t1}, 3
    s_add_u32 {s_t1}, {s_t1}, {s_w}
    s_lshl_b32 {s_t1}, {s_t1}, 2
    s_add_u32 {s_t1}, {s_t1}, {WS_KN}
    s_mov_b64 exec, 1""",
                 I(f"buffer_store_dword {x1}, v{L16}, {sWS}, {s_t1} offen sc1", tag="kvst"),
                 "s_mov_b64 exec, -1"]
        vblk = [f"""
    s_mul_i32 {s_t0}, {s_w}, 1536
    s_add_u32 {s_t0}, {s_t0}, {QSCR + 72}
    v_and_b32 {x0}, 3, v{LANE}
    v_min_u32 {x0}, 2, {x0}
    v_lshl_add_u32 {x0}, {x0}, 3, {s_t0}
    v_lshrrev_b32 {x1}, 2, v{LANE}
    v_mul_u32_u24 {x1}, 96, {x1}
    v_add_u32 {x0}, {x0}, {x1}
    ds_read_b64_tr_b16 {vr(T + 10, 2)}, {x0}
    s_and_b32 {s_t1}, {s_j}, 1
    s_lshl_b32 {s_t0}, {s_t1}, 3
    v_add_u32 {x0}, {s_t0}, {tok}
    v_add_u32 {x1}, 6, {tok}
    v_cmp_gt_u32 vcc, 8, {tok}
    v_cndmask_b32 {x0}, {x1}, {x0}, vcc
    v_and_b32 {x1}, 1, {g}
    v_lshlrev_b32 {x1}, 3, {x1}
    v_lshl_add_u32 {x0}, {x0}, 4, {x1}
    v_lshrrev_b32 {x1}, 1, {g}
    v_mul_u32_u24 {x1}, 288, {x1}
    v_add_u32 {x0}, {x0}, {x1}
    s_mul_i32 {s_t0}, {s_tt}, 9216
    s_lshl_b32 {s_t2}, {s_p}, 1
    s_add_u32 {s_t2}, {s_t2}, {s_hf}
    s_mul_i32 {s_t2}, {s_t2}, 576
    s_add_u32 {s_t0}, {s_t0}, {s_t2}
    s_add_u32 {s_t0}, {s_t0}, {WS_KV + 4096}
    s_mov_b32 {s_t2}, 0x0cff0cff
    s_cmp_eq_u32 {s_t1}, 0
    s_cselect_b32 {s_t2}, {s_t2}, 0x00ff00ff
    s_mov_b32 exec_lo, {s_t2}
    s_mov_b32 exec_hi, {s_t2}""",
                I(f"buffer_store_dwordx2 {vr(T + 10, 2)}, {x0}, {sWS}, {s_t0} offen sc1", tag="kvst"),
                "s_mov_b64 exec, -1"]
        tail = [self.cond(f"s_cmp_lt_u32 {s_j}, 2", kblk),
                [f"s_lshr_b32 {s_t0}, {s_j}, 1", self.cond(f"s_cmp_eq_u32 {s_t0}, 1", vblk)]]
        return o, tail

    def wo_job(self):
        x0, x1, x2 = f"v{T}", f"v{T + 1}", f"v{T + 2}"
        sel = f"""
    s_cmp_lt_u32 {s_j}, 9
    s_cselect_b32 {s_t0}, 11, 9
    s_cmp_lt_u32 {s_tt}, {s_t0}
    s_cselect_b32 {s_t0}, 1, 0
    s_andn2_b32 {s_t0}, {s_t0}, {s_hf}"""
        main = f"""
    v_lshrrev_b32 {x0}, 5, v{LANE}
    v_bfe_u32 {x1}, v{LANE}, 3, 2
    v_mad_u32_u24 {x0}, {x0}, 18, {x1}
    s_mul_i32 {s_t0}, {s_j}, 36
    s_lshl_b32 {s_t1}, {s_w}, 2
    s_add_u32 {s_t0}, {s_t0}, {s_t1}
    s_mul_i32 {s_t0}, {s_t0}, 1152
    s_lshl_b32 {s_t1}, {s_tt}, 7
    s_add_u32 {s_d1}, {s_t0}, {s_t1}"""
        rest = f"""
    v_lshrrev_b32 {x0}, 5, v{LANE}
    v_bfe_u32 {x1}, v{LANE}, 4, 1
    v_lshl_add_u32 {x0}, {x0}, 2, {x1}
    v_bfe_u32 {x1}, v{LANE}, 3, 1
    v_mad_u32_u24 {x0}, {x0}, 18, {x1}
    s_sub_u32 {s_t0}, {s_tt}, 9
    s_lshl_b32 {s_t0}, {s_t0}, 1
    s_and_b32 {s_t1}, {s_w}, 1
    s_add_u32 {s_t0}, {s_t0}, {s_t1}
    s_lshl_b32 {s_t0}, {s_t0}, 3
    s_and_b32 {s_t1}, {s_w}, 2
    s_add_u32 {s_t0}, {s_t0}, {s_t1}
    s_mul_i32 {s_t0}, {s_t0}, 18
    s_add_u32 {s_t0}, {s_t0}, 16
    s_mul_i32 {s_t0}, {s_t0}, 1152
    s_lshl_b32 {s_t1}, {s_j}, 7
    s_add_u32 {s_d1}, {s_t0}, {s_t1}"""
        part1 = [sel, self.cond(f"s_cmp_eq_u32 {s_t0}, 1", [
            main, self.cond(f"s_cmp_ge_u32 {s_tt}, 9", [rest]), f"""
    v_lshrrev_b32 {x1}, 4, v{LANE}
    v_lshlrev_b32 {x1}, 1, {x1}
    v_and_b32 {x2}, 7, v{LANE}
    v_xor_b32 {x1}, {x1}, {x2}
    v_mul_u32_u24 {x0}, 1152, {x0}
    v_lshl_add_u32 {x0}, {x1}, 4, {x0}
    s_add_u32 m0, {s_m}, {WOSCR}""",
            I(f"buffer_load_dwordx4 {x0}, {sWO}, {s_d1} offen lds", tag="wodma")])]
        part2 = [sel, self.cond(f"s_cmp_eq_u32 {s_t0}, 1", [f"""
    v_bfe_u32 {x0}, v{LANE}, 3, 2
    v_xor_b32 {x0}, {s_w}, {x0}
    v_lshlrev_b32 {x0}, 5, {x0}
    v_and_b32 {x1}, 3, v{LANE}
    v_lshl_add_u32 {x0}, {x1}, 3, {x0}
    v_lshrrev_b32 {x1}, 2, v{LANE}
    v_lshl_add_u32 {x0}, {x1}, 7, {x0}
    v_add_u32 {x0}, {WOSCR}, {x0}
    ds_read_b64_tr_b16 {vr(T + 4, 2)}, {x0}
    ds_read_b64_tr_b16 {vr(T + 6, 2)}, {x0} offset:2048
    s_add_u32 {s_t0}, {s_tt}, 7
    s_cmp_ge_u32 {s_tt}, 9
    s_cselect_b32 {s_t0}, {s_t0}, {s_j}
    s_cselect_b32 {s_t1}, {s_j}, {s_tt}
    s_lshl_b32 {s_t1}, {s_t1}, 2
    s_add_u32 {s_t1}, {s_t1}, {s_w}
    s_mul_i32 {s_t1}, {s_t1}, 18
    s_add_u32 {s_t0}, {s_t0}, {s_t1}
    s_lshl_b32 {s_t0}, {s_t0}, 10
    s_add_u32 {s_t0}, {s_t0}, {WS_WO:#x}""",
            I(f"buffer_store_dwordx4 {vr(T + 4, 4)}, v{L16}, {sWS}, {s_t0} offen sc1", tag="wost")])]
        return part1, part2

    def signal(self, cmp, soff):
        return self.cond(cmp, [f"v_mov_b32 v{TMP}, 1", "s_mov_b64 exec, 1",
                               I(f"buffer_atomic_add v{TMP}, v{L16}, {sDBG}, {soff} offen"), "s_mov_b64 exec, -1"])

    def shift_setup(self):
        x = f"v{T}"
        o = [f"v_max3_f32 {x}, {x}, v{T + 1}, v{T + 2}", f"v_max_f32 {x}, {x}, v{T + 3}"]
        o += [f"v_max_f32_dpp {x}, {x}, {x} row_ror:{n} row_mask:0xf bank_mask:0xf" for n in (8, 4, 2, 1)]
        o += [[f"""
    v_readlane_b32 {s_t0}, {x}, 0
    v_readlane_b32 {s_t1}, {x}, 16
    v_readlane_b32 {s_t2}, {x}, 32
    v_readlane_b32 {s_d1}, {x}, 48
    s_max_u32 {s_t0}, {s_t0}, {s_t1}
    s_max_u32 {s_t2}, {s_t2}, {s_d1}
    v_mov_b32 {x}, {s_t0}
    v_add_f32 {x}, {s_t2}, {x}"""], f"""
    v_mul_f32 {x}, {x}, v{QN2}
    v_sqrt_f32 {x}, {x}
    v_mov_b32 v{T + 1}, {f32(0.01)}
    v_fmamk_f32 {x}, {x}, {f32(1.02)}, v{T + 1}
    v_mov_b32 v{T + 1}, {f32(self.o['thr'] if not self.o['force_slow'] else -1.0)}
    v_cmp_nle_f32 {s_slow}, {x}, v{T + 1}
    v_mov_b32 v{T + 1}, 0
    v_cvt_pk_bf16_f32 {x}, -{x}, v{T + 1}
    v_cmp_gt_u32 vcc, 32, v{LANE}
    v_cndmask_b32 v{QRA + 1}, 0, {x}, vcc
    v_cndmask_b32 v{QRB + 1}, {x}, v{T + 1}, vcc
    v_mov_b32 v{KR + 1}, 0x3f80
    v_mov_b32 v{IDX}, 0xdddddddd
    v_and_b32 {x}, 27, v{LANE}
    v_cmp_eq_u32 vcc, 18, {x}
    v_mov_b32 {x}, 0x3f803f80"""]
        o += [f"v_cndmask_b32 v{VA + i}, 0, {x}, vcc" for i in range(8)]
        o += [f"""
    v_mov_b32 v{AK}, v{L16}
    v_lshlrev_b32 v{AR}, 2, v{LANE}
    v_and_b32 {x}, 31, v{LANE}
    v_lshrrev_b32 v{AV}, 5, v{LANE}
    v_mul_u32_u24 v{AV}, 288, v{AV}
    v_lshl_add_u32 v{AV}, {x}, 4, v{AV}
    s_mov_b32 s92, 0x3ffff
    s_mov_b32 s93, 0x3ffff""", [setbase(f"v{AK}"), setbase(f"v{AV}"), setbase(f"v{AR}")]]
        return o

    def ffn(self):
        o = self.o
        ops = []

        def tr(buf, i, areg, off):
            return ds(f"ds_read_b64_tr_b16 {vr(buf + 2 * i, 2)}, v{areg}", off)

        nring = [0]

        def nb():
            nring[0] += 1
            return ABUF + 4 * ((nring[0] - 1) % 4)

        for r in range(4):
            for ks in range(18):
                for tt2 in range(2):
                    buf = nb()
                    base = ring(9 * r + ks // 2) + 4096 * (ks & 1)
                    op = dict(buf=buf, rd=[tr(buf, i, AW + tt2, base + 512 * i) for i in range(2)],
                              mf=[mf16(ACC + 16 * (r & 1) + 8 * tt2 + 4 * t, buf, X(ks, t)) for t in range(2)],
                              name=("r", r, ks, tt2), rate=1)
                    if tt2 == 0 and r == 0 and ks % 2 == 0:
                        c = ks // 2
                        op["step"] = f"x{c}"
                        op["pre"] = [ds(f"ds_read_b128 {vr(X(ks + k, t), 4)}, v{HOWN + 2 * t + k}", XREG[c % 5])
                                     for k in range(2) for t in range(2)]
                        if c < 2:
                            op["pre"] = [self.bias(c, a, t) for a in range(2) for t in range(2)] + op["pre"]
                    if tt2 == 0 and r > 0 and ks % 6 == 0:
                        op["step"] = f"r{r}_{ks // 6}"
                    ops.append(op)
        h0 = len(ops)
        for ks in range(18):
            buf = nb()
            base = ring(36 + ks // 4) + 2048 * (ks & 3)
            op = dict(buf=buf, rd=[tr(buf, i, AWH, base + 256 * i) for i in range(2)],
                      mf=[mf16(ACC + 4 * t, buf, X(ks, t)) for t in range(2)], name=("h", 0, ks, 0), rate=1)
            if ks in (0, 8):
                op["step"] = f"h{ks // 8}"
            ops.append(op)
        n = 0
        for ks in range(18):
            for a in range(3):
                buf = RQBUF + 4 * (n % 9)
                base = ring(41 + ks // 2) + 4096 * (ks & 1)
                rd = [tr(buf, i, AQ + a, base + 512 * i) for i in range(2)]
                if a == 2:
                    rd[1] = [rd[1], f"s_mov_b64 exec, {s_msk}",
                             ds(f"ds_read_b128 {vr(buf, 4)}, v{AGATE}", L_GATE + 64 * ks), "s_mov_b64 exec, -1"]
                d = (ACC + 8, ACC + 12, AQ2)[a]
                op = dict(buf=buf, rd=rd, mf=[mf16(d, buf, X(ks, 0), "0" if ks == 0 else None)],
                          name=("q", 0, ks, a), rate=2, after=h0 + 14 if n < 9 else 0)
                if a == 0 and ks % 6 == 0:
                    op["step"] = f"q{ks // 6}"
                ops.append(op)
                n += 1
        g0 = len(ops)
        for R in range(9):
            for s in range(9):
                for tt2 in range(2):
                    buf = nb()
                    base = 36 * KB * (R % 3)
                    if s < 8:
                        rd = [tr(buf, i, GADDR + 2 * (s // 4) + tt2, base + 8192 * (s % 4) + 2048 * i) for i in range(2)]
                        hb = (HOWN, HOTH)[s // 4] + 8 * (s % 4)
                    else:
                        rd = [tr(buf, i, GADDR + 4 + 2 * i + tt2, base) for i in range(2)]
                        hb = HH
                    for x in rd:
                        x.rebase_to = base
                    op = dict(buf=buf, rd=rd, name=("g", R, s, tt2), rate=1, after=g0 - 6 if R == 0 else 0,
                              mf=[mf16(GACC + 16 * (R & 1) + 8 * tt2 + 4 * t, buf, hb + 4 * t, "0" if s == 0 else None)
                                  for t in range(2)])
                    if s == 0 and tt2 == 0:
                        op["step"] = f"g{R}"
                    if R == 0 and 2 * s + tt2 == o["gx"]:
                        op["step"] = "gx"
                    ops.append(op)

        G = [dict(m=[], mem=[], valu=[])]
        bar, first = {}, {}
        last_user = {}
        prev = []
        for k, op in enumerate(ops):
            prev.append(last_user.get(op["buf"], -1))
            last_user[op["buf"]] = k
        ro, rr = 0, 0

        def issue_one():
            nonlocal ro, rr
            op = ops[ro]
            if rr == 0 and "step" in op:
                b = barrier()
                bar[op["step"]] = (len(G) - 1, b)
                G[-1]["mem"].append(b)
            if rr == 0:
                G[-1]["mem"] += op.get("pre", [])
            G[-1]["mem"].append(op["rd"][rr])
            rr += 1
            if rr == len(op["rd"]):
                ro, rr = ro + 1, 0

        while ro < 3:
            issue_one()
        for k, op in enumerate(ops):
            while ro <= k:
                issue_one()
            first[op["name"]] = len(G)
            for mi, m in enumerate(op["mf"]):
                G.append(dict(m=[m], mem=[], valu=[]))
                done = k if mi == len(op["mf"]) - 1 else k - 1
                cnt = 0
                while ro < len(ops) and cnt < max(op["rate"], ops[ro]["rate"]) and prev[ro] <= k - 1 + (op["rate"] > 1) \
                        and prev[ro] <= done + 0 and ops[ro].get("after", -1) <= done:
                    issue_one()
                    cnt += 1
        NG = len(G)

        def spread(items, lo, hi, key="valu"):
            items = [x for e in items for x in (e.strip().split("\n") if isinstance(e, str) else [e])]
            assert lo < hi <= NG, (lo, hi)
            for i, it in enumerate(items):
                G[lo + (i * (hi - lo)) // len(items)][key].append(it)

        steps = [s for s, _ in sorted(bar.items(), key=lambda kv: kv[1][0])] + ["a0", "a1", "end"]
        B = {s: v[0] for s, v in bar.items()}
        B["a0"] = NG

        def stepof(gi):
            return [s for s in steps[:-3] if B[s] <= gi][-1]

        others = []
        for r in range(4):
            items = []
            for t in range(2):
                for tt2 in range(2):
                    items += self.gelu_quad(ACC + 16 * (r & 1) + 8 * tt2 + 4 * t, HOWN + 8 * r + 4 * t + 2 * tt2)
                    if r < 2 or (r == 2 and tt2 == 0):
                        items.append(self.bias(r + 2, tt2, t))
                if r < 3:
                    items.append(ds(f"ds_write_b128 v{AEXW}, {vr(HOWN + 8 * r + 4 * t, 4)}", EX1 + U * (2 * r + t)))
            if r < 3:
                lo = first[("r", r + 1, 0, 0)] + 3
                hi = (first[("r", r + 2, 0, 0)] if r < 2 else first[("h", 0, 0, 0)]) - 4
                others.append((EX1 + 2 * U * r, 2 * U, stepof(lo), "q0"))
            else:
                lo, hi = first[("h", 0, 0, 0)] + 3, B["q2"] - 3
            spread(items, lo, hi)
        q0 = first[("q", 0, 0, 0)]
        assert q0 + 1 < B["q1"] - 1
        spread([f"v_xor_b32 v{AEXR}, 0x1000, v{AEXW}", self.copybase(AEXR, AEXW)], q0 - 2, q0 - 1)
        spread([ds(f"ds_read_b128 {vr(HOTH + 8 * r + 4 * t, 4)}, v{AEXR}", EX1 + U * (2 * r + 1 - t))
                for r in range(3) for t in range(2)], q0, B["q1"], "mem")
        spread([ds(f"ds_write_b128 v{AEXW}, {vr(HOWN + 24 + 4 * t, 4)}", EX2 + U * t) for t in range(2)],
               B["q2"] - 3, B["q2"] - 1)
        assert B["q2"] - 3 > B["q1"]
        spread([ds(f"ds_read_b128 {vr(HOTH + 24 + 4 * t, 4)}, v{AEXR}", EX2 + U * (1 - t)) for t in range(2)],
               B["q2"] + 1, B["q2"] + 3, "mem")
        others.append((EX2, 2 * U, "q1", "q2"))
        a, bb, cc = f"v{GACC}", f"v{GACC + 1}", f"v{GACC + 2}"
        ga = [f"""
    v_bfe_u32 {a}, v{LANE}, 3, 2
    s_lshl_b32 {s_t0}, {s_hf}, 1
    v_xor_b32 {a}, {s_t0}, {a}
    v_lshlrev_b32 {a}, 5, {a}
    v_and_b32 {bb}, 3, v{LANE}
    v_lshl_add_u32 {a}, {bb}, 3, {a}
    v_lshrrev_b32 {bb}, 2, v{LANE}
    v_lshl_add_u32 {a}, {bb}, 7, {a}
    v_xor_b32 {bb}, 32, {a}
    s_and_b32 {s_t1}, {s_j}, 1
    s_add_u32 {s_t0}, {s_t1}, {s_hf}
    s_lshl_b32 {s_t0}, {s_t0}, 12
    v_add_u32 v{GADDR}, {s_t0}, {a}
    v_add_u32 v{GADDR + 1}, {s_t0}, {bb}
    s_sub_u32 {s_t0}, {s_t1}, {s_hf}
    s_add_u32 {s_t0}, {s_t0}, 1
    s_lshl_b32 {s_t0}, {s_t0}, 12
    v_add_u32 v{GADDR + 2}, {s_t0}, {a}
    v_add_u32 v{GADDR + 3}, {s_t0}, {bb}
    s_xor_b32 {s_t1}, {s_t1}, 1
    s_lshl_b32 {s_t1}, {s_t1}, 4
    s_add_u32 {s_t0}, {s_t1}, {s_hf}
    s_lshl_b32 {s_t0}, {s_t0}, 11
    v_add_u32 v{GADDR + 4}, {s_t0}, {a}
    v_add_u32 v{GADDR + 5}, {s_t0}, {bb}
    v_xor_b32 v{GADDR + 6}, 0x800, v{GADDR + 4}
    v_xor_b32 v{GADDR + 7}, 0x800, v{GADDR + 5}""", [setbase(f"v{GADDR + i}") for i in range(8)]]
        spread(ga, max(first[("q", 0, 3, 0)], B["q2"] - 2), B["g0"])
        items = []
        for t in range(2):
            items += self.gelu_quad(ACC + 4 * t, HH + 4 * t)
            items.append(ds(f"ds_write_b64 v{AEXW}, {vr(HH + 4 * t, 2)}", EX2H + 8 * t))
        spread(items, B["q2"] - 1, B["gx"] - 1)
        spread([ds(f"ds_read_b64 {vr(HH + 4 * t + 2, 2)}, v{AEXR}", EX2H + 8 * (1 - t)) for t in range(2)],
               B["gx"] + 1, B["gx"] + 3, "mem")
        others.append((EX2H, U, "q1", "gx"))
        qe, qtail = self.q_epilogue()
        lo = max(B["gx"], first[("g", 0, 1, 0)])
        mid = first[("g", 1, 3, 0)]
        spread(qe, lo, mid)
        spread(qtail, mid, mid + 2)
        assert mid + 2 < B["g2"]
        others.append((QSCR, 12 * KB, "gx", "g1"))
        epi = []
        for R in range(9):
            items = []
            for tt2 in range(2):
                d = GP + 8 * (R & 1) + 4 * tt2
                s = GACC + 16 * (R & 1) + 8 * tt2
                items += [f"v_cvt_pk_bf16_f32 v{d + i}, v{s + 2 * i}, v{s + 2 * i + 1}" for i in range(4)]
                items.append([f"s_add_u32 {s_d1}, {s_pst}, {(4 * R + tt2) * 16384}",
                              I(f"buffer_store_dwordx4 {vr(d, 4)}, v{L16}, {sWS}, {s_d1} offen {o['pst'].replace('+', ' ')}", tag="pst")])
            if R < 8:
                f = first[("g", R + 1, 0, 0)]
                spread(items, f + 16, f + 32)
            else:
                epi = items
        spread([[f"v_mov_b32 v{GP + 8}, 0", "s_mov_b64 exec, 1",
                 I(f"buffer_store_dword v{GP + 8}, v{L16}, {sWS}, {s_oun} offen offset:1152 sc1", tag="frst"),
                 "s_mov_b64 exec, -1"]], first[("g", 0, 1, 0)], first[("g", 0, 1, 0)] + 1)
        w1, w2 = self.wo_job()
        spread([w1], B["g2"] + 6, B["g2"] + 7)
        spread([w2], B["g5"] + 6, B["g5"] + 7)
        others.append((WOSCR, 4 * KB, "g2", "g5"))
        extra = {"g5": ["wodma"], f"g{o['kvsig']}": ["kvst"]}
        sg = B[f"g{o['kvsig']}"]
        spread([[f"s_lshr_b32 {s_t0}, {s_j}, 2", f"s_or_b32 {s_t0}, {s_t0}, {s_w}",
                 self.signal(f"s_cmp_eq_u32 {s_t0}, 0", "0")]], sg + 1, sg + 2)
        pl = B[f"g{o['kvpoll']}"]
        load = f"buffer_load_dword v{T + 8}, v{T + 9}, {sDBG}, 0 offen sc1"
        spread([[f"v_mov_b32 v{T + 9}, 0", load]], pl + 1, pl + 2)
        nx = B[f"g{o['kvpoll'] + 1}"]
        spread([self.spin(load, T + 8, f"v_cmp_gt_u32 vcc, 64, v{T + 8}")], nx - 2, nx - 1)
        spread([[f"s_mov_b32 {s_d1}, {WS_KN}",
                 I(f"buffer_load_dwordx4 {vr(T, 4)}, v{L16}, {sWS}, {s_d1} offen sc1")]], B["g6"] + 1, B["g6"] + 2)
        spread(self.shift_setup(), B["g8"] - 6, B["g8"] + 18)

        P = self.pieces()
        self.plan(steps, P, others)
        pre_dma, a0_dma = [], []
        for si in range(-1, len(steps)):
            mine = [q["code"] for q in P if q["issue"] == si]
            if not mine:
                continue
            if si < 0:
                pre_dma = mine
            elif steps[si] == "a0":
                a0_dma = mine
            else:
                spread(mine, B[steps[si]] + 1, B[steps[si + 1]], "mem")
        for s, (gi, b) in bar.items():
            b.need = [q["tag"] for q in P if q["use0"] == s] + extra.get(s, [])
        self.need_a0 = [q["tag"] for q in P if q["use0"] == "a0"]
        self.need_a1 = [q["tag"] for q in P if q["use0"] == "a1"]
        self.planinfo = [(q["tag"], steps[q["issue"]] if q["issue"] >= 0 else "pre", q["use0"]) for q in P]
        for nm, s in (("x0", "x0"), ("r1", "r1_0"), ("r2", "r2_0"), ("h", "h0"), ("g0", "g0"), ("g4", "g4")):
            i = G[B[s]]["mem"].index(bar[s][1])
            G[B[s]]["mem"][i + 1:i + 1] = self.ts(nm)
        body = [[g["m"], g["mem"], g["valu"]] for g in G]
        return pre_dma, body, a0_dma, epi

    def copybase(self, dst, src):
        i = I("", pseudo="copybase")
        i.dst, i.src = f"v{dst}", f"v{src}"
        return i

    def kv_off(self, t):
        base = 9216 * ((12 + t // 4) % 16)
        return base, t & 3

    def k_reads(self, t):
        base, q = self.kv_off(t)
        o = [ds(f"ds_read_b128 {vr(KM, 4)}, v{AK}", base + 1024 * q)]
        if q % 2 == 0:
            o.append(ds(f"ds_read_b32 v{KR}, v{AR}", base + 8704 + 128 * q))
        return o

    def v_reads(self, t):
        base, q = self.kv_off(t)
        a = ds(f"ds_read_b128 {vr(VA, 4)}, v{AV}", base + 4096 + 1152 * q)
        a.span = 576
        return [f"s_mov_b64 exec, {s_msk}", a, ds(f"ds_read_b128 {vr(VB, 4)}, v{AV}", base + 4096 + 1152 * q + 576),
                "s_mov_b64 exec, -1"]

    def qk(self, t):
        s = SREG + 16 * (t & 1)
        return (I(f"v_mfma_f32_32x32x8_bf16 {vr(s, 16)}, {vr(KR, 2)}, {vr(QRB if t & 1 else QRA, 2)}, 0",
                  needregs={("v", KM)}),
                I(f"v_mfma_f32_32x32x16_bf16 {vr(s, 16)}, {vr(KM, 4)}, {vr(QM, 4)}, {vr(s, 16)}"))

    def pv(self, t):
        s = SREG + 16 * (t & 1)
        return (I(f"v_smfmac_f32_32x32x32_bf16 {vr(OREG, 16)}, {vr(VA, 4)}, {vr(s, 8)}, v{IDX}", needregs={("v", VB)}),
                I(f"v_smfmac_f32_32x32x32_bf16 {vr(OREG, 16)}, {vr(VB, 4)}, {vr(s + 8, 8)}, v{IDX}"))

    def bg_setup(self):
        return f"""
    s_lshr_b32 {s_t2}, {s_j}, 2
    s_mul_i32 {s_t2}, {s_t2}, 9
    s_and_b32 {s_t0}, {s_j}, 3
    s_lshl_b32 {s_t1}, {s_tt}, 2
    s_add_u32 {s_t0}, {s_t0}, {s_t1}
    s_mul_i32 {s_t0}, {s_t0}, 36
    s_add_u32 {s_t0}, {s_t0}, {s_t2}
    s_lshl_b32 {s_t0}, {s_t0}, 14
    s_add_u32 {s_t0}, {s_t0}, {WS_P:#x}
    s_lshl_b32 {s_t1}, {s_w}, 11
    s_add_u32 {s_w1o}, {s_t0}, {s_t1}
    s_add_u32 {s_w1o}, {s_w1o}, {8 * 16384}
    s_lshl_b32 {s_xo}, {s_w}, 14
    s_add_u32 {s_xo}, {s_xo}, {s_t0}
    s_mul_i32 {s_t0}, {s_t2}, {18 * KB}
    s_add_u32 {s_t0}, {s_t0}, {WS_WO:#x}
    s_mul_i32 {s_who}, {s_w}, {18 * KB}
    s_add_u32 {s_who}, {s_who}, {s_t0}
    s_add_u32 {s_t0}, {s_t0}, {8 * 18 * KB}
    s_add_u32 {s_whmax}, {s_t0}, {s_t1}
    s_and_b32 {s_t1}, {s_w}, 1
    s_lshl_b32 {s_t1}, {s_t1}, 10
    s_add_u32 {s_w2a}, {s_t0}, {s_t1}
    s_add_u32 {s_w2a}, {s_w2a}, {16 * KB}"""

    def bg_loads(self):
        o = []

        def ld(reg, sbase, off):
            pre = []
            so = sbase
            if off >= 4096:
                so = s_d0
                if off % 4096 == 0:
                    pre = [f"s_add_u32 {s_d0}, {sbase}, {off}"]
            oo = f" offset:{off % 4096}" if off % 4096 else ""
            o.append(pre + [I(f"buffer_load_dwordx4 {vr(reg, 4)}, v{L16}, {sWS}, {so} offen{oo} sc1")])

        for k in range(18):
            ld(WREG + 4 * k, s_who, KB * k)
        for k in range(2):
            ld(WREG + 72 + 4 * k, s_whmax, KB * k)
        ld(WREG + 80, s_w2a, 0)
        for k in range(16):
            ld(PREG + 4 * k, s_xo, KB * k)
        for k in range(2):
            ld(PREG + 64 + 4 * k, s_w1o, KB * k)
        return o

    def poll2(self):
        load = f"buffer_load_dword v{TMP + 1}, v{TMP + 2}, {sDBG}, 0 offen offset:128 sc1"
        a = [f"v_and_b32 v{TMP + 2}, 15, v{LANE}", f"v_lshlrev_b32 v{TMP + 2}, 2, v{TMP + 2}", load]
        return a, self.spin(load, TMP + 1, f"v_cmp_gt_u32 vcc, 16, v{TMP + 1}")

    def gsignal(self):
        return [f"s_lshl_b32 {s_d1}, {s_tt}, 2", f"s_add_u32 {s_d1}, {s_d1}, 128",
                self.signal(f"s_cmp_eq_u32 {s_w}, 0", s_d1)]

    def attention(self):
        o = self.o
        p = []
        pa, pb = self.poll2()
        loads = self.bg_loads()
        t0 = o["poll2"] + 3
        per = -(-len(loads) // (62 - t0))
        p += self.k_reads(0)
        p += list(self.qk(0))
        p += self.k_reads(1)
        for t in range(64):
            e = [f"v_exp_f32 v{SREG + 16 * (t & 1) + i}, v{SREG + 16 * (t & 1) + i}" for i in range(16)]
            extra = []
            if t == o["b1tile"]:
                p += [barrier(need=self.need_a1 + ["pst", "wost", "frst"], drain_lds=False), self.ts("b1")]
                if o["wb"]:
                    p += self.cond(f"s_cmp_eq_u32 {s_w}, 0", [I("buffer_wbl2 sc1", tag="wbl2")])
            if t == o["b1tile"] + o["wb"]:
                p += [wait(need=["wbl2"] if o["wb"] else []), self.gsignal()]
            if t == o["poll2"] - 1:
                extra.append(self.bg_setup())
            if t == o["poll2"]:
                extra.append(pa)
            if t == o["poll2"] + 2:
                extra.append(pb)
            if t >= t0:
                extra += loads[(t - t0) * per:(t - t0 + 1) * per]
            p += e[0:2]
            if t > 0:
                p.append(self.pv(t - 1)[1])
            p += self.v_reads(t)
            p += e[2:5]
            if t < 63:
                p.append(self.qk(t + 1)[0])
            p += e[5:9]
            if t < 63:
                p.append(self.qk(t + 1)[1])
            if t < 62:
                p += self.k_reads(t + 2)
            p += e[9:12]
            p.append(self.pv(t)[0])
            p += extra
            p += e[12:16]
        p.append(self.pv(63)[1])
        return p

    def slow_path(self):
        S = SREG
        mx, ak, av, ar = f"v{TMP}", f"v{AK}", f"v{AV}", f"v{AR}"

        def qk(q):
            o = f"    ds_read_b128 {vr(KM, 4)}, {ak} offset:{1024 * q}\n"
            o += f"    ds_read_b32 v{KR}, {ar} offset:{8704 + 256 * (q >> 1)}\n"
            o += "    s_waitcnt lgkmcnt(0)\n"
            o += "    " + self.qk(q)[0].text.replace(vr(S + 16, 16), vr(S, 16)) + "\n"
            o += "    " + self.qk(0)[1].text + "\n    s_nop 15\n"
            return o

        adv = f"""    v_add_u32 {ak}, 9216, {ak}
    v_add_u32 {av}, 9216, {av}
    v_add_u32 {ar}, 9216, {ar}
    s_sub_u32 {s_t0}, {s_t0}, 1
    s_cmp_lg_u32 {s_t0}, 0
"""
        s = f"""    v_mov_b32 v{QRA + 1}, 0
    v_mov_b32 v{QRB + 1}, 0
    v_mov_b32 {mx}, 0xff800000
    s_mov_b32 {s_t0}, 16
L_slow1:
"""
        for q in range(4):
            s += qk(q)
            for i in range(8):
                s += f"    v_max3_f32 {mx}, {mx}, v{S + 2 * i}, v{S + 2 * i + 1}\n"
        s += adv + f"""    s_cbranch_scc1 L_slow1
    v_mov_b32 v{TMP + 1}, {mx}
    s_nop 1
    v_permlane32_swap_b32 v{TMP + 1}, {mx}
    s_nop 1
    v_max_f32 {mx}, {mx}, v{TMP + 1}
    v_subrev_u32 {ak}, {16 * 9216}, {ak}
    v_subrev_u32 {av}, {16 * 9216}, {av}
    v_subrev_u32 {ar}, {16 * 9216}, {ar}
    s_mov_b32 {s_t0}, 16
L_slow2:
"""
        for q in range(4):
            s += f"""    s_mov_b64 exec, {s_msk}
    ds_read_b128 {vr(VA, 4)}, {av} offset:{4096 + 1152 * q}
    ds_read_b128 {vr(VB, 4)}, {av} offset:{4096 + 1152 * q + 576}
    s_mov_b64 exec, -1
"""
            s += qk(q)
            for i in range(16):
                s += f"    v_sub_f32 v{S + i}, v{S + i}, {mx}\n"
            for i in range(16):
                s += f"    v_exp_f32 v{S + i}, v{S + i}\n"
            s += "    s_nop 1\n    " + self.pv(0)[0].text + "\n    " + self.pv(0)[1].text + "\n    s_nop 3\n"
        s += adv + "    s_cbranch_scc1 L_slow2\n"
        pa, pb = self.poll2()
        return [label("L_slow"), raw("    s_waitcnt vmcnt(0) lgkmcnt(0)\n    s_barrier"),
                raw("    buffer_wbl2 sc1\n    s_waitcnt vmcnt(0)" if self.o["wb"] else "    s_nop 0"), self.gsignal(), raw(s),
                self.bg_setup(), pa, pb, self.bg_loads(),
                raw("    s_waitcnt vmcnt(0) lgkmcnt(0)\n    s_nop 15\n    s_branch L_att_done")]

    def final(self):
        O = OREG
        tok, g, x0, x1 = "v12", "v13", "v14", "v15"
        SEL, BIA, BI9, GG = 16, 96, 4, 2
        AB, AA, NB_, NA = 64, 72, 80, 88
        BB = 40
        p = [f"""
    v_and_b32 {tok}, 15, v{LANE}
    v_lshrrev_b32 {g}, 4, v{LANE}
    v_lshlrev_b32 {x0}, 3, {tok}
    v_lshl_add_u32 {x0}, {g}, 2, {x0}
    v_rcp_f32 v{O + 10}, v{O + 10}"""]
        p += [f"v_mul_f32 v{O + i}, v{O + i}, v{O + 10}" for i in range(10)]
        p += [f"v_cvt_pk_bf16_f32 v{O + 12 + i}, v{O + 2 * i}, v{O + 2 * i + 1}" for i in range(4)]
        p += [I(f"buffer_store_dwordx4 {vr(O + 12, 4)}, v{L16}, {sWS}, {s_oun} offen sc1", tag="ost"),
              f"v_cvt_pk_bf16_f32 v{O + 11}, v{O + 8}, v{O + 9}",
              "s_mov_b32 exec_hi, 0",
              I(f"buffer_store_dword v{O + 11}, {x0}, {sWS}, {s_oun} offen offset:1024 sc1", tag="ost"),
              "s_mov_b64 exec, -1"]
        p += [f"""
    s_lshr_b32 {s_t2}, {s_j}, 2
    s_mul_i32 {s_t0}, {s_t2}, 288
    s_lshl_b32 {s_t1}, {s_w}, 5
    s_add_u32 {s_t1}, {s_t1}, {s_t0}
    v_lshlrev_b32 {x1}, 3, {g}""",
              I(f"buffer_load_dwordx2 {vr(BIA + 2, 2)}, {x1}, {sB2}, {s_t1} offen"),
              I(f"buffer_load_dwordx2 {vr(BI9 + 2, 2)}, {x1}, {sB2}, {s_t0} offen offset:256"), f"""
    s_and_b32 {s_t1}, {s_j}, 3
    s_lshl_b32 {s_t1}, {s_t1}, 7
    s_add_u32 {s_t1}, {s_t1}, {L_GT}
    v_lshl_add_u32 {x0}, {tok}, 2, {s_t1}
    ds_read2_b32 {vr(GG, 2)}, {x0} offset0:0 offset1:16
    v_and_b32 {x0}, 1, {tok}
    v_lshlrev_b32 {x0}, 4, {x0}
    v_mov_b32 {x1}, 0x3f80
    v_lshlrev_b32 {x0}, {x0}, {x1}
    v_lshrrev_b32 {x1}, 1, {tok}
    v_lshlrev_b32 v8, 1, {g}
    v_cmp_eq_u32 vcc, v8, {x1}
    v_cndmask_b32 v{SEL + 2}, 0, {x0}, vcc
    v_add_u32 v8, 1, v8
    v_cmp_eq_u32 vcc, v8, {x1}
    v_cndmask_b32 v{SEL + 3}, 0, {x0}, vcc
    v_mov_b32 v{SEL}, 0
    v_mov_b32 v{SEL + 1}, 0
    v_mov_b32 v{SEL + 4}, 0
    v_mov_b32 v{SEL + 5}, 0
    v_mov_b32 v9, 1""",
              wait(need=["ost"]), "s_mov_b64 exec, 1",
              I(f"buffer_store_dword v9, v{L16}, {sWS}, {s_oun} offen offset:1152 sc1"), "s_mov_b64 exec, -1",
              self.ts("oflag")]
        load = f"buffer_load_dword v10, v11, {sWS}, {s_d1} offen offset:1152 sc1"
        p += [f"""
    s_and_b32 {s_t0}, {s_j}, 3
    s_lshl_b32 {s_t1}, {s_tt}, 2
    s_add_u32 {s_t0}, {s_t0}, {s_t1}
    s_lshl_b32 {s_t0}, {s_t0}, 3
    s_add_u32 {s_t0}, {s_t0}, {s_w}
    s_mul_i32 {s_d1}, {s_t0}, 5120
    s_add_u32 {s_d1}, {s_d1}, {WS_O:#x}
    v_and_b32 v11, 3, v{LANE}
    v_mul_u32_u24 v11, 1280, v11
    s_cmp_eq_u32 {s_w}, 0
    s_cselect_b32 {s_t0}, -1, 0
    v_and_b32 v{BI9 + 2}, {s_t0}, v{BI9 + 2}
    v_and_b32 v{BI9 + 3}, {s_t0}, v{BI9 + 3}"""]
        for b in (BIA, BI9):
            p += [f"""
    v_lshlrev_b32 v{b}, 16, v{b + 2}
    v_and_b32 v{b + 1}, 0xffff0000, v{b + 2}
    v_lshlrev_b32 v{b + 2}, 16, v{b + 3}
    v_and_b32 v{b + 3}, 0xffff0000, v{b + 3}"""]
        sums = []
        for k in range(18):
            acc, c = (AB, BIA) if k < 16 else (NB_, BI9)
            for h in range(2):
                sums.append(mf16(acc + 4 * h, SEL + 2 - 2 * h, PREG + 4 * k, vr(c, 4) if k in (0, 16) else None))
        p += sums[:24]
        p += [barrier(), load, sums[24:], self.spin(load, 10, "v_cmp_ne_u32 vcc, 1, v10"), self.ts("opoll"),
              f"s_mul_i32 {s_t0}, {s_w}, 5120", f"s_mov_b32 m0, {s_t0}"]
        for k in range(4):
            oo = f" offset:{KB * k}" if k else ""
            p.append(I(f"buffer_load_dwordx4 v{L16}, {sWS}, {s_d1} offen{oo} sc1 lds", tag="odma"))
        p += [f"s_add_u32 m0, {s_t0}, 4096", f"s_add_u32 {s_d1}, {s_d1}, 4096",
              I(f"buffer_load_dwordx4 v{L16}, {sWS}, {s_d1} offen sc1 lds", tag="odma")]
        a9, ar, ast, an9 = "v8", "v9", "v10", "v11"
        p += [f"""
    s_lshr_b32 {s_t2}, {s_j}, 2
    s_add_u32 {s_t1}, {s_t2}, {s_w}""",
              self.cond(f"s_bitcmp1_b32 {s_t1}, 1", [f"v_swap_b32 v{AB + i}, v{AB + 4 + i}" for i in range(4)]),
              self.cond(f"s_bitcmp1_b32 {s_t2}, 1", [f"v_swap_b32 v{NB_ + i}, v{NB_ + 4 + i}" for i in range(4)]),
              f"""
    v_add_u32 {a9}, {s_t0}, v{L16}
    v_mul_u32_u24 {ar}, 5120, {g}
    v_lshl_add_u32 {ar}, {tok}, 3, {ar}
    v_mul_u32_u24 {ast}, 272, {tok}
    v_lshl_add_u32 {ast}, {g}, 3, {ast}
    s_lshl_b32 {s_t1}, {s_w}, 5
    v_add_u32 {ast}, {s_t1}, {ast}
    v_lshlrev_b32 {an9}, 6, {tok}
    v_lshl_add_u32 {an9}, {g}, 4, {an9}
    s_lshl_b32 {s_t1}, {s_w}, 11
    v_add_u32 {an9}, {s_t1}, {an9}""", barrier(need=["odma"]), self.ts("oland")]
        seq = []
        for k in range(2):
            for t in range(2):
                seq.append((lambda b, k=k, t=t: [f"ds_read_b128 {vr(b, 4)}, {a9} offset:{2560 * k + 1280 * t}"],
                            lambda b, k=k, t=t: [mf16(NA + 4 * t, WREG + 72 + 4 * k, b, "0" if k == 0 else None)]))
        for u in range(2):
            for t in range(2):
                seq.append((lambda b, u=u, t=t: [
                    f"ds_read_b64 {vr(b + 2 * i, 2)}, {ar} offset:{20480 * u + 1280 * t + 2560 * i + 1024}" for i in range(2)],
                    lambda b, u=u, t=t: [mf16(AA + 4 * t, WREG + 64 + 4 * u, b, "0" if u == 0 else None),
                                         self.cond(f"s_cmp_eq_u32 {s_w}, {u}", [mf16(NA + 4 * t, WREG + 80, b)])]))
        for k in range(16):
            for t in range(2):
                seq.append((lambda b, k=k, t=t: [f"ds_read_b128 {vr(b, 4)}, v{L16} offset:{2560 * k + 1280 * t}"],
                            lambda b, k=k, t=t: [mf16(AA + 4 * t, WREG + 4 * k, b)]))
        NBUF = 6
        n9 = []
        for t in range(2):
            n9 += [f"v_sub_f32 v{NA + 4 * t + i}, v{NA + 4 * t + i}, v{NB_ + 4 * t + i}" for i in range(4)]
            n9 += [f"v_fmac_f32 v{NB_ + 4 * t + i}, v{NA + 4 * t + i}, v{GG + t}" for i in range(4)]
            n9.append(f"ds_write_b128 {an9}, {vr(NB_ + 4 * t, 4)} offset:{L_N9 + 1024 * t}")
        for i in range(NBUF):
            p += seq[i][0](BB + 4 * i)
        for i in range(len(seq)):
            p += seq[i][1](BB + 4 * (i % NBUF))
            if i + NBUF < len(seq):
                p += seq[i + NBUF][0](BB + 4 * (i % NBUF))
            if 14 <= i < 14 + len(n9):
                p.append(n9[i - 14])
        for t in range(2):
            p += [f"v_sub_f32 v{AA + 4 * t + i}, v{AA + 4 * t + i}, v{AB + 4 * t + i}" for i in range(4)]
            p += [f"v_fmac_f32 v{AB + 4 * t + i}, v{AA + 4 * t + i}, v{GG + t}" for i in range(4)]
            p += [f"v_cvt_pk_bf16_f32 v{AA + 4 * t + i}, v{AB + 4 * t + 2 * i}, v{AB + 4 * t + 2 * i + 1}" for i in range(2)]
            p.append(f"ds_write_b64 {ast}, {vr(AA + 4 * t, 2)} offset:{L_STG + 16 * 272 * t}")
        p += [f"""
    s_lshl_b32 {s_t1}, {s_w}, 2
    v_add_u32 {x0}, {s_t1}, {g}
    v_mul_u32_u24 {ast}, 272, {x0}
    v_lshl_add_u32 {ast}, {tok}, 4, {ast}
    s_lshl_b32 {s_t1}, {s_w}, 8
    s_add_u32 {s_t1}, {s_t1}, {L_N9}
    v_lshl_add_u32 {an9}, v{LANE}, 2, {s_t1}
    v_mul_u32_u24 {x0}, 1152, {x0}
    v_lshl_add_u32 {x1}, {tok}, 1, {x0}
    v_lshl_add_u32 {x0}, {tok}, 4, {x0}
    s_and_b32 {s_t0}, {s_j}, 3
    s_lshl_b32 {s_t1}, {s_tt}, 2
    s_add_u32 {s_t0}, {s_t0}, {s_t1}
    s_mul_i32 {s_t0}, {s_t0}, {32 * 1152}
    s_mul_i32 {s_t1}, {s_t2}, 288
    s_add_u32 {s_t0}, {s_t0}, {s_t1}""", barrier(), f"ds_read_b128 {vr(BB, 4)}, {ast} offset:{L_STG}"]
        p += [f"ds_read2st64_b32 {vr(BB + 4 + 2 * i, 2)}, {an9} offset0:{16 * i} offset1:{16 * i + 8}" for i in range(4)]
        p += [I(f"buffer_store_dwordx4 {vr(BB, 4)}, {x0}, {sOUT}, {s_t0} offen")]
        p += [f"v_add_f32 v{BB + 4 + 2 * i}, v{BB + 4 + 2 * i}, v{BB + 5 + 2 * i}" for i in range(4)]
        p += [f"""
    v_add_f32 v{BB + 4}, v{BB + 4}, v{BB + 6}
    v_add_f32 v{BB + 8}, v{BB + 8}, v{BB + 10}
    v_add_f32 v{BB + 4}, v{BB + 4}, v{BB + 8}
    v_cvt_pk_bf16_f32 v{BB + 4}, v{BB + 4}, v{BB + 4}""",
              I(f"buffer_store_short v{BB + 4}, {x1}, {sOUT}, {s_t0} offen offset:256")]
        return p

    def diag_dump(self):
        if not self.o["diag"]:
            return []
        s = "    s_waitcnt vmcnt(0)\n"
        p = [raw(s), self.ts("end")]
        s = f"""    s_memtime s[100:101]
    s_waitcnt lgkmcnt(0)
    s_sub_u32 s100, s100, s98
    s_lshl_b32 {s_t0}, s2, 3
    s_add_u32 {s_t0}, {s_t0}, {s_w}
    s_lshl_b32 {s_t0}, {s_t0}, 6
    s_add_u32 {s_t0}, {s_t0}, {WS_DIAG:#x}
    s_mov_b64 exec, 1
"""
        srcs = ["s98" if self.o["diag"] == 2 else "s96", "s100"] + [f"s{4 + 2 * k}" for k in range(self.nts)]
        for i, r in enumerate(srcs):
            s += f"    v_mov_b32 v1, {r}\n    buffer_store_dword v1, v{L16}, {sWS}, {s_t0} offen offset:{4 * i}\n"
        return p + [raw(s)]

    def experiments(self, text):
        o = self.o
        out = []
        nb = 0
        for l in text.split("\n"):
            if "s_barrier" in l:
                nb += 1
            ffn = 9 < nb < 34
            if o["x_nodma"] and ffn and (" lds" in l or "load_lds" in l):
                continue
            if o["x_nobar"] and ffn and "s_barrier" in l:
                continue
            if o["x_nost"] and ffn and "buffer_store_dwordx4" in l:
                continue
            if o["x_nogelu"] and nb < 25 and any(f" v{TMP + i}," in l for i in range(4)) and l.strip().startswith("v_") \
                    and "mfma" not in l:
                continue
            if o["x_fast"] and "s_cbranch_scc1 L_slow" in l:
                continue
            out.append(l)
        return "\n".join(out)

    def build(self):
        p0, p1 = self.prologue()
        pre_dma, body, a0_dma, epi = self.ffn()
        prog = [p0, pre_dma, p1, body,
                barrier(need=self.need_a0), self.ts("a0"), a0_dma,
                [f"v_mov_b32 v{OREG + i}, 0" for i in range(16)], epi,
                f"s_cmp_lg_u64 {s_slow}, 0", "s_cbranch_scc1 L_slow",
                self.attention(), label("L_att_done"), self.ts("aend"), self.final(), self.diag_dump(),
                label("L_end"), "s_endpgm"]
        text, stats = finalize(prog)
        text = self.experiments(text)
        text2, _ = finalize(self.slow_path())
        self.stats = stats
        ref = open(f"cdna_kernels/{NAME}.s.ref").read().split("\n")
        head = [l for l in ref if l.startswith(";") and "@launch" not in l and "Override launch" not in l
                and "grid=ceil" not in l]
        out = "\n".join(head) + f"""
; @launch grid=(256,1,1) block=(512,1,1) lds=163840
; Generated by gen/gen.py. One workgroup per CU: 128 tokens x (288 hidden units, 2 heads).
.amdgcn_target "amdgcn-amd-amdhsa--gfx950"
.text
.globl {NAME}_kernel
.p2align 8
.type {NAME}_kernel,@function
{NAME}_kernel:
{text}{text2}
.section .rodata,"a"
.p2align 6
.amdhsa_kernel {NAME}_kernel
  .amdhsa_next_free_vgpr 256
  .amdhsa_next_free_sgpr 102
  .amdhsa_accum_offset 256
  .amdhsa_group_segment_fixed_size 0
  .amdhsa_kernarg_size 112
  .amdhsa_user_sgpr_count 2
  .amdhsa_user_sgpr_kernarg_segment_ptr 1
  .amdhsa_system_sgpr_workgroup_id_x 1
.end_amdhsa_kernel
"""
        return out


def parse_opts(args):
    kw = {}
    for a in args:
        k, v = a.split("=", 1)
        d = DEFAULTS[k]
        kw[k] = type(d)(v)
    return kw


if __name__ == "__main__":
    out = sys.argv[1]
    g = Gen(**parse_opts(sys.argv[2:]))
    open(out, "w").write(g.build())
    print(g.stats, g.tsnames)
```

```python
import math
import struct
import sys

from asmlib import I, barrier, finalize, label, opt_begin, opt_end, raw, setbase, vr, wait

NAME = "gated_mix__grouped_kv_mqa__dense_activation_gelu__prompt"
KB = 1024
U = 8192

DEFAULTS = dict(
    b=4,
    diag=0,
    burst=9,
    lead=10,
    gx=8,
    kvsig=2,
    kvpoll=4,
    b1tile=16,
    poll2=34,
    pst="sc1",
    thr=40.0,
    force_slow=0,
    ost="",
    x_pad="",
    wb=0,
    wsoff=0,
    x_nodma=0, x_nogelu=0, x_nobar=0, x_nost=0, x_fast=0,
)


def f32(x):
    return "0x%08x" % struct.unpack("<I", struct.pack("<f", x))[0]


WS_KV, WS_KN, WS_WO, WS_O, WS_P, WS_DIAG, WS_SIZE = 0, 147456, 0x40000, 0x100000, 0x400000, 0x3000000, 0x4000000
XREG = [11 * U, 0, 13 * U, 15 * U, 17 * U]
EX1, EX2, EX2H = 13 * U, 14 * U, 16 * U
QSCR, WOSCR, MISC = 136 * KB, 148 * KB, 152 * KB
L_B1, L_GATE, L_GT = MISC, MISC + 2048, MISC + 4096
L_STG, L_N9 = 40 * KB, 50 * KB


def ring(n):
    return ((n + 2) % 13) * U


sX, sW1, sW2, sWS, sDBG, sOUT, sWO, sB1, sB2, sG = (f"s[{a}:{a + 3}]" for a in range(32, 72, 4))
s_w, s_p, s_hf, s_tt, s_j = "s72", "s73", "s74", "s75", "s76"
s_xo, s_m, s_w1o, s_who, s_whmax = "s77", "s78", "s79", "s80", "s81"
s_w2a, s_w2b, s_mb, s_kb, s_pst, s_oun = "s82", "s83", "s84", "s85", "s86", "s87"
s_t0, s_t1, s_d0, s_d1 = "s88", "s89", "s90", "s91"
s_msk, s_slow = "s[92:93]", "s[94:95]"
s_t2 = "s3"

L16, C0, AW, ABIAS, DW1, AWH, DWH, AQ, AGATE, TMP = 0, 1, 2, 4, 5, 6, 7, 8, 11, 12
DQ, SQ, DW2, AEXW, LANE, ABH = 16, 18, 20, 21, 22, 23
AEXR, QN2 = 5, 23
ABUF, ACC, HOWN, HH, XO = 24, 40, 72, 104, 112
RQBUF, AQ2, HOTH = 184, 220, 224
GADDR, GACC, GP, T = 112, 120, 152, 168
QM, QRA, QRB, KM, KR, IDX, VA, VB = 40, 44, 46, 48, 52, 54, 56, 60
SREG, OREG, PREG, WREG = 64, 24, 100, 172
AK, AV, AR = 2, 3, 4


def X(ks, t):
    return XO + 72 * t + 4 * ks


LOG2E = math.log2(math.e)
GC0 = -2.0 * LOG2E * math.sqrt(2.0 / math.pi)
GC1 = GC0 * 0.044715
QSCALE = LOG2E / math.sqrt(18.0)


def ds(text, off, **kw):
    return I(text, off=off, **kw)


def mf16(d, a, b, c=None):
    c = vr(d, 4) if c is None else c
    return I(f"v_mfma_f32_16x16x32_bf16 {vr(d, 4)}, {vr(a, 4)}, {vr(b, 4)}, {c}")


class Gen:
    def __init__(self, **kw):
        self.o = dict(DEFAULTS)
        self.o.update(kw)
        self.nl = 0
        self.nts = 0
        self.tsnames = []

    def lab(self, s):
        self.nl += 1
        return f"L_{s}_{self.nl}"

    def ts(self, name):
        if self.o["x_pad"] == name:
            l = self.lab("pad")
            return [raw(f"""{l}:
    s_memrealtime s[4:5]
    s_waitcnt lgkmcnt(0)
    s_sub_u32 s4, s4, s96
    s_cmp_lt_u32 s4, 10000
    s_cbranch_scc1 {l}""")]
        if not self.o["diag"]:
            return []
        k = self.nts
        self.nts += 1
        assert k < 14
        self.tsnames.append(name)
        op = "s_memtime" if self.o["diag"] == 2 else "s_memrealtime"
        return [raw(f"    {op} s[{4 + 2 * k}:{5 + 2 * k}]")]

    def cond(self, cmp, body):
        l = self.lab("skip")
        return [cmp, f"s_cbranch_scc0 {l}", opt_begin(), body, opt_end(), label(l)]

    def spin(self, load, reg, cmp_neq):
        lo, ld = self.lab("ok"), self.lab("spin")
        return [cmp_neq, "s_cmp_eq_u64 vcc, 0", f"s_cbranch_scc1 {lo}", opt_begin(),
                raw(f"""    s_mov_b32 {s_t2}, 0x8000
{ld}:
    s_sleep 2
    {load}
    s_waitcnt vmcnt(0)
    {cmp_neq}
    s_nop 1
    s_cmp_eq_u64 vcc, 0
    s_cbranch_scc1 {lo}
    s_sub_u32 {s_t2}, {s_t2}, 1
    s_cmp_lg_u32 {s_t2}, 0
    s_cbranch_scc1 {ld}"""), opt_end(), label(lo)]

    def prologue(self):
        b = self.o["b"]
        nb, lb = 16 // b, b.bit_length() - 1
        t = HOWN + 5
        l3, l7, g, tok, r, c4, w1 = (f"v{t + i}" for i in range(7))
        a, bb, cc = f"v{t + 7}", f"v{t + 8}", f"v{t + 9}"
        DX = HOWN + 4
        p = []
        if self.o["diag"] or self.o["x_pad"]:
            p += [raw("    s_memrealtime s[96:97]\n    s_memtime s[98:99]")]
        p += [f"""
    s_cmp_ge_u32 s2, 256
    s_cbranch_scc1 L_end""", raw("""    s_load_dwordx16 s[4:19], s[0:1], 0
    s_load_dwordx8 s[20:27], s[0:1], 64
    s_load_dwordx4 s[28:31], s[0:1], 96"""), f"""
    v_lshrrev_b32 {a}, 6, v0
    v_and_b32 v{LANE}, 63, v0
    v_readfirstlane_b32 {s_w}, {a}
    v_lshlrev_b32 v{t + 10}, 1, v0
    v_lshlrev_b32 v{t + 11}, 2, v0
    v_lshrrev_b32 {l3}, 3, v{LANE}
    v_and_b32 {l7}, 7, v{LANE}
    v_lshrrev_b32 {g}, 4, v{LANE}
    v_and_b32 {w1}, 1, {a}
    v_lshlrev_b32 {w1}, 2, {w1}
    s_and_b32 {s_t0}, s2, {nb - 1}
    s_lshl_b32 {s_j}, {s_t0}, {lb}
    s_lshr_b32 {s_t0}, s2, 3
    s_and_b32 {s_t1}, {s_t0}, {b - 1}
    s_add_u32 {s_j}, {s_j}, {s_t1}
    s_lshr_b32 {s_tt}, {s_t0}, {lb}
    s_and_b32 {s_t0}, s2, 7
    s_lshr_b32 {s_t0}, {s_t0}, {nb.bit_length() - 1}
    s_mul_i32 {s_t0}, {s_t0}, {32 // b}
    s_add_u32 {s_tt}, {s_tt}, {s_t0}
    s_and_b32 {s_p}, {s_w}, 3
    s_lshr_b32 {s_hf}, {s_w}, 2
    s_lshl_b32 {s_m}, {s_w}, 10
    s_lshl_b32 {s_t0}, {s_tt}, 4
    s_add_u32 {s_t0}, {s_t0}, {s_w}
    s_mul_i32 {s_xo}, {s_t0}, {8 * 1152}
    s_and_b32 {s_t1}, {s_j}, 1
    s_mul_i32 {s_t0}, {s_j}, 576
    s_lshl_b32 {s_t2}, {s_t1}, 6
    s_add_u32 {s_w1o}, {s_t0}, {s_t2}
    s_mul_i32 {s_t2}, {s_w}, {8 * 9216}
    s_add_u32 {s_w1o}, {s_w1o}, {s_t2}
    v_add_u32 {a}, {w1}, {g}
    v_xor_b32 {a}, {a}, {l7}
    v_lshlrev_b32 {a}, 4, {a}
    v_mul_u32_u24 {bb}, 1152, {l3}
    v_add_u32 v{DX}, {a}, {bb}
    v_and_b32 {a}, 1, {g}
    v_lshl_add_u32 {a}, {a}, 1, {w1}
    v_xor_b32 {cc}, {a}, {l7}
    v_lshlrev_b32 {a}, 4, {cc}
    v_mul_u32_u24 v{DW1}, 9216, {l3}
    v_add_u32 v{DW1}, {a}, v{DW1}
    s_mov_b32 s34, {2048 * 1152}
    s_mov_b32 s35, 0x20000
    s_mov_b32 s38, {576 * 9216}
    s_mov_b32 s39, 0x20000
    s_mov_b32 s62, 9216
    s_mov_b32 s63, 0x20000
    s_mov_b32 s70, 1152
    s_mov_b32 s71, 0x20000""", raw("    s_waitcnt lgkmcnt(0)"), """
    s_mov_b32 s32, s4
    s_mov_b32 s33, s5
    s_mov_b32 s36, s16
    s_mov_b32 s37, s17
    s_mov_b32 s60, s18
    s_mov_b32 s61, s19
    s_mov_b32 s68, s24
    s_mov_b32 s69, s25""",
              I(f"buffer_load_ushort v{t + 14}, v{t + 10}, {sB1}, {s_t0} offen"),
              I(f"buffer_load_dword v{t + 15}, v{t + 11}, {sG}, 0 offen")]
        q = [f"""
    s_mov_b32 s40, s20
    s_mov_b32 s41, s21
    s_mov_b32 s42, {4608 * 1152}
    s_mov_b32 s43, 0x20000
    s_add_u32 s44, s30, {self.o['wsoff'] << 20:#x}
    s_addc_u32 s45, s31, 0
    s_mov_b32 s46, {WS_SIZE:#x}
    s_mov_b32 s47, 0x20000
    s_mov_b32 s48, s28
    s_mov_b32 s49, s29
    s_mov_b32 s50, 256
    s_mov_b32 s51, 0x20000
    s_mov_b32 s52, s26
    s_mov_b32 s53, s27
    s_mov_b32 s54, {2048 * 1152}
    s_mov_b32 s55, 0x20000
    s_mov_b32 s56, s12
    s_mov_b32 s57, s13
    s_mov_b32 s58, {576 * 1152}
    s_mov_b32 s59, 0x20000
    s_mov_b32 s64, s22
    s_mov_b32 s65, s23
    s_mov_b32 s66, 1152
    s_mov_b32 s67, 0x20000
    s_and_b32 {s_t1}, {s_j}, 1
    s_mul_i32 {s_t0}, {s_j}, 576
    s_xor_b32 {s_t2}, {s_t1}, 1
    s_lshl_b32 {s_t2}, {s_t2}, 9
    s_add_u32 {s_t0}, {s_t0}, {s_t2}
    s_add_u32 {s_whmax}, {s_t0}, {560 * 9216}
    s_mul_i32 {s_who}, {s_w}, {16 * 9216}
    s_add_u32 {s_who}, {s_who}, {s_t0}
    s_mul_i32 {s_t0}, {s_j}, {288 * 1152}
    s_mul_i32 {s_w2a}, {s_w}, {8 * 1152}
    s_add_u32 {s_w2a}, {s_w2a}, {s_t0}
    s_mul_i32 {s_t0}, {s_hf}, {(128 - 288 * 1152) & 0xFFFFFFFF:#x}
    s_add_u32 {s_w2b}, {s_w2a}, {s_t0}
    s_mul_i32 {s_t0}, {s_hf}, {108 * KB}
    s_sub_u32 {s_mb}, {s_m}, {s_t0}
    s_mul_i32 {s_t0}, {s_hf}, {144 * KB}
    s_sub_u32 {s_kb}, {s_m}, {s_t0}
    s_lshl_b32 {s_t0}, {s_tt}, 2
    s_add_u32 {s_t0}, {s_t0}, {s_p}
    s_mul_i32 {s_pst}, {s_t0}, {36 * 16384}
    s_lshl_b32 {s_t2}, {s_hf}, 15
    s_add_u32 {s_pst}, {s_pst}, {s_t2}
    s_lshl_b32 {s_t2}, {s_j}, 10
    s_add_u32 {s_pst}, {s_pst}, {s_t2}
    s_add_u32 {s_pst}, {s_pst}, {WS_P:#x}
    s_lshl_b32 {s_t0}, {s_t0}, 4
    s_add_u32 {s_t0}, {s_t0}, {s_j}
    s_lshl_b32 {s_t0}, {s_t0}, 1
    s_add_u32 {s_t0}, {s_t0}, {s_hf}
    s_mul_i32 {s_oun}, {s_t0}, 1280
    s_add_u32 {s_oun}, {s_oun}, {WS_O:#x}
    v_and_b32 {tok}, 15, v{LANE}
    v_bfe_u32 {r}, v{LANE}, 2, 2
    v_and_b32 {c4}, 3, v{LANE}
    v_lshlrev_b32 v{L16}, 4, v{LANE}
    v_mov_b32 v{C0}, {f32(GC0)}
    v_add_u32 v{AEXW}, {s_m}, v{L16}
    v_lshlrev_b32 v{AGATE}, 4, {g}
    s_add_u32 {s_t0}, {s_t1}, {s_hf}
    s_lshl_b32 {s_t0}, {s_t0}, 7
    v_add_u32 v{ABIAS}, {s_t0}, v{AGATE}
    s_xor_b32 {s_t0}, {s_t1}, 1
    s_lshl_b32 {s_t0}, {s_t0}, 4
    s_add_u32 {s_t0}, {s_t0}, {s_hf}
    s_lshl_b32 {s_t0}, {s_t0}, 6
    v_add_u32 v{ABH}, {s_t0}, v{AGATE}
    v_lshlrev_b32 {a}, 1, {g}
    v_xor_b32 {a}, {a}, {l7}
    v_lshl_add_u32 v{DW2}, {a}, 4, {bb}
    v_lshrrev_b32 {a}, 5, v{LANE}
    v_lshlrev_b32 {a}, 1, {a}
    v_xor_b32 {a}, {a}, {c4}
    v_lshrrev_b32 v{DWH}, 2, v{LANE}
    v_mul_u32_u24 v{DWH}, 9216, v{DWH}
    v_lshl_add_u32 v{DWH}, {a}, 4, v{DWH}""",
             f"""
    v_lshrrev_b32 {a}, 1, {tok}
    v_xor_b32 {a}, {a}, {g}
    v_lshlrev_b32 {a}, 4, {a}
    v_lshl_add_u32 {a}, {tok}, 7, {a}
    s_lshl_b32 {s_t0}, {s_p}, 1
    s_add_u32 {s_t0}, {s_t0}, {s_hf}
    s_lshl_b32 {s_t0}, {s_t0}, 11
    s_add_u32 {s_t0}, {s_t0}, {XREG[0]}
    v_add_u32 v{HOWN}, {s_t0}, {a}
    v_xor_b32 v{HOWN + 1}, 64, v{HOWN}
    v_xor_b32 v{HOWN + 2}, 0x800, v{HOWN}
    v_xor_b32 v{HOWN + 3}, 0x840, v{HOWN}""", [setbase(f"v{HOWN + i}", XREG[0]) for i in range(4)],
             f"""
    v_mov_b32 v{t + 12}, {l3}
    v_lshrrev_b32 {a}, 1, {r}
    v_and_b32 {l3}, 1, {g}
    v_lshl_add_u32 {l3}, {l3}, 1, {a}
    v_lshlrev_b32 {l3}, 5, {l3}
    v_lshl_add_u32 {l7}, {g}, 3, {r}
    v_lshlrev_b32 {w1}, 3, {c4}
    s_lshl_b32 {s_t0}, {s_hf}, 6
    v_add_u32 {a}, {s_t0}, {w1}
    v_xor_b32 {a}, {a}, {l3}
    v_lshl_add_u32 v{AW}, {l7}, 7, {a}
    v_xor_b32 v{AW + 1}, 32, v{AW}
    v_and_b32 {a}, 1, {g}
    v_xor_b32 {a}, {s_hf}, {a}
    v_lshl_add_u32 {a}, {a}, 5, {w1}
    v_lshl_add_u32 v{AWH}, {l7}, 6, {a}
    s_lshl_b32 {s_t0}, {s_t1}, 3
    v_add_u32 {a}, {s_t0}, {w1}
    v_xor_b32 v{AQ}, {a}, {l3}
    v_lshl_add_u32 v{AQ}, {l7}, 7, v{AQ}
    v_add_u32 {a}, 32, {a}
    v_xor_b32 v{AQ + 1}, {a}, {l3}
    v_lshl_add_u32 v{AQ + 1}, {l7}, 7, v{AQ + 1}
    v_add_u32 {a}, 72, {w1}
    s_add_u32 {s_t2}, {s_t0}, 64
    v_mov_b32 {bb}, {s_t2}
    v_cmp_eq_u32 vcc, 0, {c4}
    v_cndmask_b32 {a}, {a}, {bb}, vcc
    s_sub_u32 {s_t2}, 104, {s_t0}
    v_mov_b32 {bb}, {s_t2}
    v_cmp_eq_u32 vcc, 3, {c4}
    v_cndmask_b32 {a}, {a}, {bb}, vcc
    v_xor_b32 {a}, {a}, {l3}
    v_lshl_add_u32 v{AQ + 2}, {l7}, 7, {a}""",
             [setbase(f"v{x}", 0) for x in (AW, AW + 1, AWH, AQ, AQ + 1, AQ + 2, ABIAS, ABH, AGATE, AEXW)],
             f"""
    s_lshl_b32 {s_t0}, {s_w}, 3
    v_add_u32 {l7}, {s_t0}, v{t + 12}
    s_mul_i32 {s_t0}, {s_j}, 72
    s_and_b32 {s_t0}, {s_t0}, 0xfffffff0
    v_mul_u32_u24 {a}, 1152, {l7}
    v_lshl_add_u32 {a}, {cc}, 4, {a}
    v_add_u32 {a}, {s_t0}, {a}
    s_lshl_b32 {s_t0}, {s_t1}, 4
    v_mov_b32 {bb}, {s_t0}
    v_cmp_eq_u32 vcc, 5, {cc}
    v_cndmask_b32 {bb}, 20, {bb}, vcc
    v_mad_u32_u24 {bb}, {l7}, 36, {bb}
    s_bitcmp1_b32 {s_j}, 1
    s_cselect_b32 s8, s10, s8
    s_cselect_b32 s9, s11, s9
    v_cmp_gt_u32 vcc, 5, {cc}
    v_cndmask_b32 v{SQ}, {bb}, {a}, vcc
    v_mov_b32 v{SQ + 1}, 0
    v_mov_b32 {a}, s6
    v_mov_b32 {bb}, s8
    v_cndmask_b32 v{DQ}, {bb}, {a}, vcc
    v_mov_b32 {a}, s7
    v_mov_b32 {bb}, s9
    v_cndmask_b32 v{DQ + 1}, {bb}, {a}, vcc
    v_lshl_add_u64 {vr(DQ, 2)}, {vr(SQ, 2)}, 0, {vr(DQ, 2)}
    v_mov_b32 {a}, {64 * 1152}
    v_mov_b32 {bb}, {64 * 36}
    v_cndmask_b32 v{SQ}, {bb}, {a}, vcc
    s_mov_b32 s92, 0x10001000
    s_mov_b32 s93, 0x10001000
    v_lshlrev_b32 v{t + 14}, 16, v{t + 14}
    v_add_u32 v{t + 11}, {MISC}, v{t + 11}
    ds_write_b32 v{t + 11}, v{t + 14}
    ds_write_b32 v{t + 11}, v{t + 15} offset:2048"""]
        return p, q

    def pieces(self):
        P = []
        DX = HOWN + 4

        def add(code, tag, lo, nblk, use0, use1, extra=(), **kw):
            P.append(dict(code=code, tag=tag, blocks=set(range(lo // KB, lo // KB + nblk)) | set(extra),
                          use0=use0, use1=use1, **kw))

        def w1(n):
            r, c = divmod(n, 9)
            st = f"x{c}" if r == 0 else f"r{r}_{c // 3}"
            add([f"s_add_u32 m0, {s_m}, {ring(n)}", f"s_add_u32 {s_d0}, {s_w1o}, {64 * c * 9216 + 128 * r}",
                 I(f"buffer_load_dwordx4 v{DW1}, {sW1}, {s_d0} offen lds", tag=f"w{n}")], f"w{n}", ring(n), 8, st, st)

        for c in range(9):
            for a in range(2):
                lo = XREG[c % 5] + a * U
                add([f"s_add_u32 m0, {s_m}, {lo}", f"s_add_u32 {s_d0}, {s_xo}, {64 * a * 1152 + 128 * c}",
                     I(f"buffer_load_dwordx4 v{DX}, {sX}, {s_d0} offen lds", tag=f"x{c}{a}")],
                    f"x{c}{a}", lo, 8, f"x{c}", f"x{c}")
            w1(c)
        for n in range(9, 36):
            w1(n)
        for u in range(5):
            n = 36 + u
            st = "h0" if u < 2 else "h1"
            code = [f"s_add_u32 m0, {s_m}, {ring(n)}", f"s_add_u32 {s_d0}, {s_who}, {128 * u * 9216}"]
            if u == 4:
                code.append(f"s_min_u32 {s_d0}, {s_d0}, {s_whmax}")
            code.append(I(f"buffer_load_dwordx4 v{DWH}, {sW1}, {s_d0} offen lds", tag=f"w{n}"))
            add(code, f"w{n}", ring(n), 8, st, st)
        for c in range(9):
            n = 41 + c
            code = [f"s_add_u32 m0, {s_m}, {ring(n)}",
                    I(f"global_load_lds_dwordx4 {vr(DQ, 2)}, off", tag=f"w{n}")]
            if c < 8:
                code.append(f"v_lshl_add_u64 {vr(DQ, 2)}, {vr(SQ, 2)}, 0, {vr(DQ, 2)}")
            add(code, f"w{n}", ring(n), 8, f"q{c // 3}", f"q{c // 3}")
        for u in range(41):
            R, rb = divmod(8 * u, 36)
            pos = (8 * u) % 108
            wrap = rb == 32
            code = [f"s_add_u32 m0, {s_mb if pos == 104 else s_m}, {pos * KB}",
                    f"s_add_u32 {s_d0}, {s_w2b if wrap else s_w2a}, {8 * rb * 1152 + 128 * R}",
                    I(f"buffer_load_dwordx4 v{DW2}, {sW2}, {s_d0} offen lds", tag=f"g{u}")]
            if u == 40:
                code = self.cond(f"s_cmp_eq_u32 {s_hf}, 0", code)
                add(code, f"g{u}", pos * KB, 4, "g8", "g8")
            elif wrap:
                add(code, f"g{u}", pos * KB, 4, f"g{R}", f"g{R}" if R else "gx", size=1,
                    second=(set(range((pos + 4) % 108, (pos + 4) % 108 + 4)), f"g{R + 1}"))
            else:
                add(code, f"g{u}", pos * KB, 8, f"g{R}", f"g{R}" if R else "gx")
        for u in range(18):
            pos = (108 + 8 * u) % 144
            base = s_kb if pos == 140 else s_m
            code = [f"s_add_u32 m0, {base}, {pos * KB}", f"s_add_u32 {s_d0}, {base}, {WS_KV + pos * KB}",
                    I(f"buffer_load_dwordx4 v{L16}, {sWS}, {s_d0} offen sc1 lds", tag=f"kv{u}")]
            first = "a0" if 8 * u < 9 * math.ceil((self.o["b1tile"] + 2) / 4) else "a1"
            P.append(dict(code=code, tag=f"kv{u}", blocks={(pos + i) % 144 for i in range(8)}, use0=first, use1="end",
                          notbefore=f"g{self.o['kvpoll'] + 1}"))
        return P

    def plan(self, steps, P, others):
        idx = {s: i for i, s in enumerate(steps)}
        users = []
        for q in P:
            users.append((q["blocks"], idx[q["use0"]], idx[q["use1"]]))
            if "second" in q:
                users.append((q["second"][0], idx[q["second"][1]], idx[q["second"][1]]))
        for lo, n, a, b in others:
            users.append((set(range(lo // KB, (lo + n + KB - 1) // KB)), idx[a], idx[b]))
        for i, (bl, a, b) in enumerate(users):
            for bl2, a2, b2 in users[:i]:
                assert not (bl & bl2) or b < a2 or b2 < a, ("LDS overlap", steps[a], steps[a2], sorted(bl & bl2))

        def earliest(bl, a):
            return max([b2 + 1 for bl2, a2, b2 in users if bl & bl2 and b2 < a], default=-1)

        cur = -1
        for k, q in enumerate(P):
            e = earliest(q["blocks"], idx[q["use0"]])
            if "second" in q:
                e = max(e, earliest(q["second"][0], idx[q["second"][1]]))
            if "notbefore" in q:
                e = max(e, idx[q["notbefore"]])
            cur = max(cur, e)
            while True:
                ahead = sum(1 for z in P[:k] if idx[z["use0"]] > cur and not z["tag"].startswith("kv"))
                lim = self.o["burst"] if cur < idx["x5"] else self.o["lead"]
                here = sum(1 for z in P[:k] if z["issue"] == cur)
                if q["tag"].startswith("kv"):
                    if here < 7 or cur >= idx["a0"]:
                        break
                elif ahead < lim:
                    break
                cur += 1
            q["issue"] = cur
            assert cur < idx[q["use0"]], (q["tag"], steps[cur])
        for q in P:
            bl = q["blocks"] | (q["second"][0] if "second" in q else set())
            for lo, n, a, b in others:
                o = set(range(lo // KB, (lo + n + KB - 1) // KB))
                if bl & o and idx[a] <= idx[q["use0"]]:
                    assert idx[b] < q["issue"], (q["tag"], a, b)

    def gelu_quad(self, src, dst):
        o = []
        tt = [f"v{TMP + i}" for i in range(4)]
        xs = [f"v{src + i}" for i in range(4)]
        for h in (0, 2):
            pr = list(zip(tt[h:h + 2], xs[h:h + 2]))
            o += [f"v_mul_f32 {t}, {x}, {x}" for t, x in pr]
            o += [f"v_fmamk_f32 {t}, {t}, {f32(GC1)}, v{C0}" for t, x in pr]
            o += [f"v_mul_f32 {t}, {t}, {x}" for t, x in pr]
            o += [f"v_exp_f32 {t}, {t}" for t, x in pr]
            o += [f"v_add_f32 {t}, 1.0, {t}" for t, x in pr]
            o += [f"v_rcp_f32 {t}, {t}" for t, x in pr]
            o += [f"v_mul_f32 {t}, {t}, {x}" for t, x in pr]
            o.append(f"v_cvt_pk_bf16_f32 v{dst + h // 2}, {pr[0][0]}, {pr[1][0]}")
        return o

    def bias(self, r, tt2, t):
        if r < 4:
            return ds(f"ds_read_b128 {vr(ACC + 16 * (r & 1) + 8 * tt2 + 4 * t, 4)}, v{ABIAS}", L_B1 + 256 * r + 64 * tt2)
        return ds(f"ds_read_b128 {vr(ACC + 4 * t, 4)}, v{ABH}", L_B1)

    def q_epilogue(self):
        a0, a1, a2 = ACC + 8, ACC + 12, AQ2
        tok, g, row, sc, aS = (f"v{56 + i}" for i in range(5))
        x0, x1 = "v61", "v62"
        o = [f"""
    v_and_b32 {tok}, 15, v{LANE}
    v_lshrrev_b32 {g}, 4, v{LANE}
    s_mul_i32 {s_t0}, {s_w}, 1536
    s_add_u32 {s_t0}, {s_t0}, {QSCR}
    v_mul_u32_u24 {row}, 96, {tok}
    v_add_u32 {row}, {s_t0}, {row}
    v_lshl_add_u32 {aS}, {g}, 3, {row}
    v_mov_b32 {sc}, {f32(QSCALE)}"""]
        o += [f"v_mul_f32 v{a0 + i}, v{a0 + i}, {sc}" for i in range(8)]
        o += [f"v_cmp_eq_u32 vcc, 0, {g}"]
        o += [f"v_cvt_pk_bf16_f32 v{T + 2 + i}, v{a0 + 2 * i}, v{a0 + 2 * i + 1}" for i in range(4)]
        o += [f"v_cndmask_b32 {sc}, 1.0, {sc}, vcc"]
        o += [f"v_mul_f32 v{a2 + i}, v{a2 + i}, {sc}" for i in range(4)]
        o += [f"v_cvt_pk_bf16_f32 v{T + 6 + i}, v{a2 + 2 * i}, v{a2 + 2 * i + 1}" for i in range(2)]
        o += [f"""
    ds_write_b64 {aS}, {vr(T + 2, 2)}
    ds_write_b64 {aS}, {vr(T + 4, 2)} offset:32
    ds_write_b64 {aS}, {vr(T + 6, 2)} offset:64
    v_and_b32 {x0}, 1, {g}
    v_mad_u32_u24 {x0}, {x0}, 36, {row}
    v_lshrrev_b32 {x1}, 1, {g}
    v_lshl_add_u32 {x1}, {x1}, 4, {x0}
    ds_read2_b32 {vr(QM, 2)}, {x1} offset0:0 offset1:1
    ds_read2_b32 {vr(QM + 2, 2)}, {x1} offset0:2 offset1:3
    ds_read_b32 v{QRA}, {x0} offset:32
    v_mul_f32 v{T + 8}, {f32(-LOG2E)}, v{a2}
    v_exp_f32 v{T + 8}, v{T + 8}
    s_lshl_b32 {s_t0}, {s_p}, 1
    s_add_u32 {s_t0}, {s_t0}, {s_hf}
    s_lshl_b32 {s_t0}, {s_t0}, 6
    s_add_u32 {s_t0}, {s_t0}, {L_GT}
    v_add_f32 v{T + 8}, 1.0, v{T + 8}
    v_rcp_f32 v{T + 8}, v{T + 8}
    v_lshl_add_u32 v{T + 9}, {tok}, 2, {s_t0}""",
              ["s_mov_b32 exec_lo, 0", "s_mov_b32 exec_hi, 0xffff0000", f"ds_write_b32 v{T + 9}, v{T + 8}",
               "s_mov_b64 exec, -1"],
              f"""
    v_mov_b32 v{QN2}, 0
    v_dot2_f32_bf16 v{QN2}, v{QM}, v{QM}, v{QN2}
    v_dot2_f32_bf16 v{QN2}, v{QM + 1}, v{QM + 1}, v{QN2}
    v_dot2_f32_bf16 v{QN2}, v{QM + 2}, v{QM + 2}, v{QN2}
    v_dot2_f32_bf16 v{QN2}, v{QM + 3}, v{QM + 3}, v{QN2}
    v_mov_b32 v{T + 10}, v{QN2}
    v_permlane32_swap_b32 v{T + 10}, v{QN2}
    v_add_f32 v{QN2}, v{QN2}, v{T + 10}
    v_dot2_f32_bf16 v{QN2}, v{QRA}, v{QRA}, v{QN2}
    v_cmp_gt_u32 vcc, 32, v{LANE}
    v_mov_b32 v{T + 10}, 0
    v_cndmask_b32 v{QRB}, v{QRA}, v{T + 10}, vcc
    v_cndmask_b32 v{QRA}, 0, v{QRA}, vcc"""]
        kblk = [f"""
    ds_read_b64 {vr(T + 10, 2)}, {row} offset:72
    ds_read_b64 {vr(T + 12, 2)}, {row} offset:80
    ds_read_b32 v{T + 14}, {row} offset:92
    s_mul_i32 {s_t0}, {s_tt}, 9216
    s_lshl_b32 {s_t1}, {s_p}, 1
    s_add_u32 {s_t1}, {s_t1}, {s_j}
    s_lshl_b32 {s_t1}, {s_t1}, 1
    s_add_u32 {s_t1}, {s_t1}, {s_hf}
    s_lshl_b32 {s_t1}, {s_t1}, 8
    s_add_u32 {s_t1}, {s_t1}, {s_t0}
    v_lshlrev_b32 {x0}, 3, {g}
    v_lshl_add_u32 {x0}, {tok}, 4, {x0}
    v_subrev_u32 {x0}, 8, {x0}
    s_mov_b32 exec_lo, 0xffff0000
    s_mov_b32 exec_hi, 0x0000ffff""",
                I(f"buffer_store_dwordx2 {vr(T + 6, 2)}, {x0}, {sWS}, {s_t1} offen sc1", tag="kvst"),
                "s_mov_b64 exec, -1",
                self.cond(f"s_cmp_eq_u32 {s_j}, 0", [f"""
    s_lshl_b32 {s_t1}, {s_p}, 1
    s_add_u32 {s_t1}, {s_t1}, {s_hf}
    s_lshl_b32 {s_t1}, {s_t1}, 6
    s_add_u32 {s_t1}, {s_t1}, {s_t0}
    s_add_u32 {s_t1}, {s_t1}, 8704
    v_lshlrev_b32 {x0}, 2, {tok}
    s_mov_b32 exec_lo, 0
    s_mov_b32 exec_hi, 0xffff0000""",
                    I(f"buffer_store_dword v{T + 7}, {x0}, {sWS}, {s_t1} offen sc1", tag="kvst"),
                    "s_mov_b64 exec, -1"]),
                f"""
    s_sub_u32 {s_t1}, {s_j}, 1
    v_and_b32 v{T + 14}, {s_t1}, v{T + 14}
    v_mov_b32 {x1}, 0"""]
        kblk += [f"v_dot2_f32_bf16 {x1}, v{T + 10 + i}, v{T + 10 + i}, {x1}" for i in range(5)]
        kblk += [f"v_max_f32_dpp {x1}, {x1}, {x1} row_ror:{n} row_mask:0xf bank_mask:0xf" for n in (8, 4, 2, 1)]
        kblk += [f"""
    s_lshl_b32 {s_t1}, {s_j}, 4
    s_add_u32 {s_t1}, {s_t1}, {s_tt}
    s_lshl_b32 {s_t1}, {s_t1}, 3
    s_add_u32 {s_t1}, {s_t1}, {s_w}
    s_lshl_b32 {s_t1}, {s_t1}, 2
    s_add_u32 {s_t1}, {s_t1}, {WS_KN}
    s_mov_b64 exec, 1""",
                 I(f"buffer_store_dword {x1}, v{L16}, {sWS}, {s_t1} offen sc1", tag="kvst"),
                 "s_mov_b64 exec, -1"]
        vblk = [f"""
    s_mul_i32 {s_t0}, {s_w}, 1536
    s_add_u32 {s_t0}, {s_t0}, {QSCR + 72}
    v_and_b32 {x0}, 3, v{LANE}
    v_min_u32 {x0}, 2, {x0}
    v_lshl_add_u32 {x0}, {x0}, 3, {s_t0}
    v_lshrrev_b32 {x1}, 2, v{LANE}
    v_mul_u32_u24 {x1}, 96, {x1}
    v_add_u32 {x0}, {x0}, {x1}
    ds_read_b64_tr_b16 {vr(T + 10, 2)}, {x0}
    s_and_b32 {s_t1}, {s_j}, 1
    s_lshl_b32 {s_t0}, {s_t1}, 3
    v_add_u32 {x0}, {s_t0}, {tok}
    v_add_u32 {x1}, 6, {tok}
    v_cmp_gt_u32 vcc, 8, {tok}
    v_cndmask_b32 {x0}, {x1}, {x0}, vcc
    v_and_b32 {x1}, 1, {g}
    v_lshlrev_b32 {x1}, 3, {x1}
    v_lshl_add_u32 {x0}, {x0}, 4, {x1}
    v_lshrrev_b32 {x1}, 1, {g}
    v_mul_u32_u24 {x1}, 288, {x1}
    v_add_u32 {x0}, {x0}, {x1}
    s_mul_i32 {s_t0}, {s_tt}, 9216
    s_lshl_b32 {s_t2}, {s_p}, 1
    s_add_u32 {s_t2}, {s_t2}, {s_hf}
    s_mul_i32 {s_t2}, {s_t2}, 576
    s_add_u32 {s_t0}, {s_t0}, {s_t2}
    s_add_u32 {s_t0}, {s_t0}, {WS_KV + 4096}
    s_mov_b32 {s_t2}, 0x0cff0cff
    s_cmp_eq_u32 {s_t1}, 0
    s_cselect_b32 {s_t2}, {s_t2}, 0x00ff00ff
    s_mov_b32 exec_lo, {s_t2}
    s_mov_b32 exec_hi, {s_t2}""",
                I(f"buffer_store_dwordx2 {vr(T + 10, 2)}, {x0}, {sWS}, {s_t0} offen sc1", tag="kvst"),
                "s_mov_b64 exec, -1"]
        tail = [self.cond(f"s_cmp_lt_u32 {s_j}, 2", kblk),
                [f"s_lshr_b32 {s_t0}, {s_j}, 1", self.cond(f"s_cmp_eq_u32 {s_t0}, 1", vblk)]]
        return o, tail

    def wo_job(self):
        x0, x1, x2 = f"v{T}", f"v{T + 1}", f"v{T + 2}"
        sel = f"""
    s_cmp_lt_u32 {s_j}, 9
    s_cselect_b32 {s_t0}, 11, 9
    s_cmp_lt_u32 {s_tt}, {s_t0}
    s_cselect_b32 {s_t0}, 1, 0
    s_andn2_b32 {s_t0}, {s_t0}, {s_hf}"""
        main = f"""
    v_lshrrev_b32 {x0}, 5, v{LANE}
    v_bfe_u32 {x1}, v{LANE}, 3, 2
    v_mad_u32_u24 {x0}, {x0}, 18, {x1}
    s_mul_i32 {s_t0}, {s_j}, 36
    s_lshl_b32 {s_t1}, {s_w}, 2
    s_add_u32 {s_t0}, {s_t0}, {s_t1}
    s_mul_i32 {s_t0}, {s_t0}, 1152
    s_lshl_b32 {s_t1}, {s_tt}, 7
    s_add_u32 {s_d1}, {s_t0}, {s_t1}"""
        rest = f"""
    v_lshrrev_b32 {x0}, 5, v{LANE}
    v_bfe_u32 {x1}, v{LANE}, 4, 1
    v_lshl_add_u32 {x0}, {x0}, 2, {x1}
    v_bfe_u32 {x1}, v{LANE}, 3, 1
    v_mad_u32_u24 {x0}, {x0}, 18, {x1}
    s_sub_u32 {s_t0}, {s_tt}, 9
    s_lshl_b32 {s_t0}, {s_t0}, 1
    s_and_b32 {s_t1}, {s_w}, 1
    s_add_u32 {s_t0}, {s_t0}, {s_t1}
    s_lshl_b32 {s_t0}, {s_t0}, 3
    s_and_b32 {s_t1}, {s_w}, 2
    s_add_u32 {s_t0}, {s_t0}, {s_t1}
    s_mul_i32 {s_t0}, {s_t0}, 18
    s_add_u32 {s_t0}, {s_t0}, 16
    s_mul_i32 {s_t0}, {s_t0}, 1152
    s_lshl_b32 {s_t1}, {s_j}, 7
    s_add_u32 {s_d1}, {s_t0}, {s_t1}"""
        part1 = [sel, self.cond(f"s_cmp_eq_u32 {s_t0}, 1", [
            main, self.cond(f"s_cmp_ge_u32 {s_tt}, 9", [rest]), f"""
    v_lshrrev_b32 {x1}, 4, v{LANE}
    v_lshlrev_b32 {x1}, 1, {x1}
    v_and_b32 {x2}, 7, v{LANE}
    v_xor_b32 {x1}, {x1}, {x2}
    v_mul_u32_u24 {x0}, 1152, {x0}
    v_lshl_add_u32 {x0}, {x1}, 4, {x0}
    s_add_u32 m0, {s_m}, {WOSCR}""",
            I(f"buffer_load_dwordx4 {x0}, {sWO}, {s_d1} offen lds", tag="wodma")])]
        part2 = [sel, self.cond(f"s_cmp_eq_u32 {s_t0}, 1", [f"""
    v_bfe_u32 {x0}, v{LANE}, 3, 2
    v_xor_b32 {x0}, {s_w}, {x0}
    v_lshlrev_b32 {x0}, 5, {x0}
    v_and_b32 {x1}, 3, v{LANE}
    v_lshl_add_u32 {x0}, {x1}, 3, {x0}
    v_lshrrev_b32 {x1}, 2, v{LANE}
    v_lshl_add_u32 {x0}, {x1}, 7, {x0}
    v_add_u32 {x0}, {WOSCR}, {x0}
    ds_read_b64_tr_b16 {vr(T + 4, 2)}, {x0}
    ds_read_b64_tr_b16 {vr(T + 6, 2)}, {x0} offset:2048
    s_add_u32 {s_t0}, {s_tt}, 7
    s_cmp_ge_u32 {s_tt}, 9
    s_cselect_b32 {s_t0}, {s_t0}, {s_j}
    s_cselect_b32 {s_t1}, {s_j}, {s_tt}
    s_lshl_b32 {s_t1}, {s_t1}, 2
    s_add_u32 {s_t1}, {s_t1}, {s_w}
    s_mul_i32 {s_t1}, {s_t1}, 18
    s_add_u32 {s_t0}, {s_t0}, {s_t1}
    s_lshl_b32 {s_t0}, {s_t0}, 10
    s_add_u32 {s_t0}, {s_t0}, {WS_WO:#x}""",
            I(f"buffer_store_dwordx4 {vr(T + 4, 4)}, v{L16}, {sWS}, {s_t0} offen sc1", tag="wost")])]
        return part1, part2

    def signal(self, cmp, soff):
        return self.cond(cmp, [f"v_mov_b32 v{TMP}, 1", "s_mov_b64 exec, 1",
                               I(f"buffer_atomic_add v{TMP}, v{L16}, {sDBG}, {soff} offen"), "s_mov_b64 exec, -1"])

    def shift_setup(self):
        x = f"v{T}"
        o = [f"v_max3_f32 {x}, {x}, v{T + 1}, v{T + 2}", f"v_max_f32 {x}, {x}, v{T + 3}"]
        o += [f"v_max_f32_dpp {x}, {x}, {x} row_ror:{n} row_mask:0xf bank_mask:0xf" for n in (8, 4, 2, 1)]
        o += [[f"""
    v_readlane_b32 {s_t0}, {x}, 0
    v_readlane_b32 {s_t1}, {x}, 16
    v_readlane_b32 {s_t2}, {x}, 32
    v_readlane_b32 {s_d1}, {x}, 48
    s_max_u32 {s_t0}, {s_t0}, {s_t1}
    s_max_u32 {s_t2}, {s_t2}, {s_d1}
    v_mov_b32 {x}, {s_t0}
    v_add_f32 {x}, {s_t2}, {x}"""], f"""
    v_mul_f32 {x}, {x}, v{QN2}
    v_sqrt_f32 {x}, {x}
    v_mov_b32 v{T + 1}, {f32(0.01)}
    v_fmamk_f32 {x}, {x}, {f32(1.02)}, v{T + 1}
    v_mov_b32 v{T + 1}, {f32(self.o['thr'] if not self.o['force_slow'] else -1.0)}
    v_cmp_nle_f32 {s_slow}, {x}, v{T + 1}
    v_mov_b32 v{T + 1}, 0
    v_cvt_pk_bf16_f32 {x}, -{x}, v{T + 1}
    v_cmp_gt_u32 vcc, 32, v{LANE}
    v_cndmask_b32 v{QRA + 1}, 0, {x}, vcc
    v_cndmask_b32 v{QRB + 1}, {x}, v{T + 1}, vcc
    v_mov_b32 v{KR + 1}, 0x3f80
    v_mov_b32 v{IDX}, 0xdddddddd
    v_and_b32 {x}, 27, v{LANE}
    v_cmp_eq_u32 vcc, 18, {x}
    v_mov_b32 {x}, 0x3f803f80"""]
        o += [f"v_cndmask_b32 v{VA + i}, 0, {x}, vcc" for i in range(8)]
        o += [f"""
    v_mov_b32 v{AK}, v{L16}
    v_lshlrev_b32 v{AR}, 2, v{LANE}
    v_and_b32 {x}, 31, v{LANE}
    v_lshrrev_b32 v{AV}, 5, v{LANE}
    v_mul_u32_u24 v{AV}, 288, v{AV}
    v_lshl_add_u32 v{AV}, {x}, 4, v{AV}
    s_mov_b32 s92, 0x3ffff
    s_mov_b32 s93, 0x3ffff""", [setbase(f"v{AK}"), setbase(f"v{AV}"), setbase(f"v{AR}")]]
        return o

    def ffn(self):
        o = self.o
        ops = []

        def tr(buf, i, areg, off):
            return ds(f"ds_read_b64_tr_b16 {vr(buf + 2 * i, 2)}, v{areg}", off)

        nring = [0]

        def nb():
            nring[0] += 1
            return ABUF + 4 * ((nring[0] - 1) % 4)

        for r in range(4):
            for ks in range(18):
                for tt2 in range(2):
                    buf = nb()
                    base = ring(9 * r + ks // 2) + 4096 * (ks & 1)
                    op = dict(buf=buf, rd=[tr(buf, i, AW + tt2, base + 512 * i) for i in range(2)],
                              mf=[mf16(ACC + 16 * (r & 1) + 8 * tt2 + 4 * t, buf, X(ks, t)) for t in range(2)],
                              name=("r", r, ks, tt2), rate=1)
                    if tt2 == 0 and r == 0 and ks % 2 == 0:
                        c = ks // 2
                        op["step"] = f"x{c}"
                        op["pre"] = [ds(f"ds_read_b128 {vr(X(ks + k, t), 4)}, v{HOWN + 2 * t + k}", XREG[c % 5])
                                     for k in range(2) for t in range(2)]
                        if c < 2:
                            op["pre"] = [self.bias(c, a, t) for a in range(2) for t in range(2)] + op["pre"]
                    if tt2 == 0 and r > 0 and ks % 6 == 0:
                        op["step"] = f"r{r}_{ks // 6}"
                    ops.append(op)
        h0 = len(ops)
        for ks in range(18):
            buf = nb()
            base = ring(36 + ks // 4) + 2048 * (ks & 3)
            op = dict(buf=buf, rd=[tr(buf, i, AWH, base + 256 * i) for i in range(2)],
                      mf=[mf16(ACC + 4 * t, buf, X(ks, t)) for t in range(2)], name=("h", 0, ks, 0), rate=1)
            if ks in (0, 8):
                op["step"] = f"h{ks // 8}"
            ops.append(op)
        n = 0
        for ks in range(18):
            for a in range(3):
                buf = RQBUF + 4 * (n % 9)
                base = ring(41 + ks // 2) + 4096 * (ks & 1)
                rd = [tr(buf, i, AQ + a, base + 512 * i) for i in range(2)]
                if a == 2:
                    rd[1] = [rd[1], f"s_mov_b64 exec, {s_msk}",
                             ds(f"ds_read_b128 {vr(buf, 4)}, v{AGATE}", L_GATE + 64 * ks), "s_mov_b64 exec, -1"]
                d = (ACC + 8, ACC + 12, AQ2)[a]
                op = dict(buf=buf, rd=rd, mf=[mf16(d, buf, X(ks, 0), "0" if ks == 0 else None)],
                          name=("q", 0, ks, a), rate=2, after=h0 + 14 if n < 9 else 0)
                if a == 0 and ks % 6 == 0:
                    op["step"] = f"q{ks // 6}"
                ops.append(op)
                n += 1
        g0 = len(ops)
        for R in range(9):
            for s in range(9):
                for tt2 in range(2):
                    buf = nb()
                    base = 36 * KB * (R % 3)
                    if s < 8:
                        rd = [tr(buf, i, GADDR + 2 * (s // 4) + tt2, base + 8192 * (s % 4) + 2048 * i) for i in range(2)]
                        hb = (HOWN, HOTH)[s // 4] + 8 * (s % 4)
                    else:
                        rd = [tr(buf, i, GADDR + 4 + 2 * i + tt2, base) for i in range(2)]
                        hb = HH
                    for x in rd:
                        x.rebase_to = base
                    op = dict(buf=buf, rd=rd, name=("g", R, s, tt2), rate=1, after=g0 - 6 if R == 0 else 0,
                              mf=[mf16(GACC + 16 * (R & 1) + 8 * tt2 + 4 * t, buf, hb + 4 * t, "0" if s == 0 else None)
                                  for t in range(2)])
                    if s == 0 and tt2 == 0:
                        op["step"] = f"g{R}"
                    if R == 0 and 2 * s + tt2 == o["gx"]:
                        op["step"] = "gx"
                    ops.append(op)

        G = [dict(m=[], mem=[], valu=[])]
        bar, first = {}, {}
        last_user = {}
        prev = []
        for k, op in enumerate(ops):
            prev.append(last_user.get(op["buf"], -1))
            last_user[op["buf"]] = k
        ro, rr = 0, 0

        def issue_one():
            nonlocal ro, rr
            op = ops[ro]
            if rr == 0 and "step" in op:
                b = barrier()
                bar[op["step"]] = (len(G) - 1, b)
                G[-1]["mem"].append(b)
            if rr == 0:
                G[-1]["mem"] += op.get("pre", [])
            G[-1]["mem"].append(op["rd"][rr])
            rr += 1
            if rr == len(op["rd"]):
                ro, rr = ro + 1, 0

        while ro < 3:
            issue_one()
        for k, op in enumerate(ops):
            while ro <= k:
                issue_one()
            first[op["name"]] = len(G)
            for mi, m in enumerate(op["mf"]):
                G.append(dict(m=[m], mem=[], valu=[]))
                done = k if mi == len(op["mf"]) - 1 else k - 1
                cnt = 0
                while ro < len(ops) and cnt < max(op["rate"], ops[ro]["rate"]) and prev[ro] <= k - 1 + (op["rate"] > 1) \
                        and prev[ro] <= done + 0 and ops[ro].get("after", -1) <= done:
                    issue_one()
                    cnt += 1
        NG = len(G)

        def spread(items, lo, hi, key="valu"):
            items = [x for e in items for x in (e.strip().split("\n") if isinstance(e, str) else [e])]
            assert lo < hi <= NG, (lo, hi)
            for i, it in enumerate(items):
                G[lo + (i * (hi - lo)) // len(items)][key].append(it)

        steps = [s for s, _ in sorted(bar.items(), key=lambda kv: kv[1][0])] + ["a0", "a1", "end"]
        B = {s: v[0] for s, v in bar.items()}
        B["a0"] = NG

        def stepof(gi):
            return [s for s in steps[:-3] if B[s] <= gi][-1]

        others = []
        for r in range(4):
            items = []
            for t in range(2):
                for tt2 in range(2):
                    items += self.gelu_quad(ACC + 16 * (r & 1) + 8 * tt2 + 4 * t, HOWN + 8 * r + 4 * t + 2 * tt2)
                    if r < 2 or (r == 2 and tt2 == 0):
                        items.append(self.bias(r + 2, tt2, t))
                if r < 3:
                    items.append(ds(f"ds_write_b128 v{AEXW}, {vr(HOWN + 8 * r + 4 * t, 4)}", EX1 + U * (2 * r + t)))
            if r < 3:
                lo = first[("r", r + 1, 0, 0)] + 3
                hi = (first[("r", r + 2, 0, 0)] if r < 2 else first[("h", 0, 0, 0)]) - 4
                others.append((EX1 + 2 * U * r, 2 * U, stepof(lo), "q0"))
            else:
                lo, hi = first[("h", 0, 0, 0)] + 3, B["q2"] - 3
            spread(items, lo, hi)
        q0 = first[("q", 0, 0, 0)]
        assert q0 + 1 < B["q1"] - 1
        spread([f"v_xor_b32 v{AEXR}, 0x1000, v{AEXW}", self.copybase(AEXR, AEXW)], q0 - 2, q0 - 1)
        spread([ds(f"ds_read_b128 {vr(HOTH + 8 * r + 4 * t, 4)}, v{AEXR}", EX1 + U * (2 * r + 1 - t))
                for r in range(3) for t in range(2)], q0, B["q1"], "mem")
        spread([ds(f"ds_write_b128 v{AEXW}, {vr(HOWN + 24 + 4 * t, 4)}", EX2 + U * t) for t in range(2)],
               B["q2"] - 3, B["q2"] - 1)
        assert B["q2"] - 3 > B["q1"]
        spread([ds(f"ds_read_b128 {vr(HOTH + 24 + 4 * t, 4)}, v{AEXR}", EX2 + U * (1 - t)) for t in range(2)],
               B["q2"] + 1, B["q2"] + 3, "mem")
        others.append((EX2, 2 * U, "q1", "q2"))
        a, bb, cc = f"v{GACC}", f"v{GACC + 1}", f"v{GACC + 2}"
        ga = [f"""
    v_bfe_u32 {a}, v{LANE}, 3, 2
    s_lshl_b32 {s_t0}, {s_hf}, 1
    v_xor_b32 {a}, {s_t0}, {a}
    v_lshlrev_b32 {a}, 5, {a}
    v_and_b32 {bb}, 3, v{LANE}
    v_lshl_add_u32 {a}, {bb}, 3, {a}
    v_lshrrev_b32 {bb}, 2, v{LANE}
    v_lshl_add_u32 {a}, {bb}, 7, {a}
    v_xor_b32 {bb}, 32, {a}
    s_and_b32 {s_t1}, {s_j}, 1
    s_add_u32 {s_t0}, {s_t1}, {s_hf}
    s_lshl_b32 {s_t0}, {s_t0}, 12
    v_add_u32 v{GADDR}, {s_t0}, {a}
    v_add_u32 v{GADDR + 1}, {s_t0}, {bb}
    s_sub_u32 {s_t0}, {s_t1}, {s_hf}
    s_add_u32 {s_t0}, {s_t0}, 1
    s_lshl_b32 {s_t0}, {s_t0}, 12
    v_add_u32 v{GADDR + 2}, {s_t0}, {a}
    v_add_u32 v{GADDR + 3}, {s_t0}, {bb}
    s_xor_b32 {s_t1}, {s_t1}, 1
    s_lshl_b32 {s_t1}, {s_t1}, 4
    s_add_u32 {s_t0}, {s_t1}, {s_hf}
    s_lshl_b32 {s_t0}, {s_t0}, 11
    v_add_u32 v{GADDR + 4}, {s_t0}, {a}
    v_add_u32 v{GADDR + 5}, {s_t0}, {bb}
    v_xor_b32 v{GADDR + 6}, 0x800, v{GADDR + 4}
    v_xor_b32 v{GADDR + 7}, 0x800, v{GADDR + 5}""", [setbase(f"v{GADDR + i}") for i in range(8)]]
        spread(ga, max(first[("q", 0, 3, 0)], B["q2"] - 2), B["g0"])
        items = []
        for t in range(2):
            items += self.gelu_quad(ACC + 4 * t, HH + 4 * t)
            items.append(ds(f"ds_write_b64 v{AEXW}, {vr(HH + 4 * t, 2)}", EX2H + 8 * t))
        spread(items, B["q2"] - 1, B["gx"] - 1)
        spread([ds(f"ds_read_b64 {vr(HH + 4 * t + 2, 2)}, v{AEXR}", EX2H + 8 * (1 - t)) for t in range(2)],
               B["gx"] + 1, B["gx"] + 3, "mem")
        others.append((EX2H, U, "q1", "gx"))
        qe, qtail = self.q_epilogue()
        lo = max(B["gx"], first[("g", 0, 1, 0)])
        mid = first[("g", 1, 3, 0)]
        spread(qe, lo, mid)
        spread(qtail, mid, mid + 2)
        assert mid + 2 < B["g2"]
        others.append((QSCR, 12 * KB, "gx", "g1"))
        epi = []
        for R in range(9):
            items = []
            for tt2 in range(2):
                d = GP + 8 * (R & 1) + 4 * tt2
                s = GACC + 16 * (R & 1) + 8 * tt2
                items += [f"v_cvt_pk_bf16_f32 v{d + i}, v{s + 2 * i}, v{s + 2 * i + 1}" for i in range(4)]
                items.append([f"s_add_u32 {s_d1}, {s_pst}, {(4 * R + tt2) * 16384}",
                              I(f"buffer_store_dwordx4 {vr(d, 4)}, v{L16}, {sWS}, {s_d1} offen {o['pst'].replace('+', ' ')}", tag="pst")])
            if R < 8:
                f = first[("g", R + 1, 0, 0)]
                spread(items, f + 16, f + 32)
            else:
                epi = items
        spread([[f"v_mov_b32 v{GP + 8}, 0", "s_mov_b64 exec, 1",
                 I(f"buffer_store_dword v{GP + 8}, v{L16}, {sWS}, {s_oun} offen offset:1152 sc1", tag="frst"),
                 "s_mov_b64 exec, -1"]], first[("g", 0, 1, 0)], first[("g", 0, 1, 0)] + 1)
        w1, w2 = self.wo_job()
        spread([w1], B["g2"] + 6, B["g2"] + 7)
        spread([w2], B["g5"] + 6, B["g5"] + 7)
        others.append((WOSCR, 4 * KB, "g2", "g5"))
        extra = {"g5": ["wodma"], f"g{o['kvsig']}": ["kvst"]}
        sg = B[f"g{o['kvsig']}"]
        spread([[f"s_lshr_b32 {s_t0}, {s_j}, 2", f"s_or_b32 {s_t0}, {s_t0}, {s_w}",
                 self.signal(f"s_cmp_eq_u32 {s_t0}, 0", "0")]], sg + 1, sg + 2)
        pl = B[f"g{o['kvpoll']}"]
        load = f"buffer_load_dword v{T + 8}, v{T + 9}, {sDBG}, 0 offen sc1"
        spread([[f"v_mov_b32 v{T + 9}, 0", load]], pl + 1, pl + 2)
        nx = B[f"g{o['kvpoll'] + 1}"]
        spread([self.spin(load, T + 8, f"v_cmp_gt_u32 vcc, 64, v{T + 8}")], nx - 2, nx - 1)
        spread([[f"s_mov_b32 {s_d1}, {WS_KN}",
                 I(f"buffer_load_dwordx4 {vr(T, 4)}, v{L16}, {sWS}, {s_d1} offen sc1")]], B["g6"] + 1, B["g6"] + 2)
        spread(self.shift_setup(), B["g8"] - 6, B["g8"] + 18)

        P = self.pieces()
        self.plan(steps, P, others)
        pre_dma, a0_dma = [], []
        for si in range(-1, len(steps)):
            mine = [q["code"] for q in P if q["issue"] == si]
            if not mine:
                continue
            if si < 0:
                pre_dma = mine
            elif steps[si] == "a0":
                a0_dma = mine
            else:
                spread(mine, B[steps[si]] + 1, B[steps[si + 1]], "mem")
        for s, (gi, b) in bar.items():
            b.need = [q["tag"] for q in P if q["use0"] == s] + extra.get(s, [])
        self.need_a0 = [q["tag"] for q in P if q["use0"] == "a0"]
        self.need_a1 = [q["tag"] for q in P if q["use0"] == "a1"]
        self.planinfo = [(q["tag"], steps[q["issue"]] if q["issue"] >= 0 else "pre", q["use0"]) for q in P]
        for nm, s in (("x0", "x0"), ("r1", "r1_0"), ("r2", "r2_0"), ("h", "h0"), ("g0", "g0"), ("g4", "g4")):
            i = G[B[s]]["mem"].index(bar[s][1])
            G[B[s]]["mem"][i + 1:i + 1] = self.ts(nm)
        body = [[g["m"], g["mem"], g["valu"]] for g in G]
        return pre_dma, body, a0_dma, epi

    def copybase(self, dst, src):
        i = I("", pseudo="copybase")
        i.dst, i.src = f"v{dst}", f"v{src}"
        return i

    def kv_off(self, t):
        base = 9216 * ((12 + t // 4) % 16)
        return base, t & 3

    def k_reads(self, t):
        base, q = self.kv_off(t)
        o = [ds(f"ds_read_b128 {vr(KM, 4)}, v{AK}", base + 1024 * q)]
        if q % 2 == 0:
            o.append(ds(f"ds_read_b32 v{KR}, v{AR}", base + 8704 + 128 * q))
        return o

    def v_reads(self, t):
        base, q = self.kv_off(t)
        a = ds(f"ds_read_b128 {vr(VA, 4)}, v{AV}", base + 4096 + 1152 * q)
        a.span = 576
        return [f"s_mov_b64 exec, {s_msk}", a, ds(f"ds_read_b128 {vr(VB, 4)}, v{AV}", base + 4096 + 1152 * q + 576),
                "s_mov_b64 exec, -1"]

    def qk(self, t):
        s = SREG + 16 * (t & 1)
        return (I(f"v_mfma_f32_32x32x8_bf16 {vr(s, 16)}, {vr(KR, 2)}, {vr(QRB if t & 1 else QRA, 2)}, 0",
                  needregs={("v", KM)}),
                I(f"v_mfma_f32_32x32x16_bf16 {vr(s, 16)}, {vr(KM, 4)}, {vr(QM, 4)}, {vr(s, 16)}"))

    def pv(self, t):
        s = SREG + 16 * (t & 1)
        return (I(f"v_smfmac_f32_32x32x32_bf16 {vr(OREG, 16)}, {vr(VA, 4)}, {vr(s, 8)}, v{IDX}", needregs={("v", VB)}),
                I(f"v_smfmac_f32_32x32x32_bf16 {vr(OREG, 16)}, {vr(VB, 4)}, {vr(s + 8, 8)}, v{IDX}"))

    def bg_setup(self):
        return f"""
    s_lshr_b32 {s_t2}, {s_j}, 2
    s_mul_i32 {s_t2}, {s_t2}, 9
    s_and_b32 {s_t0}, {s_j}, 3
    s_lshl_b32 {s_t1}, {s_tt}, 2
    s_add_u32 {s_t0}, {s_t0}, {s_t1}
    s_mul_i32 {s_t0}, {s_t0}, 36
    s_add_u32 {s_t0}, {s_t0}, {s_t2}
    s_lshl_b32 {s_t0}, {s_t0}, 14
    s_add_u32 {s_t0}, {s_t0}, {WS_P:#x}
    s_lshl_b32 {s_t1}, {s_w}, 11
    s_add_u32 {s_w1o}, {s_t0}, {s_t1}
    s_add_u32 {s_w1o}, {s_w1o}, {8 * 16384}
    s_lshl_b32 {s_xo}, {s_w}, 14
    s_add_u32 {s_xo}, {s_xo}, {s_t0}
    s_mul_i32 {s_t0}, {s_t2}, {18 * KB}
    s_add_u32 {s_t0}, {s_t0}, {WS_WO:#x}
    s_mul_i32 {s_who}, {s_w}, {18 * KB}
    s_add_u32 {s_who}, {s_who}, {s_t0}
    s_add_u32 {s_t0}, {s_t0}, {8 * 18 * KB}
    s_add_u32 {s_whmax}, {s_t0}, {s_t1}
    s_and_b32 {s_t1}, {s_w}, 1
    s_lshl_b32 {s_t1}, {s_t1}, 10
    s_add_u32 {s_w2a}, {s_t0}, {s_t1}
    s_add_u32 {s_w2a}, {s_w2a}, {16 * KB}"""

    def bg_loads(self):
        o = []

        def ld(reg, sbase, off):
            pre = []
            so = sbase
            if off >= 4096:
                so = s_d0
                if off % 4096 == 0:
                    pre = [f"s_add_u32 {s_d0}, {sbase}, {off}"]
            oo = f" offset:{off % 4096}" if off % 4096 else ""
            o.append(pre + [I(f"buffer_load_dwordx4 {vr(reg, 4)}, v{L16}, {sWS}, {so} offen{oo} sc1")])

        for k in range(18):
            ld(WREG + 4 * k, s_who, KB * k)
        for k in range(2):
            ld(WREG + 72 + 4 * k, s_whmax, KB * k)
        ld(WREG + 80, s_w2a, 0)
        for k in range(16):
            ld(PREG + 4 * k, s_xo, KB * k)
        for k in range(2):
            ld(PREG + 64 + 4 * k, s_w1o, KB * k)
        return o

    def poll2(self):
        load = f"buffer_load_dword v{TMP + 1}, v{TMP + 2}, {sDBG}, 0 offen offset:128 sc1"
        a = [f"v_and_b32 v{TMP + 2}, 15, v{LANE}", f"v_lshlrev_b32 v{TMP + 2}, 2, v{TMP + 2}", load]
        return a, self.spin(load, TMP + 1, f"v_cmp_gt_u32 vcc, 16, v{TMP + 1}")

    def gsignal(self):
        return [f"s_lshl_b32 {s_d1}, {s_tt}, 2", f"s_add_u32 {s_d1}, {s_d1}, 128",
                self.signal(f"s_cmp_eq_u32 {s_w}, 0", s_d1)]

    def attention(self):
        o = self.o
        p = []
        pa, pb = self.poll2()
        loads = self.bg_loads()
        t0 = o["poll2"] + 3
        per = -(-len(loads) // (62 - t0))
        p += self.k_reads(0)
        p += list(self.qk(0))
        p += self.k_reads(1)
        for t in range(64):
            e = [f"v_exp_f32 v{SREG + 16 * (t & 1) + i}, v{SREG + 16 * (t & 1) + i}" for i in range(16)]
            extra = []
            if t == o["b1tile"]:
                p += [barrier(need=self.need_a1 + ["pst", "wost", "frst"], drain_lds=False), self.ts("b1")]
                if o["wb"]:
                    p += self.cond(f"s_cmp_eq_u32 {s_w}, 0", [I("buffer_wbl2 sc1", tag="wbl2")])
            if t == o["b1tile"] + o["wb"]:
                p += [wait(need=["wbl2"] if o["wb"] else []), self.gsignal()]
            if t == o["poll2"] - 1:
                extra.append(self.bg_setup())
            if t == o["poll2"]:
                extra.append(pa)
            if t == o["poll2"] + 2:
                extra.append(pb)
            if t >= t0:
                extra += loads[(t - t0) * per:(t - t0 + 1) * per]
            p += e[0:2]
            if t > 0:
                p.append(self.pv(t - 1)[1])
            p += self.v_reads(t)
            p += e[2:5]
            if t < 63:
                p.append(self.qk(t + 1)[0])
            p += e[5:9]
            if t < 63:
                p.append(self.qk(t + 1)[1])
            if t < 62:
                p += self.k_reads(t + 2)
            p += e[9:12]
            p.append(self.pv(t)[0])
            p += extra
            p += e[12:16]
        p.append(self.pv(63)[1])
        return p

    def slow_path(self):
        S = SREG
        mx, ak, av, ar = f"v{TMP}", f"v{AK}", f"v{AV}", f"v{AR}"

        def qk(q):
            o = f"    ds_read_b128 {vr(KM, 4)}, {ak} offset:{1024 * q}\n"
            o += f"    ds_read_b32 v{KR}, {ar} offset:{8704 + 256 * (q >> 1)}\n"
            o += "    s_waitcnt lgkmcnt(0)\n"
            o += "    " + self.qk(q)[0].text.replace(vr(S + 16, 16), vr(S, 16)) + "\n"
            o += "    " + self.qk(0)[1].text + "\n    s_nop 15\n"
            return o

        adv = f"""    v_add_u32 {ak}, 9216, {ak}
    v_add_u32 {av}, 9216, {av}
    v_add_u32 {ar}, 9216, {ar}
    s_sub_u32 {s_t0}, {s_t0}, 1
    s_cmp_lg_u32 {s_t0}, 0
"""
        s = f"""    v_mov_b32 v{QRA + 1}, 0
    v_mov_b32 v{QRB + 1}, 0
    v_mov_b32 {mx}, 0xff800000
    s_mov_b32 {s_t0}, 16
L_slow1:
"""
        for q in range(4):
            s += qk(q)
            for i in range(8):
                s += f"    v_max3_f32 {mx}, {mx}, v{S + 2 * i}, v{S + 2 * i + 1}\n"
        s += adv + f"""    s_cbranch_scc1 L_slow1
    v_mov_b32 v{TMP + 1}, {mx}
    s_nop 1
    v_permlane32_swap_b32 v{TMP + 1}, {mx}
    s_nop 1
    v_max_f32 {mx}, {mx}, v{TMP + 1}
    v_subrev_u32 {ak}, {16 * 9216}, {ak}
    v_subrev_u32 {av}, {16 * 9216}, {av}
    v_subrev_u32 {ar}, {16 * 9216}, {ar}
    s_mov_b32 {s_t0}, 16
L_slow2:
"""
        for q in range(4):
            s += f"""    s_mov_b64 exec, {s_msk}
    ds_read_b128 {vr(VA, 4)}, {av} offset:{4096 + 1152 * q}
    ds_read_b128 {vr(VB, 4)}, {av} offset:{4096 + 1152 * q + 576}
    s_mov_b64 exec, -1
"""
            s += qk(q)
            for i in range(16):
                s += f"    v_sub_f32 v{S + i}, v{S + i}, {mx}\n"
            for i in range(16):
                s += f"    v_exp_f32 v{S + i}, v{S + i}\n"
            s += "    s_nop 1\n    " + self.pv(0)[0].text + "\n    " + self.pv(0)[1].text + "\n    s_nop 3\n"
        s += adv + "    s_cbranch_scc1 L_slow2\n"
        pa, pb = self.poll2()
        return [label("L_slow"), raw("    s_waitcnt vmcnt(0) lgkmcnt(0)\n    s_barrier"),
                raw("    buffer_wbl2 sc1\n    s_waitcnt vmcnt(0)" if self.o["wb"] else "    s_nop 0"), self.gsignal(), raw(s),
                self.bg_setup(), pa, pb, self.bg_loads(),
                raw("    s_waitcnt vmcnt(0) lgkmcnt(0)\n    s_nop 15\n    s_branch L_att_done")]

    def final(self):
        O = OREG
        tok, g, x0, x1 = "v12", "v13", "v14", "v15"
        SEL, BIA, BI9, GG = 16, 96, 4, 2
        AB, AA, NB_, NA = 64, 72, 80, 88
        BB = 40
        p = [f"""
    v_and_b32 {tok}, 15, v{LANE}
    v_lshrrev_b32 {g}, 4, v{LANE}
    v_lshlrev_b32 {x0}, 3, {tok}
    v_lshl_add_u32 {x0}, {g}, 2, {x0}
    v_rcp_f32 v{O + 10}, v{O + 10}"""]
        p += [f"v_mul_f32 v{O + i}, v{O + i}, v{O + 10}" for i in range(10)]
        p += [f"v_cvt_pk_bf16_f32 v{O + 12 + i}, v{O + 2 * i}, v{O + 2 * i + 1}" for i in range(4)]
        p += [I(f"buffer_store_dwordx4 {vr(O + 12, 4)}, v{L16}, {sWS}, {s_oun} offen sc1", tag="ost"),
              f"v_cvt_pk_bf16_f32 v{O + 11}, v{O + 8}, v{O + 9}",
              "s_mov_b32 exec_hi, 0",
              I(f"buffer_store_dword v{O + 11}, {x0}, {sWS}, {s_oun} offen offset:1024 sc1", tag="ost"),
              "s_mov_b64 exec, -1"]
        p += [f"""
    s_lshr_b32 {s_t2}, {s_j}, 2
    s_mul_i32 {s_t0}, {s_t2}, 288
    s_lshl_b32 {s_t1}, {s_w}, 5
    s_add_u32 {s_t1}, {s_t1}, {s_t0}
    v_lshlrev_b32 {x1}, 3, {g}""",
              I(f"buffer_load_dwordx2 {vr(BIA + 2, 2)}, {x1}, {sB2}, {s_t1} offen"),
              I(f"buffer_load_dwordx2 {vr(BI9 + 2, 2)}, {x1}, {sB2}, {s_t0} offen offset:256"), f"""
    s_and_b32 {s_t1}, {s_j}, 3
    s_lshl_b32 {s_t1}, {s_t1}, 7
    s_add_u32 {s_t1}, {s_t1}, {L_GT}
    v_lshl_add_u32 {x0}, {tok}, 2, {s_t1}
    ds_read2_b32 {vr(GG, 2)}, {x0} offset0:0 offset1:16
    v_and_b32 {x0}, 1, {tok}
    v_lshlrev_b32 {x0}, 4, {x0}
    v_mov_b32 {x1}, 0x3f80
    v_lshlrev_b32 {x0}, {x0}, {x1}
    v_lshrrev_b32 {x1}, 1, {tok}
    v_lshlrev_b32 v8, 1, {g}
    v_cmp_eq_u32 vcc, v8, {x1}
    v_cndmask_b32 v{SEL + 2}, 0, {x0}, vcc
    v_add_u32 v8, 1, v8
    v_cmp_eq_u32 vcc, v8, {x1}
    v_cndmask_b32 v{SEL + 3}, 0, {x0}, vcc
    v_mov_b32 v{SEL}, 0
    v_mov_b32 v{SEL + 1}, 0
    v_mov_b32 v{SEL + 4}, 0
    v_mov_b32 v{SEL + 5}, 0
    v_mov_b32 v9, 1""",
              wait(need=["ost"]), "s_mov_b64 exec, 1",
              I(f"buffer_store_dword v9, v{L16}, {sWS}, {s_oun} offen offset:1152 sc1"), "s_mov_b64 exec, -1",
              self.ts("oflag")]
        load = f"buffer_load_dword v10, v11, {sWS}, {s_d1} offen offset:1152 sc1"
        p += [f"""
    s_and_b32 {s_t0}, {s_j}, 3
    s_lshl_b32 {s_t1}, {s_tt}, 2
    s_add_u32 {s_t0}, {s_t0}, {s_t1}
    s_lshl_b32 {s_t0}, {s_t0}, 3
    s_add_u32 {s_t0}, {s_t0}, {s_w}
    s_mul_i32 {s_d1}, {s_t0}, 5120
    s_add_u32 {s_d1}, {s_d1}, {WS_O:#x}
    v_and_b32 v11, 3, v{LANE}
    v_mul_u32_u24 v11, 1280, v11
    s_cmp_eq_u32 {s_w}, 0
    s_cselect_b32 {s_t0}, -1, 0
    v_and_b32 v{BI9 + 2}, {s_t0}, v{BI9 + 2}
    v_and_b32 v{BI9 + 3}, {s_t0}, v{BI9 + 3}"""]
        for b in (BIA, BI9):
            p += [f"""
    v_lshlrev_b32 v{b}, 16, v{b + 2}
    v_and_b32 v{b + 1}, 0xffff0000, v{b + 2}
    v_lshlrev_b32 v{b + 2}, 16, v{b + 3}
    v_and_b32 v{b + 3}, 0xffff0000, v{b + 3}"""]
        sums = []
        for k in range(18):
            acc, c = (AB, BIA) if k < 16 else (NB_, BI9)
            for h in range(2):
                sums.append(mf16(acc + 4 * h, SEL + 2 - 2 * h, PREG + 4 * k, vr(c, 4) if k in (0, 16) else None))
        p += sums[:24]
        p += [barrier(), load, sums[24:], self.spin(load, 10, "v_cmp_ne_u32 vcc, 1, v10"), self.ts("opoll"),
              f"s_mul_i32 {s_t0}, {s_w}, 5120", f"s_mov_b32 m0, {s_t0}"]
        for k in range(4):
            oo = f" offset:{KB * k}" if k else ""
            p.append(I(f"buffer_load_dwordx4 v{L16}, {sWS}, {s_d1} offen{oo} sc1 lds", tag="odma"))
        p += [f"s_add_u32 m0, {s_t0}, 4096", f"s_add_u32 {s_d1}, {s_d1}, 4096",
              I(f"buffer_load_dwordx4 v{L16}, {sWS}, {s_d1} offen sc1 lds", tag="odma")]
        a9, ar, ast, an9 = "v8", "v9", "v10", "v11"
        p += [f"""
    s_lshr_b32 {s_t2}, {s_j}, 2
    s_add_u32 {s_t1}, {s_t2}, {s_w}""",
              self.cond(f"s_bitcmp1_b32 {s_t1}, 1", [f"v_swap_b32 v{AB + i}, v{AB + 4 + i}" for i in range(4)]),
              self.cond(f"s_bitcmp1_b32 {s_t2}, 1", [f"v_swap_b32 v{NB_ + i}, v{NB_ + 4 + i}" for i in range(4)]),
              f"""
    v_add_u32 {a9}, {s_t0}, v{L16}
    v_mul_u32_u24 {ar}, 5120, {g}
    v_lshl_add_u32 {ar}, {tok}, 3, {ar}
    v_mul_u32_u24 {ast}, 272, {tok}
    v_lshl_add_u32 {ast}, {g}, 3, {ast}
    s_lshl_b32 {s_t1}, {s_w}, 5
    v_add_u32 {ast}, {s_t1}, {ast}
    v_lshlrev_b32 {an9}, 6, {tok}
    v_lshl_add_u32 {an9}, {g}, 4, {an9}
    s_lshl_b32 {s_t1}, {s_w}, 11
    v_add_u32 {an9}, {s_t1}, {an9}""", barrier(need=["odma"]), self.ts("oland")]
        seq = []
        for k in range(2):
            for t in range(2):
                seq.append((lambda b, k=k, t=t: [f"ds_read_b128 {vr(b, 4)}, {a9} offset:{2560 * k + 1280 * t}"],
                            lambda b, k=k, t=t: [mf16(NA + 4 * t, WREG + 72 + 4 * k, b, "0" if k == 0 else None)]))
        for u in range(2):
            for t in range(2):
                seq.append((lambda b, u=u, t=t: [
                    f"ds_read_b64 {vr(b + 2 * i, 2)}, {ar} offset:{20480 * u + 1280 * t + 2560 * i + 1024}" for i in range(2)],
                    lambda b, u=u, t=t: [mf16(AA + 4 * t, WREG + 64 + 4 * u, b, "0" if u == 0 else None),
                                         self.cond(f"s_cmp_eq_u32 {s_w}, {u}", [mf16(NA + 4 * t, WREG + 80, b)])]))
        for k in range(16):
            for t in range(2):
                seq.append((lambda b, k=k, t=t: [f"ds_read_b128 {vr(b, 4)}, v{L16} offset:{2560 * k + 1280 * t}"],
                            lambda b, k=k, t=t: [mf16(AA + 4 * t, WREG + 4 * k, b)]))
        NBUF = 6
        n9 = []
        for t in range(2):
            n9 += [f"v_sub_f32 v{NA + 4 * t + i}, v{NA + 4 * t + i}, v{NB_ + 4 * t + i}" for i in range(4)]
            n9 += [f"v_fmac_f32 v{NB_ + 4 * t + i}, v{NA + 4 * t + i}, v{GG + t}" for i in range(4)]
            n9.append(f"ds_write_b128 {an9}, {vr(NB_ + 4 * t, 4)} offset:{L_N9 + 1024 * t}")
        for i in range(NBUF):
            p += seq[i][0](BB + 4 * i)
        for i in range(len(seq)):
            p += seq[i][1](BB + 4 * (i % NBUF))
            if i + NBUF < len(seq):
                p += seq[i + NBUF][0](BB + 4 * (i % NBUF))
            if 14 <= i < 14 + len(n9):
                p.append(n9[i - 14])
        for t in range(2):
            p += [f"v_sub_f32 v{AA + 4 * t + i}, v{AA + 4 * t + i}, v{AB + 4 * t + i}" for i in range(4)]
            p += [f"v_fmac_f32 v{AB + 4 * t + i}, v{AA + 4 * t + i}, v{GG + t}" for i in range(4)]
            p += [f"v_cvt_pk_bf16_f32 v{AA + 4 * t + i}, v{AB + 4 * t + 2 * i}, v{AB + 4 * t + 2 * i + 1}" for i in range(2)]
            p.append(f"ds_write_b64 {ast}, {vr(AA + 4 * t, 2)} offset:{L_STG + 16 * 272 * t}")
        p += [f"""
    s_lshl_b32 {s_t1}, {s_w}, 2
    v_add_u32 {x0}, {s_t1}, {g}
    v_mul_u32_u24 {ast}, 272, {x0}
    v_lshl_add_u32 {ast}, {tok}, 4, {ast}
    s_lshl_b32 {s_t1}, {s_w}, 8
    s_add_u32 {s_t1}, {s_t1}, {L_N9}
    v_lshl_add_u32 {an9}, v{LANE}, 2, {s_t1}
    v_mul_u32_u24 {x0}, 1152, {x0}
    v_lshl_add_u32 {x1}, {tok}, 1, {x0}
    v_lshl_add_u32 {x0}, {tok}, 4, {x0}
    s_and_b32 {s_t0}, {s_j}, 3
    s_lshl_b32 {s_t1}, {s_tt}, 2
    s_add_u32 {s_t0}, {s_t0}, {s_t1}
    s_mul_i32 {s_t0}, {s_t0}, {32 * 1152}
    s_mul_i32 {s_t1}, {s_t2}, 288
    s_add_u32 {s_t0}, {s_t0}, {s_t1}""", barrier(), f"ds_read_b128 {vr(BB, 4)}, {ast} offset:{L_STG}"]
        p += [f"ds_read2st64_b32 {vr(BB + 4 + 2 * i, 2)}, {an9} offset0:{16 * i} offset1:{16 * i + 8}" for i in range(4)]
        p += [I(f"buffer_store_dwordx4 {vr(BB, 4)}, {x0}, {sOUT}, {s_t0} offen {self.o['ost'].replace('+', ' ')}")]
        p += [f"v_add_f32 v{BB + 4 + 2 * i}, v{BB + 4 + 2 * i}, v{BB + 5 + 2 * i}" for i in range(4)]
        p += [f"""
    v_add_f32 v{BB + 4}, v{BB + 4}, v{BB + 6}
    v_add_f32 v{BB + 8}, v{BB + 8}, v{BB + 10}
    v_add_f32 v{BB + 4}, v{BB + 4}, v{BB + 8}
    v_cvt_pk_bf16_f32 v{BB + 4}, v{BB + 4}, v{BB + 4}""",
              I(f"buffer_store_short v{BB + 4}, {x1}, {sOUT}, {s_t0} offen offset:256 {self.o['ost'].replace('+', ' ')}")]
        return p

    def diag_dump(self):
        if not self.o["diag"]:
            return self.ts("end")
        s = "    s_waitcnt vmcnt(0)\n"
        p = [raw(s), self.ts("end")]
        s = f"""    s_memtime s[100:101]
    s_waitcnt lgkmcnt(0)
    s_sub_u32 s100, s100, s98
    s_lshl_b32 {s_t0}, s2, 3
    s_add_u32 {s_t0}, {s_t0}, {s_w}
    s_lshl_b32 {s_t0}, {s_t0}, 6
    s_add_u32 {s_t0}, {s_t0}, {WS_DIAG:#x}
    s_mov_b64 exec, 1
"""
        srcs = ["s98" if self.o["diag"] == 2 else "s96", "s100"] + [f"s{4 + 2 * k}" for k in range(self.nts)]
        for i, r in enumerate(srcs):
            s += f"    v_mov_b32 v1, {r}\n    buffer_store_dword v1, v{L16}, {sWS}, {s_t0} offen offset:{4 * i}\n"
        return p + [raw(s)]

    def experiments(self, text):
        o = self.o
        out = []
        nb = 0
        for l in text.split("\n"):
            if "s_barrier" in l:
                nb += 1
            ffn = 9 < nb < 34
            if o["x_nodma"] and ffn and (" lds" in l or "load_lds" in l):
                continue
            if o["x_nobar"] and ffn and "s_barrier" in l:
                continue
            if o["x_nost"] and ffn and "buffer_store_dwordx4" in l:
                continue
            if o["x_nogelu"] and nb < 25 and any(f" v{TMP + i}," in l for i in range(4)) and l.strip().startswith("v_") \
                    and "mfma" not in l:
                continue
            if o["x_fast"] and "s_cbranch_scc1 L_slow" in l:
                continue
            out.append(l)
        return "\n".join(out)

    def build(self):
        p0, p1 = self.prologue()
        pre_dma, body, a0_dma, epi = self.ffn()
        prog = [p0, pre_dma, p1, body,
                barrier(need=self.need_a0), self.ts("a0"), a0_dma,
                [f"v_mov_b32 v{OREG + i}, 0" for i in range(16)], epi,
                f"s_cmp_lg_u64 {s_slow}, 0", "s_cbranch_scc1 L_slow",
                self.attention(), label("L_att_done"), self.ts("aend"), self.final(), self.diag_dump(),
                label("L_end"), "s_endpgm"]
        text, stats = finalize(prog)
        text = self.experiments(text)
        text2, _ = finalize(self.slow_path())
        self.stats = stats
        ref = open(f"cdna_kernels/{NAME}.s.ref").read().split("\n")
        head = [l for l in ref if l.startswith(";") and "@launch" not in l and "Override launch" not in l
                and "grid=ceil" not in l]
        out = "\n".join(head) + f"""
; @launch grid=(256,1,1) block=(512,1,1) lds=163840
; Generated by gen/gen.py. One workgroup per CU: 128 tokens x (288 hidden units, 2 heads).
.amdgcn_target "amdgcn-amd-amdhsa--gfx950"
.text
.globl {NAME}_kernel
.p2align 8
.type {NAME}_kernel,@function
{NAME}_kernel:
{text}{text2}
.section .rodata,"a"
.p2align 6
.amdhsa_kernel {NAME}_kernel
  .amdhsa_next_free_vgpr 256
  .amdhsa_next_free_sgpr 102
  .amdhsa_accum_offset 256
  .amdhsa_group_segment_fixed_size 0
  .amdhsa_kernarg_size 112
  .amdhsa_user_sgpr_count 2
  .amdhsa_user_sgpr_kernarg_segment_ptr 1
  .amdhsa_system_sgpr_workgroup_id_x 1
.end_amdhsa_kernel
"""
        return out


def parse_opts(args):
    kw = {}
    for a in args:
        k, v = a.split("=", 1)
        d = DEFAULTS[k]
        kw[k] = type(d)(v)
    return kw


if __name__ == "__main__":
    out = sys.argv[1]
    g = Gen(**parse_opts(sys.argv[2:]))
    open(out, "w").write(g.build())
    print(g.stats, g.tsnames)
```

```python
import re

_RE_RANGE = re.compile(r"^([vsa])\[(\d+):(\d+)\]$")
_RE_ONE = re.compile(r"^([vsa])(\d+)$")
TRANS = ("v_exp_", "v_log_", "v_rcp_", "v_rsq_", "v_sqrt_", "v_sin_", "v_cos_")


def regs(op):
    op = op.strip()
    if op.startswith("-"):
        op = op[1:]
    if op.startswith("abs(") or op.startswith("neg("):
        op = op[4:-1]
    if op.startswith("|"):
        op = op[1:-1]
    m = _RE_RANGE.match(op)
    if m:
        return {(m.group(1), i) for i in range(int(m.group(2)), int(m.group(3)) + 1)}
    m = _RE_ONE.match(op)
    if m:
        return {(m.group(1), int(m.group(2)))}
    if op in ("vcc", "vcc_lo", "vcc_hi"):
        return {("s", "vcc")}
    if op in ("exec", "exec_lo", "exec_hi"):
        return {("s", "exec")}
    if op == "m0":
        return {("s", "m0")}
    return set()


def vr(a, n=1):
    return f"v{a}" if n == 1 else f"v[{a}:{a + n - 1}]"


def sr(a, n=1):
    return f"s{a}" if n == 1 else f"s[{a}:{a + n - 1}]"


class I:
    def __init__(self, text, tag=None, need=(), off=None, pseudo=None, needregs=()):
        self.text = text
        self.tag = tag
        self.need = list(need)
        self.off = off
        self.pseudo = pseudo
        self.needregs = set(needregs)
        if pseudo is None:
            self.parse()

    def parse(self):
        t = self.text.split(";")[0].strip()
        mn, _, rest = t.partition(" ")
        self.mn = mn
        ops = [o.strip() for o in rest.split(",")] if rest.strip() else []
        mods = ""
        if ops:
            last = ops[-1].split()
            ops[-1] = last[0] if last else ""
            mods = " ".join(last[1:])
        self.ops, self.mods = ops, mods
        R, W = set(), set()
        self.cls = "other"
        self.passes = 0
        self.srcC = set()
        self.srcAB = set()
        self.wide_store = set()
        self.lds_dma = False
        if mn.startswith("v_mfma") or mn.startswith("v_smfmac"):
            self.cls = "mfma"
            self.passes = 4 if "16x16" in mn else 8
            if "_2b_" in mn:
                self.passes = 16
            W = regs(ops[0])
            self.srcAB = regs(ops[1]) | regs(ops[2])
            if mn.startswith("v_smfmac"):
                self.srcC = set(W)
                self.srcAB |= regs(ops[3])
            else:
                self.srcC = regs(ops[3])
            R = self.srcAB | self.srcC
        elif mn.startswith("v_"):
            self.cls = "valu"
            W = regs(ops[0]) if ops else set()
            k = 1
            if "_co_" in mn or mn.startswith("v_mad_u64"):
                W |= regs(ops[1])
                k = 2
            for o in ops[k:]:
                R |= regs(o)
            if "swap" in mn:
                W |= regs(ops[1])
                R |= regs(ops[0])
            if mn.startswith(("v_fmac", "v_dot2c", "v_writelane")) or "dpp" in mn:
                R |= regs(ops[0])
            if mn.startswith("v_cmpx"):
                W |= {("s", "exec")}
        elif mn.startswith("ds_"):
            self.cls = "ds"
            if mn.startswith("ds_read"):
                W = regs(ops[0])
                R = regs(ops[1])
                self.addr = ops[1]
            else:
                for o in ops:
                    R |= regs(o)
                self.addr = ops[0]
        elif mn.startswith(("buffer_", "global_")):
            self.cls = "vm"
            self.lds_dma = "lds" in mods.split() or "_lds_" in mn
            if "load" in mn and not self.lds_dma:
                W = regs(ops[0])
                for o in ops[1:]:
                    R |= regs(o)
            else:
                for o in ops:
                    R |= regs(o)
                if "atomic" in mn and "sc0" in mods.split():
                    W = regs(ops[0])
                if "store_dwordx4" in mn or "store_dwordx3" in mn:
                    self.wide_store = regs(ops[0] if mn.startswith("buffer_") else ops[1])
            if self.lds_dma:
                R |= {("s", "m0")}
        elif mn.startswith("s_"):
            self.cls = "salu"
            if mn.startswith(("s_cmp", "s_waitcnt", "s_nop", "s_barrier", "s_cbranch", "s_branch", "s_setprio",
                              "s_sleep", "s_endpgm", "s_bitcmp")):
                for o in ops:
                    R |= regs(o)
            else:
                if ops:
                    W = regs(ops[0])
                for o in ops[1:]:
                    R |= regs(o)
                if "saveexec" in mn:
                    W |= {("s", "exec")}
        self.R, self.W = R, W
        self.trans = mn.startswith(TRANS)


def label(name):
    return I(name + ":", pseudo="label")


def raw(text):
    return I(text, pseudo="raw")


def barrier(need=(), drain_lds=True):
    i = I("s_barrier", pseudo="barrier", need=need)
    i.drain = drain_lds
    return i


def wait(need=(), needregs=(), all_vm=False, all_ds=False):
    i = I("", pseudo="wait", need=need, needregs=needregs)
    i.all_vm, i.all_ds = all_vm, all_ds
    return i


def opt_begin():
    return I("", pseudo="opt_begin")


def opt_end():
    return I("", pseudo="opt_end")


def setbase(reg, base=0):
    i = I("", pseudo="setbase")
    i.reg, i.base = reg, base
    return i


def rebase(reg, lo, hi):
    i = I("", pseudo="rebase")
    i.reg, i.lo, i.hi = reg, lo, hi
    return i


def _need_states(p, c):
    n = 0
    pv = {r for r in p.W if r[0] != "s"}
    ps = {r for r in p.W if r[0] == "s"}
    if p.cls == "valu":
        if c.cls == "mfma" and pv & c.R:
            n = max(n, 2)
        if c.cls == "mfma" and ("s", "exec") in ps:
            n = max(n, 4)
        if c.cls == "valu":
            if p.trans and not c.trans and pv & (c.R | c.W):
                n = max(n, 1)
            if c.mn.startswith(("v_readfirstlane", "v_readlane")) and pv & c.R:
                n = max(n, 1)
            if ("dpp" in c.mn or "permlane" in c.mn) and pv & c.R:
                n = max(n, 2)
            if ps & c.R:
                n = max(n, 4 if c.mn.startswith(("v_readlane", "v_writelane")) else 2)
            if p.mn.startswith("v_dot") and pv & (c.R | c.W):
                n = max(n, 3)
        if p.mn.startswith("v_dot") and c.cls in ("mfma", "vm", "ds") and pv & c.R:
            n = max(n, 3)
        if c.cls == "vm" and ps & c.R:
            n = max(n, 5)
        if c.cls == "salu" and ps & c.R:
            n = max(n, 1)
        if p.trans and c.cls in ("vm", "ds") and pv & c.R:
            n = max(n, 1)
    if p.cls == "mfma":
        long_ = {4: 8, 8: 12, 16: 20}[p.passes]
        if c.cls == "mfma":
            if pv & c.srcAB:
                n = max(n, long_)
            if pv & c.srcC and not (pv == c.srcC and p.passes == c.passes):
                n = max(n, long_ - 2)
            if pv & c.W and not (pv == c.W and p.passes == c.passes):
                n = max(n, long_ - 2)
        elif pv & (c.R | c.W):
            n = max(n, long_)
        if c.cls in ("valu", "ds", "vm") and p.srcC & c.W:
            n = max(n, p.passes - 1)
    if p.cls == "vm" and p.wide_store and p.wide_store & c.W:
        n = max(n, 2)
    if p.cls == "salu" and ("s", "m0") in ps and c.cls == "vm" and c.lds_dma:
        n = max(n, 1)
    return n


class Fin:
    def __init__(self):
        self.out = []
        self.ds = []
        self.vm = []
        self.hist = []
        self.base = {}
        self.stack = []
        self.seen = set()
        self.stats = {"nop": 0, "wait": 0, "rebase": 0}

    def _emit(self, text, states=1, ins=None):
        self.out.append("    " + text)
        for h in self.hist:
            h[1] += states
        self.hist = [h for h in self.hist if h[1] < 24]
        if ins is not None and (ins.W or ins.cls in ("mfma", "vm")):
            self.hist.append([ins, 0])

    def _count(self, fifo, idx):
        depth = len(self.stack)
        return sum(1 for e in fifo[idx + 1:] if not e[2])

    def _waits(self, tags, rset, is_ds_load=False, wset=frozenset(), all_vm=False, all_ds=False):
        for t in tags:
            assert t in self.seen, f"wait for unknown tag {t}"
        parts = []
        for name, fifo, mx, allf in (("vmcnt", self.vm, 63, all_vm), ("lgkmcnt", self.ds, 15, all_ds)):
            idx = -1
            for i, e in enumerate(fifo):
                hit = allf or (e[0] is not None and e[0] in tags) or (e[1] & rset)
                if not hit and (e[1] & wset) and not (name == "lgkmcnt" and is_ds_load):
                    hit = True
                if hit:
                    idx = i
            if idx >= 0:
                n = min(self._count(fifo, idx), mx)
                parts.append(f"{name}({n})")
                del fifo[: idx + 1]
        if parts:
            self.stats["wait"] += 1
            self._emit("s_waitcnt " + " ".join(parts))

    def _hazard(self, ins):
        n = 0
        for p, st in self.hist:
            n = max(n, _need_states(p, ins) - st)
        while n > 0:
            k = min(n, 16)
            self.stats["nop"] += k
            self._emit(f"s_nop {k - 1}", states=k)
            n -= k

    def add(self, ins):
        ps = ins.pseudo
        if ps == "label":
            self.out.append(ins.text)
            return
        if ps == "raw":
            for line in ins.text.strip("\n").split("\n"):
                self.out.append(line)
            return
        if ps == "setbase":
            self.base[ins.reg] = ins.base
            return
        if ps == "rebase":
            b = self.base[ins.reg]
            if not (b <= ins.lo and ins.hi - b <= 65535):
                self.stats["rebase"] += 1
                self.add(I(f"v_add_u32 {ins.reg}, {(ins.lo - b) & 0xFFFFFFFF:#x}, {ins.reg}"))
                self.base[ins.reg] = ins.lo
            return
        if ps == "copybase":
            self.base[ins.dst] = self.base[ins.src]
            assert self.base[ins.src] % 8192 == 0
            return
        if ps == "wait":
            self._waits(ins.need, ins.needregs, all_vm=ins.all_vm, all_ds=ins.all_ds)
            return
        if ps == "barrier":
            self._waits(ins.need, set(), all_ds=ins.drain)
            self._emit("s_barrier")
            return
        if ps == "opt_begin":
            self.stack.append(([list(e) for e in self.ds], [list(e) for e in self.vm],
                               [list(h) for h in self.hist], dict(self.base), self.ds + self.vm))
            return
        if ps == "opt_end":
            ds0, vm0, h0, b0, keep = self.stack.pop()
            ids = set(map(id, keep))
            self.ds = ds0 + [[e[0], e[1], True] for e in self.ds if id(e) not in ids]
            self.vm = vm0 + [[e[0], e[1], True] for e in self.vm if id(e) not in ids]
            known = {id(h[0]) for h in h0}
            self.hist = h0 + [h for h in self.hist if id(h[0]) not in known]
            for k, v in b0.items():
                assert self.base.get(k) == v, f"address register {k} re-based inside an optional block"
            return
        text = ins.text
        if ins.off is not None:
            b = self.base[ins.addr]
            span = getattr(ins, "span", 0)
            if not (0 <= ins.off - b <= 65535 - span):
                nb = getattr(ins, "rebase_to", None)
                if nb is None:
                    nb = ins.off & ~1023
                self.stats["rebase"] += 1
                self.add(I(f"v_add_u32 {ins.addr}, {(nb - b) & 0xFFFFFFFF:#x}, {ins.addr}"))
                self.base[ins.addr] = b = nb
            if ins.off - b:
                text += f" offset:{ins.off - b}"
        is_ds_load = ins.cls == "ds" and bool(ins.W)
        self._waits(ins.need, {r for r in ins.R if r[0] != "s"} | ins.needregs, is_ds_load,
                    {r for r in ins.W if r[0] != "s"})
        self._hazard(ins)
        states = 1
        if ins.mn == "s_nop":
            states = int(ins.ops[0], 0) + 1
        self._emit(text, states, ins)
        if ins.tag is not None:
            self.seen.add(ins.tag)
        if ins.cls == "ds":
            self.ds.append([ins.tag, set(ins.W), False])
        elif ins.cls == "vm":
            self.vm.append([ins.tag, set(ins.W), False])
            assert len(self.vm) <= 63 + 40


def flat(x):
    for e in x:
        if isinstance(e, (list, tuple)):
            yield from flat(e)
        elif isinstance(e, str):
            for line in e.strip().split("\n"):
                line = line.strip()
                if line:
                    yield I(line)
        else:
            yield e


def finalize(prog, init=(), want_state=False):
    f = Fin()
    for g in init:
        many = len(init) > 1
        f.ds += [[e[0], set(e[1]), e[2] or many] for e in g.ds]
        f.vm += [[e[0], set(e[1]), e[2] or many] for e in g.vm]
        f.hist += [list(h) for h in g.hist]
        f.seen |= g.seen
        for k, v in g.base.items():
            if f.base.setdefault(k, v) != v:
                f.base[k] = None
        for k in f.stats:
            f.stats[k] += g.stats[k]
    for ins in flat(prog):
        f.add(ins)
    text = "\n".join(f.out) + "\n"
    return (text, f) if want_state else (text, f.stats)
```

```python
import math
import struct
import sys

from asmlib import I, barrier, finalize, flat, label, opt_begin, opt_end, raw, rebase, setbase, vr, wait

NAME = "gated_mix__grouped_kv_mqa__dense_activation_gelu__prompt"
KB = 1024
U = 8192

DEFAULTS = dict(
    b=4,
    diag=0,
    burst=18,
    lead=22,
    hoist=2,
    gx=5,
    mdma=1,
    mlds=1,
    nbuf=6,
    hqw="1+1+1.6+1.4+1",
    kvsig="g2",
    kvpoll="g5",
    kv0=2,
    pace=2.0,
    fdelay=8,
    cdelay=12,
    wins="15+39",
    pst="sc1",
    ost="sc1",
    asch="aeBvRfMkL4H66",
    touch=9,
    thr=40.0,
    force_slow=0,
    zoom="",
    x_pad="",
    x_nodma=0, x_nogelu=0, x_nost=0, x_fast=0,
)


def f32(x):
    return "0x%08x" % struct.unpack("<I", struct.pack("<f", x))[0]


WS_KV, WS_KN, WS_F, WS_WO, WS_O, WS_P = 0, 147456, 0x30000, 0x40000, 0x100000, 0x400000
WS_DIAG, WS_SIZE = 0x3000000, 0x4000000
SL = 4096
XREG = [72 * KB, 88 * KB, 104 * KB, 120 * KB, 136 * KB]
EX1, EX2, EX2H = 104 * KB, 116 * KB, 132 * KB
QSCR, MISC = 140 * KB, 152 * KB
L_B1, L_GATE, WOSCR = MISC, MISC + 2048, MISC + 4096
L_GT, L_DUMMY = MISC + 2048 + 1152, MISC + 1536
L_STG, L_N9 = 40 * KB, 50 * KB

sX, sW1, sW2, sWS, sDBG, sOUT, sWO, sB1, sB2, sG = (f"s[{a}:{a + 3}]" for a in range(32, 72, 4))
sWQ = sB1
s_w, s_p, s_hf, s_tt, s_j = "s72", "s73", "s74", "s75", "s76"
s_xo, s_m, s_w1o, s_who, s_whmax = "s77", "s78", "s79", "s80", "s81"
s_w2a, s_w2b, s_fl, s_cq, s_pst, s_oun = "s82", "s83", "s84", "s85", "s86", "s87"
s_t0, s_t1, s_d0, s_d1 = "s88", "s89", "s90", "s91"
s_msk, s_slow = "s[92:93]", "s[94:95]"
s_t2 = "s3"
s_wj, s_wo = "s68", "s69"

L16, C0, AW, A16, DW1, AWH, AQ, TMP = 0, 1, 2, 6, 7, 8, 9, 12
DQ, SQ, DW2, AEXW, LANE, DWH = 16, 18, 20, 21, 22, 23
QN2 = 23
ABUF, ACC, HOWN, HH, XO = 24, 40, 72, 104, 112
TX, TW0, TW1, TWQ, TW2, WJD, WJA, WJV = 96, 97, 98, 99, 100, 101, 102, 92
GTA, GTB = 80, 84
RQBUF, AQ2, HOTH = 184, 220, 224
GADDR, GACC, T, GP = 112, 120, 152, 176
QM, QRA, QRB, KM, KR, IDX, VA, VB = 40, 44, 46, 48, 52, 54, 56, 60
SREG, OREG, PREG, WREG, ATM = 64, 6, 100, 172, 96
AK, AV, AR = 2, 3, 4


def X(ks, t):
    return XO + 72 * t + 4 * ks


LOG2E = math.log2(math.e)
GC0 = -2.0 * LOG2E * math.sqrt(2.0 / math.pi)
GC1 = GC0 * 0.044715
QSCALE = LOG2E / math.sqrt(18.0)


def ds(text, off, **kw):
    return I(text, off=off, **kw)


def mf16(d, a, b, c=None):
    c = vr(d, 4) if c is None else c
    return I(f"v_mfma_f32_16x16x32_bf16 {vr(d, 4)}, {vr(a, 4)}, {vr(b, 4)}, {c}")


class Gen:
    def __init__(self, **kw):
        self.o = dict(DEFAULTS)
        self.o.update(kw)
        self.nl = 0
        self.nts = 0
        self.tsnames = []

    def lab(self, s):
        self.nl += 1
        return f"L_{s}_{self.nl}"

    def ts(self, name):
        if self.o["x_pad"] == name:
            l = self.lab("pad")
            return [raw(f"""{l}:
    s_memrealtime s[4:5]
    s_waitcnt lgkmcnt(0)
    s_sub_u32 s4, s4, s96
    s_cmp_lt_u32 s4, 10000
    s_cbranch_scc1 {l}""")]
        if not self.o["diag"] or (self.o["zoom"] and name[0] != "z" and name != "end"):
            return []
        if name not in self.tsnames:
            self.tsnames.append(name)
            self.nts += 1
        k = self.tsnames.index(name)
        assert k < 14
        op = "s_memtime" if self.o["diag"] == 2 else "s_memrealtime"
        return [raw(f"    {op} s[{4 + 2 * k}:{5 + 2 * k}]")]

    def cond(self, cmp, body):
        l = self.lab("skip")
        return [cmp, f"s_cbranch_scc0 {l}", opt_begin(), body, opt_end(), label(l)]

    def spin(self, load, reg, cmp_neq):
        lo, ld = self.lab("ok"), self.lab("spin")
        return [cmp_neq, "s_cmp_eq_u64 vcc, 0", f"s_cbranch_scc1 {lo}", opt_begin(),
                raw(f"""    s_mov_b32 {s_t2}, 0x8000
{ld}:
    s_sleep 2
    {load}
    s_waitcnt vmcnt(0)
    {cmp_neq}
    s_nop 1
    s_cmp_eq_u64 vcc, 0
    s_cbranch_scc1 {lo}
    s_sub_u32 {s_t2}, {s_t2}, 1
    s_cmp_lg_u32 {s_t2}, 0
    s_cbranch_scc1 {ld}"""), opt_end(), label(lo)]

    def touch(self, vaddr, srd, soff):
        return [f"s_mov_b32 m0, {L_DUMMY}", I(f"buffer_load_dword v{vaddr}, {srd}, {soff} offen lds")]

    def prologue(self):
        b = self.o["b"]
        tch = self.o["touch"]
        assert b == 4 or not tch & 14
        nb, lb = 16 // b, b.bit_length() - 1
        t = HOWN + 5
        l3, l7, g, tok, r, c4, w1 = (f"v{t + i}" for i in range(7))
        a, bb, cc = f"v{t + 7}", f"v{t + 8}", f"v{t + 9}"
        DX = HOWN + 4
        p = []
        if self.o["diag"] or self.o["x_pad"]:
            p += [raw("    s_memrealtime s[96:97]\n    s_memtime s[98:99]")]
        p += [f"""
    s_cmp_ge_u32 s2, 256
    s_cbranch_scc1 L_end""", raw("""    s_load_dwordx16 s[4:19], s[0:1], 0
    s_load_dwordx8 s[20:27], s[0:1], 64
    s_load_dwordx4 s[28:31], s[0:1], 96"""), f"""
    v_lshrrev_b32 {a}, 6, v0
    v_and_b32 v{LANE}, 63, v0
    v_readfirstlane_b32 {s_w}, {a}"""]
        if tch & 1:
            p += [self.cond(f"s_cmp_eq_u32 {s_w}, 7", [raw("""    s_getpc_b64 s[92:93]
L_pc:"""), f"""
    s_lshr_b32 {s_t0}, s2, 3
    s_and_b32 {s_t0}, {s_t0}, 7
    s_lshl_b32 {s_t0}, {s_t0}, 13
    v_lshl_add_u32 {bb}, v{LANE}, 7, {s_t0}
    v_min_u32 {bb}, L_end-L_pc, {bb}
    s_mov_b32 m0, {L_DUMMY}""", I(f"global_load_lds_dword {bb}, s[92:93]")])]
        p += [f"""
    v_lshlrev_b32 v{t + 11}, 2, v0
    v_lshrrev_b32 {l3}, 3, v{LANE}
    v_and_b32 {l7}, 7, v{LANE}
    v_lshrrev_b32 {g}, 4, v{LANE}
    v_and_b32 {w1}, 1, {a}
    v_lshlrev_b32 {w1}, 2, {w1}
    s_and_b32 {s_t0}, s2, {nb - 1}
    s_lshl_b32 {s_j}, {s_t0}, {lb}
    s_lshr_b32 {s_t0}, s2, 3
    s_and_b32 {s_t1}, {s_t0}, {b - 1}
    s_add_u32 {s_j}, {s_j}, {s_t1}
    s_lshr_b32 {s_tt}, {s_t0}, {lb}
    s_and_b32 {s_t0}, s2, 7
    s_lshr_b32 {s_t0}, {s_t0}, {nb.bit_length() - 1}
    s_mul_i32 {s_t0}, {s_t0}, {32 // b}
    s_add_u32 {s_tt}, {s_tt}, {s_t0}
    s_and_b32 {s_p}, {s_w}, 3
    s_lshr_b32 {s_hf}, {s_w}, 2
    s_lshl_b32 {s_m}, {s_p}, 10
    s_lshl_b32 {s_t0}, {s_tt}, 4
    s_add_u32 {s_t0}, {s_t0}, {s_p}
    s_mul_i32 {s_xo}, {s_t0}, {8 * 1152}
    s_and_b32 {s_t1}, {s_j}, 1
    s_mul_i32 {s_t0}, {s_j}, 576
    s_lshl_b32 {s_t2}, {s_t1}, 6
    s_add_u32 {s_whmax}, {s_t0}, {s_t2}
    s_mul_i32 {s_w1o}, {s_p}, {8 * 9216}
    s_add_u32 {s_w1o}, {s_w1o}, {s_whmax}
    v_lshl_add_u32 v{t + 10}, v0, 1, {s_t2}
    s_mul_i32 {s_t2}, {s_t1}, 576
    v_subrev_u32 {a}, {s_t2}, v{t + 10}
    v_cmp_gt_u32 vcc, 0x100, v0
    v_cndmask_b32 v{t + 10}, {a}, v{t + 10}, vcc
    v_add_u32 {a}, {w1}, {g}
    v_xor_b32 {a}, {a}, {l7}
    v_lshlrev_b32 {a}, 4, {a}
    v_mul_u32_u24 {bb}, 1152, {l3}
    v_add_u32 v{DX}, {a}, {bb}
    v_and_b32 {a}, 1, {g}
    v_lshl_add_u32 {a}, {a}, 1, {w1}
    v_xor_b32 {cc}, {a}, {l7}
    v_lshlrev_b32 {a}, 4, {cc}
    v_mul_u32_u24 v{DW1}, 9216, {l3}
    v_add_u32 v{DW1}, {a}, v{DW1}"""]
        if tch & 2:
            p += [f"""
    v_and_b32 {a}, 31, v0
    v_mul_u32_u24 {a}, 1152, {a}
    v_lshrrev_b32 v{TX}, 5, v0
    v_lshl_add_u32 v{TX}, v{TX}, 7, {a}
    s_and_b32 {s_t2}, {s_j}, 3
    s_lshl_b32 {s_d1}, {s_tt}, 2
    s_add_u32 {s_d1}, {s_d1}, {s_t2}
    s_mul_i32 {s_d1}, {s_d1}, {32 * 1152}
    s_add_u32 {s_d1}, {s_d1}, 384
    v_mul_u32_u24 v{TW0}, {8 * 9216}, v{LANE}
    s_and_b32 {s_t2}, {s_tt}, 7
    s_add_u32 {s_t2}, {s_t2}, 192
    s_mul_i32 {s_t2}, {s_t2}, 9216
    s_add_u32 {s_t2}, {s_t2}, {s_whmax}"""]
        p += [f"""
    s_mov_b32 s34, {2048 * 1152}
    s_mov_b32 s35, 0x20000
    s_mov_b32 s38, {576 * 9216}
    s_mov_b32 s39, 0x20000
    s_mov_b32 s62, 9216
    s_mov_b32 s63, 0x20000
    s_mov_b32 s70, 1152
    s_mov_b32 s71, 0x20000""", raw("    s_waitcnt lgkmcnt(0)"), """
    s_mov_b32 s32, s4
    s_mov_b32 s33, s5
    s_mov_b32 s36, s16
    s_mov_b32 s37, s17
    s_mov_b32 s60, s18
    s_mov_b32 s61, s19
    s_mov_b32 s68, s24
    s_mov_b32 s69, s25""",
              I(f"buffer_load_ushort v{t + 14}, v{t + 10}, {sB1}, {s_t0} offen"),
              I(f"buffer_load_dword v{t + 15}, v{t + 11}, {sG}, 0 offen")]
        if tch & 2:
            p += [self.cond(f"s_cmp_lt_u32 {s_w}, 3", self.touch(TX, sX, s_d1)),
                  self.cond(f"s_cmp_eq_u32 {s_w}, 3", self.touch(TW0, sW1, s_t2))]
        q = [f"""
    s_mov_b32 s40, s20
    s_mov_b32 s41, s21
    s_mov_b32 s42, {4608 * 1152}
    s_mov_b32 s43, 0x20000
    s_mov_b32 s44, s30
    s_mov_b32 s45, s31
    s_mov_b32 s46, {WS_SIZE:#x}
    s_mov_b32 s47, 0x20000
    s_mov_b32 s48, s28
    s_mov_b32 s49, s29
    s_mov_b32 s50, 256
    s_mov_b32 s51, 0x20000
    s_mov_b32 s52, s26
    s_mov_b32 s53, s27
    s_mov_b32 s54, {2048 * 1152}
    s_mov_b32 s55, 0x20000
    s_mov_b32 s56, s12
    s_mov_b32 s57, s13
    s_mov_b32 s58, {576 * 1152}
    s_mov_b32 s59, 0x20000
    s_mov_b32 s60, s6
    s_mov_b32 s61, s7
    s_mov_b32 s62, {576 * 1152}
    s_mov_b32 s64, s22
    s_mov_b32 s65, s23
    s_mov_b32 s66, 1152
    s_mov_b32 s67, 0x20000
    s_and_b32 {s_cq}, {s_j}, 3
    s_and_b32 {s_t1}, {s_j}, 1
    s_mul_i32 {s_t0}, {s_j}, 576
    s_xor_b32 {s_t2}, {s_t1}, 1
    s_lshl_b32 {s_t2}, {s_t2}, 9
    s_add_u32 {s_t0}, {s_t0}, {s_t2}
    s_mul_i32 {s_who}, {s_p}, {16 * 9216}
    s_add_u32 {s_who}, {s_who}, {s_t0}
    s_lshl_b32 {s_t2}, {s_p}, 4
    s_add_u32 {s_t0}, {s_t0}, {s_t2}
    s_mul_i32 {s_w2b}, {s_t0}, 576
    s_add_u32 {s_t0}, {s_whmax}, {s_t2}
    s_mul_i32 {s_w2a}, {s_t0}, 576
    s_lshl_b32 {s_t0}, {s_tt}, 2
    s_add_u32 {s_t0}, {s_t0}, {s_p}
    s_mul_i32 {s_pst}, {s_t0}, {36 * 16384}
    s_lshl_b32 {s_t2}, {s_hf}, 15
    s_add_u32 {s_pst}, {s_pst}, {s_t2}
    s_lshl_b32 {s_t2}, {s_j}, 10
    s_add_u32 {s_pst}, {s_pst}, {s_t2}
    s_add_u32 {s_pst}, {s_pst}, {WS_P:#x}
    s_lshl_b32 {s_fl}, {s_t0}, 1
    s_add_u32 {s_fl}, {s_fl}, {s_hf}
    s_lshl_b32 {s_fl}, {s_fl}, 4
    s_add_u32 {s_fl}, {s_fl}, {s_j}
    s_lshl_b32 {s_fl}, {s_fl}, 2
    s_add_u32 {s_fl}, {s_fl}, {WS_F:#x}
    s_lshl_b32 {s_t0}, {s_t0}, 4
    s_add_u32 {s_t0}, {s_t0}, {s_j}
    s_lshl_b32 {s_t0}, {s_t0}, 1
    s_add_u32 {s_t0}, {s_t0}, {s_hf}
    s_mul_i32 {s_oun}, {s_t0}, 1280
    s_add_u32 {s_oun}, {s_oun}, {WS_O:#x}
    v_and_b32 {tok}, 15, v{LANE}
    v_bfe_u32 {r}, v{LANE}, 2, 2
    v_and_b32 {c4}, 3, v{LANE}
    v_lshlrev_b32 v{L16}, 4, v{LANE}
    v_mov_b32 v{C0}, {f32(GC0)}
    s_add_u32 {s_t0}, {s_m}, {EX1}
    v_add_u32 v{AEXW}, {s_t0}, v{L16}
    v_lshlrev_b32 v{A16}, 4, {g}
    v_add_u32 v{A16}, {MISC}, v{A16}
    v_lshlrev_b32 {a}, 1, {g}
    v_xor_b32 {a}, {a}, {l7}
    v_lshl_add_u32 v{DW2}, {a}, 4, {bb}
    v_lshlrev_b32 v{WJD}, 4, {a}
    v_lshrrev_b32 {a}, 5, v{LANE}
    v_lshlrev_b32 {a}, 1, {a}
    v_xor_b32 {a}, {a}, {c4}
    v_lshrrev_b32 v{DWH}, 2, v{LANE}
    v_mul_u32_u24 v{DWH}, 9216, v{DWH}
    v_lshl_add_u32 v{DWH}, {a}, 4, v{DWH}""", setbase(f"v{AEXW}", EX1), setbase(f"v{A16}", MISC),
             f"""
    v_lshrrev_b32 {a}, 1, {tok}
    v_xor_b32 {a}, {a}, {g}
    v_lshlrev_b32 {a}, 4, {a}
    v_lshl_add_u32 {a}, {tok}, 7, {a}
    s_lshl_b32 {s_t0}, {s_p}, 1
    s_add_u32 {s_t0}, {s_t0}, {s_hf}
    s_lshl_b32 {s_t0}, {s_t0}, 11
    s_add_u32 {s_t0}, {s_t0}, {XREG[0]}
    v_add_u32 v{HOWN}, {s_t0}, {a}
    v_xor_b32 v{HOWN + 1}, 64, v{HOWN}
    v_xor_b32 v{HOWN + 2}, 0x800, v{HOWN}
    v_xor_b32 v{HOWN + 3}, 0x840, v{HOWN}""", [setbase(f"v{HOWN + i}", XREG[0]) for i in range(4)],
             f"""
    v_mov_b32 v{t + 12}, {l3}
    v_lshrrev_b32 {a}, 1, {r}
    v_and_b32 {l3}, 1, {g}
    v_lshl_add_u32 {l3}, {l3}, 1, {a}
    v_lshlrev_b32 {l3}, 5, {l3}
    v_lshl_add_u32 {l7}, {g}, 3, {r}
    v_lshlrev_b32 {w1}, 3, {c4}
    s_lshl_b32 {s_t0}, {s_hf}, 6
    v_add_u32 {a}, {s_t0}, {w1}
    v_xor_b32 {a}, {a}, {l3}
    v_lshl_add_u32 v{AW}, {l7}, 7, {a}
    v_xor_b32 v{AW + 1}, 32, v{AW}
    v_add_u32 v{AW + 2}, 0x10000, v{AW}
    v_add_u32 v{AW + 3}, 0x10000, v{AW + 1}
    v_and_b32 {a}, 1, {g}
    v_xor_b32 {a}, {s_hf}, {a}
    v_lshl_add_u32 {a}, {a}, 5, {w1}
    v_lshl_add_u32 v{AWH}, {l7}, 6, {a}
    s_lshl_b32 {s_t0}, {s_t1}, 3
    v_add_u32 {a}, {s_t0}, {w1}
    v_xor_b32 v{AQ}, {a}, {l3}
    v_lshl_add_u32 v{AQ}, {l7}, 7, v{AQ}
    v_add_u32 {a}, 32, {a}
    v_xor_b32 v{AQ + 1}, {a}, {l3}
    v_lshl_add_u32 v{AQ + 1}, {l7}, 7, v{AQ + 1}
    v_add_u32 {a}, 72, {w1}
    s_add_u32 {s_t2}, {s_t0}, 64
    v_mov_b32 {bb}, {s_t2}
    v_cmp_eq_u32 vcc, 0, {c4}
    v_cndmask_b32 {a}, {a}, {bb}, vcc
    s_sub_u32 {s_t2}, 104, {s_t0}
    v_mov_b32 {bb}, {s_t2}
    v_cmp_eq_u32 vcc, 3, {c4}
    v_cndmask_b32 {a}, {a}, {bb}, vcc
    v_xor_b32 {a}, {a}, {l3}
    v_lshl_add_u32 v{AQ + 2}, {l7}, 7, {a}""",
             [setbase(f"v{x}", 0) for x in (AW, AW + 1, AWH, AQ, AQ + 1, AQ + 2)],
             [setbase(f"v{x}", 65536) for x in (AW + 2, AW + 3)]]
        if tch & 12:
            q += [f"""
    s_mul_i32 {s_t2}, {s_t1}, 576
    v_lshlrev_b32 {a}, 7, {c4}
    v_add_u32 {a}, 128, {a}
    v_subrev_u32 {bb}, {s_t2}, {a}
    v_cndmask_b32 {a}, {a}, {bb}, vcc
    v_add_u32 {a}, {s_whmax}, {a}
    s_mul_i32 {s_t0}, {s_w}, 72
    s_and_b32 {s_t2}, {s_tt}, 7
    s_add_u32 {s_t0}, {s_t0}, {s_t2}
    v_lshrrev_b32 {bb}, 2, v{LANE}
    v_lshl_add_u32 {bb}, {bb}, 3, {s_t0}
    v_mul_u32_u24 {bb}, 9216, {bb}
    v_add_u32 v{TW1}, {a}, {bb}
    v_bfrev_b32 {l3}, 1
    v_cmp_gt_u32 vcc, 36, v{LANE}
    v_cndmask_b32 v{TW1}, {l3}, v{TW1}, vcc
    v_lshrrev_b32 {bb}, 1, v{LANE}
    v_lshl_add_u32 {bb}, {bb}, 3, {s_t0}
    v_mul_u32_u24 {bb}, 1152, {bb}
    v_and_b32 {a}, 1, v{LANE}
    v_mul_u32_u24 {a}, 68, {a}
    s_mul_i32 {s_t0}, {s_j}, 72
    v_add3_u32 v{TWQ}, {a}, {bb}, {s_t0}
    v_cmp_gt_u32 vcc, 18, v{LANE}
    v_cndmask_b32 v{TWQ}, {l3}, v{TWQ}, vcc
    s_lshl_b32 {s_t0}, {s_j}, 3
    s_add_u32 {s_t0}, {s_t0}, {s_t2}
    s_mul_i32 {s_t0}, {s_t0}, {36 * 1152}
    s_mul_i32 {s_t2}, {s_w}, {41 * 128}
    s_add_u32 {s_t0}, {s_t0}, {s_t2}
    v_lshl_add_u32 v{TW2}, v{LANE}, 7, {s_t0}
    v_cmp_gt_u32 vcc, 41, v{LANE}
    v_cndmask_b32 v{TW2}, {l3}, v{TW2}, vcc"""]
        q += [f"""
    s_lshl_b32 {s_t0}, {s_w}, 3
    v_add_u32 {l7}, {s_t0}, v{t + 12}
    s_mul_i32 {s_t0}, {s_j}, 72
    s_and_b32 {s_t0}, {s_t0}, 0xfffffff0
    v_mul_u32_u24 {a}, 1152, {l7}
    v_lshl_add_u32 {a}, {cc}, 4, {a}
    v_add_u32 {a}, {s_t0}, {a}
    s_lshl_b32 {s_t0}, {s_t1}, 4
    v_mov_b32 {bb}, {s_t0}
    v_cmp_eq_u32 vcc, 5, {cc}
    v_cndmask_b32 {bb}, 20, {bb}, vcc
    v_mad_u32_u24 {bb}, {l7}, 36, {bb}
    s_bitcmp1_b32 {s_j}, 1
    s_cselect_b32 s8, s10, s8
    s_cselect_b32 s9, s11, s9
    v_cmp_gt_u32 vcc, 5, {cc}
    v_cndmask_b32 v{SQ}, {bb}, {a}, vcc
    v_mov_b32 v{SQ + 1}, 0
    v_mov_b32 {a}, s6
    v_mov_b32 {bb}, s8
    v_cndmask_b32 v{DQ}, {bb}, {a}, vcc
    v_mov_b32 {a}, s7
    v_mov_b32 {bb}, s9
    v_cndmask_b32 v{DQ + 1}, {bb}, {a}, vcc
    v_lshl_add_u64 {vr(DQ, 2)}, {vr(SQ, 2)}, 0, {vr(DQ, 2)}
    v_mov_b32 {a}, {64 * 1152}
    v_mov_b32 {bb}, {64 * 36}
    v_cndmask_b32 v{SQ}, {bb}, {a}, vcc
    s_mov_b32 s92, 0x3ffff
    s_mov_b32 s93, 0x3ffff""",
              self.wo_setup(a, bb), f"""
    v_lshlrev_b32 v{t + 14}, 16, v{t + 14}
    v_add_u32 v{t + 11}, {MISC}, v{t + 11}
    ds_write_b32 v{t + 11}, v{t + 14}
    ds_write_b32 v{t + 11}, v{t + 15} offset:2048"""]
        return p, q

    def gelu_quad(self, src, dst):
        pr = [(f"v{TMP + i}", f"v{src + i}") for i in range(4)]
        o = [f"v_mul_f32 {t}, {x}, {x}" for t, x in pr]
        o += [f"v_fmamk_f32 {t}, {t}, {f32(GC1)}, v{C0}" for t, x in pr]
        o += [f"v_mul_f32 {t}, {t}, {x}" for t, x in pr]
        o += [f"v_exp_f32 {t}, {t}" for t, x in pr]
        o += [f"v_add_f32 {t}, 1.0, {t}" for t, x in pr]
        o += [f"v_rcp_f32 {t}, {t}" for t, x in pr]
        o += [f"v_mul_f32 {t}, {t}, {x}" for t, x in pr]
        o += [f"v_cvt_pk_bf16_f32 v{dst + i}, {pr[2 * i][0]}, {pr[2 * i + 1][0]}" for i in range(2)]
        return o

    def bias(self, h, r, tt2, t):
        if r < 4:
            return ds(f"ds_read_b128 {vr(ACC + 16 * (r & 1) + 8 * tt2 + 4 * t, 4)}, v{A16}",
                      L_B1 + 256 * r + 128 * h + 64 * tt2)
        return ds(f"ds_read_b128 {vr(ACC + 4 * t, 4)}, v{A16}", L_B1 + 1024 + 64 * h)

    def q_epilogue(self):
        a0, a2 = ACC + 8, AQ2
        tok, g, row, sc, aS = (f"v{56 + i}" for i in range(5))
        x0, x1 = "v61", "v62"
        p1 = [f"""
    v_and_b32 {tok}, 15, v{LANE}
    v_lshrrev_b32 {g}, 4, v{LANE}
    s_mul_i32 {s_t0}, {s_w}, 1536
    s_add_u32 {s_t0}, {s_t0}, {QSCR}
    v_mov_b32 {sc}, {f32(QSCALE)}
    v_cmp_eq_u32 vcc, 0, {g}
    v_mul_u32_u24 {row}, 96, {tok}
    v_add_u32 {row}, {s_t0}, {row}
    v_cndmask_b32 {x0}, 1.0, {sc}, vcc
    v_lshl_add_u32 {aS}, {g}, 3, {row}"""]
        p1 += [f"v_mul_f32 v{a2 + i}, v{a2 + i}, {x0}" for i in range(4)]
        p1 += [f"v_cvt_pk_bf16_f32 v{T + 6 + i}, v{a2 + 2 * i}, v{a2 + 2 * i + 1}" for i in range(2)]
        p1 += [f"ds_write_b64 {aS}, {vr(T + 6, 2)} offset:64"]
        kblk = [f"""
    s_mul_i32 {s_t0}, {s_tt}, 9216
    s_lshl_b32 {s_t1}, {s_p}, 1
    s_add_u32 {s_t1}, {s_t1}, {s_j}
    s_lshl_b32 {s_t1}, {s_t1}, 1
    s_add_u32 {s_t1}, {s_t1}, {s_hf}
    s_lshl_b32 {s_t1}, {s_t1}, 8
    s_add_u32 {s_t1}, {s_t1}, {s_t0}
    v_lshlrev_b32 {x0}, 3, {g}
    v_lshl_add_u32 {x0}, {tok}, 4, {x0}
    v_subrev_u32 {x0}, 8, {x0}
    v_mov_b32 {x1}, 0
    s_mov_b32 exec_lo, 0xffff0000
    s_mov_b32 exec_hi, 0x0000ffff""",
                I(f"buffer_store_dwordx2 {vr(T + 6, 2)}, {x0}, {sWS}, {s_t1} offen sc1", tag="kvst"), f"""
    v_fmac_f32 {x1}, v{a2}, v{a2}
    v_fmac_f32 {x1}, v{a2 + 1}, v{a2 + 1}""",
                self.cond(f"s_cmp_eq_u32 {s_j}, 0", [f"""
    s_lshl_b32 {s_t1}, {s_p}, 1
    s_add_u32 {s_t1}, {s_t1}, {s_hf}
    s_lshl_b32 {s_t1}, {s_t1}, 6
    s_add_u32 {s_t1}, {s_t1}, {s_t0}
    s_add_u32 {s_t1}, {s_t1}, 8704
    s_mov_b32 exec_lo, 0
    s_mov_b32 exec_hi, 0xffff0000
    v_lshlrev_b32 {x0}, 2, {tok}""",
                    I(f"buffer_store_dword v{T + 7}, {x0}, {sWS}, {s_t1} offen sc1", tag="kvst"),
                    "s_mov_b32 exec_lo, 0xffff0000", "s_mov_b32 exec_hi, -1"]), f"""
    v_fmac_f32 {x1}, v{a2 + 2}, v{a2 + 2}
    v_fmac_f32 {x1}, v{a2 + 3}, v{a2 + 3}
    s_mov_b64 exec, -1
    v_mov_b32 {x0}, {x1}
    s_lshl_b32 {s_t1}, {s_j}, 4
    s_add_u32 {s_t1}, {s_t1}, {s_tt}
    v_permlane32_swap_b32 {x0}, {x1}
    v_add_f32 {x1}, {x0}, {x1}
    v_mov_b32 {x0}, {x1}
    s_lshl_b32 {s_t1}, {s_t1}, 3
    s_add_u32 {s_t1}, {s_t1}, {s_w}
    v_permlane16_swap_b32 {x0}, {x1}
    v_add_f32 {x1}, {x0}, {x1}
    s_lshl_b32 {s_t1}, {s_t1}, 2
    s_add_u32 {s_t1}, {s_t1}, {WS_KN}"""]
        kblk += [f"v_max_f32_dpp {x1}, {x1}, {x1} row_ror:{n} row_mask:0xf bank_mask:0xf" for n in (8, 4, 2, 1)]
        kblk += ["s_mov_b64 exec, 1", I(f"buffer_store_dword {x1}, v{L16}, {sWS}, {s_t1} offen sc1", tag="kvst"),
                 "s_mov_b64 exec, -1"]
        vblk = [f"""
    s_mul_i32 {s_t0}, {s_w}, 1536
    s_add_u32 {s_t0}, {s_t0}, {QSCR + 72}
    v_and_b32 {x0}, 3, v{LANE}
    v_min_u32 {x0}, 2, {x0}
    v_lshl_add_u32 {x0}, {x0}, 3, {s_t0}
    v_lshrrev_b32 {x1}, 2, v{LANE}
    v_mul_u32_u24 {x1}, 96, {x1}
    v_add_u32 {x0}, {x0}, {x1}
    ds_read_b64_tr_b16 {vr(T + 10, 2)}, {x0}
    s_and_b32 {s_t1}, {s_j}, 1
    s_lshl_b32 {s_t0}, {s_t1}, 3
    v_add_u32 {x0}, {s_t0}, {tok}
    v_add_u32 {x1}, 6, {tok}
    v_cmp_gt_u32 vcc, 8, {tok}
    s_mul_i32 {s_t0}, {s_tt}, 9216
    s_lshl_b32 {s_t2}, {s_p}, 1
    v_cndmask_b32 {x0}, {x1}, {x0}, vcc
    v_and_b32 {x1}, 1, {g}
    s_add_u32 {s_t2}, {s_t2}, {s_hf}
    s_mul_i32 {s_t2}, {s_t2}, 576
    v_lshlrev_b32 {x1}, 3, {x1}
    v_lshl_add_u32 {x0}, {x0}, 4, {x1}
    s_add_u32 {s_t0}, {s_t0}, {s_t2}
    s_add_u32 {s_t0}, {s_t0}, {WS_KV + 4096}
    v_lshrrev_b32 {x1}, 1, {g}
    v_mul_u32_u24 {x1}, 288, {x1}
    s_mov_b32 {s_t2}, 0x0cff0cff
    s_cmp_eq_u32 {s_t1}, 0
    v_add_u32 {x0}, {x0}, {x1}
    s_cselect_b32 {s_t2}, {s_t2}, 0x00ff00ff
    s_mov_b32 exec_lo, {s_t2}
    s_mov_b32 exec_hi, {s_t2}""",
                I(f"buffer_store_dwordx2 {vr(T + 10, 2)}, {x0}, {sWS}, {s_t0} offen sc1", tag="kvst"),
                "s_mov_b64 exec, -1"]
        p1 += [self.cond(f"s_cmp_lt_u32 {s_j}, 4", [
            self.cond(f"s_cmp_lt_u32 {s_j}, 2", kblk), self.cond(f"s_cmp_ge_u32 {s_j}, 2", vblk)])]
        p2 = [f"v_mul_f32 v{a0 + i}, v{a0 + i}, {sc}" for i in range(8)]
        p2 += [f"v_cvt_pk_bf16_f32 v{T + 2 + i}, v{a0 + 2 * i}, v{a0 + 2 * i + 1}" for i in range(4)]
        p2 += [f"""
    v_and_b32 {x0}, 1, {g}
    v_mad_u32_u24 {x0}, {x0}, 36, {row}
    v_lshrrev_b32 {x1}, 1, {g}
    v_lshl_add_u32 {x1}, {x1}, 4, {x0}
    ds_write_b64 {aS}, {vr(T + 2, 2)}
    ds_write_b64 {aS}, {vr(T + 4, 2)} offset:32
    ds_read2_b32 {vr(QM, 2)}, {x1} offset0:0 offset1:1
    ds_read2_b32 {vr(QM + 2, 2)}, {x1} offset0:2 offset1:3""", I(f"ds_read_b32 v{QRA}, {x0} offset:32", tag="qrd")]
        p3 = [f"v_lshlrev_b32 v{T + i}, 16, v{QM + i}" for i in range(5)]
        p3 += [f"v_mul_f32 v{QN2}, v{QM}, v{QM}"] + [f"v_fmac_f32 v{QN2}, v{QM + i}, v{QM + i}" for i in range(1, 4)]
        p3 += [f"v_fmac_f32 v{QN2}, v{T + i}, v{T + i}" for i in range(4)]
        p3 += [f"""
    v_mov_b32 {x0}, v{QN2}
    v_cmp_gt_u32 vcc, 32, v{LANE}
    v_mov_b32 {x1}, 0
    v_permlane32_swap_b32 {x0}, v{QN2}
    v_add_f32 v{QN2}, v{QN2}, {x0}
    v_fmac_f32 v{QN2}, v{QRA}, v{QRA}
    v_fmac_f32 v{QN2}, v{T + 4}, v{T + 4}
    v_cndmask_b32 v{QRB}, v{QRA}, {x1}, vcc
    v_cndmask_b32 v{QRA}, 0, v{QRA}, vcc"""]
        return p1, p2, p3

    def gate(self, h):
        x = f"v{GTA}"
        return f"""
    v_mul_f32 {x}, {f32(-LOG2E)}, {x}
    v_and_b32 v{GTA + 1}, 15, v{LANE}
    v_exp_f32 {x}, {x}
    s_lshl_b32 {s_t0}, {s_p}, 7
    s_add_u32 {s_t0}, {s_t0}, {L_GT + 64 * h}
    v_lshl_add_u32 v{GTA + 1}, v{GTA + 1}, 2, {s_t0}
    v_add_f32 {x}, 1.0, {x}
    v_rcp_f32 {x}, {x}
    ds_write_b32 v{GTA + 1}, {x}"""

    def wo_setup(self, x0, x1):
        return [f"""
    v_lshrrev_b32 {x0}, 5, v{LANE}
    v_bfe_u32 {x1}, v{LANE}, 3, 2
    v_mad_u32_u24 {x0}, {x0}, 18, {x1}
    s_mul_i32 {s_t0}, {s_j}, 36
    s_lshl_b32 {s_t1}, {s_p}, 2
    s_add_u32 {s_t0}, {s_t0}, {s_t1}
    s_mul_i32 {s_t0}, {s_t0}, 1152
    s_lshl_b32 {s_t1}, {s_tt}, 7
    s_add_u32 {s_wj}, {s_t0}, {s_t1}""", self.cond(f"s_cmp_ge_u32 {s_tt}, 9", [f"""
    v_lshrrev_b32 {x0}, 5, v{LANE}
    v_bfe_u32 {x1}, v{LANE}, 4, 1
    v_lshl_add_u32 {x0}, {x0}, 2, {x1}
    v_bfe_u32 {x1}, v{LANE}, 3, 1
    v_mad_u32_u24 {x0}, {x0}, 18, {x1}
    s_sub_u32 {s_t0}, {s_tt}, 9
    s_lshl_b32 {s_t0}, {s_t0}, 1
    s_and_b32 {s_t1}, {s_p}, 1
    s_add_u32 {s_t0}, {s_t0}, {s_t1}
    s_lshl_b32 {s_t0}, {s_t0}, 3
    s_and_b32 {s_t1}, {s_p}, 2
    s_add_u32 {s_t0}, {s_t0}, {s_t1}
    s_mul_i32 {s_t0}, {s_t0}, 18
    s_add_u32 {s_t0}, {s_t0}, 16
    s_mul_i32 {s_t0}, {s_t0}, 1152
    s_lshl_b32 {s_t1}, {s_j}, 7
    s_add_u32 {s_wj}, {s_t0}, {s_t1}"""]), f"""
    v_mul_u32_u24 {x0}, 1152, {x0}
    v_add_u32 v{WJD}, v{WJD}, {x0}
    v_bfe_u32 {x0}, v{LANE}, 3, 2
    v_xor_b32 {x0}, {s_p}, {x0}
    v_lshlrev_b32 {x0}, 5, {x0}
    v_and_b32 {x1}, 3, v{LANE}
    v_lshl_add_u32 {x0}, {x1}, 3, {x0}
    v_lshrrev_b32 {x1}, 2, v{LANE}
    v_lshl_add_u32 {x0}, {x1}, 7, {x0}
    v_add_u32 v{WJA}, {WOSCR}, {x0}
    s_add_u32 {s_t0}, {s_tt}, 7
    s_cmp_ge_u32 {s_tt}, 9
    s_cselect_b32 {s_t0}, {s_t0}, {s_j}
    s_cselect_b32 {s_t1}, {s_j}, {s_tt}
    s_lshl_b32 {s_t1}, {s_t1}, 2
    s_add_u32 {s_t1}, {s_t1}, {s_p}
    s_mul_i32 {s_t1}, {s_t1}, 18
    s_add_u32 {s_t0}, {s_t0}, {s_t1}
    s_lshl_b32 {s_t0}, {s_t0}, 10
    s_add_u32 {s_wo}, {s_t0}, {WS_WO:#x}
    s_cmp_lt_u32 {s_j}, 9
    s_cselect_b32 {s_t0}, 11, 9
    s_cmp_lt_u32 {s_tt}, {s_t0}
    s_cselect_b32 {s_wo}, {s_wo}, -1"""]

    def wo_job(self):
        c = f"s_cmp_lg_u32 {s_wo}, -1"
        return (self.cond(c, [f"s_add_u32 m0, {s_m}, {WOSCR}",
                              I(f"buffer_load_dwordx4 v{WJD}, {sWO}, {s_wj} offen lds", tag="wodma")]),
                [f"ds_read_b64_tr_b16 {vr(WJV, 2)}, v{WJA}", f"ds_read_b64_tr_b16 {vr(WJV + 2, 2)}, v{WJA} offset:2048"],
                self.cond(c, [I(f"buffer_store_dwordx4 {vr(WJV, 4)}, v{L16}, {sWS}, {s_wo} offen sc1", tag="wost")]))

    def signal(self, cmp, soff, reg):
        return self.cond(cmp, [f"v_mov_b32 v{reg}, 1", "s_mov_b64 exec, 1",
                               I(f"buffer_atomic_add v{reg}, v{L16}, {sDBG}, {soff} offen"), "s_mov_b64 exec, -1"])

    def shift_setup(self):
        x = f"v{T}"
        o = [f"v_max3_f32 {x}, {x}, v{T + 1}, v{T + 2}", f"v_max_f32 {x}, {x}, v{T + 3}"]
        o += [f"v_max_f32_dpp {x}, {x}, {x} row_ror:{n} row_mask:0xf bank_mask:0xf" for n in (8, 4, 2, 1)]
        o += [[f"""
    v_readlane_b32 {s_t0}, {x}, 0
    v_readlane_b32 {s_t1}, {x}, 16
    v_readlane_b32 {s_t2}, {x}, 32
    v_readlane_b32 {s_d1}, {x}, 48
    s_max_u32 {s_t0}, {s_t0}, {s_t1}
    s_max_u32 {s_t2}, {s_t2}, {s_d1}
    v_mov_b32 {x}, {s_t0}
    v_add_f32 {x}, {s_t2}, {x}"""], f"""
    v_mul_f32 {x}, {x}, v{QN2}
    v_sqrt_f32 {x}, {x}
    v_mov_b32 v{T + 1}, {f32(0.01)}
    v_fmamk_f32 {x}, {x}, {f32(1.02)}, v{T + 1}
    v_mov_b32 v{T + 1}, {f32(self.o['thr'] if not self.o['force_slow'] else -1.0)}
    v_cmp_nle_f32 {s_slow}, {x}, v{T + 1}
    v_mov_b32 v{T + 1}, 0
    v_cvt_pk_bf16_f32 {x}, -{x}, v{T + 1}
    v_cmp_gt_u32 vcc, 32, v{LANE}
    v_cndmask_b32 v{QRA + 1}, 0, {x}, vcc
    v_cndmask_b32 v{QRB + 1}, {x}, v{T + 1}, vcc"""]
        return o

    def att_consts(self):
        x = f"v{T}"
        o = [f"""
    v_mov_b32 v{KR + 1}, 0x3f80
    v_mov_b32 v{IDX}, 0xdddddddd
    v_and_b32 {x}, 27, v{LANE}
    v_cmp_eq_u32 vcc, 18, {x}
    v_mov_b32 {x}, 0x3f803f80"""]
        o += [f"v_cndmask_b32 v{VA + i}, 0, {x}, vcc" for i in range(8)]
        o += [f"""
    v_mov_b32 v{AK}, v{L16}
    v_lshlrev_b32 v{AR}, 2, v{LANE}
    v_and_b32 {x}, 31, v{LANE}
    v_lshrrev_b32 v{AV}, 5, v{LANE}
    v_mul_u32_u24 v{AV}, 288, v{AV}
    v_lshl_add_u32 v{AV}, {x}, 4, v{AV}""", [setbase(f"v{AK}"), setbase(f"v{AV}"), setbase(f"v{AR}")]]
        return o

    START = [f"x{c}" for c in range(9)] + ["r1_0"]

    def stream(self, h, where):
        o = self.o
        ops = []

        def tr(buf, i, areg, off, win=False):
            if win:
                areg += 2 * (off >> 16)
            return ds(f"ds_read_b64_tr_b16 {vr(buf + 2 * i, 2)}, v{areg}", off)

        ring, nring = [ABUF + 4 * i for i in range(4)], [0]

        def nb():
            nring[0] += 1
            return ring[(nring[0] - 1) % len(ring)]

        def new_ring(extra):
            base = [x for x in ring[nring[0] % len(ring):] + ring[:nring[0] % len(ring)] if x < ABUF + 16]
            ring[:] = [extra + 4 * i for i in range(o["nbuf"] - 4)] + base
            nring[0] = 0

        for r in range(4):
            if r == 1:
                new_ring(HH)
            for ks in range(18):
                for tt2 in range(2):
                    buf, pc = nb(), ("w", r, ks)
                    op = dict(buf=buf, rd=[tr(buf, i, AW + tt2, where(pc) + 512 * i, True) for i in range(2)], pc=pc,
                              mf=[mf16(ACC + 16 * (r & 1) + 8 * tt2 + 4 * t, buf, X(ks, t)) for t in range(2)], rate=1)
                    if tt2 == 0 and r == 0 and ks % 2 == 0:
                        c = ks // 2
                        op["step"] = f"x{c}"
                        op["pre"] = [ds(f"ds_read_b128 {vr(X(ks + k, t), 4)}, v{HOWN + 2 * t + k}", XREG[c % 5])
                                     for k in range(2) for t in range(2)]
                        if c < 2:
                            op["pre"] = [self.bias(h, c, a, t) for a in range(2) for t in range(2)] + op["pre"]
                    if tt2 == 0 and r > 0 and ks % 6 == 0:
                        op["step"] = f"r{r}_{ks // 6}"
                    ops.append(op)
                if r == 0:
                    buf = GTB + 4 * (ks % 3)
                    ops.append(dict(buf=buf, rd=[ds(f"ds_read_b128 {vr(buf, 4)}, v{A16}", L_GATE + 64 * ks)], pc=pc,
                                    mf=[mf16(GTA, buf, X(ks, 0), "0" if ks == 0 else None)], rate=1))
        h0 = len(ops)
        for ks in range(18):
            buf, pc = nb(), ("h", 0, ks // 2)
            op = dict(buf=buf, rd=[tr(buf, i, AWH, where(pc) + 2048 * (ks & 1) + 256 * i) for i in range(2)], pc=pc,
                      mf=[mf16(ACC + 4 * t, buf, X(ks, t)) for t in range(2)], rate=1)
            if ks in (0, 8):
                op["step"] = f"h{ks // 8}"
            ops.append(op)
        n = 0
        for ks in range(18):
            for a in range(3):
                buf, pc = RQBUF + 4 * (n % 9), ("q", 0, ks)
                rd = [tr(buf, i, AQ + a, where(pc) + 512 * i) for i in range(2)]
                d = (ACC + 8, ACC + 12, AQ2)[a]
                op = dict(buf=buf, rd=rd, mf=[mf16(d, buf, X(ks, 0), "0" if ks == 0 else None)], pc=pc,
                          rate=2, after=h0 + 14 if n < 9 else -1)
                if a == 0:
                    op["mf"][0].needregs = {("v", buf + 8)}
                if a == 0 and ks % 6 == 0:
                    op["step"] = f"q{ks // 6}"
                ops.append(op)
                n += 1
        g0 = len(ops)
        new_ring(168)
        for R in range(9):
            for q in range(9):
                for tt2 in range(2):
                    buf, pc = nb(), ("g", R, q)
                    rd = [tr(buf, i, GADDR + tt2, where(pc) + 2048 * (i ^ (h if q == 8 else 0)), True) for i in range(2)]
                    hb = HH if q == 8 else (HOWN if (q & 1) == h else HOTH) + 8 * (q >> 1)
                    op = dict(buf=buf, rd=rd, pc=pc, rate=1, after=g0 - 6 if R == 0 else -1,
                              mf=[mf16(GACC + 16 * (R & 1) + 8 * tt2 + 4 * t, buf, hb + 4 * t, "0" if q == 0 else None)
                                  for t in range(2)])
                    if q == 0 and tt2 == 0:
                        op["step"] = f"g{R}"
                    if R == 0 and q == o["gx"] and tt2 == 0:
                        op["step"] = "gx"
                    ops.append(op)

        G = [dict(m=[], mem=[])]
        B, use0, lastm, reads = {}, {}, {}, {}
        last_user, prev = {}, []
        for k, op in enumerate(ops):
            prev.append(last_user.get(op["buf"], -1))
            last_user[op["buf"]] = k
        ro, rr, cur = 0, 0, None

        def issue_one():
            nonlocal ro, rr, cur
            op = ops[ro]
            if rr == 0 and "step" in op:
                cur = op["step"]
                B[cur] = len(G) - 1
                G[-1]["mem"].append(("boundary", cur))
            if rr == 0:
                G[-1]["mem"] += op.get("pre", [])
                use0.setdefault(op["pc"], cur)
                assert use0[op["pc"]] == cur
            x = op["rd"][rr]
            G[-1]["mem"].append(x)
            reads.setdefault(cur, []).append(x[0] if isinstance(x, list) else x)
            rr += 1
            if rr == len(op["rd"]):
                ro, rr = ro + 1, 0

        while ro < 3:
            issue_one()
        for k, op in enumerate(ops):
            while ro <= k:
                issue_one()
            for mi, m in enumerate(op["mf"]):
                G.append(dict(m=[m], mem=[]))
                lastm[op["pc"]] = len(G) - 1
                done = k if mi == len(op["mf"]) - 1 else k - 1
                cnt = 0
                while ro < len(ops) and prev[ro] <= k - 1 + (op["rate"] > 1) and prev[ro] <= done \
                        and ops[ro].get("after", -1) <= done and cnt < max(op["rate"], ops[ro]["rate"]) + (
                            ops[ro]["rate"] == 1 and ro + 1 < len(ops) and prev[ro + 1] <= k - 1):
                    issue_one()
                    cnt += 1
        return G, B, use0, lastm, reads

    def dma_code(self, q):
        k, a, b = q["pc"]
        m0 = f"s_add_u32 m0, {s_m}, {q['at']}"
        tag = q["pc"]
        if k == "q":
            code = [m0, I(f"global_load_lds_dwordx4 {vr(DQ, 2)}, off", tag=tag)]
            if b < 16:
                code.append(f"v_lshl_add_u64 {vr(DQ, 2)}, {vr(SQ, 2)}, 0, {vr(DQ, 2)}")
            return code
        v, srd, base, off, aux = {
            "x": (HOWN + 4, sX, s_xo, 32 * b * 1152 + 128 * a, ""),
            "w": (DW1, sW1, s_w1o, 32 * b * 9216 + 128 * a, ""),
            "h": (DWH, sW1, s_who, 64 * b * 9216, ""),
            "g": (DW2, sW2, s_w2a if b < 8 else s_w2b, (32 * b * 1152 if b < 8 else 0) + 128 * a, ""),
            "kv": (L16, sWS, s_m, WS_KV + SL * b, " sc1"),
        }[k]
        return [m0, f"s_add_u32 {s_d0}, {base}, {off}",
                I(f"buffer_load_dwordx4 v{v}, {srd}, {s_d0} offen{aux} lds", tag=tag)]

    def plan(self):
        o = self.o
        G, B, use0, lastm, _ = self.stream(1, lambda pc: 0)
        steps = sorted(B, key=B.get) + ["a0", "a1", "end"]
        idx = {s: i for i, s in enumerate(steps)}
        self.steps, self.idx = steps, idx

        def last_abs(pc):
            s = idx[use0[pc]]
            nxt = steps[s + 1]
            if nxt in self.START or nxt == "a0":
                return s
            assert lastm[pc] <= B.get(steps[s + 2], 1 << 30) - o["hoist"]
            return s + (lastm[pc] > B[nxt] - o["hoist"])

        def slots(lo, n):
            return range(lo // SL, (lo + n + SL - 1) // SL)

        res = [(slots(XREG[i], 4 * SL), -1, idx[f"x{i + 5 if i < 4 else i}"]) for i in range(5)]
        res += [(slots(EX1 + 4 * SL * r, 4 * SL), idx[f"r{r + 1}_0"], idx["q1"]) for r in range(3)]
        res += [(slots(EX2, 6 * SL), idx["q2"], idx["gx"]), (slots(QSCR, 3 * SL), idx["g0"], idx["g2"])]
        for i, (sa, a0, a1) in enumerate(res):
            for sb, b0, b1 in res[:i]:
                assert not set(sa) & set(sb) or a1 < b0 or b1 < a0
        P = []
        for c in range(9):
            P += [dict(pc=("x", c, q), h=q & 1, at=XREG[c % 5] + SL * q, u0=c, e=c - 4 if c >= 5 else -1) for q in range(4)]
            P += [dict(pc=("w", 0, 2 * c + k), h=k) for k in range(2)]
        P += [dict(pc=("w", r, ks), h=ks & 1) for r in range(1, 4) for ks in range(18)]
        P += [dict(pc=("h", 0, u), h=(u + 1) & 1) for u in range(9)]
        P += [dict(pc=("q", 0, ks), h=ks & 1) for ks in range(18)]
        P += [dict(pc=("g", R, q), h=(9 * R + q + 1) & 1) for R in range(9) for q in range(9)]
        cap = {"q2": 6, "g0": 4, "gx": 4}
        free = [-1] * 38
        cur, ptr = -1, 0
        for k, q in enumerate(P):
            fixed = "at" in q
            if not fixed:
                q["u0"], q["u1"] = idx[use0[q["pc"]]], last_abs(q["pc"])
            top = 36 if q["pc"][0] == "g" else 26
            while True:
                ahead = sum(1 for z in P[:k] if z["u0"] > cur)
                ok = ahead < (o["burst"] if cur < idx["x5"] else o["lead"]) and cur >= q.get("e", -1)
                if cur >= 0:
                    ok = ok and sum(1 for z in P[:k] if z["issue"] == cur) < cap.get(steps[cur], 10)
                if ok and not fixed:
                    cand = [x % top for x in range(ptr, ptr + top) if free[x % top] <= cur and not any(
                        x % top in sl and not (b < cur or q["u1"] < a) for sl, a, b in res)]
                    ok = bool(cand)
                if ok:
                    break
                cur += 1
            if not fixed:
                q["at"], free[cand[0]], ptr = cand[0] * SL, q["u1"] + 1, cand[0] + 1
            q["issue"] = cur
            assert cur < q["u0"], (q, steps[cur])
        nb4 = idx[o["kvpoll"]] + 1
        av = [max([free[x], nb4] + [b + 1 for sl, a, b in res if x in sl]) for x in range(36)]
        self.kv_order = sorted(range(16), key=lambda g: max(av[x] for x in slots(9216 * g, 9216)))
        seen = []
        for n, g in enumerate(self.kv_order):
            for x in slots(9216 * g, 9216):
                if x in seen:
                    continue
                seen.append(x)
                cur = max(cur, av[x])
                while cur < idx["a0"] and sum(1 for z in P if z["issue"] == cur) >= 12:
                    cur += 1
                P.append(dict(pc=("kv", 0, x), h=len(seen) & 1, at=x * SL, issue=cur, grp=n))
        late = [q["grp"] for q in P if "grp" in q and q["issue"] >= idx["g8"]]
        n0 = max(min(late), o["kv0"])
        for q in P:
            if "grp" in q:
                q["u0"] = idx["a0"] if q["grp"] < n0 else idx["a1"]
                assert q["issue"] < q["u0"]
        self.b1tile = 4 * n0 - 2
        self.P = P
        self.planinfo = " ".join(f"{q['pc'][0]}{q['pc'][1]}.{q['pc'][2]}@{q['at'] // SL}:"
                                 f"{steps[q['issue']] if q['issue'] >= 0 else 'pre'}" for q in P)

    def p_store(self, u):
        R, tt2 = divmod(u, 2)
        d = GP + 8 * (R % 6) + 4 * tt2
        return [f"s_add_u32 {s_d1}, {s_pst}, {(4 * R + tt2) * 16384}",
                I(f"buffer_store_dwordx4 {vr(d, 4)}, v{L16}, {sWS}, {s_d1} offen {self.o['pst'].replace('+', ' ')}",
                  tag=("p", u))]

    def p_pack(self, R):
        return [f"v_cvt_pk_bf16_f32 v{GP + 8 * (R % 6) + i}, v{GACC + 16 * (R & 1) + 2 * i}, "
                f"v{GACC + 16 * (R & 1) + 2 * i + 1}" for i in range(8)]

    def ffn(self, h):
        o = self.o
        steps, idx = self.steps, self.idx
        at = {q["pc"]: q["at"] for q in self.P}
        G, B, use0, lastm, reads = self.stream(h, at.get)
        NG = len(G)
        blk = {s: [] for s in steps}
        head = {s: [] for s in steps}
        post = {s: [] for s in steps}
        mb0 = {s: [] for s in steps}
        mb1 = {s: [] for s in steps}
        need = {s: [q["pc"] for q in self.P if q["h"] == h and steps[q["u0"]] == s] for s in steps}

        def lines(items):
            return [x for e in items for x in (e.strip().split("\n") if isinstance(e, str) else [e])]

        def pos(s):
            return steps[idx[s] - h]

        def split(items, names, wts):
            items, k, acc = lines(items), 0, 0.0
            cost = [2 - o["mlds"] if isinstance(x, list) else 2 if "exp" in x or "rcp" in x else 1 for x in items]
            for nm, w in zip(names, wts):
                acc += w / sum(wts)
                e = min(range(k, len(items) + 1, 2), key=lambda e: abs(sum(cost[:e]) - acc * sum(cost)))
                for x in items[k:e]:
                    if isinstance(x, list) and o["mlds"]:
                        x = list(flat(x))
                        nxt = steps[idx[nm] + 1]
                        mb0[nxt] += [y for y in x[1:] if y.W]
                        mb1[nxt] += [y for y in x[1:] if not y.W]
                        x = x[0]
                    blk[nm].append(x)
                k = e
            assert k == len(items)

        def exw(text, off, tag):
            return ds(text, off + SL * h, tag=tag)

        for r in range(3):
            items = []
            for t in range(2):
                for tt2 in range(2):
                    items += self.gelu_quad(ACC + 16 * (r & 1) + 8 * tt2 + 4 * t, HOWN + 8 * r + 4 * t + 2 * tt2)
                    if r < 2 or tt2 == 0:
                        items[-1] = [items[-1], self.bias(h, r + 2, tt2, t)]
                items[-1] = [items[-1], exw(f"ds_write_b128 v{AEXW}, {vr(HOWN + 8 * r + 4 * t, 4)}",
                                            EX1 + U * (2 * r + t), "ex1")]
            split(items, [f"r{r + 1}_{i}" for i in range(3)], [1, 1, 1])
        need["h1"].append("ex1")
        items = []
        for t in range(2):
            for tt2 in range(2):
                items += self.gelu_quad(ACC + 16 + 8 * tt2 + 4 * t, HOWN + 24 + 4 * t + 2 * tt2)
        for t in range(2):
            items += self.gelu_quad(ACC + 4 * t, HH + 4 * t)
        split(items, ["h0", "h1", "q0", "q1", "q2"], [float(x) for x in o["hqw"].split("+")])
        head["q0"] += [ds(f"ds_read_b128 {vr(HOTH + 8 * r + 4 * t, 4)}, v{AEXW}",
                          EX1 + U * (2 * r + 1 - t) + SL * (1 - h), tag="ex1r") for r in range(3) for t in range(2)]
        need["q2"].append("ex1r")
        a, bb = f"v{GACC}", f"v{GACC + 1}"
        blk["q1"] += lines([f"""
    v_bfe_u32 {a}, v{LANE}, 3, 2
    v_xor_b32 {a}, {2 * h}, {a}
    v_lshlrev_b32 {a}, 5, {a}
    v_and_b32 {bb}, 3, v{LANE}
    v_lshl_add_u32 {a}, {bb}, 3, {a}
    v_lshrrev_b32 {bb}, 2, v{LANE}
    v_lshl_add_u32 v{GADDR}, {bb}, 7, {a}
    v_xor_b32 v{GADDR + 1}, 32, v{GADDR}"""] + [f"v_add_u32 v{GADDR + 2 + i}, 0x10000, v{GADDR + i}" for i in range(4)]
                           + [[setbase(f"v{GADDR + i}", 65536 * (i >> 1)) for i in range(6)]])
        assert lastm[("q", 0, 2)] <= B["q2"] and lastm[("h", 0, 8)] <= B["q1"] and lastm[("q", 0, 17)] <= B["gx"]
        blk["q2"] += [exw(f"ds_write_b128 v{AEXW}, {vr(HOWN + 24 + 4 * t, 4)}", EX2 + U * t, "ex2") for t in range(2)]
        blk["q2"] += [exw(f"ds_write_b64 v{AEXW}, {vr(HH + 4 * t, 2)}", EX2H + 8 * t, "ex2") for t in range(2)]
        need[("g0", "gx")[h]].append("ex2")
        ex2r = [ds(f"ds_read_b128 {vr(HOTH + 24 + 4 * t, 4)}, v{AEXW}", EX2 + U * (1 - t) + SL * (1 - h), tag="ex2r")
                for t in range(2)]
        ex2r += [ds(f"ds_read_b64 {vr(HH + 4 * t + 2, 2)}, v{AEXW}", EX2H + 8 * (1 - t) + SL * (1 - h), tag="ex2r")
                 for t in range(2)]
        (blk["q2"] if h else post["gx"]).extend(ex2r)
        need["g1"].append("ex2r")
        assert o["gx"] <= 6
        q1, q2, q3 = self.q_epilogue()
        head["g0"] += q1
        blk["g1"] += lines(q2)
        need["g3"].append("qrd")
        blk["g2"] += lines(q3)
        blk["g3"] += lines(self.att_consts())
        head["r1_0"].append(self.gate(h))
        for R in range(7):
            assert lastm[("g", R, 8)] <= B[f"g{R + 2}"]
            blk[f"g{R + 1}"] += self.p_pack(R) + [self.p_store(R)]
        zero = f"v{SQ + 1}"
        post["x5"] += ["s_mov_b64 exec, 1",
                       I(f"buffer_store_dword {zero}, v{L16}, {sWS}, {s_oun} offen offset:1152 sc1", tag="frst"),
                       I(f"buffer_store_dword {zero}, v{L16}, {sWS}, {s_fl} offen sc1", tag="frst"), "s_mov_b64 exec, -1"]
        need["r2_0"].append("frst")
        if h == 0:
            w1, w2, w3 = self.wo_job()
            post["x7"].append(w1)
            need["r1_1"].append("wodma")
            head["r1_1"] += w2
            blk["r1_1"].append(w3)
            need["r2_0"].append("wost")
            head["r2_0"] += [f"s_lshl_b32 {s_d1}, {s_tt}, 2", self.signal(f"s_cmp_eq_u32 {s_w}, 0", s_d1, WJV)]
            post[o["kvsig"]] += [f"s_lshr_b32 {s_t0}, {s_j}, 2", f"s_or_b32 {s_t0}, {s_t0}, {s_w}",
                                 f"s_movk_i32 {s_d1}, 128", self.signal(f"s_cmp_eq_u32 {s_t0}, 0", s_d1, TMP)]
        need[o["kvsig"]].append("kvst")
        if o["touch"] & 4:
            post["x6"] += self.touch(TW1, sW1, 0)
            head[pos("r1_2")] += self.touch(TWQ, sWQ, 0)
        if o["touch"] & 8:
            for k in range(4):
                head[steps[idx["r1_0"] + 2 * k + 1 - h]].append(
                    self.cond(f"s_cmp_eq_u32 {s_p}, {k}", self.touch(TW2, sW2, 0)))
        k = idx[o["kvpoll"]]
        load = f"buffer_load_dword v{T + 8}, v{T + 9}, {sDBG}, 0 offen sc1"
        head[pos(steps[k])] += [f"""
    v_cmp_gt_u32 vcc, 16, v{LANE}
    v_mov_b32 v{T + 10}, 16
    v_cndmask_b32 v{T + 9}, 32, v{LANE}, vcc
    v_cndmask_b32 v{T + 10}, 64, v{T + 10}, vcc
    v_lshlrev_b32 v{T + 9}, 2, v{T + 9}""", load]
        head[pos(steps[k + 1])] += [self.spin(load, T + 8, f"v_cmp_gt_u32 vcc, v{T + 10}, v{T + 8}"),
                                    f"s_mov_b32 {s_d1}, {WS_KN}",
                                    I(f"buffer_load_dwordx4 {vr(T, 4)}, v{L16}, {sWS}, {s_d1} offen sc1")]
        blk["g7"] += lines(self.shift_setup()) + [f"v_mov_b32 v{OREG + i}, 0" for i in range(16)]
        assert all(q["issue"] <= idx["g7"] - 1 + h for q in self.P if q["pc"][0] == "g" and q["h"] == h)
        assert idx[pos(steps[k + 1])] < idx["g7"]

        pre_dma, a0_dma, g8_dma = [], [], []
        dma = {s: [] for s in steps}
        for si in range(-1, idx["a0"] + 1):
            mine = [self.dma_code(q) for q in self.P if q["issue"] == si and q["h"] == h]
            s = steps[si] if si >= 0 else None
            if s is None:
                pre_dma = mine
            elif s == "a0":
                pass
            elif s in self.START[:-1] or (s == "r1_0" and h == 1):
                lo, hi = B[s] + 1, B[steps[si + 1]] - (o["hoist"] if s == "r1_0" else 0)
                for i, c in enumerate(mine):
                    G[lo + (i * (hi - lo)) // len(mine)]["mem"].append(c)
            else:
                n = o["mdma"] if idx[s] < idx["q0"] else 0
                if h:
                    n = len(mine) - min(n, len(mine))
                    dma[pos(s)] = mine[:n]
                    mb1[s] = mine[n:] + mb1[s]
                else:
                    mb1[s] = mine[:n] + mb1[s]
                    dma[s] = mine[n:]
        for s in steps[:-4]:
            for i, x in enumerate(mb0[s]):
                G[B[s] + 1 + i]["mem"].append(x)
            lo, hi = B[s] + 2 + len(mb0[s]), B[steps[idx[s] + 1]] - o["hoist"] - 2
            for i, x in enumerate(mb1[s]):
                G[lo + (i * (hi - lo)) // len(mb1[s])]["mem"].append(x)

        def gblock(s, nxt):
            items, d = list(blk[s]), dma[s]
            z = s in o["zoom"].split("+")
            out = (self.ts(f"z{s}.G") if z else []) + list(head[s])
            for i, c in enumerate(d):
                out.append(c)
                out += items[(i * len(items)) // (2 * len(d)) * 1:((i + 1) * len(items)) // (2 * len(d))]
            out += self.ts(f"z{s}.D") if z else []
            out += items[(len(items) // 2 if d else 0):]
            out += self.ts(f"z{s}.E") if z else []
            for reg in sorted({x.addr for x in reads.get(nxt, [])}):
                offs = [x.off for x in reads[nxt] if x.addr == reg]
                lo = min(offs) if max(offs) - min(offs) < 65536 else offs[0]
                out.append(rebase(reg, lo & ~4095, max(x for x in offs if x - (lo & ~4095) < 65536)))
            return out

        stamps = {"x0": "x0", "r1_0": "r1", "r2_0": "r2", "h0": "h", "g0": "g0", "g4": "g4"}
        if h:
            for s in steps[:-3]:
                if s not in self.START:
                    G[B[s] - o["hoist"]]["mem"].insert(0, barrier(need=need[s], drain_lds=False))
                    G[B[s] - o["hoist"] - 1]["mem"].append("s_setprio 1")
                    post[s].append("s_setprio 0")
            G[NG - 2]["mem"] += ["s_setprio 1", barrier(need=need["a0"])]
            for i, x in enumerate(self.p_pack(7)):
                G[NG - 10 + i]["mem"].insert(0, x)
        body = []
        for g in G:
            body.append(g["m"])
            for x in g["mem"]:
                if isinstance(x, tuple):
                    s = x[1]
                    if s not in self.START:
                        body.append(gblock(steps[idx[s] - 1], s))
                    if s in self.START or h == 0:
                        body.append(barrier(need=need[s]))
                    if steps[idx[s] - 1] in o["zoom"].split("+"):
                        body += self.ts(f"z{s}.M")
                    body += [self.ts(stamps[s]) if s in stamps else [], post[s]]
                else:
                    body.append(x)
        if h:
            body += [self.p_store(7), self.p_pack(8), "s_setprio 0"]
        else:
            body += [gblock("g8", None), self.p_pack(7), self.p_store(7), self.p_pack(8), barrier(need=need["a0"])]
        return pre_dma, body

    def kv_off(self, t):
        return 9216 * self.kv_order[t // 4], t & 3

    def k_reads(self, t):
        base, q = self.kv_off(t)
        o = [ds(f"ds_read_b128 {vr(KM, 4)}, v{AK}", base + 1024 * q)]
        if q % 2 == 0:
            o.append(ds(f"ds_read_b32 v{KR}, v{AR}", base + 8704 + 128 * q))
        return o

    def v_reads(self, t):
        base, q = self.kv_off(t)
        a = ds(f"ds_read_b128 {vr(VA, 4)}, v{AV}", base + 4096 + 1152 * q)
        a.span = 576
        return [f"s_mov_b64 exec, {s_msk}", a, ds(f"ds_read_b128 {vr(VB, 4)}, v{AV}", base + 4096 + 1152 * q + 576),
                "s_mov_b64 exec, -1"]

    def qk(self, t):
        s = SREG + 16 * (t & 1)
        return (I(f"v_mfma_f32_32x32x8_bf16 {vr(s, 16)}, {vr(KR, 2)}, {vr(QRB if t & 1 else QRA, 2)}, 0",
                  needregs={("v", KM)}),
                I(f"v_mfma_f32_32x32x16_bf16 {vr(s, 16)}, {vr(KM, 4)}, {vr(QM, 4)}, {vr(s, 16)}"))

    def pv(self, t):
        s = SREG + 16 * (t & 1)
        return (I(f"v_smfmac_f32_32x32x32_bf16 {vr(OREG, 16)}, {vr(VA, 4)}, {vr(s, 8)}, v{IDX}", needregs={("v", VB)}),
                I(f"v_smfmac_f32_32x32x32_bf16 {vr(OREG, 16)}, {vr(VB, 4)}, {vr(s + 8, 8)}, v{IDX}"))

    def bg_setup(self):
        return f"""
    s_mul_i32 {s_t2}, {s_cq}, 9
    s_lshr_b32 {s_t0}, {s_j}, 2
    s_lshl_b32 {s_t1}, {s_tt}, 2
    s_add_u32 {s_t0}, {s_t0}, {s_t1}
    s_lshl_b32 {s_w2b}, {s_t0}, 7
    s_add_u32 {s_w2b}, {s_w2b}, {WS_F:#x}
    s_mul_i32 {s_t0}, {s_t0}, 36
    s_add_u32 {s_t0}, {s_t0}, {s_t2}
    s_lshl_b32 {s_t0}, {s_t0}, 14
    s_add_u32 {s_t0}, {s_t0}, {WS_P:#x}
    s_lshl_b32 {s_t1}, {s_w}, 11
    s_add_u32 {s_w1o}, {s_t0}, {s_t1}
    s_add_u32 {s_w1o}, {s_w1o}, {8 * 16384}
    s_lshl_b32 {s_xo}, {s_w}, 14
    s_add_u32 {s_xo}, {s_xo}, {s_t0}
    s_mul_i32 {s_t0}, {s_t2}, {18 * KB}
    s_add_u32 {s_t0}, {s_t0}, {WS_WO:#x}
    s_mul_i32 {s_who}, {s_w}, {18 * KB}
    s_add_u32 {s_who}, {s_who}, {s_t0}
    s_add_u32 {s_t0}, {s_t0}, {8 * 18 * KB}
    s_add_u32 {s_whmax}, {s_t0}, {s_t1}
    s_and_b32 {s_t1}, {s_w}, 1
    s_lshl_b32 {s_t1}, {s_t1}, 10
    s_add_u32 {s_w2a}, {s_t0}, {s_t1}
    s_add_u32 {s_w2a}, {s_w2a}, {16 * KB}
    v_and_b32 v{ATM + 2}, 31, v{LANE}
    v_lshlrev_b32 v{ATM + 2}, 2, v{ATM + 2}"""

    def a0_dma(self):
        at = [q["at"] for q in self.P if self.steps[q["issue"]] == "a0" and q["issue"] >= 0]
        o = []
        for i in range(0, len(at), 2):
            x, y = at[i], at[min(i + 1, len(at) - 1)]
            o.append([f"s_mul_i32 {s_d0}, {s_hf}, {(y - x) & 0xFFFFFFFF:#x}", f"s_add_u32 {s_d0}, {s_d0}, {s_m}",
                      f"s_add_u32 m0, {s_d0}, {x}", f"s_add_u32 {s_d0}, {s_d0}, {WS_KV + x}",
                      I(f"buffer_load_dwordx4 v{L16}, {sWS}, {s_d0} offen sc1 lds", tag="kvl")])
        return o

    def bg_loads(self):
        def ld(reg, sbase, off):
            pre, so = [], sbase
            if off >= 4096:
                pre, so = [f"s_add_u32 {s_d0}, {sbase}, {off & ~4095}"], s_d0
            oo = f" offset:{off % 4096}" if off % 4096 else ""
            return reg, pre + [I(f"buffer_load_dwordx4 {vr(reg, 4)}, v{L16}, {sWS}, {so} offen{oo} sc1")]

        wo = [ld(WREG + 4 * k, s_who, KB * k) for k in range(18)]
        wo += [ld(WREG + 72 + 4 * k, s_whmax, KB * k) for k in range(2)] + [ld(WREG + 80, s_w2a, 0)]
        pl = [ld(PREG + 4 * k, s_xo, KB * k)[1] for k in range(16)]
        pl += [ld(PREG + 64 + 4 * k, s_w1o, KB * k)[1] for k in range(2)]
        return wo, pl

    def p_poll(self, val):
        load = f"buffer_load_dword v{ATM + 1}, v{ATM + 2}, {sWS}, {s_w2b} offen sc1"
        return [load], self.spin(load, ATM + 1, f"v_cmp_gt_u32 vcc, {val}, v{ATM + 1}")

    def p_flag(self, val, need):
        return [f"v_mov_b32 v{ATM}, {val}", wait(need=need), "s_mov_b64 exec, 1",
                I(f"buffer_store_dword v{ATM}, v{L16}, {sWS}, {s_fl} offen sc1"), "s_mov_b64 exec, -1"]

    def attention(self):
        o = self.o
        ex = [([], []) for _ in range(64)]
        st = {u: int(1 + (u - 8) * o["pace"]) for u in range(8, 18)}
        for u, t in st.items():
            ex[t][0].append(self.p_store(u))
        for i, x in enumerate(self.a0_dma()):
            ex[i // 2][i & 1].append(x)
        su = self.bg_setup().strip().split("\n")
        for i, x in enumerate(su):
            ex[4 + i // 6][1].append(x)
        wo, _ = self.bg_loads()
        busy = {GP + 8 * ((u // 2) % 6) + 4 * (u & 1): t for u, t in st.items()}
        wo.sort(key=lambda e: busy.get(e[0], 0))
        t = 9
        for reg, code in wo:
            t = max(t, busy.get(reg, 0) + 1)
            ex[t][1].append(code)
            t += 1
        lo = 0
        for w in o["wins"].split("+"):
            hi, val = int(w[0]), int(w[1])
            tf = max(st.get(2 * val - 1, 0) + o["fdelay"], 3)
            ex[tf][0].append(self.p_flag(val, [("p", u) for u in range(2 * val)]))
            tc = max(tf + o["cdelay"], 10)
            pa, pb = self.p_poll(val)
            pre = [f"s_sub_u32 {s_t0}, {s_cq}, {lo}"]
            c = f"s_cmp_le_u32 {s_t0}, {hi - lo}"
            ex[tc - 2][0].append(pa)
            ex[tc][0].append([pre, self.cond(c, pb)])
            _, pl = self.bg_loads()
            for i in range(9):
                ex[tc + (i * min(18, 62 - tc)) // 9][1].append([pre, self.cond(c, pl[2 * i:2 * i + 2])])
            lo = hi + 1
            self.planinfo += f" | flag {val} at {tf}, check at {tc}"
        assert lo == 4
        self.planinfo += f" | stores {st}"
        p = [self.k_reads(0), self.qk(0), self.k_reads(1)]
        sch = o["asch"]
        for t in range(64):
            e = [f"v_exp_f32 v{SREG + 16 * (t & 1) + i}, v{SREG + 16 * (t & 1) + i}" for i in range(16)]
            if t == self.b1tile:
                p += [barrier(need=["kvl"], drain_lds=False),
                      self.ts("b1")]
            if o["zoom"] == "att" and t % 5 == 0:
                p += self.ts(f"z{t}")
            k = 0
            for c in sch:
                if c.isdigit():
                    p += e[k:k + int(c)]
                    k += int(c)
                elif c in "aB" and t > 0:
                    p.append(self.pv(t - 1)[c == "B"])
                elif c == "A":
                    p.append(self.pv(t)[0])
                elif c in "RM" and t < 63:
                    p.append(self.qk(t + 1)[c == "M"])
                elif c == "v":
                    p += self.v_reads(t)
                elif c == "k" and t < 62:
                    p += self.k_reads(t + 2)
                elif c in "ef":
                    p += ex[t][c == "f"]
                elif c in "LHX":
                    p.append(f"s_setprio {'LHX'.index(c)}")
            assert k == 16
        if "a" in sch:
            p.append(self.pv(63)[0])
        p += [self.pv(63)[1], "s_setprio 0"]
        return p

    def slow_path(self):
        S = SREG
        mx, ak, av, ar = f"v{ATM}", f"v{AK}", f"v{AV}", f"v{AR}"

        def qk(q):
            o = f"    ds_read_b128 {vr(KM, 4)}, {ak} offset:{1024 * q}\n"
            o += f"    ds_read_b32 v{KR}, {ar} offset:{8704 + 256 * (q >> 1)}\n"
            o += "    s_waitcnt lgkmcnt(0)\n"
            o += "    " + self.qk(q)[0].text.replace(vr(S + 16, 16), vr(S, 16)) + "\n"
            o += "    " + self.qk(0)[1].text + "\n    s_nop 15\n"
            return o

        adv = f"""    v_add_u32 {ak}, 9216, {ak}
    v_add_u32 {av}, 9216, {av}
    v_add_u32 {ar}, 9216, {ar}
    s_sub_u32 {s_t0}, {s_t0}, 1
    s_cmp_lg_u32 {s_t0}, 0
"""
        s = f"""    v_mov_b32 v{QRA + 1}, 0
    v_mov_b32 v{QRB + 1}, 0
    v_mov_b32 {mx}, 0xff800000
    s_mov_b32 {s_t0}, 16
L_slow1:
"""
        for q in range(4):
            s += qk(q)
            for i in range(8):
                s += f"    v_max3_f32 {mx}, {mx}, v{S + 2 * i}, v{S + 2 * i + 1}\n"
        s += adv + f"""    s_cbranch_scc1 L_slow1
    v_mov_b32 v{ATM + 1}, {mx}
    s_nop 1
    v_permlane32_swap_b32 v{ATM + 1}, {mx}
    s_nop 1
    v_max_f32 {mx}, {mx}, v{ATM + 1}
    v_subrev_u32 {ak}, {16 * 9216}, {ak}
    v_subrev_u32 {av}, {16 * 9216}, {av}
    v_subrev_u32 {ar}, {16 * 9216}, {ar}
    s_mov_b32 {s_t0}, 16
L_slow2:
"""
        for q in range(4):
            s += f"""    s_mov_b64 exec, {s_msk}
    ds_read_b128 {vr(VA, 4)}, {av} offset:{4096 + 1152 * q}
    ds_read_b128 {vr(VB, 4)}, {av} offset:{4096 + 1152 * q + 576}
    s_mov_b64 exec, -1
"""
            s += qk(q)
            for i in range(16):
                s += f"    v_sub_f32 v{S + i}, v{S + i}, {mx}\n"
            for i in range(16):
                s += f"    v_exp_f32 v{S + i}, v{S + i}\n"
            s += "    s_nop 1\n    " + self.pv(0)[0].text + "\n    " + self.pv(0)[1].text + "\n    s_nop 3\n"
        s += adv + "    s_cbranch_scc1 L_slow2\n"
        pa, pb = self.p_poll(9)
        wo, pl = self.bg_loads()
        return [label("L_slow"), self.a0_dma(), [self.p_store(u) for u in range(8, 18)],
                raw("    s_waitcnt vmcnt(0) lgkmcnt(0)\n    s_barrier"), self.p_flag(9, []), raw(s),
                self.bg_setup(), pa, pb, [c for _, c in wo], pl,
                raw("    s_waitcnt vmcnt(0) lgkmcnt(0)\n    s_nop 15\n    s_branch L_att_done")]

    def final(self):
        O = OREG
        tok, g, x0, x1 = "v24", "v25", "v26", "v27"
        SEL, BIA, BI9, GG = 28, 96, 60, 2
        AB, AA, NB_, NA = 64, 72, 80, 88
        BB = 40
        p = [f"""
    v_and_b32 {tok}, 15, v{LANE}
    v_lshrrev_b32 {g}, 4, v{LANE}
    v_lshlrev_b32 {x0}, 3, {tok}
    v_lshl_add_u32 {x0}, {g}, 2, {x0}
    v_rcp_f32 v{O + 10}, v{O + 10}"""]
        p += [f"v_mul_f32 v{O + i}, v{O + i}, v{O + 10}" for i in range(10)]
        p += [f"v_cvt_pk_bf16_f32 v{O + 12 + i}, v{O + 2 * i}, v{O + 2 * i + 1}" for i in range(4)]
        p += [I(f"buffer_store_dwordx4 {vr(O + 12, 4)}, v{L16}, {sWS}, {s_oun} offen sc1", tag="ost"),
              f"v_cvt_pk_bf16_f32 v{O + 11}, v{O + 8}, v{O + 9}",
              "s_mov_b32 exec_hi, 0",
              I(f"buffer_store_dword v{O + 11}, {x0}, {sWS}, {s_oun} offen offset:1024 sc1", tag="ost"),
              "s_mov_b64 exec, -1"]
        p += [f"""
    s_mov_b32 {s_t2}, {s_cq}
    s_mul_i32 {s_t0}, {s_t2}, 288
    s_lshl_b32 {s_t1}, {s_w}, 5
    s_add_u32 {s_t1}, {s_t1}, {s_t0}
    v_lshlrev_b32 {x1}, 3, {g}""",
              I(f"buffer_load_dwordx2 {vr(BIA + 2, 2)}, {x1}, {sB2}, {s_t1} offen"),
              I(f"buffer_load_dwordx2 {vr(BI9 + 2, 2)}, {x1}, {sB2}, {s_t0} offen offset:256"), f"""
    s_lshr_b32 {s_t1}, {s_j}, 2
    s_lshl_b32 {s_t1}, {s_t1}, 7
    s_add_u32 {s_t1}, {s_t1}, {L_GT}
    v_lshl_add_u32 {x0}, {tok}, 2, {s_t1}
    ds_read2_b32 {vr(GG, 2)}, {x0} offset0:0 offset1:16
    v_and_b32 {x0}, 1, {tok}
    v_lshlrev_b32 {x0}, 4, {x0}
    v_mov_b32 {x1}, 0x3f80
    v_lshlrev_b32 {x0}, {x0}, {x1}
    v_lshrrev_b32 {x1}, 1, {tok}
    v_lshlrev_b32 v34, 1, {g}
    v_cmp_eq_u32 vcc, v34, {x1}
    v_cndmask_b32 v{SEL + 2}, 0, {x0}, vcc
    v_add_u32 v34, 1, v34
    v_cmp_eq_u32 vcc, v34, {x1}
    v_cndmask_b32 v{SEL + 3}, 0, {x0}, vcc
    v_mov_b32 v{SEL}, 0
    v_mov_b32 v{SEL + 1}, 0
    v_mov_b32 v{SEL + 4}, 0
    v_mov_b32 v{SEL + 5}, 0
    v_mov_b32 v35, 1""",
              wait(need=["ost"]), "s_mov_b64 exec, 1",
              I(f"buffer_store_dword v35, v{L16}, {sWS}, {s_oun} offen offset:1152 sc1"), "s_mov_b64 exec, -1",
              self.ts("oflag")]
        load = f"buffer_load_dword v36, v37, {sWS}, {s_d1} offen offset:1152 sc1"
        p += [f"""
    s_lshr_b32 {s_t0}, {s_j}, 2
    s_lshl_b32 {s_t1}, {s_tt}, 2
    s_add_u32 {s_t0}, {s_t0}, {s_t1}
    s_lshl_b32 {s_t0}, {s_t0}, 3
    s_add_u32 {s_t0}, {s_t0}, {s_w}
    s_mul_i32 {s_d1}, {s_t0}, 5120
    s_add_u32 {s_d1}, {s_d1}, {WS_O:#x}
    v_and_b32 v37, 3, v{LANE}
    v_mul_u32_u24 v37, 1280, v37
    s_cmp_eq_u32 {s_w}, 0
    s_cselect_b32 {s_t0}, -1, 0
    v_and_b32 v{BI9 + 2}, {s_t0}, v{BI9 + 2}
    v_and_b32 v{BI9 + 3}, {s_t0}, v{BI9 + 3}"""]
        for b in (BIA, BI9):
            p += [f"""
    v_lshlrev_b32 v{b}, 16, v{b + 2}
    v_and_b32 v{b + 1}, 0xffff0000, v{b + 2}
    v_lshlrev_b32 v{b + 2}, 16, v{b + 3}
    v_and_b32 v{b + 3}, 0xffff0000, v{b + 3}"""]
        sums = []
        for k in range(18):
            acc, c = (AB, BIA) if k < 16 else (NB_, BI9)
            for h in range(2):
                sums.append(mf16(acc + 4 * h, SEL + 2 - 2 * h, PREG + 4 * k, vr(c, 4) if k in (0, 16) else None))
        p += sums[:24]
        p += [barrier(), load, sums[24:], self.spin(load, 10, "v_cmp_ne_u32 vcc, 1, v36"), self.ts("opoll"),
              f"s_mul_i32 {s_t0}, {s_w}, 5120", f"s_mov_b32 m0, {s_t0}"]
        for k in range(4):
            oo = f" offset:{KB * k}" if k else ""
            p.append(I(f"buffer_load_dwordx4 v{L16}, {sWS}, {s_d1} offen{oo} sc1 lds", tag="odma"))
        p += [f"s_add_u32 m0, {s_t0}, 4096", f"s_add_u32 {s_d1}, {s_d1}, 4096",
              I(f"buffer_load_dwordx4 v{L16}, {sWS}, {s_d1} offen sc1 lds", tag="odma")]
        a9, ar, ast, an9 = "v34", "v35", "v36", "v37"
        p += [f"""
    s_mov_b32 {s_t2}, {s_cq}
    s_add_u32 {s_t1}, {s_t2}, {s_w}""",
              self.cond(f"s_bitcmp1_b32 {s_t1}, 1", [f"v_swap_b32 v{AB + i}, v{AB + 4 + i}" for i in range(4)]),
              self.cond(f"s_bitcmp1_b32 {s_t2}, 1", [f"v_swap_b32 v{NB_ + i}, v{NB_ + 4 + i}" for i in range(4)]),
              f"""
    v_add_u32 {a9}, {s_t0}, v{L16}
    v_mul_u32_u24 {ar}, 5120, {g}
    v_lshl_add_u32 {ar}, {tok}, 3, {ar}
    v_mul_u32_u24 {ast}, 272, {tok}
    v_lshl_add_u32 {ast}, {g}, 3, {ast}
    s_lshl_b32 {s_t1}, {s_w}, 5
    v_add_u32 {ast}, {s_t1}, {ast}
    v_lshlrev_b32 {an9}, 6, {tok}
    v_lshl_add_u32 {an9}, {g}, 4, {an9}
    s_lshl_b32 {s_t1}, {s_w}, 11
    v_add_u32 {an9}, {s_t1}, {an9}""", barrier(need=["odma"]), self.ts("oland")]
        seq = []
        for k in range(2):
            for t in range(2):
                seq.append((lambda b, k=k, t=t: [f"ds_read_b128 {vr(b, 4)}, {a9} offset:{2560 * k + 1280 * t}"],
                            lambda b, k=k, t=t: [mf16(NA + 4 * t, WREG + 72 + 4 * k, b, "0" if k == 0 else None)]))
        for u in range(2):
            for t in range(2):
                seq.append((lambda b, u=u, t=t: [
                    f"ds_read_b64 {vr(b + 2 * i, 2)}, {ar} offset:{20480 * u + 1280 * t + 2560 * i + 1024}" for i in range(2)],
                    lambda b, u=u, t=t: [mf16(AA + 4 * t, WREG + 64 + 4 * u, b, "0" if u == 0 else None),
                                         self.cond(f"s_cmp_eq_u32 {s_w}, {u}", [mf16(NA + 4 * t, WREG + 80, b)])]))
        for k in range(16):
            for t in range(2):
                seq.append((lambda b, k=k, t=t: [f"ds_read_b128 {vr(b, 4)}, v{L16} offset:{2560 * k + 1280 * t}"],
                            lambda b, k=k, t=t: [mf16(AA + 4 * t, WREG + 4 * k, b)]))
        NBUF = 6
        n9 = []
        for t in range(2):
            n9 += [f"v_sub_f32 v{NA + 4 * t + i}, v{NA + 4 * t + i}, v{NB_ + 4 * t + i}" for i in range(4)]
            n9 += [f"v_fmac_f32 v{NB_ + 4 * t + i}, v{NA + 4 * t + i}, v{GG + t}" for i in range(4)]
            n9.append(f"ds_write_b128 {an9}, {vr(NB_ + 4 * t, 4)} offset:{L_N9 + 1024 * t}")
        for i in range(NBUF):
            p += seq[i][0](BB + 4 * i)
        for i in range(len(seq)):
            p += seq[i][1](BB + 4 * (i % NBUF))
            if i + NBUF < len(seq):
                p += seq[i + NBUF][0](BB + 4 * (i % NBUF))
            if 14 <= i < 14 + len(n9):
                p.append(n9[i - 14])
        for t in range(2):
            p += [f"v_sub_f32 v{AA + 4 * t + i}, v{AA + 4 * t + i}, v{AB + 4 * t + i}" for i in range(4)]
            p += [f"v_fmac_f32 v{AB + 4 * t + i}, v{AA + 4 * t + i}, v{GG + t}" for i in range(4)]
            p += [f"v_cvt_pk_bf16_f32 v{AA + 4 * t + i}, v{AB + 4 * t + 2 * i}, v{AB + 4 * t + 2 * i + 1}" for i in range(2)]
            p.append(f"ds_write_b64 {ast}, {vr(AA + 4 * t, 2)} offset:{L_STG + 16 * 272 * t}")
        p += [f"""
    s_lshl_b32 {s_t1}, {s_w}, 2
    v_add_u32 {x0}, {s_t1}, {g}
    v_mul_u32_u24 {ast}, 272, {x0}
    v_lshl_add_u32 {ast}, {tok}, 4, {ast}
    s_lshl_b32 {s_t1}, {s_w}, 8
    s_add_u32 {s_t1}, {s_t1}, {L_N9}
    v_lshl_add_u32 {an9}, v{LANE}, 2, {s_t1}
    v_mul_u32_u24 {x0}, 1152, {x0}
    v_lshl_add_u32 {x1}, {tok}, 1, {x0}
    v_lshl_add_u32 {x0}, {tok}, 4, {x0}
    s_lshr_b32 {s_t0}, {s_j}, 2
    s_lshl_b32 {s_t1}, {s_tt}, 2
    s_add_u32 {s_t0}, {s_t0}, {s_t1}
    s_mul_i32 {s_t0}, {s_t0}, {32 * 1152}
    s_mul_i32 {s_t1}, {s_t2}, 288
    s_add_u32 {s_t0}, {s_t0}, {s_t1}""", barrier(), f"ds_read_b128 {vr(BB, 4)}, {ast} offset:{L_STG}"]
        p += [f"ds_read2st64_b32 {vr(BB + 4 + 2 * i, 2)}, {an9} offset0:{16 * i} offset1:{16 * i + 8}" for i in range(4)]
        p += [I(f"buffer_store_dwordx4 {vr(BB, 4)}, {x0}, {sOUT}, {s_t0} offen {self.o['ost'].replace('+', ' ')}")]
        p += [f"v_add_f32 v{BB + 4 + 2 * i}, v{BB + 4 + 2 * i}, v{BB + 5 + 2 * i}" for i in range(4)]
        p += [f"""
    v_add_f32 v{BB + 4}, v{BB + 4}, v{BB + 6}
    v_add_f32 v{BB + 8}, v{BB + 8}, v{BB + 10}
    v_add_f32 v{BB + 4}, v{BB + 4}, v{BB + 8}
    v_cvt_pk_bf16_f32 v{BB + 4}, v{BB + 4}, v{BB + 4}""",
              I(f"buffer_store_short v{BB + 4}, {x1}, {sOUT}, {s_t0} offen offset:256 {self.o['ost'].replace('+', ' ')}")]
        return p

    def diag_dump(self):
        if not self.o["diag"]:
            return self.ts("end")
        s = "    s_waitcnt vmcnt(0)\n"
        p = [raw(s), self.ts("end")]
        s = f"""    s_memtime s[100:101]
    s_waitcnt lgkmcnt(0)
    s_sub_u32 s100, s100, s98
    s_lshl_b32 {s_t0}, s2, 3
    s_add_u32 {s_t0}, {s_t0}, {s_w}
    s_lshl_b32 {s_t0}, {s_t0}, 6
    s_add_u32 {s_t0}, {s_t0}, {WS_DIAG:#x}
    s_mov_b64 exec, 1
"""
        srcs = ["s98" if self.o["diag"] == 2 else "s96", "s100"] + [f"s{4 + 2 * k}" for k in range(self.nts)]
        for i, r in enumerate(srcs):
            s += f"    v_mov_b32 v1, {r}\n    buffer_store_dword v1, v{L16}, {sWS}, {s_t0} offen offset:{4 * i}\n"
        return p + [raw(s)]

    def experiments(self, text):
        o = self.o
        out = []
        nb = 0
        for l in text.split("\n"):
            if "s_barrier" in l:
                nb += 1
            if o["x_nodma"] and nb > 9 and (" lds" in l or "load_lds" in l):
                continue
            if o["x_nost"] and nb > 9 and "buffer_store_dwordx4" in l:
                continue
            if o["x_nogelu"] and nb < 25 and any(f" v{TMP + i}," in l for i in range(4)) and l.strip().startswith("v_") \
                    and "mfma" not in l:
                continue
            out.append(l)
        return "\n".join(out)

    def build(self):
        self.plan()
        p0, _ = self.prologue()
        t0, f0 = finalize([p0, f"s_cmp_eq_u32 {s_hf}, 0", "s_cbranch_scc1 L_half0"], want_state=True)
        th, fh = [], []
        for h in (1, 0):
            pre_dma, body = self.ffn(h)
            t, f = finalize([label(f"L_half{h}"), pre_dma, self.prologue()[1], body, "s_branch L_join" if h else []],
                            init=[f0], want_state=True)
            th.append(self.experiments(t))
            fh.append(f)
        slow = [] if self.o["x_fast"] else [f"s_cmp_lg_u64 {s_slow}, 0", "s_cbranch_scc1 L_slow"]
        t1, stats = finalize([label("L_join"), self.ts("a0"), slow, self.attention(), label("L_att_done"),
                              self.ts("aend"), self.final(), self.diag_dump(), label("L_end"), "s_endpgm"], init=fh)
        text = t0 + th[0] + th[1] + t1
        text2, _ = finalize(self.slow_path())
        self.stats = stats
        ref = open(f"cdna_kernels/{NAME}.s.ref").read().split("\n")
        head = [l for l in ref if l.startswith(";") and "@launch" not in l and "Override launch" not in l
                and "grid=ceil" not in l]
        out = "\n".join(head) + f"""
; @launch grid=(256,1,1) block=(512,1,1) lds=163840
; Generated by gen/gen.py. One workgroup per CU: 128 tokens x (288 hidden units, 2 heads).
.amdgcn_target "amdgcn-amd-amdhsa--gfx950"
.text
.globl {NAME}_kernel
.p2align 8
.type {NAME}_kernel,@function
{NAME}_kernel:
{text}{text2}
.section .rodata,"a"
.p2align 6
.amdhsa_kernel {NAME}_kernel
  .amdhsa_next_free_vgpr 256
  .amdhsa_next_free_sgpr 102
  .amdhsa_accum_offset 256
  .amdhsa_group_segment_fixed_size 0
  .amdhsa_kernarg_size 112
  .amdhsa_user_sgpr_count 2
  .amdhsa_user_sgpr_kernarg_segment_ptr 1
  .amdhsa_system_sgpr_workgroup_id_x 1
.end_amdhsa_kernel
"""
        return out


def parse_opts(args):
    kw = {}
    for a in args:
        k, v = a.split("=", 1)
        d = DEFAULTS[k]
        kw[k] = type(d)(v)
    return kw


if __name__ == "__main__":
    out = sys.argv[1]
    g = Gen(**parse_opts(sys.argv[2:]))
    open(out, "w").write(g.build())
    print(g.stats, g.tsnames)
```

```python
import re

_RE_RANGE = re.compile(r"^([vsa])\[(\d+):(\d+)\]$")
_RE_ONE = re.compile(r"^([vsa])(\d+)$")
TRANS = ("v_exp_", "v_log_", "v_rcp_", "v_rsq_", "v_sqrt_", "v_sin_", "v_cos_")


def regs(op):
    op = op.strip()
    if op.startswith("-"):
        op = op[1:]
    if op.startswith("abs(") or op.startswith("neg("):
        op = op[4:-1]
    if op.startswith("|"):
        op = op[1:-1]
    m = _RE_RANGE.match(op)
    if m:
        return {(m.group(1), i) for i in range(int(m.group(2)), int(m.group(3)) + 1)}
    m = _RE_ONE.match(op)
    if m:
        return {(m.group(1), int(m.group(2)))}
    if op in ("vcc", "vcc_lo", "vcc_hi"):
        return {("s", "vcc")}
    if op in ("exec", "exec_lo", "exec_hi"):
        return {("s", "exec")}
    if op == "m0":
        return {("s", "m0")}
    return set()


def vr(a, n=1):
    return f"v{a}" if n == 1 else f"v[{a}:{a + n - 1}]"


def sr(a, n=1):
    return f"s{a}" if n == 1 else f"s[{a}:{a + n - 1}]"


class I:
    def __init__(self, text, tag=None, need=(), off=None, pseudo=None, needregs=()):
        self.text = text
        self.tag = tag
        self.need = list(need)
        self.off = off
        self.pseudo = pseudo
        self.needregs = set(needregs)
        if pseudo is None:
            self.parse()

    def parse(self):
        t = self.text.split(";")[0].strip()
        mn, _, rest = t.partition(" ")
        self.mn = mn
        ops = [o.strip() for o in rest.split(",")] if rest.strip() else []
        mods = ""
        if ops:
            last = ops[-1].split()
            ops[-1] = last[0] if last else ""
            mods = " ".join(last[1:])
        self.ops, self.mods = ops, mods
        R, W = set(), set()
        self.cls = "other"
        self.passes = 0
        self.srcC = set()
        self.srcAB = set()
        self.wide_store = set()
        self.lds_dma = False
        if mn.startswith("v_mfma") or mn.startswith("v_smfmac"):
            self.cls = "mfma"
            self.passes = 4 if "16x16" in mn else 8
            if "_2b_" in mn:
                self.passes = 16
            W = regs(ops[0])
            self.srcAB = regs(ops[1]) | regs(ops[2])
            if mn.startswith("v_smfmac"):
                self.srcC = set(W)
                self.srcAB |= regs(ops[3])
            else:
                self.srcC = regs(ops[3])
            R = self.srcAB | self.srcC
        elif mn.startswith("v_"):
            self.cls = "valu"
            W = regs(ops[0]) if ops else set()
            k = 1
            if "_co_" in mn or mn.startswith(("v_mad_u64", "v_mad_i64")):
                W |= regs(ops[1])
                k = 2
            for o in ops[k:]:
                R |= regs(o)
            if "swap" in mn:
                W |= regs(ops[1])
                R |= regs(ops[0])
            if mn.startswith(("v_fmac", "v_dot2c", "v_writelane")) or "dpp" in mn:
                R |= regs(ops[0])
            if mn.startswith("v_cmpx"):
                W |= {("s", "exec")}
        elif mn.startswith("ds_"):
            self.cls = "ds"
            if mn.startswith("ds_read"):
                W = regs(ops[0])
                R = regs(ops[1])
                self.addr = ops[1]
            else:
                for o in ops:
                    R |= regs(o)
                self.addr = ops[0]
        elif mn.startswith(("buffer_", "global_")):
            self.cls = "vm"
            self.lds_dma = "lds" in mods.split() or "_lds_" in mn
            if "load" in mn and not self.lds_dma:
                W = regs(ops[0])
                for o in ops[1:]:
                    R |= regs(o)
            else:
                for o in ops:
                    R |= regs(o)
                if "atomic" in mn and "sc0" in mods.split():
                    W = regs(ops[0])
                if "store_dwordx4" in mn or "store_dwordx3" in mn:
                    self.wide_store = regs(ops[0] if mn.startswith("buffer_") else ops[1])
            if self.lds_dma:
                R |= {("s", "m0")}
        elif mn.startswith("s_"):
            self.cls = "salu"
            if mn.startswith(("s_cmp", "s_waitcnt", "s_nop", "s_barrier", "s_cbranch", "s_branch", "s_setprio",
                              "s_sleep", "s_endpgm", "s_bitcmp")):
                for o in ops:
                    R |= regs(o)
            else:
                if ops:
                    W = regs(ops[0])
                for o in ops[1:]:
                    R |= regs(o)
                if "saveexec" in mn:
                    W |= {("s", "exec")}
        self.R, self.W = R, W
        self.trans = mn.startswith(TRANS)


def label(name):
    return I(name + ":", pseudo="label")


def raw(text):
    return I(text, pseudo="raw")


def barrier(need=(), drain_lds=True):
    i = I("s_barrier", pseudo="barrier", need=need)
    i.drain = drain_lds
    return i


def wait(need=(), needregs=(), all_vm=False, all_ds=False):
    i = I("", pseudo="wait", need=need, needregs=needregs)
    i.all_vm, i.all_ds = all_vm, all_ds
    return i


def opt_begin():
    return I("", pseudo="opt_begin")


def opt_end():
    return I("", pseudo="opt_end")


def setbase(reg, base=0):
    i = I("", pseudo="setbase")
    i.reg, i.base = reg, base
    return i


def rebase(reg, lo, hi):
    i = I("", pseudo="rebase")
    i.reg, i.lo, i.hi = reg, lo, hi
    return i


def _need_states(p, c):
    n = 0
    pv = {r for r in p.W if r[0] != "s"}
    ps = {r for r in p.W if r[0] == "s"}
    if p.cls == "valu":
        if c.cls == "mfma" and pv & c.R:
            n = max(n, 2)
        if c.cls == "mfma" and ("s", "exec") in ps:
            n = max(n, 4)
        if c.cls == "valu":
            if p.trans and not c.trans and pv & (c.R | c.W):
                n = max(n, 1)
            if c.mn.startswith(("v_readfirstlane", "v_readlane")) and pv & c.R:
                n = max(n, 1)
            if ("dpp" in c.mn or "permlane" in c.mn) and pv & c.R:
                n = max(n, 2)
            if ps & c.R:
                n = max(n, 4 if c.mn.startswith(("v_readlane", "v_writelane")) else 2)
            if p.mn.startswith("v_dot") and pv & (c.R | c.W):
                n = max(n, 3)
        if p.mn.startswith("v_dot") and c.cls in ("mfma", "vm", "ds") and pv & c.R:
            n = max(n, 3)
        if c.cls == "vm" and ps & c.R:
            n = max(n, 5)
        if c.cls == "salu" and ps & c.R:
            n = max(n, 1)
        if p.trans and c.cls in ("vm", "ds") and pv & c.R:
            n = max(n, 1)
    if p.cls == "mfma":
        long_ = {4: 8, 8: 12, 16: 20}[p.passes]
        if c.cls == "mfma":
            if pv & c.srcAB:
                n = max(n, long_)
            if pv & c.srcC and not (pv == c.srcC and p.passes == c.passes):
                n = max(n, long_ - 2)
            if pv & c.W and not (pv == c.W and p.passes == c.passes):
                n = max(n, long_ - 2)
        elif pv & (c.R | c.W):
            n = max(n, long_)
        if c.cls in ("valu", "ds", "vm") and p.srcC & c.W:
            n = max(n, p.passes - 1)
    if p.cls == "vm" and p.wide_store and p.wide_store & c.W:
        n = max(n, 2)
    if p.cls == "salu" and ("s", "m0") in ps and c.cls == "vm" and c.lds_dma:
        n = max(n, 1)
    return n


class Fin:
    def __init__(self):
        self.out = []
        self.ds = []
        self.vm = []
        self.hist = []
        self.base = {}
        self.stack = []
        self.seen = set()
        self.stats = {"nop": 0, "wait": 0, "rebase": 0}

    def _emit(self, text, states=1, ins=None):
        self.out.append("    " + text)
        for h in self.hist:
            h[1] += states
        self.hist = [h for h in self.hist if h[1] < 24]
        if ins is not None and (ins.W or ins.cls in ("mfma", "vm")):
            self.hist.append([ins, 0])

    def _count(self, fifo, idx):
        depth = len(self.stack)
        return sum(1 for e in fifo[idx + 1:] if not e[2])

    def _waits(self, tags, rset, is_ds_load=False, wset=frozenset(), all_vm=False, all_ds=False):
        for t in tags:
            assert t in self.seen, f"wait for unknown tag {t}"
        parts = []
        for name, fifo, mx, allf in (("vmcnt", self.vm, 63, all_vm), ("lgkmcnt", self.ds, 15, all_ds)):
            idx = -1
            for i, e in enumerate(fifo):
                names = e[0][1:] if isinstance(e[0], tuple) and e[0][0] == "both" else (e[0],)
                hit = allf or any(x is not None and x in tags for x in names) or (e[1] & rset)
                if not hit and (e[1] & wset) and not (name == "lgkmcnt" and is_ds_load):
                    hit = True
                if hit:
                    idx = i
            if idx >= 0:
                n = min(self._count(fifo, idx), mx - 1)
                parts.append(f"{name}({n})")
                del fifo[: idx + 1]
        if parts:
            self.stats["wait"] += 1
            self._emit("s_waitcnt " + " ".join(parts))

    def _hazard(self, ins):
        n = 0
        for p, st in self.hist:
            n = max(n, _need_states(p, ins) - st)
        while n > 0:
            k = min(n, 16)
            self.stats["nop"] += k
            self._emit(f"s_nop {k - 1}", states=k)
            n -= k

    def add(self, ins):
        ps = ins.pseudo
        if ps == "label":
            self.out.append(ins.text)
            return
        if ps == "raw":
            for line in ins.text.strip("\n").split("\n"):
                self.out.append(line)
            return
        if ps == "setbase":
            self.base[ins.reg] = ins.base
            return
        if ps == "rebase":
            b = self.base[ins.reg]
            if not (b <= ins.lo and ins.hi - b <= 65535):
                self.stats["rebase"] += 1
                self.add(I(f"v_add_u32 {ins.reg}, {(ins.lo - b) & 0xFFFFFFFF:#x}, {ins.reg}"))
                self.base[ins.reg] = ins.lo
            return
        if ps == "copybase":
            self.base[ins.dst] = self.base[ins.src]
            assert self.base[ins.src] % 8192 == 0
            return
        if ps == "wait":
            self._waits(ins.need, ins.needregs, all_vm=ins.all_vm, all_ds=ins.all_ds)
            return
        if ps == "barrier":
            self._waits(ins.need, set(), all_ds=ins.drain)
            self._emit("s_barrier")
            return
        if ps == "opt_begin":
            self.stack.append(([list(e) for e in self.ds], [list(e) for e in self.vm],
                               [list(h) for h in self.hist], dict(self.base), self.ds + self.vm))
            return
        if ps == "opt_end":
            ds0, vm0, h0, b0, keep = self.stack.pop()
            ids = set(map(id, keep))
            self.ds = ds0 + [[e[0], e[1], True] for e in self.ds if id(e) not in ids]
            self.vm = vm0 + [[e[0], e[1], True] for e in self.vm if id(e) not in ids]
            known = {id(h[0]) for h in h0}
            self.hist = h0 + [h for h in self.hist if id(h[0]) not in known]
            for k, v in b0.items():
                assert self.base.get(k) == v, f"address register {k} re-based inside an optional block"
            return
        text = ins.text
        if ins.off is not None:
            b = self.base[ins.addr]
            span = getattr(ins, "span", 0)
            if not (0 <= ins.off - b <= 65535 - span):
                nb = getattr(ins, "rebase_to", None)
                if nb is None:
                    nb = ins.off & ~1023
                self.stats["rebase"] += 1
                self.add(I(f"v_add_u32 {ins.addr}, {(nb - b) & 0xFFFFFFFF:#x}, {ins.addr}"))
                self.base[ins.addr] = b = nb
            if ins.off - b:
                text += f" offset:{ins.off - b}"
        is_ds_load = ins.cls == "ds" and bool(ins.W)
        self._waits(ins.need, {r for r in ins.R if r[0] != "s"} | ins.needregs, is_ds_load,
                    {r for r in ins.W if r[0] != "s"})
        self._hazard(ins)
        states = 1
        if ins.mn == "s_nop":
            states = int(ins.ops[0], 0) + 1
        self._emit(text, states, ins)
        if ins.tag is not None:
            self.seen.add(ins.tag)
            if isinstance(ins.tag, tuple) and ins.tag[0] == "both":
                self.seen.update(ins.tag[1:])
        if ins.cls == "ds":
            self.ds.append([ins.tag, set(ins.W), False])
        elif ins.cls == "vm":
            self.vm.append([ins.tag, set(ins.W), False])
            assert len(self.vm) <= 63 + 40


def flat(x):
    for e in x:
        if isinstance(e, (list, tuple)):
            yield from flat(e)
        elif isinstance(e, str):
            for line in e.strip().split("\n"):
                line = line.strip()
                if line:
                    yield I(line)
        else:
            yield e


def finalize(prog, init=(), want_state=False):
    f = Fin()
    for g in init:
        many = len(init) > 1
        f.ds += [[e[0], set(e[1]), e[2] or many] for e in g.ds]
        f.vm += [[e[0], set(e[1]), e[2] or many] for e in g.vm]
        f.hist += [list(h) for h in g.hist]
        f.seen |= g.seen
        for k, v in g.base.items():
            if f.base.setdefault(k, v) != v:
                f.base[k] = None
        for k in f.stats:
            f.stats[k] += g.stats[k]
    for ins in flat(prog):
        f.add(ins)
    text = "\n".join(f.out) + "\n"
    return (text, f) if want_state else (text, f.stats)
```

```python
import math
import struct
import sys

from asmlib import I, barrier, finalize, flat, label, opt_begin, opt_end, raw, rebase, setbase, vr, wait

NAME = "gated_mix__grouped_kv_mqa__dense_activation_gelu__prompt"
KB = 1024
U = 8192

DEFAULTS = dict(
    b=4,
    diag=0,
    burst=18,
    lead=22,
    hoist=2,
    gx=5,
    mdma=0,
    ex64=0,
    rsteps=2,
    mlds=1,
    nbuf=6,
    hqw="1+1+1.6+1.4+1",
    kvsig="g2",
    kvpoll="g6",
    kv0=2,
    pace=1.5,
    fdelay=8,
    cdelay=12,
    nst=8,
    wchk=8,
    plast=61,
    kvcap=10,
    pst="sc1",
    ost="sc1",
    asch="aXeBvRMkfL4H66",
    touch=9,
    rot=1,
    thr=40.0,
    oearly=16,
    force_slow=0,
    zoom="",
    x_pad="",
    x_nodma=0, x_noex=0, x_nogelu=0, x_nost=0, x_fast=0,
)


def f32(x):
    return "0x%08x" % struct.unpack("<I", struct.pack("<f", x))[0]


WS_KV, WS_KN, WS_E, WS_F, WS_WO, WS_O, WS_P = 0, 147456, 0x28000, 0x30000, 0x40000, 0x100000, 0x400000
WS_DIAG, WS_SIZE = 0x3000000, 0x4000000
OBLK = 36 * KB
SL = 4096
XREG = [72 * KB, 88 * KB, 104 * KB, 120 * KB, 136 * KB]
EX1, EX2, EX2H = 104 * KB, 116 * KB, 132 * KB
QSCR, MISC = 140 * KB, 152 * KB
L_B1, L_GATE, WOSCR = MISC, MISC + 2048, MISC + 4096
L_GT, L_DUMMY = MISC + 2048 + 1152, MISC + 1536
L_STG, L_N9 = 40 * KB, 50 * KB

sX, sW1, sW2, sWS, sDBG, sOUT, sWO, sB1, sB2, sG = (f"s[{a}:{a + 3}]" for a in range(32, 72, 4))
s_w, s_p, s_hf, s_tt, s_j = "s72", "s73", "s74", "s75", "s76"
s_xo, s_m, s_w1o, s_who, s_rc = "s77", "s78", "s79", "s80", "s81"
s_w2a, s_w2b, s_fl, s_cq, s_pst, s_oun = "s82", "s83", "s84", "s85", "s86", "s87"
s_t0, s_t1, s_d0, s_d1 = "s88", "s89", "s90", "s91"
s_msk, s_slow = "s[92:93]", "s[94:95]"
s_t2 = "s3"
s_wj, s_wo = "s68", "s69"
s_tw = ["s0", "s1", "s92", "s60", "s61", "s62", "s63", "s70", "s71"]
s_non, s_our = "s93", "s69"
s_tag, s_w9 = "s68", "s81"
s_w9r, s_fc = "s60", "s61"

L16, C0, AW, A16, DW1, AWH, AQ, TMP = 0, 1, 2, 6, 7, 8, 9, 12
ZERO, DQ, SQ, DW2, AEXW, LANE, DWH = 11, 16, 18, 20, 21, 22, 23
QN2, AFP, AFW = 23, 1, 5
ABUF, ACC, HOWN, HH, XO = 24, 40, 72, 104, 112
TW2, WJD, WJA, WJV, EPO = 100, 101, 102, 92, 103
GTA, GTB = 80, 84
AQ2 = 56
GADDR, GBUF, GACC, T, GP = 128, 136, 144, 200, 208
QM, QRA, QRB, KM, KR, IDX, VA, VB = 40, 44, 46, 48, 52, 54, 56, 60
SREG, OREG, PREG, WREG, ATM = 64, 6, 100, 172, 38
AK, AV, AR = 2, 3, 4
BIA, BI9 = 96, 24


def X(ks, t):
    return XO + 72 * t + 4 * ks


LOG2E = math.log2(math.e)
GC0 = -2.0 * LOG2E * math.sqrt(2.0 / math.pi)
GC1 = GC0 * 0.044715
QSCALE = LOG2E / math.sqrt(18.0)


def ds(text, off, **kw):
    return I(text, off=off, **kw)


def mf16(d, a, b, c=None):
    c = vr(d, 4) if c is None else c
    return I(f"v_mfma_f32_16x16x32_bf16 {vr(d, 4)}, {vr(a, 4)}, {vr(b, 4)}, {c}")


class Gen:
    def __init__(self, **kw):
        self.o = dict(DEFAULTS)
        self.o.update(kw)
        self.nl = 0
        self.nts = 0
        self.tsnames = []

    def lab(self, s):
        self.nl += 1
        return f"L_{s}_{self.nl}"

    def ts(self, name):
        if self.o["x_pad"] == name:
            l = self.lab("pad")
            return [raw(f"""{l}:
    s_memrealtime s[4:5]
    s_waitcnt lgkmcnt(0)
    s_sub_u32 s4, s4, s96
    s_cmp_lt_u32 s4, 10000
    s_cbranch_scc1 {l}""")]
        if not self.o["diag"] or (self.o["zoom"] and name[0] != "z" and name != "end"):
            return []
        if name not in self.tsnames:
            self.tsnames.append(name)
            self.nts += 1
        k = self.tsnames.index(name)
        assert k < 14
        op = "s_memtime" if self.o["diag"] == 2 else "s_memrealtime"
        return [raw(f"    {op} s[{4 + 2 * k}:{5 + 2 * k}]")]

    def cond(self, cmp, body):
        l = self.lab("skip")
        return [cmp, f"s_cbranch_scc0 {l}", opt_begin(), body, opt_end(), label(l)]

    def spin(self, load, test, sleep=2):
        lo, ld = self.lab("ok"), self.lab("spin")
        nl = "\n    "
        return [test, "s_cmp_eq_u64 vcc, 0", f"s_cbranch_scc1 {lo}", opt_begin(),
                raw(f"""    s_mov_b32 {s_t2}, 0x8000
{ld}:
    s_sleep {sleep}
    {nl.join(load)}
    s_waitcnt vmcnt(0)
    {nl.join(test)}
    s_nop 1
    s_cmp_eq_u64 vcc, 0
    s_cbranch_scc1 {lo}
    s_sub_u32 {s_t2}, {s_t2}, 1
    s_cmp_lg_u32 {s_t2}, 0
    s_cbranch_scc1 {ld}"""), opt_end(), label(lo)]

    def lane0(self, *ins):
        return ["s_mov_b64 exec, 1", list(ins), "s_mov_b64 exec, -1"]

    def touch(self, vaddr, srd, soff):
        return [f"s_mov_b32 m0, {L_DUMMY}", I(f"buffer_load_dword v{vaddr}, {srd}, {soff} offen lds")]

    def prologue(self):
        o = self.o
        b, tch = o["b"], o["touch"]
        assert b == 4 or not tch & 8
        nb, lb = 16 // b, b.bit_length() - 1
        t = HOWN + 5
        l3, l7, g, tok, r, c4, w1 = (f"v{t + i}" for i in range(7))
        a, bb, cc = f"v{t + 7}", f"v{t + 8}", f"v{t + 9}"
        DX = HOWN + 4
        s_bf, s_mw = s_pst, s_oun
        p = []
        if o["diag"] or o["x_pad"]:
            p += [raw("    s_memrealtime s[96:97]\n    s_memtime s[98:99]")]
        p += [f"""
    s_cmp_ge_u32 s2, 256
    s_cbranch_scc1 L_end""", raw("""    s_load_dwordx16 s[4:19], s[0:1], 0
    s_load_dwordx8 s[20:27], s[0:1], 64
    s_load_dwordx4 s[28:31], s[0:1], 96""")]
        if tch & 1:
            p += [raw("""    s_getpc_b64 s[92:93]
L_pc:"""), f"""
    s_bfe_u32 {s_t0}, s2, 0x30003
    v_lshrrev_b32 {a}, 3, v0
    v_and_b32 {bb}, 7, v0
    v_or_b32 {bb}, {a}, {bb}
    v_lshl_add_u32 {bb}, {bb}, 3, {s_t0}
    v_lshlrev_b32 {bb}, 7, {bb}
    v_min_u32 {bb}, L_end-L_pc, {bb}
    s_mov_b32 m0, {L_DUMMY}
    s_mov_b64 exec, 0xff""", I(f"global_load_lds_dword {bb}, s[92:93]"), "s_mov_b64 exec, -1"]
        p += [f"""
    v_lshrrev_b32 {a}, 6, v0
    v_and_b32 v{LANE}, 63, v0
    v_readfirstlane_b32 {s_w}, {a}
    v_lshrrev_b32 {l3}, 3, v{LANE}
    v_and_b32 {l7}, 7, v{LANE}
    v_lshrrev_b32 {g}, 4, v{LANE}
    v_and_b32 {w1}, 1, {a}
    v_lshlrev_b32 {w1}, 2, {w1}
    s_and_b32 {s_t0}, s2, {nb - 1}
    s_lshl_b32 {s_j}, {s_t0}, {lb}
    s_lshr_b32 {s_t0}, s2, 3
    s_and_b32 {s_t1}, {s_t0}, {b - 1}
    s_add_u32 {s_j}, {s_j}, {s_t1}
    s_lshr_b32 {s_tt}, {s_t0}, {lb}"""]
        if o["rot"]:
            m = (s_t1, s_tt) if b <= 4 else (s_tt, s_t1)
            p += [f"""
    s_lshl1_add_u32 {s_rc}, {m[0]}, {m[1]}
    s_sub_u32 {s_t1}, {s_rc}, 9
    s_min_u32 {s_rc}, {s_rc}, {s_t1}"""]
            assert b in (4, 8)
        else:
            p += [f"s_mov_b32 {s_rc}, 0"]
        p += [f"""
    s_bfe_u32 {s_t0}, s2, {((3 - (nb.bit_length() - 1)) << 16) | (nb.bit_length() - 1):#x}
    s_mul_i32 {s_t0}, {s_t0}, {32 // b}
    s_add_u32 {s_tt}, {s_tt}, {s_t0}
    s_lshl_b32 {s_mw}, {s_w}, 10
    s_lshl4_add_u32 {s_t0}, {s_tt}, {s_w}
    s_mul_i32 {s_xo}, {s_t0}, {8 * 1152}
    s_and_b32 {s_t1}, {s_j}, 1
    s_mul_i32 {s_t0}, {s_j}, 576
    s_lshl_b32 {s_t2}, {s_t1}, 6
    s_add_u32 {s_bf}, {s_t0}, {s_t2}
    s_mul_i32 {s_w1o}, {s_w}, {8 * 9216}
    s_add_u32 {s_w1o}, {s_w1o}, {s_bf}
    v_add_u32 {a}, {w1}, {g}
    v_xor_b32 {a}, {a}, {l7}
    v_mul_u32_u24 {bb}, 1152, {l3}
    v_lshl_add_u32 v{DX}, {a}, 4, {bb}
    v_and_b32 {a}, 1, {g}
    v_lshl_add_u32 {a}, {a}, 1, {w1}
    v_xor_b32 {cc}, {a}, {l7}
    v_mul_u32_u24 v{DW1}, 9216, {l3}
    v_lshl_add_u32 v{DW1}, {cc}, 4, v{DW1}
    s_mov_b32 s34, {2048 * 1152}
    s_mov_b32 s35, 0x20000
    s_mov_b32 s38, {576 * 9216}
    s_mov_b32 s39, 0x20000
    s_mov_b32 {s_fl}, {s_rc}""", raw("    s_waitcnt lgkmcnt(0)"), """
    s_mov_b32 s32, s4
    s_mov_b32 s33, s5
    s_mov_b32 s36, s16
    s_mov_b32 s37, s17"""]
        pre = [q for q in self.P if q["issue"] < 0]
        burst = []
        for q, z in zip(pre[0::2], pre[1::2]):
            assert (q["h"], z["h"], z["at"] - q["at"]) == (0, 1, SL)
            burst.append(self.dma_code(q, s_mw, z["pc"]))
        assert max(q["pc"][2] for q in pre if q["pc"][0] == "w") < 6
        p += [burst[:3], f"""
    v_lshl_add_u32 v{t + 10}, v0, 1, {s_t2}
    s_mul_i32 {s_t2}, {s_t1}, 576
    v_subrev_u32 {a}, {s_t2}, v{t + 10}
    v_cmp_gt_u32 vcc, 0x100, v0
    s_mov_b32 s60, s18
    s_mov_b32 s61, s19
    s_mov_b32 s62, 9216
    s_mov_b32 s63, 0x20000
    v_cndmask_b32 v{t + 10}, {a}, v{t + 10}, vcc""",
              I(f"buffer_load_ushort v{t + 14}, v{t + 10}, {sB1}, {s_t0} offen"), f"""
    s_lshl_b32 {s_t2}, {s_fl}, 7
    v_lshlrev_b32 v{t + 11}, 2, v0
    v_add_u32 v{t + 10}, {s_t2}, v{t + 11}
    v_subrev_u32 {a}, 1152, v{t + 10}
    v_min_u32 v{t + 10}, {a}, v{t + 10}
    s_mov_b32 s68, s24
    s_mov_b32 s69, s25
    s_mov_b32 s70, 1152
    s_mov_b32 s71, 0x20000""",
              I(f"buffer_load_dword v{t + 15}, v{t + 10}, {sG}, 0 offen"), burst[3:]]
        p += [f"""
    s_lshl3_add_u32 {s_t0}, {s_fl}, {s_w}
    s_lshl_b32 {s_t0}, {s_t0}, 3
    v_add_u32 {tok}, {s_t0}, {l3}
    s_mul_i32 {s_t0}, {s_j}, 72
    s_and_b32 {s_t0}, {s_t0}, 0xfffffff0
    v_mul_u32_u24 {a}, 1152, {tok}
    v_lshl_add_u32 {a}, {cc}, 4, {a}
    v_add_u32 {a}, {s_t0}, {a}
    s_lshl_b32 {s_t0}, {s_t1}, 4
    v_mov_b32 {r}, {s_t0}
    v_cmp_eq_u32 vcc, 5, {cc}
    v_cndmask_b32 {r}, 20, {r}, vcc
    v_mad_u32_u24 {r}, {tok}, 36, {r}
    s_bitcmp1_b32 {s_j}, 1
    s_cselect_b32 s8, s10, s8
    s_cselect_b32 s9, s11, s9
    v_cmp_gt_u32 vcc, 5, {cc}
    v_cndmask_b32 v{SQ}, {r}, {a}, vcc
    v_mov_b32 v{SQ + 1}, 0
    v_mov_b32 {a}, s6
    v_mov_b32 {r}, s8
    v_cndmask_b32 v{DQ}, {r}, {a}, vcc
    v_mov_b32 {a}, s7
    v_mov_b32 {r}, s9
    v_cndmask_b32 v{DQ + 1}, {r}, {a}, vcc
    v_lshl_add_u64 {vr(DQ, 2)}, {vr(SQ, 2)}, 0, {vr(DQ, 2)}
    v_mov_b32 {a}, {64 * 1152}
    v_mov_b32 {r}, {64 * 36}
    v_cndmask_b32 v{SQ}, {r}, {a}, vcc
    s_mov_b32 s40, s20
    s_mov_b32 s41, s21
    s_mov_b32 s42, {4608 * 1152}
    s_mov_b32 s43, 0x20000
    s_mov_b32 s44, s30
    s_mov_b32 s45, s31
    s_mov_b32 s46, {WS_SIZE:#x}
    s_mov_b32 s47, 0x20000
    s_mov_b32 s48, s28
    s_mov_b32 s49, s29
    s_mov_b32 s50, 256
    s_mov_b32 s51, 0x20000
    s_mov_b32 s52, s26
    s_mov_b32 s53, s27
    s_mov_b32 s54, {2048 * 1152}
    s_mov_b32 s55, 0x20000
    s_mov_b32 s56, s12
    s_mov_b32 s57, s13
    s_mov_b32 s58, {576 * 1152}
    s_mov_b32 s59, 0x20000
    s_mov_b32 s64, s22
    s_mov_b32 s65, s23
    s_mov_b32 s66, 1152
    s_mov_b32 s67, 0x20000
    s_mov_b32 {s_non}, 1
    s_and_b32 {s_p}, {s_w}, 3
    s_lshr_b32 {s_hf}, {s_w}, 2
    s_lshl_b32 {s_m}, {s_p}, 10
    s_and_b32 {s_cq}, {s_j}, 3
    s_mul_i32 {s_t0}, {s_j}, 576
    s_xor_b32 {s_t2}, {s_t1}, 1
    s_lshl_b32 {s_t2}, {s_t2}, 9
    s_add_u32 {s_t0}, {s_t0}, {s_t2}
    s_mul_i32 {s_who}, {s_p}, {16 * 9216}
    s_add_u32 {s_who}, {s_who}, {s_t0}
    s_sub_u32 {s_who}, {s_who}, {s_w1o}
    s_lshl4_add_u32 {s_t0}, {s_p}, {s_t0}
    s_mul_i32 {s_w2b}, {s_t0}, 576
    s_lshl4_add_u32 {s_t0}, {s_p}, {s_bf}
    s_mul_i32 {s_w2a}, {s_t0}, 576
    s_lshl2_add_u32 {s_t0}, {s_tt}, {s_p}
    s_mul_i32 {s_pst}, {s_t0}, {36 * 16384}
    s_lshl_b32 {s_t2}, {s_hf}, 15
    s_add_u32 {s_pst}, {s_pst}, {s_t2}
    s_lshl_b32 {s_t2}, {s_j}, 10
    s_add_u32 {s_pst}, {s_pst}, {s_t2}
    s_add_u32 {s_pst}, {s_pst}, {WS_P:#x}
    s_lshl1_add_u32 {s_fl}, {s_t0}, {s_hf}
    s_lshl4_add_u32 {s_fl}, {s_fl}, {s_j}
    s_lshl_b32 {s_fl}, {s_fl}, 2
    s_add_u32 {s_fl}, {s_fl}, {WS_F:#x}
    s_mul_i32 {s_oun}, {s_t0}, 36
    s_lshl1_add_u32 {s_oun}, {s_j}, {s_oun}
    s_add_u32 {s_oun}, {s_oun}, {s_hf}
    s_lshl_b32 {s_oun}, {s_oun}, 10
    s_add_u32 {s_oun}, {s_oun}, {WS_O:#x}
    v_and_b32 {tok}, 15, v{LANE}
    v_bfe_u32 {r}, v{LANE}, 2, 2
    v_and_b32 {c4}, 3, v{LANE}
    v_lshlrev_b32 v{L16}, 4, v{LANE}
    v_mov_b32 v{C0}, {f32(GC0)}
    s_add_u32 {s_t0}, {s_m}, {EX1}
    v_add_u32 v{AEXW}, {s_t0}, v{L16}
    v_lshlrev_b32 v{A16}, 4, {g}
    v_add_u32 v{A16}, {MISC}, v{A16}
    v_lshlrev_b32 {a}, 1, {g}
    v_xor_b32 {a}, {a}, {l7}
    v_lshl_add_u32 v{DW2}, {a}, 4, {bb}
    v_lshlrev_b32 v{WJD}, 4, {a}
    v_lshrrev_b32 {a}, 5, v{LANE}
    v_lshlrev_b32 {a}, 1, {a}
    v_xor_b32 {a}, {a}, {c4}
    v_lshrrev_b32 v{DWH}, 2, v{LANE}
    v_mul_u32_u24 v{DWH}, 9216, v{DWH}
    v_lshl_add_u32 v{DWH}, {a}, 4, v{DWH}""", setbase(f"v{AEXW}", EX1), setbase(f"v{A16}", MISC),
              f"""
    v_lshrrev_b32 {a}, 1, {tok}
    v_xor_b32 {a}, {a}, {g}
    v_lshlrev_b32 {a}, 4, {a}
    v_lshl_add_u32 {a}, {tok}, 7, {a}
    s_lshl1_add_u32 {s_t0}, {s_p}, {s_hf}
    s_lshl_b32 {s_t0}, {s_t0}, 11
    s_add_u32 {s_t0}, {s_t0}, {XREG[0]}
    v_add_u32 v{HOWN}, {s_t0}, {a}
    v_xor_b32 v{HOWN + 1}, 64, v{HOWN}
    v_xor_b32 v{HOWN + 2}, 0x800, v{HOWN}
    v_xor_b32 v{HOWN + 3}, 0x840, v{HOWN}""", [setbase(f"v{HOWN + i}", XREG[0]) for i in range(4)],
              f"""
    v_lshrrev_b32 {a}, 1, {r}
    v_and_b32 {l3}, 1, {g}
    v_lshl_add_u32 {l3}, {l3}, 1, {a}
    v_lshlrev_b32 {l3}, 5, {l3}
    v_lshl_add_u32 {l7}, {g}, 3, {r}
    v_lshlrev_b32 {w1}, 3, {c4}
    s_lshl_b32 {s_t0}, {s_hf}, 6
    v_add_u32 {a}, {s_t0}, {w1}
    v_xor_b32 {a}, {a}, {l3}
    v_lshl_add_u32 v{AW}, {l7}, 7, {a}
    v_xor_b32 v{AW + 1}, 32, v{AW}
    v_add_u32 v{AW + 2}, 0x10000, v{AW}
    v_add_u32 v{AW + 3}, 0x10000, v{AW + 1}
    v_and_b32 {a}, 1, {g}
    v_xor_b32 {a}, {s_hf}, {a}
    v_lshl_add_u32 {a}, {a}, 5, {w1}
    v_lshl_add_u32 v{AWH}, {l7}, 6, {a}
    s_lshl2_add_u32 {s_t2}, {s_hf}, {s_t1}
    s_lshl_b32 {s_t2}, {s_t2}, 3
    v_add_u32 {a}, {s_t2}, {w1}
    v_xor_b32 v{AQ}, {a}, {l3}
    v_lshl_add_u32 v{AQ}, {l7}, 7, v{AQ}
    s_lshl_b32 {s_t0}, {s_t1}, 3
    v_add_u32 {a}, 72, {w1}
    s_add_u32 {s_t2}, {s_t0}, 64
    v_mov_b32 {bb}, {s_t2}
    v_cmp_eq_u32 vcc, 0, {c4}
    v_cndmask_b32 {a}, {a}, {bb}, vcc
    s_sub_u32 {s_t2}, 104, {s_t0}
    v_mov_b32 {bb}, {s_t2}
    v_cmp_eq_u32 vcc, 3, {c4}
    v_cndmask_b32 {a}, {a}, {bb}, vcc
    v_xor_b32 {a}, {a}, {l3}
    v_lshl_add_u32 v{AQ + 1}, {l7}, 7, {a}""",
              [setbase(f"v{x}", 0) for x in (AW, AW + 1, AWH, AQ, AQ + 1)],
              [setbase(f"v{x}", 65536) for x in (AW + 2, AW + 3)]]
        if tch & 8:
            p += [f"""
    s_and_b32 {s_t2}, {s_tt}, 7
    s_lshl3_add_u32 {s_t0}, {s_j}, {s_t2}
    s_mul_i32 {s_t0}, {s_t0}, {36 * 1152}
    s_mul_i32 {s_t2}, {s_w}, {41 * 128}
    s_add_u32 {s_t0}, {s_t0}, {s_t2}
    v_min_u32 v{TW2}, 40, v{LANE}
    v_lshl_add_u32 v{TW2}, v{TW2}, 7, {s_t0}"""]
        p += [self.wo_setup(a, bb), f"""
    v_lshlrev_b32 v{t + 14}, 16, v{t + 14}
    v_add_u32 v{t + 11}, {MISC}, v{t + 11}
    ds_write_b32 v{t + 11}, v{t + 14}
    ds_write_b32 v{t + 11}, v{t + 15} offset:2048"""]
        return p

    def gelu_quad(self, src, dst):
        pr = [(f"v{TMP + i}", f"v{src + i}") for i in range(4)]
        o = [f"v_mul_f32 {t}, {x}, {x}" for t, x in pr]
        o += [f"v_fmamk_f32 {t}, {t}, {f32(GC1)}, v{C0}" for t, x in pr]
        o += [f"v_mul_f32 {t}, {t}, {x}" for t, x in pr]
        o += [f"v_exp_f32 {t}, {t}" for t, x in pr]
        o += [f"v_add_f32 {t}, 1.0, {t}" for t, x in pr]
        o += [f"v_rcp_f32 {t}, {t}" for t, x in pr]
        o += [f"v_mul_f32 {t}, {t}, {x}" for t, x in pr]
        o += [f"v_cvt_pk_bf16_f32 v{dst + i}, {pr[2 * i][0]}, {pr[2 * i + 1][0]}" for i in range(2)]
        return o

    def bias(self, h, r, tt2, t):
        if r < 4:
            return ds(f"ds_read_b128 {vr(ACC + 16 * (r & 1) + 8 * tt2 + 4 * t, 4)}, v{A16}",
                      L_B1 + 256 * r + 128 * h + 64 * tt2)
        return ds(f"ds_read_b128 {vr(ACC + 4 * t, 4)}, v{A16}", L_B1 + 1024 + 64 * h)

    def q_epilogue(self, h):
        a0, a2 = ACC + 8, AQ2
        tok, g, row, sc, aS = (f"v{64 + i}" for i in range(5))
        x0, x1 = "v69", "v70"
        p1 = [f"""
    v_and_b32 {tok}, 15, v{LANE}
    v_lshrrev_b32 {g}, 4, v{LANE}
    s_mul_i32 {s_t0}, {s_p}, 3072
    s_add_u32 {s_t0}, {s_t0}, {QSCR}
    v_mov_b32 {sc}, {f32(QSCALE)}
    v_cmp_eq_u32 vcc, 0, {g}
    v_mul_u32_u24 {row}, 96, {tok}
    v_add_u32 {row}, {s_t0}, {row}
    v_cndmask_b32 {x0}, 1.0, {sc}, vcc
    v_lshl_add_u32 {aS}, {g}, 3, {row}"""]
        p1 += [f"v_mul_f32 v{a2 + i}, v{a2 + i}, {x0}" for i in range(4)]
        p1 += [f"v_cvt_pk_bf16_f32 v{T + 4 + i}, v{a2 + 2 * i}, v{a2 + 2 * i + 1}" for i in range(2)]
        p1 += [f"ds_write_b64 {aS}, {vr(T + 4, 2)} offset:{64 + 1536 * h}"]
        kblk = [f"""
    s_mul_i32 {s_t0}, {s_tt}, 9216
    s_lshl_b32 {s_t1}, {s_p}, 1
    s_add_u32 {s_t1}, {s_t1}, {s_j}
    s_lshl_b32 {s_t1}, {s_t1}, 1
    s_add_u32 {s_t1}, {s_t1}, {s_hf}
    s_lshl_b32 {s_t1}, {s_t1}, 8
    s_add_u32 {s_t1}, {s_t1}, {s_t0}
    v_lshlrev_b32 {x0}, 3, {g}
    v_lshl_add_u32 {x0}, {tok}, 4, {x0}
    v_subrev_u32 {x0}, 8, {x0}
    v_mov_b32 {x1}, 0
    s_mov_b32 exec_lo, 0xffff0000
    s_mov_b32 exec_hi, 0x0000ffff""",
                I(f"buffer_store_dwordx2 {vr(T + 4, 2)}, {x0}, {sWS}, {s_t1} offen sc1", tag="kvst"), f"""
    v_fmac_f32 {x1}, v{a2}, v{a2}
    v_fmac_f32 {x1}, v{a2 + 1}, v{a2 + 1}""",
                self.cond(f"s_cmp_eq_u32 {s_j}, 0", [f"""
    s_lshl_b32 {s_t1}, {s_p}, 1
    s_add_u32 {s_t1}, {s_t1}, {s_hf}
    s_lshl_b32 {s_t1}, {s_t1}, 6
    s_add_u32 {s_t1}, {s_t1}, {s_t0}
    s_add_u32 {s_t1}, {s_t1}, 8704
    s_mov_b32 exec_lo, 0
    s_mov_b32 exec_hi, 0xffff0000
    v_lshlrev_b32 {x0}, 2, {tok}""",
                    I(f"buffer_store_dword v{T + 5}, {x0}, {sWS}, {s_t1} offen sc1", tag="kvst"),
                    "s_mov_b32 exec_lo, 0xffff0000", "s_mov_b32 exec_hi, -1"]), f"""
    v_fmac_f32 {x1}, v{a2 + 2}, v{a2 + 2}
    v_fmac_f32 {x1}, v{a2 + 3}, v{a2 + 3}
    s_mov_b64 exec, -1
    v_mov_b32 {x0}, {x1}
    s_lshl_b32 {s_t1}, {s_j}, 4
    s_add_u32 {s_t1}, {s_t1}, {s_tt}
    v_permlane32_swap_b32 {x0}, {x1}
    v_add_f32 {x1}, {x0}, {x1}
    v_mov_b32 {x0}, {x1}
    s_lshl_b32 {s_t1}, {s_t1}, 3
    s_add_u32 {s_t1}, {s_t1}, {s_w}
    v_permlane16_swap_b32 {x0}, {x1}
    v_add_f32 {x1}, {x0}, {x1}
    s_lshl_b32 {s_t1}, {s_t1}, 2
    s_add_u32 {s_t1}, {s_t1}, {WS_KN}"""]
        kblk += [f"v_max_f32_dpp {x1}, {x1}, {x1} row_ror:{n} row_mask:0xf bank_mask:0xf" for n in (8, 4, 2, 1)]
        kblk += ["s_mov_b64 exec, 1", I(f"buffer_store_dword {x1}, v{L16}, {sWS}, {s_t1} offen sc1", tag="kvst"),
                 "s_mov_b64 exec, -1"]
        vblk = [f"""
    s_mul_i32 {s_t0}, {s_p}, 3072
    s_add_u32 {s_t0}, {s_t0}, {QSCR + 72 + 1536 * h}
    v_and_b32 {x0}, 3, v{LANE}
    v_min_u32 {x0}, 2, {x0}
    v_lshl_add_u32 {x0}, {x0}, 3, {s_t0}
    v_lshrrev_b32 {x1}, 2, v{LANE}
    v_mul_u32_u24 {x1}, 96, {x1}
    v_add_u32 {x0}, {x0}, {x1}
    ds_read_b64_tr_b16 {vr(T + 6, 2)}, {x0}
    s_and_b32 {s_t1}, {s_j}, 1
    s_lshl_b32 {s_t0}, {s_t1}, 3
    v_add_u32 {x0}, {s_t0}, {tok}
    v_add_u32 {x1}, 6, {tok}
    v_cmp_gt_u32 vcc, 8, {tok}
    s_mul_i32 {s_t0}, {s_tt}, 9216
    s_lshl_b32 {s_t2}, {s_p}, 1
    v_cndmask_b32 {x0}, {x1}, {x0}, vcc
    v_and_b32 {x1}, 1, {g}
    s_add_u32 {s_t2}, {s_t2}, {s_hf}
    s_mul_i32 {s_t2}, {s_t2}, 576
    v_lshlrev_b32 {x1}, 3, {x1}
    v_lshl_add_u32 {x0}, {x0}, 4, {x1}
    s_add_u32 {s_t0}, {s_t0}, {s_t2}
    s_add_u32 {s_t0}, {s_t0}, {WS_KV + 4096}
    v_lshrrev_b32 {x1}, 1, {g}
    v_mul_u32_u24 {x1}, 288, {x1}
    s_mov_b32 {s_t2}, 0x0cff0cff
    s_cmp_eq_u32 {s_t1}, 0
    v_add_u32 {x0}, {x0}, {x1}
    s_cselect_b32 {s_t2}, {s_t2}, 0x00ff00ff
    s_mov_b32 exec_lo, {s_t2}
    s_mov_b32 exec_hi, {s_t2}""",
                I(f"buffer_store_dwordx2 {vr(T + 6, 2)}, {x0}, {sWS}, {s_t0} offen sc1", tag="kvst"),
                "s_mov_b64 exec, -1"]
        p1 += [self.cond(f"s_cmp_lt_u32 {s_j}, 4", [
            self.cond(f"s_cmp_lt_u32 {s_j}, 2", kblk), self.cond(f"s_cmp_ge_u32 {s_j}, 2", vblk)])]
        p2 = [f"v_mul_f32 v{a0 + i}, v{a0 + i}, {sc}" for i in range(8)]
        p2 += [f"v_cvt_pk_bf16_f32 v{T + i}, v{a0 + 2 * i}, v{a0 + 2 * i + 1}" for i in range(4)]
        p2 += [I(f"ds_write_b64 {aS}, {vr(T + 2 * t, 2)} offset:{32 * h + 1536 * (h ^ t)}", tag="qwr") for t in range(2)]
        p2r = [f"""
    v_and_b32 {x0}, 1, {g}
    v_mad_u32_u24 {x0}, {x0}, 36, {row}
    v_add_u32 {x0}, {1536 * h}, {x0}
    v_lshrrev_b32 {x1}, 1, {g}
    v_lshl_add_u32 {x1}, {x1}, 4, {x0}
    ds_read2_b32 {vr(QM, 2)}, {x1} offset0:0 offset1:1
    ds_read2_b32 {vr(QM + 2, 2)}, {x1} offset0:2 offset1:3""", I(f"ds_read_b32 v{QRA}, {x0} offset:32", tag="qrd")]
        p3 = [f"v_lshlrev_b32 v{T + i}, 16, v{QM + i}" for i in range(5)]
        p3 += [f"v_mul_f32 v{QN2}, v{QM}, v{QM}"] + [f"v_fmac_f32 v{QN2}, v{QM + i}, v{QM + i}" for i in range(1, 4)]
        p3 += [f"v_fmac_f32 v{QN2}, v{T + i}, v{T + i}" for i in range(4)]
        p3 += [f"""
    v_mov_b32 {x0}, v{QN2}
    v_cmp_gt_u32 vcc, 32, v{LANE}
    v_mov_b32 {x1}, 0
    v_permlane32_swap_b32 {x0}, v{QN2}
    v_add_f32 v{QN2}, v{QN2}, {x0}
    v_fmac_f32 v{QN2}, v{QRA}, v{QRA}
    v_fmac_f32 v{QN2}, v{T + 4}, v{T + 4}
    v_cndmask_b32 v{QRB}, v{QRA}, {x1}, vcc
    v_cndmask_b32 v{QRA}, 0, v{QRA}, vcc"""]
        return p1, p2, p2r, p3

    def gate(self, h):
        x = f"v{GTA}"
        return f"""
    v_mul_f32 {x}, {f32(-LOG2E)}, {x}
    v_and_b32 v{GTA + 1}, 15, v{LANE}
    v_exp_f32 {x}, {x}
    s_lshl_b32 {s_t0}, {s_p}, 7
    s_add_u32 {s_t0}, {s_t0}, {L_GT + 64 * h}
    v_lshl_add_u32 v{GTA + 1}, v{GTA + 1}, 2, {s_t0}
    v_add_f32 {x}, 1.0, {x}
    v_rcp_f32 {x}, {x}
    ds_write_b32 v{GTA + 1}, {x}"""

    def wo_setup(self, x0, x1):
        return [f"""
    v_lshrrev_b32 {x0}, 5, v{LANE}
    v_bfe_u32 {x1}, v{LANE}, 3, 2
    v_mad_u32_u24 {x0}, {x0}, 18, {x1}
    s_mul_i32 {s_t0}, {s_j}, 36
    s_lshl_b32 {s_t1}, {s_p}, 2
    s_add_u32 {s_t0}, {s_t0}, {s_t1}
    s_mul_i32 {s_t0}, {s_t0}, 1152
    s_lshl_b32 {s_t1}, {s_tt}, 7
    s_add_u32 {s_wj}, {s_t0}, {s_t1}""", self.cond(f"s_cmp_ge_u32 {s_tt}, 9", [f"""
    v_lshrrev_b32 {x0}, 5, v{LANE}
    v_bfe_u32 {x1}, v{LANE}, 4, 1
    v_lshl_add_u32 {x0}, {x0}, 2, {x1}
    v_bfe_u32 {x1}, v{LANE}, 3, 1
    v_mad_u32_u24 {x0}, {x0}, 18, {x1}
    s_sub_u32 {s_t0}, {s_tt}, 9
    s_lshl_b32 {s_t0}, {s_t0}, 1
    s_and_b32 {s_t1}, {s_p}, 1
    s_add_u32 {s_t0}, {s_t0}, {s_t1}
    s_lshl_b32 {s_t0}, {s_t0}, 3
    s_and_b32 {s_t1}, {s_p}, 2
    s_add_u32 {s_t0}, {s_t0}, {s_t1}
    s_mul_i32 {s_t0}, {s_t0}, 18
    s_add_u32 {s_t0}, {s_t0}, 16
    s_mul_i32 {s_t0}, {s_t0}, 1152
    s_lshl_b32 {s_t1}, {s_j}, 7
    s_add_u32 {s_wj}, {s_t0}, {s_t1}"""]), f"""
    v_mul_u32_u24 {x0}, 1152, {x0}
    v_add_u32 v{WJD}, v{WJD}, {x0}
    v_bfe_u32 {x0}, v{LANE}, 3, 2
    v_xor_b32 {x0}, {s_p}, {x0}
    v_lshlrev_b32 {x0}, 5, {x0}
    v_and_b32 {x1}, 3, v{LANE}
    v_lshl_add_u32 {x0}, {x1}, 3, {x0}
    v_lshrrev_b32 {x1}, 2, v{LANE}
    v_lshl_add_u32 {x0}, {x1}, 7, {x0}
    v_add_u32 v{WJA}, {WOSCR}, {x0}
    s_add_u32 {s_t0}, {s_tt}, 7
    s_cmp_ge_u32 {s_tt}, 9
    s_cselect_b32 {s_t0}, {s_t0}, {s_j}
    s_cselect_b32 {s_t1}, {s_j}, {s_tt}
    s_lshl_b32 {s_t1}, {s_t1}, 2
    s_add_u32 {s_t1}, {s_t1}, {s_p}
    s_mul_i32 {s_t1}, {s_t1}, 18
    s_add_u32 {s_t0}, {s_t0}, {s_t1}
    s_lshl_b32 {s_t0}, {s_t0}, 10
    s_add_u32 {s_wo}, {s_t0}, {WS_WO:#x}
    s_cmp_lt_u32 {s_j}, 9
    s_cselect_b32 {s_t0}, 11, 9
    s_cmp_lt_u32 {s_tt}, {s_t0}
    s_cselect_b32 {s_wo}, {s_wo}, -1"""]

    def wo_job(self):
        c = f"s_cmp_lg_u32 {s_wo}, -1"
        return (self.cond(c, [f"s_add_u32 m0, {s_m}, {WOSCR}",
                              I(f"buffer_load_dwordx4 v{WJD}, {sWO}, {s_wj} offen lds", tag="wodma")]),
                [f"ds_read_b64_tr_b16 {vr(WJV, 2)}, v{WJA}", f"ds_read_b64_tr_b16 {vr(WJV + 2, 2)}, v{WJA} offset:2048"],
                self.cond(c, [I(f"buffer_store_dwordx4 {vr(WJV, 4)}, v{L16}, {sWS}, {s_wo} offen sc1", tag="wost")]))

    def shift_setup(self):
        x = f"v{T}"
        o = [f"v_max3_f32 {x}, {x}, v{T + 1}, v{T + 2}", f"v_max_f32 {x}, {x}, v{T + 3}"]
        o += [f"v_max_f32_dpp {x}, {x}, {x} row_ror:{n} row_mask:0xf bank_mask:0xf" for n in (8, 4, 2, 1)]
        o += [[f"""
    v_readlane_b32 {s_t0}, {x}, 0
    v_readlane_b32 {s_t1}, {x}, 16
    v_readlane_b32 {s_t2}, {x}, 32
    v_readlane_b32 {s_d1}, {x}, 48
    s_max_u32 {s_t0}, {s_t0}, {s_t1}
    s_max_u32 {s_t2}, {s_t2}, {s_d1}
    v_mov_b32 {x}, {s_t0}
    v_add_f32 {x}, {s_t2}, {x}"""], f"""
    v_mul_f32 {x}, {x}, v{QN2}
    v_sqrt_f32 {x}, {x}
    v_mov_b32 v{T + 1}, {f32(0.01)}
    v_fmamk_f32 {x}, {x}, {f32(1.02)}, v{T + 1}
    v_mov_b32 v{T + 1}, {f32(self.o['thr'] if not self.o['force_slow'] else -1.0)}
    v_cmp_nle_f32 {s_slow}, {x}, v{T + 1}
    v_mov_b32 v{T + 1}, 0
    v_cvt_pk_bf16_f32 {x}, -{x}, v{T + 1}
    v_cmp_gt_u32 vcc, 32, v{LANE}
    v_cndmask_b32 v{QRA + 1}, 0, {x}, vcc
    v_cndmask_b32 v{QRB + 1}, {x}, v{T + 1}, vcc"""]
        return o

    def att_consts(self):
        x = f"v{T}"
        o = [f"""
    v_mov_b32 v{KR + 1}, 0x3f80
    v_mov_b32 v{IDX}, 0xdddddddd
    v_and_b32 {x}, 27, v{LANE}
    v_cmp_eq_u32 vcc, 18, {x}
    v_mov_b32 {x}, 0x3f803f80"""]
        o += [f"v_cndmask_b32 v{VA + i}, 0, {x}, vcc" for i in range(8)]
        o += [f"""
    v_mov_b32 v{AK}, v{L16}
    v_lshlrev_b32 v{AR}, 2, v{LANE}
    v_and_b32 {x}, 31, v{LANE}
    v_lshrrev_b32 v{AV}, 5, v{LANE}
    v_mul_u32_u24 v{AV}, 288, v{AV}
    v_lshl_add_u32 v{AV}, {x}, 4, v{AV}
    v_lshlrev_b32 v{AFP}, 2, {x}
    s_mov_b32 s92, 0x3ffff
    s_mov_b32 s93, 0x3ffff""", [setbase(f"v{AK}"), setbase(f"v{AV}"), setbase(f"v{AR}")]]
        return o

    def wo_flag_addr(self):
        x, y = f"v{T}", f"v{T + 1}"
        return f"""
    s_mul_i32 {s_t0}, {s_cq}, 9
    s_add_u32 {s_t1}, {s_t0}, 8
    s_add_u32 {s_t0}, {s_t0}, {s_w}
    v_and_b32 {x}, 16, v{LANE}
    v_cmp_eq_u32 vcc, 0, {x}
    v_mov_b32 {x}, {s_t0}
    v_mov_b32 {y}, {s_t1}
    v_cndmask_b32 {x}, {y}, {x}, vcc
    v_and_b32 {y}, 15, v{LANE}
    v_lshl_add_u32 v{AFW}, {x}, 5, {y}
    v_and_b32 {y}, 1, v{LANE}
    v_lshl_add_u32 {y}, {y}, 2, 36
    v_and_or_b32 {y}, {x}, 3, {y}
    v_lshrrev_b32 {x}, 2, {x}
    v_lshl_add_u32 {x}, {y}, 5, {x}
    v_cmp_gt_u32 vcc, 32, v{LANE}
    v_cndmask_b32 v{AFW}, {x}, v{AFW}, vcc
    v_lshlrev_b32 v{AFW}, 2, v{AFW}
    v_add_u32 v{AFW}, {WS_F:#x}, v{AFW}"""

    def poison(self, h):
        x = f"v{T + 4}"
        return [[f"v_mov_b32 v{T + i}, -1" for i in range(4)],
                I(f"buffer_store_dwordx4 {vr(T, 4)}, v{L16}, {sWS}, {s_oun} offen sc1"), f"""
    s_lshl2_add_u32 {s_t0}, {s_tt}, {s_p}
    s_mul_i32 {s_t0}, {s_t0}, {OBLK}
    s_lshl_b32 {s_our}, {s_j}, 8
    s_add_u32 {s_our}, {s_our}, {s_t0}
    s_add_u32 {s_our}, {s_our}, {WS_O + 32 * KB + 128 * h:#x}
    s_mov_b64 exec, 0xff""", I(f"buffer_store_dwordx4 {vr(T, 4)}, v{L16}, {sWS}, {s_our} offen sc1"),
                "s_mov_b64 exec, -1"]

    START = [f"x{c}" for c in range(9)] + ["r1_0"]

    def stream(self, h, where):
        o = self.o
        ops = []

        def tr(buf, i, areg, off, win=False):
            if win:
                areg += 2 * (off >> 16)
            return ds(f"ds_read_b64_tr_b16 {vr(buf + 2 * i, 2)}, v{areg}", off)

        ring, nring = [ABUF + 4 * i for i in range(4)], [0]

        def nb():
            nring[0] += 1
            return ring[(nring[0] - 1) % len(ring)]

        def new_ring(extra):
            base = [x for x in ring[nring[0] % len(ring):] + ring[:nring[0] % len(ring)] if x < ABUF + 16]
            ring[:] = extra[:o["nbuf"] - 4] + base
            nring[0] = 0

        for r in range(4):
            if r == 1:
                new_ring([HH, HH + 4])
            for ks in range(18):
                for tt2 in range(2):
                    buf, pc = nb(), ("w", r, ks)
                    op = dict(buf=buf, rd=[tr(buf, i, AW + tt2, where(pc) + 512 * i, True) for i in range(2)], pc=pc,
                              mf=[mf16(ACC + 16 * (r & 1) + 8 * tt2 + 4 * t, buf, X(ks, t)) for t in range(2)], rate=1)
                    if tt2 == 0 and r == 0 and ks % 2 == 0:
                        c = ks // 2
                        op["step"] = f"x{c}"
                        op["pre"] = [ds(f"ds_read_b128 {vr(X(ks + k, t), 4)}, v{HOWN + 2 * t + k}", XREG[c % 5])
                                     for k in range(2) for t in range(2)]
                        if c < 2:
                            op["pre"] = [self.bias(h, c, a, t) for a in range(2) for t in range(2)] + op["pre"]
                    if tt2 == 0 and r > 0 and ks % (18 // o["rsteps"]) == 0:
                        op["step"] = f"r{r}_{ks * o['rsteps'] // 18}"
                    ops.append(op)
                if r == 0:
                    buf = GTB + 4 * (ks % 3)
                    ops.append(dict(buf=buf, rd=[ds(f"ds_read_b128 {vr(buf, 4)}, v{A16}", L_GATE + 64 * ks)], pc=pc,
                                    mf=[mf16(GTA, buf, X(ks, 0), "0" if ks == 0 else None)], rate=1))
        h0 = len(ops)
        for ks in range(18):
            buf, pc = nb(), ("h", 0, ks // 2)
            op = dict(buf=buf, rd=[tr(buf, i, AWH, where(pc) + 2048 * (ks & 1) + 256 * i) for i in range(2)], pc=pc,
                      mf=[mf16(ACC + 4 * t, buf, X(ks, t)) for t in range(2)], rate=1)
            if ks in (0, 8):
                op["step"] = f"h{ks // 8}"
            ops.append(op)
        q0 = len(ops)
        for ks in range(18):
            if ks == 6:
                new_ring([X(3, 0), X(3, 1)])
            if ks == 12:
                new_ring([GBUF, GBUF + 4])
            c = "0" if ks == 0 else None
            for a in range(2):
                buf, pc = nb(), ("q", 0, ks)
                mf = [mf16(AQ2, buf, X(ks, 0), c)] if a else [mf16(ACC + 8 + 4 * t, buf, X(ks, t), c) for t in range(2)]
                op = dict(buf=buf, rd=[tr(buf, i, AQ + a, where(pc) + 512 * i) for i in range(2)], mf=mf, pc=pc,
                          rate=1 + a, after={6: q0 + 7, 12: q0 + 15}.get(ks, -1))
                if a == 0 and ks % 6 == 0:
                    op["step"] = f"q{ks // 6}"
                ops.append(op)
        for R in range(9):
            for q in range(9):
                for tt2 in range(2):
                    buf, pc = nb(), ("g", R, q)
                    rd = [tr(buf, i, GADDR + tt2, where(pc) + 2048 * (i ^ (h if q == 8 else 0)), True) for i in range(2)]
                    hb = [HH + 4 * t if q == 8 else HOWN + 8 * (q >> 1) + 4 * t if (q & 1) == h else X(q >> 1, t)
                          for t in range(2)]
                    op = dict(buf=buf, rd=rd, pc=pc, rate=1,
                              mf=[mf16(GACC + 16 * (R & 1) + 8 * tt2 + 4 * t, buf, hb[t], "0" if q == 0 else None)
                                  for t in range(2)])
                    if q == 0 and tt2 == 0:
                        op["step"] = f"g{R}"
                    if R == 0 and q == o["gx"] and tt2 == 0:
                        op["step"] = "gx"
                    ops.append(op)

        G = [dict(m=[], mem=[])]
        B, use0, lastm, reads = {}, {}, {}, {}
        last_user, prev = {}, []
        for k, op in enumerate(ops):
            prev.append(last_user.get(op["buf"], -1))
            last_user[op["buf"]] = k
        ro, rr, cur = 0, 0, None

        def issue_one():
            nonlocal ro, rr, cur
            op = ops[ro]
            if rr == 0 and "step" in op:
                cur = op["step"]
                B[cur] = len(G) - 1
                G[-1]["mem"].append(("boundary", cur))
            if rr == 0:
                G[-1]["mem"] += op.get("pre", [])
                use0.setdefault(op["pc"], cur)
                assert use0[op["pc"]] == cur
            x = op["rd"][rr]
            G[-1]["mem"].append(x)
            reads.setdefault(cur, []).append(x[0] if isinstance(x, list) else x)
            rr += 1
            if rr == len(op["rd"]):
                ro, rr = ro + 1, 0

        while ro < 3:
            issue_one()
        for k, op in enumerate(ops):
            while ro <= k:
                issue_one()
            for mi, m in enumerate(op["mf"]):
                G.append(dict(m=[m], mem=[]))
                lastm[op["pc"]] = len(G) - 1
                done = k if mi == len(op["mf"]) - 1 else k - 1
                cnt = 0
                while ro < len(ops) and prev[ro] <= k - 1 and ops[ro].get("after", -1) <= done \
                        and cnt < op["rate"] + (op["rate"] == 1 and ro + 1 < len(ops) and prev[ro + 1] <= k - 1):
                    issue_one()
                    cnt += 1
        return G, B, use0, lastm, reads

    def dma_code(self, q, mbase=s_m, tag2=None):
        k, a, b = q["pc"]
        m0 = f"s_add_u32 m0, {mbase}, {q['at']}"
        tag = q["pc"] if tag2 is None else ("both", q["pc"], tag2)
        nxt = [f"s_add_u32 {s_rc}, {s_rc}, 1", f"s_cmp_eq_u32 {s_rc}, 9"]
        wrap = [f"s_cselect_b32 {s_rc}, 0, {s_rc}"]
        if k == "q":
            code = [m0, I(f"global_load_lds_dwordx4 {vr(DQ, 2)}, off", tag=tag)]
            if b < 16:
                code = [m0] + nxt + code[1:] + [f"s_cselect_b32 {s_d0}, -8, 1"] + wrap + [
                    f"v_mad_i64_i32 {vr(DQ, 2)}, {s_slow}, v{SQ}, {s_d0}, {vr(DQ, 2)}"]
            return code

        def ld(v, srd, so, aux=""):
            return I(f"buffer_load_dwordx4 v{v}, {srd}, {so} offen{aux} lds", tag=tag)

        if k == "x":
            if b < 2:
                return [m0, f"s_lshl_b32 {s_d1}, {s_rc}, 7", f"s_add_u32 {s_d1}, {s_d1}, {s_xo}", ld(HOWN + 4, sX, s_d1)]
            return [m0, f"s_add_u32 {s_d1}, {s_d1}, {64 * 1152}", ld(HOWN + 4, sX, s_d1)]
        if k == "w" and a == 0:
            tw = s_tw[b // 2]
            return [m0, f"s_mul_i32 {tw}, {s_rc}, {64 * 9216}", f"s_add_u32 {tw}, {tw}, {s_w1o}", ld(DW1, sW1, tw),
                    nxt, wrap]
        v, srd, base, off, aux = {
            "w": (DW1, sW1, s_tw[b // 2 % 9], 128 * a, ""),
            "h": (DWH, sW1, s_tw[b % 9], s_who, ""),
            "g": (DW2, sW2, s_w2a if b < 8 else s_w2b, (32 * b * 1152 if b < 8 else 0) + 128 * a, ""),
            "kv": (L16, sWS, s_m, WS_KV + SL * b, " sc1"),
        }[k]
        return [m0, f"s_add_u32 {s_d0}, {base}, {off}", ld(v, srd, s_d0, aux)]

    def plan(self):
        o = self.o
        G, B, use0, lastm, _ = self.stream(1, lambda pc: 0)
        steps = sorted(B, key=B.get) + ["a0", "a1", "end"]
        idx = {s: i for i, s in enumerate(steps)}
        self.steps, self.idx = steps, idx

        def last_abs(pc):
            s = idx[use0[pc]]
            nxt = steps[s + 1]
            if nxt in self.START or nxt == "a0":
                return s
            assert lastm[pc] <= B.get(steps[s + 2], 1 << 30) - o["hoist"]
            return s + (lastm[pc] > B[nxt] - o["hoist"])

        def slots(lo, n):
            return range(lo // SL, (lo + n + SL - 1) // SL)

        res = [(slots(XREG[i], 4 * SL), -1, idx[f"x{i + 5 if i < 4 else i}"]) for i in range(5)]
        res += [(slots(EX1 + 4 * SL * r, 4 * SL), idx[f"r{r + 1}_0"], idx["q1"]) for r in range(3)]
        res += [(slots(EX2, 6 * SL), idx["q2"], idx["gx"]), (slots(QSCR, 3 * SL), idx["g0"], idx["g2"])]
        for i, (sa, a0, a1) in enumerate(res):
            for sb, b0, b1 in res[:i]:
                assert not set(sa) & set(sb) or a1 < b0 or b1 < a0
        P = []
        for c in range(9):
            P += [dict(pc=("x", c, q), h=q & 1, at=XREG[c % 5] + SL * q, u0=c, e=c - 4 if c >= 5 else -1) for q in range(4)]
            P += [dict(pc=("w", 0, 2 * c + k), h=k) for k in range(2)]
        P += [dict(pc=("w", r, ks), h=ks & 1) for r in range(1, 4) for ks in range(18)]
        P += [dict(pc=("h", 0, u), h=(u + 1) & 1) for u in range(9)]
        P += [dict(pc=("q", 0, ks), h=ks & 1) for ks in range(18)]
        P += [dict(pc=("g", R, q), h=(9 * R + q + 1) & 1) for R in range(9) for q in range(9)]
        cap = {"q2": 6, "g0": 4, "gx": 4}
        free = [-1] * 38
        cur, ptr = -1, 0
        for k, q in enumerate(P):
            fixed = "at" in q
            if not fixed:
                q["u0"], q["u1"] = idx[use0[q["pc"]]], last_abs(q["pc"])
            top = 36 if q["pc"][0] == "g" else 26
            while True:
                ahead = sum(1 for z in P[:k] if z["u0"] > cur)
                ok = ahead < (o["burst"] if cur < idx["x5"] else o["lead"]) and cur >= q.get("e", -1)
                if cur >= 0:
                    ok = ok and sum(1 for z in P[:k] if z["issue"] == cur) < cap.get(steps[cur], 10)
                if ok and not fixed:
                    cand = [x % top for x in range(ptr, ptr + top) if free[x % top] <= cur and not any(
                        x % top in sl and not (b < cur or q["u1"] < a) for sl, a, b in res)]
                    ok = bool(cand)
                if ok:
                    break
                cur += 1
            if not fixed:
                q["at"], free[cand[0]], ptr = cand[0] * SL, q["u1"] + 1, cand[0] + 1
            q["issue"] = cur
            assert cur < q["u0"], (q, steps[cur])
        nb4 = idx[o["kvpoll"]] + 1
        av = [max([free[x], nb4] + [b + 1 for sl, a, b in res if x in sl]) for x in range(36)]
        self.kv_order = sorted(range(16), key=lambda g: max(av[x] for x in slots(9216 * g, 9216)))
        grp = {x: min(n for n, g in enumerate(self.kv_order) if x in slots(9216 * g, 9216)) for x in range(36)}
        todo = sorted(range(36), key=lambda x: grp[x])
        while todo:
            room = o["kvcap"] - sum(1 for z in P if z["issue"] == cur) if cur < idx["a0"] else 99
            for x in [x for x in todo if av[x] <= cur][:max(room, 0)]:
                todo.remove(x)
                P.append(dict(pc=("kv", 0, x), h=len(todo) & 1, at=x * SL, issue=cur, grp=grp[x]))
            cur += 1
        late = [q["grp"] for q in P if "grp" in q and q["issue"] >= idx["g8"]]
        n0 = max(min(late), o["kv0"])
        for q in P:
            if "grp" in q:
                q["u0"] = idx["a0"] if q["grp"] < n0 else idx["a1"]
                assert q["issue"] < q["u0"]
        self.b1tile = 4 * n0 - 2
        self.P = P
        self.planinfo = " ".join(f"{q['pc'][0]}{q['pc'][1]}.{q['pc'][2]}@{q['at'] // SL}:"
                                 f"{steps[q['issue']] if q['issue'] >= 0 else 'pre'}" for q in P)

    def p_store(self, u):
        R, tt2 = divmod(u, 2)
        d = GP + 8 * (R % 6) + 4 * tt2
        return [f"s_add_u32 {s_d1}, {s_pst}, {(4 * R + tt2) * 16384}",
                I(f"buffer_store_dwordx4 {vr(d, 4)}, v{L16}, {sWS}, {s_d1} offen {self.o['pst'].replace('+', ' ')}",
                  tag=("p", u))]

    def p_pack(self, R, h):
        return [f"v_cvt_pk_bf16_f32 v{GP + 8 * (R % 6) + (i ^ (2 * h))}, v{GACC + 16 * (R & 1) + 2 * i}, "
                f"v{GACC + 16 * (R & 1) + 2 * i + 1}" for i in range(8)]

    def ffn(self, h):
        o = self.o
        steps, idx = self.steps, self.idx
        at = {q["pc"]: q["at"] for q in self.P}
        G, B, use0, lastm, reads = self.stream(h, at.get)
        NG = len(G)
        blk = {s: [] for s in steps}
        head = {s: [] for s in steps}
        post = {s: [] for s in steps}
        mb0 = {s: [] for s in steps}
        mb1 = {s: [] for s in steps}
        need = {s: [q["pc"] for q in self.P if q["h"] == h and steps[q["u0"]] == s] for s in steps}

        def lines(items):
            return [x for e in items for x in (e.strip().split("\n") if isinstance(e, str) else [e])]

        def pos(s):
            return steps[idx[s] - h]

        def split(items, names, wts):
            items, k, acc = lines(items), 0, 0.0
            cost = [2 - (o["mlds"] == 3) if isinstance(x, list) else 2 if "exp" in x or "rcp" in x else 1 for x in items]
            for nm, w in zip(names, wts):
                acc += w / sum(wts)
                e = min(range(k, len(items) + 1, 2), key=lambda e: abs(sum(cost[:e]) - acc * sum(cost)))
                for x in items[k:e]:
                    if isinstance(x, list) and o["mlds"]:
                        x = list(flat(x))
                        nxt = steps[idx[nm] + 1]
                        mb0[nxt] += [y for y in x[1:] if y.W and o["mlds"] & 1]
                        mb1[nxt] += [y for y in x[1:] if not y.W and o["mlds"] & 2]
                        x = [x[0]] + [y for y in x[1:] if not o["mlds"] & (1 if y.W else 2)]
                    blk[nm].append(x)
                k = e
            assert k == len(items)

        def exw(text, off, tag):
            return ds(text, off + SL * h, tag=tag)

        for r in range(3):
            items = []
            for t in range(2):
                for tt2 in range(2):
                    items += self.gelu_quad(ACC + 16 * (r & 1) + 8 * tt2 + 4 * t, HOWN + 8 * r + 4 * t + 2 * tt2)
                    if r < 2 or tt2 == 0:
                        items[-1] = [items[-1], self.bias(h, r + 2, tt2, t)]
                    if o["ex64"]:
                        items[-1] = [items[-1], exw(f"ds_write_b64 v{AEXW}, {vr(HOWN + 8 * r + 4 * t + 2 * tt2, 2)}",
                                                    EX1 + U * (2 * r + t) + 8 * tt2, "ex1")]
                if not o["ex64"]:
                    items[-1] = [items[-1], exw(f"ds_write_b128 v{AEXW}, {vr(HOWN + 8 * r + 4 * t, 4)}",
                                                EX1 + U * (2 * r + t), "ex1")]
            split(items, [f"r{r + 1}_{i}" for i in range(o["rsteps"])], [1] * o["rsteps"])
        need["h1"].append("ex1")
        items = []
        for t in range(2):
            for tt2 in range(2):
                items += self.gelu_quad(ACC + 16 + 8 * tt2 + 4 * t, HOWN + 24 + 4 * t + 2 * tt2)
        for t in range(2):
            items += self.gelu_quad(ACC + 4 * t, HH + 4 * t)
        split(items, ["h0", "h1", "q0", "q1", "q2"], [float(x) for x in o["hqw"].split("+")])
        assert sum(isinstance(x, str) and "cvt" in x for s in ("h0", "h1") for x in blk[s]) >= 2
        mb1["q1"] += [ds(f"ds_read_b128 {vr(X(r, t), 4)}, v{AEXW}",
                         EX1 + U * (2 * r + 1 - t) + SL * (1 - h), tag="ex1r") for r in range(3) for t in range(2)]
        need["q2"].append("ex1r")
        a, bb = f"v{GADDR + 6}", f"v{GADDR + 7}"
        blk["q1"] += lines([f"""
    v_bfe_u32 {a}, v{LANE}, 3, 2
    v_xor_b32 {a}, {2 * h}, {a}
    v_lshlrev_b32 {a}, 5, {a}
    v_and_b32 {bb}, 3, v{LANE}
    v_lshl_add_u32 {a}, {bb}, 3, {a}
    v_lshrrev_b32 {bb}, 2, v{LANE}
    v_lshl_add_u32 v{GADDR}, {bb}, 7, {a}
    v_xor_b32 v{GADDR + 1}, 32, v{GADDR}"""] + [f"v_add_u32 v{GADDR + 2 + i}, 0x10000, v{GADDR + i}" for i in range(4)]
                           + [[setbase(f"v{GADDR + i}", 65536 * (i >> 1)) for i in range(6)]])
        assert lastm[("q", 0, 2)] <= B["q1"] and lastm[("q", 0, 5)] <= B["q2"] and lastm[("q", 0, 11)] <= B["g0"]
        assert lastm[("q", 0, 17)] <= B["gx"]
        assert not any(isinstance(x, str) and f"bf16_f32 v{HH}," in x for s in ("h0", "h1", "q0") for x in blk[s])
        blk["q2"] += [exw(f"ds_write_b128 v{AEXW}, {vr(HOWN + 24 + 4 * t, 4)}", EX2 + U * t, "ex2") for t in range(2)]
        blk["q2"] += [exw(f"ds_write_b64 v{AEXW}, {vr(HH + 4 * t, 2)}", EX2H + 8 * t, "ex2") for t in range(2)]
        need[("g0", "gx")[h]].append("ex2")
        ex2r = [ds(f"ds_read_b128 {vr(X(3, t), 4)}, v{AEXW}", EX2 + U * (1 - t) + SL * (1 - h), tag="ex2r")
                for t in range(2)]
        ex2r += [ds(f"ds_read_b64 {vr(HH + 4 * t + 2, 2)}, v{AEXW}", EX2H + 8 * (1 - t) + SL * (1 - h), tag="ex2r")
                 for t in range(2)]
        (blk["q2"] if h else post["gx"]).extend(ex2r)
        need["g1"].append("ex2r")
        assert o["gx"] <= 6
        q1, q2, q2r, q3 = self.q_epilogue(h)
        head["g0"] += q1
        blk["gx"] += lines(q2)
        need[("g1", "g2")[h]].append("qwr")
        blk[pos("g2")] += lines(q2r)
        need["g3"].append("qrd")
        blk["g3"] += lines(q3)
        blk["g1" if h == 0 else "g2"].append(self.poison(h))
        blk["g1"] += lines([self.wo_flag_addr()])
        blk["g2"] += lines(self.att_consts())
        head["r1_0"].append(self.gate(h))
        gst = [range(o["nst"] * R // 8, o["nst"] * (R + 1) // 8) for R in range(8)]
        for R in range(7):
            assert lastm[("g", R, 8)] <= B[f"g{R + 2}"]
            blk[f"g{R + 1}"] += self.p_pack(R, h) + [self.p_store(u) for u in gst[R]]
        if h == 0:
            w1, w2, w3 = self.wo_job()
            post["x7"].append(w1)
            need["r1_1"].append("wodma")
            mb0["r1_1"] += w2
            blk["r1_1"].append(w3)
            first = [f"s_or_b32 {s_t0}, {s_tt}, {s_j}", f"s_or_b32 {s_t0}, {s_t0}, {s_w}", f"s_mov_b32 {s_t1}, {WS_E:#x}"]
            c = f"s_cmp_eq_u32 {s_t0}, 0"
            post["x6"] += [first, self.cond(c, [I(f"buffer_load_dword v{EPO}, v{SQ + 1}, {sWS}, {s_t1} offen sc1")])]
            head["r2_0"] += [first, self.cond(c, [f"""
    v_readfirstlane_b32 {s_non}, v{EPO}
    s_mul_i32 {s_non}, {s_non}, 0x9e3779b1
    s_add_u32 {s_non}, {s_non}, 0x7f4a7c15
    v_mov_b32 v{EPO}, {s_non}""", self.lane0(I(f"buffer_store_dword v{EPO}, v{L16}, {sWS}, {s_t1} offen sc1")),
                f"s_or_b32 {s_non}, {s_non}, 1"])]
            post[o["kvsig"]] += [f"s_lshr_b32 {s_t0}, {s_j}, 2", f"s_or_b32 {s_t0}, {s_t0}, {s_w}", self.cond(c, [
                f"s_lshl2_add_u32 {s_t0}, {s_tt}, {s_j}", f"s_lshl_b32 {s_t0}, {s_t0}, 2", f"v_mov_b32 v{TMP}, {s_non}",
                self.lane0(I(f"buffer_store_dword v{TMP}, v{L16}, {sDBG}, {s_t0} offen sc1"))])]
        need[o["kvsig"]].append("kvst")
        assert idx[o["kvsig"]] <= idx["g2"]
        if o["touch"] & 8:
            for k in range(4):
                head[steps[idx["r1_0"] + (2 * k + 1 - h) * o["rsteps"] // 3]].append(
                    self.cond(f"s_cmp_eq_u32 {s_p}, {k}", self.touch(TW2, sW2, 0)))
        k = idx[o["kvpoll"]]
        load = [f"buffer_load_dword v{T + 4}, v{T + 5}, {sDBG}, 0 offen sc1"]
        head[pos(steps[k])] += [f"v_lshlrev_b32 v{T + 5}, 2, v{LANE}", load]
        head[pos(steps[k + 1])] += [self.spin(load, [f"v_cmp_eq_u32 vcc, 0, v{T + 4}"]),
                                    f"v_readfirstlane_b32 {s_tag}, v{T + 4}", f"s_mov_b32 {s_d1}, {WS_KN}",
                                    I(f"buffer_load_dwordx4 {vr(T, 4)}, v{L16}, {sWS}, {s_d1} offen sc1"),
                                    f"s_andn2_b32 {s_tag}, {s_tag}, 15"]
        blk["g4"] += [f"v_mov_b32 v{OREG + i}, 0" for i in range(16) if OREG + i != DW2]
        blk[pos(steps[k + 2])] += lines(self.shift_setup())
        blk["g7"].append(f"v_mov_b32 v{DW2}, 0")
        su = lines([self.bg_setup()])
        for i, x in enumerate(blk["g4"]):
            blk["g4"][i] = [x, su[i:i + 1]]
        blk["g4"] += su[len(blk["g4"]):]
        blk[pos(steps[k + 1])].append(self.p_flag(1, [("p", 0)], T + 5))
        assert all(q["issue"] <= idx["g7"] - 1 + h for q in self.P if q["pc"][0] == "g" and q["h"] == h)
        assert idx["g4"] <= idx[pos(steps[k])] and idx["g4"] < idx[pos(steps[k + 1])] < idx["g8"]

        dma = {s: [] for s in steps}
        for si in range(-1, idx["a0"] + 1):
            mine = [self.dma_code(q) for q in self.P if q["issue"] == si and q["h"] == h]
            s = steps[si] if si >= 0 else None
            if s is None or s == "a0":
                pass
            elif s in self.START[:-1] or (s == "r1_0" and h == 1):
                lo, hi = B[s] + 1, B[steps[si + 1]] - (o["hoist"] if s == "r1_0" else 0)
                for i, c in enumerate(mine):
                    G[lo + (i * (hi - lo)) // len(mine)]["mem"].append(c)
            else:
                n = o["mdma"] if idx[s] < idx["q0"] else 0
                if h:
                    n = len(mine) - min(n, len(mine))
                    dma[pos(s)] = mine[:n]
                    mb1[s] = mine[n:] + mb1[s]
                else:
                    mb1[s] = mine[:n] + mb1[s]
                    dma[s] = mine[n:]
        for s in steps[:-4]:
            for i, x in enumerate(mb0[s]):
                G[B[s] + 1 + i]["mem"].append(x)
            lo, hi = B[s] + 2 + len(mb0[s]), B[steps[idx[s] + 1]] - o["hoist"] - 2
            for i, x in enumerate(mb1[s]):
                G[lo + (i * (hi - lo)) // len(mb1[s])]["mem"].append(x)

        def gblock(s, nxt):
            items, d = list(blk[s]), dma[s]
            z = s in o["zoom"].split("+")
            out = (self.ts(f"z{s}.G") if z else []) + list(head[s])
            zz = o["zoom"] == "z" + s
            out = (self.ts("zG") if zz else []) + out
            for i, c in enumerate(d):
                out += self.ts(f"z{i}a") if zz else []
                out.append(c)
                out += self.ts(f"z{i}b") if zz else []
                out += items[(i * len(items)) // (2 * len(d)) * 1:((i + 1) * len(items)) // (2 * len(d))]
            out += self.ts(f"z{s}.D") if z else []
            out += items[(len(items) // 2 if d else 0):]
            out += self.ts(f"z{s}.E") if z or zz else []
            for reg in sorted({x.addr for x in reads.get(nxt, [])}):
                offs = [x.off for x in reads[nxt] if x.addr == reg]
                lo = min(offs) if max(offs) - min(offs) < 65536 else offs[0]
                out.append(rebase(reg, lo & ~4095, max(x for x in offs if x - (lo & ~4095) < 65536)))
            return out

        stamps = {"x0": "x0", "r1_0": "r1", "r2_0": "r2", "h0": "h", "g0": "g0", "g4": "g4"}
        if h:
            for s in steps[:-3]:
                if s not in self.START:
                    G[B[s] - o["hoist"]]["mem"].insert(0, barrier(need=need[s], drain_lds=False))
                    G[B[s] - o["hoist"] - 1]["mem"].append("s_setprio 1")
                    post[s].append("s_setprio 0")
            G[NG - 2]["mem"] += ["s_setprio 1", barrier(need=need["a0"])]
            for i, x in enumerate(self.p_pack(7, h)):
                G[NG - 10 + i]["mem"].insert(0, x)
        body = []
        for g in G:
            body.append(g["m"])
            for x in g["mem"]:
                if isinstance(x, tuple):
                    s = x[1]
                    if s not in self.START:
                        body.append(gblock(steps[idx[s] - 1], s))
                    if s in self.START:
                        body.append(barrier(need=need[s]))
                    elif h == 0:
                        last = reads[steps[idx[s] - 1]][-1]
                        last.tag = ("rd", s)
                        body.append(barrier(need=need[s] + [last.tag], drain_lds=False))
                    if steps[idx[s] - 1] in o["zoom"].split("+"):
                        body += self.ts(f"z{s}.M")
                    body += [self.ts(stamps[s]) if s in stamps else [], post[s]]
                else:
                    body.append(x)
        if h:
            body += [[self.p_store(u) for u in gst[7]], self.p_pack(8, h), "s_setprio 0"]
        else:
            body += [gblock("g8", None), self.p_pack(7, h), [self.p_store(u) for u in gst[7]], self.p_pack(8, h), barrier(need=need["a0"])]
        return body

    def kv_off(self, t):
        return 9216 * self.kv_order[t // 4], t & 3

    def k_reads(self, t):
        base, q = self.kv_off(t)
        o = [ds(f"ds_read_b128 {vr(KM, 4)}, v{AK}", base + 1024 * q)]
        if q % 2 == 0:
            o.append(ds(f"ds_read_b32 v{KR}, v{AR}", base + 8704 + 128 * q))
        return o

    def v_reads(self, t):
        base, q = self.kv_off(t)
        a = ds(f"ds_read_b128 {vr(VA, 4)}, v{AV}", base + 4096 + 1152 * q)
        a.span = 576
        return [f"s_mov_b64 exec, {s_msk}", a, ds(f"ds_read_b128 {vr(VB, 4)}, v{AV}", base + 4096 + 1152 * q + 576),
                "s_mov_b64 exec, -1"]

    def qk(self, t):
        s = SREG + 16 * (t & 1)
        return (I(f"v_mfma_f32_32x32x8_bf16 {vr(s, 16)}, {vr(KR, 2)}, {vr(QRB if t & 1 else QRA, 2)}, 0",
                  needregs={("v", KM)}),
                I(f"v_mfma_f32_32x32x16_bf16 {vr(s, 16)}, {vr(KM, 4)}, {vr(QM, 4)}, {vr(s, 16)}"))

    def pv(self, t):
        s = SREG + 16 * (t & 1)
        return (I(f"v_smfmac_f32_32x32x32_bf16 {vr(OREG, 16)}, {vr(VA, 4)}, {vr(s, 8)}, v{IDX}", needregs={("v", VB)}),
                I(f"v_smfmac_f32_32x32x32_bf16 {vr(OREG, 16)}, {vr(VB, 4)}, {vr(s + 8, 8)}, v{IDX}"))

    def bg_setup(self):
        return f"""
    s_mul_i32 {s_t2}, {s_cq}, 9
    s_lshr_b32 {s_t0}, {s_j}, 2
    s_lshl_b32 {s_t1}, {s_tt}, 2
    s_add_u32 {s_t0}, {s_t0}, {s_t1}
    s_lshl_b32 {s_fc}, {s_t0}, 7
    s_add_u32 {s_fc}, {s_fc}, {WS_F:#x}
    s_mul_i32 {s_t0}, {s_t0}, 36
    s_add_u32 {s_t0}, {s_t0}, {s_t2}
    s_lshl_b32 {s_t0}, {s_t0}, 14
    s_add_u32 {s_t0}, {s_t0}, {WS_P:#x}
    s_lshl_b32 {s_t1}, {s_w}, 11
    s_add_u32 {s_w1o}, {s_t0}, {s_t1}
    s_add_u32 {s_w1o}, {s_w1o}, {8 * 16384}
    s_lshl_b32 {s_xo}, {s_w}, 14
    s_add_u32 {s_xo}, {s_xo}, {s_t0}
    s_mul_i32 {s_t0}, {s_t2}, {18 * KB}
    s_add_u32 {s_t0}, {s_t0}, {WS_WO:#x}
    s_mul_i32 {s_who}, {s_w}, {18 * KB}
    s_add_u32 {s_who}, {s_who}, {s_t0}
    s_add_u32 {s_t0}, {s_t0}, {8 * 18 * KB}
    s_add_u32 {s_w9}, {s_t0}, {s_t1}
    s_and_b32 {s_t1}, {s_w}, 1
    s_lshl_b32 {s_t1}, {s_t1}, 10
    s_add_u32 {s_w9r}, {s_t0}, {s_t1}
    s_add_u32 {s_w9r}, {s_w9r}, {16 * KB}"""

    def a0_dma(self):
        at = [q["at"] for q in self.P if self.steps[q["issue"]] == "a0" and q["issue"] >= 0]
        o = []
        for i in range(0, len(at), 2):
            x, y = at[i], at[min(i + 1, len(at) - 1)]
            o.append([f"s_mul_i32 {s_d0}, {s_hf}, {(y - x) & 0xFFFFFFFF:#x}", f"s_add_u32 {s_d0}, {s_d0}, {s_m}",
                      f"s_add_u32 m0, {s_d0}, {x}", f"s_add_u32 {s_d0}, {s_d0}, {WS_KV + x}",
                      I(f"buffer_load_dwordx4 v{L16}, {sWS}, {s_d0} offen sc1 lds", tag="kvl")])
        return o

    def bg_loads(self):
        def ld(reg, sbase, off):
            pre, so = [], sbase
            if off >= 4096:
                pre, so = [f"s_add_u32 {s_d0}, {sbase}, {off & ~4095}"], s_d0
            oo = f" offset:{off % 4096}" if off % 4096 else ""
            return reg, pre + [I(f"buffer_load_dwordx4 {vr(reg, 4)}, v{L16}, {sWS}, {so} offen{oo} sc1")]

        wo = [ld(WREG + 4 * k, s_who, KB * k) for k in range(18)]
        wo += [ld(WREG + 72 + 4 * k, s_w9, KB * k) for k in range(2)] + [ld(WREG + 80, s_w9r, 0)]
        pl = [ld(PREG + 4 * k, s_xo, KB * k)[1] for k in range(16)]
        pl += [ld(PREG + 64 + 4 * k, s_w1o, KB * k)[1] for k in range(2)]
        return wo, pl

    def p_poll(self, val, wo=False):
        load = [f"buffer_load_dword v{ATM + 1}, v{AFW if wo else AFP}, {sWS}, {0 if wo else s_fc} offen sc1"]
        return load, [f"s_add_u32 {s_t1}, {s_tag}, {val}", self.spin(load, [
            f"v_subrev_u32 v{ATM + 1}, {s_t1}, v{ATM + 1}", f"v_cmp_lt_u32 vcc, {15 - val}, v{ATM + 1}"])]

    def p_flag(self, val, need, reg=ATM):
        return [f"s_add_u32 {s_t1}, {s_tag}, {val}", f"v_mov_b32 v{reg}, {s_t1}", wait(need=need),
                self.lane0(I(f"buffer_store_dword v{reg}, v{L16}, {sWS}, {s_fl} offen sc1"))]

    def b2_loads(self):
        return [f"""
    s_mul_i32 {s_t0}, {s_cq}, 288
    s_lshl_b32 {s_t1}, {s_w}, 5
    s_add_u32 {s_t1}, {s_t1}, {s_t0}
    v_lshrrev_b32 v{BIA}, 4, v{LANE}
    v_lshlrev_b32 v{BIA}, 3, v{BIA}""",
                I(f"buffer_load_dwordx2 {vr(BIA + 2, 2)}, v{BIA}, {sB2}, {s_t1} offen"),
                f"s_mul_i32 {s_t0}, {s_cq}, 288",
                I(f"buffer_load_dwordx2 {vr(BI9 + 2, 2)}, v{BIA}, {sB2}, {s_t0} offen offset:256")]

    def attention(self):
        o = self.o
        ex = [([], []) for _ in range(64)]
        used = [0] * 64

        def put(t, code, slot=1, force=False):
            while used[t] and not force:
                t += 1
            used[t] += 1
            ex[t][slot].append(code)
            return t

        dm = self.a0_dma()
        for i, x in enumerate(dm):
            put(i, x)
        pa, pb = self.p_poll(1, True)
        tw = put(o["wchk"] - 2, pa) + 2
        ex[tw][0].append(pb)
        st = {u: put(int(len(dm) + (u - o["nst"]) * o["pace"]), self.p_store(u)) for u in range(o["nst"], 18)}
        tf = put(st[17] + o["fdelay"], self.p_flag(9, [("p", 17)]))
        pa, pb = self.p_poll(9)
        tc = put(tf + o["cdelay"] - 2, pa) + 2
        ex[tc][0].append(pb)
        wo, pl = self.bg_loads()
        for i, x in enumerate(pl):
            put(tc + i * (o["plast"] - tc) // 17, x, force=True)
        busy = {GP + 8 * ((u // 2) % 6) + 4 * (u & 1): t for u, t in st.items()}
        wo.sort(key=lambda e: busy.get(e[0], 0))
        tl = [put(max(tw, busy.get(reg, 0) + 1), code) for reg, code in wo]
        b2 = self.b2_loads()
        put(tw, b2[:2])
        put(tw, b2[2:])
        self.planinfo += f" | wo check {tw} loads {tl} | stores {st} | flag {tf} check {tc} | used {used}"
        p = [self.k_reads(0), self.qk(0), self.k_reads(1)]
        sch = o["asch"]
        for t in range(64):
            e = [f"v_exp_f32 v{SREG + 16 * (t & 1) + i}, v{SREG + 16 * (t & 1) + i}" for i in range(16)]
            if t == self.b1tile:
                p += [barrier(need=["kvl"], drain_lds=False),
                      self.ts("b1")]
            if o["zoom"] == "att" and t % 5 == 0:
                p += self.ts(f"z{t}")
            k = 0
            for c in sch:
                if c.isdigit():
                    p += e[k:k + int(c)]
                    k += int(c)
                elif c in "aB" and t > 0:
                    p.append(self.pv(t - 1)[c == "B"])
                elif c == "A":
                    p.append(self.pv(t)[0])
                elif c in "RM" and t < 63:
                    p.append(self.qk(t + 1)[c == "M"])
                elif c == "v":
                    p += self.v_reads(t)
                elif c == "k" and t < 62:
                    p += self.k_reads(t + 2)
                elif c in "ef":
                    p += ex[t][c == "f"]
                elif c in "LHX":
                    p.append(f"s_setprio {'LHX'.index(c)}")
            assert k == 16
        if "a" in sch:
            p.append(self.pv(63)[0])
        p += [self.pv(63)[1], "s_setprio 0"]
        return p

    def slow_path(self):
        S = SREG
        mx, ak, av, ar = f"v{ATM}", f"v{AK}", f"v{AV}", f"v{AR}"

        def qk(q):
            o = f"    ds_read_b128 {vr(KM, 4)}, {ak} offset:{1024 * q}\n"
            o += f"    ds_read_b32 v{KR}, {ar} offset:{8704 + 256 * (q >> 1)}\n"
            o += "    s_waitcnt lgkmcnt(0)\n"
            o += "    " + self.qk(q)[0].text.replace(vr(S + 16, 16), vr(S, 16)) + "\n"
            o += "    " + self.qk(0)[1].text + "\n    s_nop 15\n"
            return o

        adv = f"""    v_add_u32 {ak}, 9216, {ak}
    v_add_u32 {av}, 9216, {av}
    v_add_u32 {ar}, 9216, {ar}
    s_sub_u32 {s_t0}, {s_t0}, 1
    s_cmp_lg_u32 {s_t0}, 0
"""
        s = f"""    v_mov_b32 v{QRA + 1}, 0
    v_mov_b32 v{QRB + 1}, 0
    v_mov_b32 {mx}, 0xff800000
    s_mov_b32 {s_t0}, 16
L_slow1:
"""
        for q in range(4):
            s += qk(q)
            for i in range(8):
                s += f"    v_max3_f32 {mx}, {mx}, v{S + 2 * i}, v{S + 2 * i + 1}\n"
        s += adv + f"""    s_cbranch_scc1 L_slow1
    v_mov_b32 v{ATM + 1}, {mx}
    s_nop 1
    v_permlane32_swap_b32 v{ATM + 1}, {mx}
    s_nop 1
    v_max_f32 {mx}, {mx}, v{ATM + 1}
    v_subrev_u32 {ak}, {16 * 9216}, {ak}
    v_subrev_u32 {av}, {16 * 9216}, {av}
    v_subrev_u32 {ar}, {16 * 9216}, {ar}
    s_mov_b32 {s_t0}, 16
L_slow2:
"""
        for q in range(4):
            s += f"""    s_mov_b64 exec, {s_msk}
    ds_read_b128 {vr(VA, 4)}, {av} offset:{4096 + 1152 * q}
    ds_read_b128 {vr(VB, 4)}, {av} offset:{4096 + 1152 * q + 576}
    s_mov_b64 exec, -1
"""
            s += qk(q)
            for i in range(16):
                s += f"    v_sub_f32 v{S + i}, v{S + i}, {mx}\n"
            for i in range(16):
                s += f"    v_exp_f32 v{S + i}, v{S + i}\n"
            s += "    s_nop 1\n    " + self.pv(0)[0].text + "\n    " + self.pv(0)[1].text + "\n    s_nop 3\n"
        s += adv + "    s_cbranch_scc1 L_slow2\n"
        pa, pb = self.p_poll(9), self.p_poll(1, True)
        wo, pl = self.bg_loads()
        return [label("L_slow"), self.a0_dma(), [self.p_store(u) for u in range(self.o["nst"], 18)],
                raw("    s_waitcnt vmcnt(0) lgkmcnt(0)\n    s_barrier"), self.p_flag(9, []), raw(s),
                self.b2_loads(), pa, pb, [c for _, c in wo], pl,
                raw("    s_waitcnt vmcnt(0) lgkmcnt(0)\n    s_nop 15\n    s_branch L_att_done")]

    def final(self):
        O, ost = OREG, self.o["ost"].replace("+", " ")
        tok, g, x0, x1 = "v34", "v35", "v36", "v37"
        SEL, GG = 28, 2
        AB, AA, NB_, NA = 64, 72, 80, 88
        BB, OL = PREG, 40
        p = [f"""
    v_and_b32 {tok}, 15, v{LANE}
    v_lshrrev_b32 {g}, 4, v{LANE}
    v_lshlrev_b32 {x0}, 3, {tok}
    v_lshl_add_u32 {x0}, {g}, 2, {x0}
    s_lshr_b32 {s_t0}, {s_j}, 2
    s_lshl2_add_u32 {s_t0}, {s_tt}, {s_t0}
    s_mul_i32 {s_t0}, {s_t0}, {OBLK}
    s_add_u32 {s_t0}, {s_t0}, {WS_O:#x}
    s_lshl_b32 {s_t1}, {s_w}, 9
    s_lshl3_add_u32 {s_d0}, {s_t1}, {s_t0}
    s_add_u32 {s_d1}, {s_t1}, {s_t0}
    s_add_u32 {s_d1}, {s_d1}, {32 * KB}
    v_rcp_f32 v{O + 10}, v{O + 10}"""]
        p += [f"v_mul_f32 v{O + i}, v{O + i}, v{O + 10}" for i in range(10)]
        p += [f"v_cvt_pk_bf16_f32 v{O + 12 + i}, v{O + 2 * i}, v{O + 2 * i + 1}" for i in range(4)]
        p += [I(f"buffer_store_dwordx4 {vr(O + 12, 4)}, v{L16}, {sWS}, {s_oun} offen sc1"),
              f"v_cvt_pk_bf16_f32 v{O + 11}, v{O + 8}, v{O + 9}",
              "s_mov_b32 exec_hi, 0",
              I(f"buffer_store_dword v{O + 11}, {x0}, {sWS}, {s_our} offen sc1"),
              "s_mov_b64 exec, -1", self.ts("oflag")]
        l8, aw, ar, ast, an9 = "v4", "v5", "v38", "v39", "v1"
        p += [f"""
    s_lshr_b32 {s_t1}, {s_j}, 2
    s_lshl_b32 {s_t1}, {s_t1}, 7
    s_add_u32 {s_t1}, {s_t1}, {L_GT}
    v_lshl_add_u32 {x0}, {tok}, 2, {s_t1}
    ds_read2_b32 {vr(GG, 2)}, {x0} offset0:0 offset1:16
    v_and_b32 {x0}, 1, {tok}
    v_lshlrev_b32 {x0}, 4, {x0}
    v_mov_b32 {x1}, 0x3f80
    v_lshlrev_b32 {x0}, {x0}, {x1}
    v_lshrrev_b32 {x1}, 1, {tok}
    v_lshlrev_b32 {l8}, 1, {g}
    v_cmp_eq_u32 vcc, {l8}, {x1}
    v_mov_b32 v{SEL}, 0
    v_mov_b32 v{SEL + 1}, 0
    v_cndmask_b32 v{SEL + 2}, 0, {x0}, vcc
    v_add_u32 {l8}, 1, {l8}
    v_cmp_eq_u32 vcc, {l8}, {x1}
    v_mov_b32 v{SEL + 4}, 0
    v_mov_b32 v{SEL + 5}, 0
    v_cndmask_b32 v{SEL + 3}, 0, {x0}, vcc
    v_lshlrev_b32 {l8}, 3, v{LANE}
    s_cmp_eq_u32 {s_w}, 0
    s_cselect_b32 {s_t0}, -1, 0
    v_and_b32 v{BI9 + 2}, {s_t0}, v{BI9 + 2}
    v_and_b32 v{BI9 + 3}, {s_t0}, v{BI9 + 3}"""]
        for b in (BIA, BI9):
            p += [f"""
    v_lshlrev_b32 v{b}, 16, v{b + 2}
    v_and_b32 v{b + 1}, 0xffff0000, v{b + 2}
    v_lshlrev_b32 v{b + 2}, 16, v{b + 3}
    v_and_b32 v{b + 3}, 0xffff0000, v{b + 3}"""]
        sums = []
        for k in range(18):
            acc, c = (AB, BIA) if k < 16 else (NB_, BI9)
            for h in range(2):
                sums.append(mf16(acc + 4 * h, SEL + 2 - 2 * h, PREG + 4 * k, vr(c, 4) if k in (0, 16) else None))
        load = [f"buffer_load_dwordx4 {vr(OL + 4 * k, 4)}, v{L16}, {sWS}, {s_d0} offen offset:{KB * k} sc1" for k in range(4)]
        load.append(f"buffer_load_dwordx2 {vr(OL + 16, 2)}, {l8}, {sWS}, {s_d1} offen sc1")
        test = [f"v_max3_u32 {x0}, v{OL}, v{OL + 1}, v{OL + 2}", f"v_max3_u32 {x1}, v{OL + 3}, v{OL + 4}, v{OL + 5}"]
        test += [f"v_max3_u32 {(x0, x1)[i & 1]}, {(x0, x1)[i & 1]}, v{OL + 6 + 2 * i}, v{OL + 7 + 2 * i}" for i in range(6)]
        test += [f"v_max_u32 {x0}, {x0}, {x1}", f"v_cmp_eq_u32 vcc, -1, {x0}"]
        addr = f"""
    s_lshl_b32 {s_t1}, {s_w}, 12
    v_add_u32 {aw}, {s_t1}, v{L16}
    v_lshlrev_b32 {ar}, 9, {g}
    v_lshl_add_u32 {ar}, {tok}, 3, {ar}
    v_mul_u32_u24 {ast}, 272, {tok}
    v_lshl_add_u32 {ast}, {g}, 3, {ast}
    s_lshl_b32 {s_t1}, {s_w}, 5
    v_add_u32 {ast}, {s_t1}, {ast}
    v_lshlrev_b32 {an9}, 6, {tok}
    v_lshl_add_u32 {an9}, {g}, 4, {an9}
    s_lshl_b32 {s_t1}, {s_w}, 11
    v_add_u32 {an9}, {s_t1}, {an9}""".strip().split("\n")
        n0 = self.o["oearly"]
        p += [sums[:n0], load]
        for i, m in enumerate(sums[n0:]):
            p += [m, addr[i:i + 1]]
        p += [addr[36 - n0:], barrier(), self.spin(load, test, sleep=1), self.ts("opoll"),
              f"s_lshl_b32 {s_t1}, {s_w}, 9", f"v_add_u32 {l8}, {s_t1}, {l8}"]
        for k in range(4):
            p += [mf16(NA + 4 * (k & 1), WREG + 72 + 4 * (k >> 1), OL + 4 * k, "0" if k < 2 else None),
                  f"ds_write_b128 {aw}, {vr(OL + 4 * k, 4)} offset:{KB * k}"]
        p += [f"ds_write_b64 {l8}, {vr(OL + 16, 2)} offset:{32 * KB}", f"""
    s_lshl_b32 {s_t1}, {s_w}, 2
    v_add_u32 {x0}, {s_t1}, {g}
    v_mul_u32_u24 {aw}, 272, {x0}
    v_lshl_add_u32 {aw}, {tok}, 4, {aw}
    s_lshl_b32 {s_t1}, {s_w}, 8
    s_add_u32 {s_t1}, {s_t1}, {L_N9}
    v_lshl_add_u32 {l8}, v{LANE}, 2, {s_t1}
    v_mul_u32_u24 {x0}, 1152, {x0}
    v_lshl_add_u32 {x1}, {tok}, 1, {x0}
    v_lshl_add_u32 {x0}, {tok}, 4, {x0}
    s_lshr_b32 {s_t0}, {s_j}, 2
    s_lshl2_add_u32 {s_t0}, {s_tt}, {s_t0}
    s_mul_i32 {s_t0}, {s_t0}, {32 * 1152}
    s_mul_i32 {s_t1}, {s_cq}, 288
    s_add_u32 {s_t0}, {s_t0}, {s_t1}""", barrier(), self.ts("oland")]
        seq = []
        for u in range(2):
            for t in range(2):
                seq.append((lambda b, u=u, t=t: [
                    f"ds_read2_b64 {vr(b, 4)}, {ar} offset0:{16 * t} offset1:{16 * t + 32}" if False else
                    f"ds_read_b64 {vr(b + 2 * i, 2)}, {ar} offset:{32 * KB + 2048 * u + 128 * t + 256 * i}" for i in range(2)],
                    lambda b, u=u, t=t: [mf16(AA + 4 * t, WREG + 64 + 4 * u, b, "0" if u == 0 else None),
                                         self.cond(f"s_cmp_eq_u32 {s_w}, {u}", [mf16(NA + 4 * t, WREG + 80, b)])]))
        for k in range(16):
            for t in range(2):
                seq.append((lambda b, k=k, t=t: [f"ds_read_b128 {vr(b, 4)}, v{L16} offset:{2048 * k + 1024 * t}"],
                            lambda b, k=k, t=t: [mf16(AA + 4 * t, WREG + 4 * k, b)]))
        NBUF = 8
        n9 = []
        for t in range(2):
            n9 += [f"v_sub_f32 v{NA + 4 * t + i}, v{NA + 4 * t + i}, v{NB_ + 4 * t + i}" for i in range(4)]
            n9 += [f"v_fmac_f32 v{NB_ + 4 * t + i}, v{NA + 4 * t + i}, v{GG + t}" for i in range(4)]
        n9 += [f"ds_write_b128 {an9}, {vr(NB_ + 4 * t, 4)} offset:{L_N9 + 1024 * t}" for t in range(2)]
        for i in range(NBUF):
            p += seq[i][0](BB + 4 * i)
        for i in range(len(seq)):
            p += seq[i][1](BB + 4 * (i % NBUF))
            if i + NBUF < len(seq):
                p += seq[i + NBUF][0](BB + 4 * (i % NBUF))
            if 14 <= i < 14 + len(n9):
                p.append(n9[i - 14])
        for t in range(2):
            p += [f"v_sub_f32 v{AA + 4 * t + i}, v{AA + 4 * t + i}, v{AB + 4 * t + i}" for i in range(4)]
            p += [f"v_fmac_f32 v{AB + 4 * t + i}, v{AA + 4 * t + i}, v{GG + t}" for i in range(4)]
            p += [f"v_cvt_pk_bf16_f32 v{AA + 4 * t + i}, v{AB + 4 * t + 2 * i}, v{AB + 4 * t + 2 * i + 1}" for i in range(2)]
            p.append(f"ds_write_b64 {ast}, {vr(AA + 4 * t, 2)} offset:{L_STG + 16 * 272 * t}")
        p += [barrier(), f"ds_read_b128 {vr(OL, 4)}, {aw} offset:{L_STG}"]
        p += [f"ds_read2st64_b32 {vr(OL + 4 + 2 * i, 2)}, {l8} offset0:{16 * i} offset1:{16 * i + 8}" for i in range(4)]
        p += [I(f"buffer_store_dwordx4 {vr(OL, 4)}, {x0}, {sOUT}, {s_t0} offen {ost}")]
        p += [f"v_add_f32 v{OL + 4 + 2 * i}, v{OL + 4 + 2 * i}, v{OL + 5 + 2 * i}" for i in range(4)]
        p += [f"""
    v_add_f32 v{OL + 4}, v{OL + 4}, v{OL + 6}
    v_add_f32 v{OL + 8}, v{OL + 8}, v{OL + 10}
    v_add_f32 v{OL + 4}, v{OL + 4}, v{OL + 8}
    v_cvt_pk_bf16_f32 v{OL + 4}, v{OL + 4}, v{OL + 4}""",
              I(f"buffer_store_short v{OL + 4}, {x1}, {sOUT}, {s_t0} offen offset:256 {ost}")]
        return p

    def diag_dump(self):
        if not self.o["diag"]:
            return self.ts("end")
        s = "    s_waitcnt vmcnt(0)\n"
        p = [raw(s), self.ts("end")]
        s = f"""    s_memtime s[100:101]
    s_waitcnt lgkmcnt(0)
    s_sub_u32 s100, s100, s98
    s_lshl_b32 {s_t0}, s2, 3
    s_add_u32 {s_t0}, {s_t0}, {s_w}
    s_lshl_b32 {s_t0}, {s_t0}, 6
    s_add_u32 {s_t0}, {s_t0}, {WS_DIAG:#x}
    s_mov_b64 exec, 1
"""
        srcs = ["s98" if self.o["diag"] == 2 else "s96", "s100"] + [f"s{4 + 2 * k}" for k in range(self.nts)]
        for i, r in enumerate(srcs):
            s += f"    v_mov_b32 v1, {r}\n    buffer_store_dword v1, v{L16}, {sWS}, {s_t0} offen offset:{4 * i}\n"
        return p + [raw(s)]

    def experiments(self, text):
        o = self.o
        out = []
        nb = 0
        for l in text.split("\n"):
            if "s_barrier" in l:
                nb += 1
            if o["x_nodma"] and nb > 9 and (" lds" in l or "load_lds" in l):
                continue
            if o["x_nost"] and nb > 9 and "buffer_store_dwordx4" in l:
                continue
            if o["x_noex"] and nb < 20 and "ds_write_b" in l and nb > 9:
                continue
            if o["x_nogelu"] and nb < 25 and any(f" v{TMP + i}," in l for i in range(4)) and l.strip().startswith("v_") \
                    and "mfma" not in l:
                continue
            out.append(l)
        return "\n".join(out)

    def build(self):
        self.plan()
        t0, f0 = finalize([self.prologue(), f"s_cmp_eq_u32 {s_hf}, 0", "s_cbranch_scc1 L_half0"], want_state=True)
        th, fh = [], []
        for h in (1, 0):
            t, f = finalize([label(f"L_half{h}"), self.ffn(h), "s_branch L_join" if h else []],
                            init=[f0], want_state=True)
            th.append(self.experiments(t))
            fh.append(f)
        slow = [] if self.o["x_fast"] else [f"s_cmp_lg_u64 {s_slow}, 0", "s_cbranch_scc1 L_slow"]
        t1, stats = finalize([label("L_join"), self.ts("a0"), slow, self.attention(), label("L_att_done"),
                              self.ts("aend"), self.final(), self.diag_dump(), label("L_end"), "s_endpgm"], init=fh)
        text = t0 + th[0] + th[1] + t1
        text2, _ = finalize(self.slow_path())
        self.stats = stats
        ref = open(f"cdna_kernels/{NAME}.s.ref").read().split("\n")
        head = [l for l in ref if l.startswith(";") and "@launch" not in l and "Override launch" not in l
                and "grid=ceil" not in l]
        out = "\n".join(head) + f"""
; @launch grid=(256,1,1) block=(512,1,1) lds=163840
; Generated by gen/gen.py. One workgroup per CU: 128 tokens x (288 hidden units, 2 heads).
.amdgcn_target "amdgcn-amd-amdhsa--gfx950"
.text
.globl {NAME}_kernel
.p2align 8
.type {NAME}_kernel,@function
{NAME}_kernel:
{text}{text2}
.section .rodata,"a"
.p2align 6
.amdhsa_kernel {NAME}_kernel
  .amdhsa_next_free_vgpr 256
  .amdhsa_next_free_sgpr 102
  .amdhsa_accum_offset 256
  .amdhsa_group_segment_fixed_size 0
  .amdhsa_kernarg_size 112
  .amdhsa_user_sgpr_count 2
  .amdhsa_user_sgpr_kernarg_segment_ptr 1
  .amdhsa_system_sgpr_workgroup_id_x 1
.end_amdhsa_kernel
"""
        return out


def parse_opts(args):
    kw = {}
    for a in args:
        k, v = a.split("=", 1)
        d = DEFAULTS[k]
        kw[k] = type(d)(v)
    return kw


if __name__ == "__main__":
    out = sys.argv[1]
    g = Gen(**parse_opts(sys.argv[2:]))
    open(out, "w").write(g.build())
    print(g.stats, g.tsnames)
```

```python
import math
import struct
import sys

from asmlib import I, barrier, finalize, flat, label, opt_begin, opt_end, raw, rebase, setbase, vr, wait

NAME = "gated_mix__grouped_kv_mqa__dense_activation_gelu__prompt"
KB = 1024
U = 8192

DEFAULTS = dict(
    b=4,
    diag=0,
    early=3,
    burst=18,
    lead=22,
    hoist=2,
    gx=5,
    mdma=0,
    ex64=0,
    rsteps=3,
    mlds=1,
    nbuf=6,
    hqw="1+1+1.6+1.4+1",
    kvsig="g2",
    kvpoll="g6",
    kv0=2,
    pace=2.0,
    fdelay=7,
    cdelay=11,
    nst=8,
    plast=61,
    kvcap=14,
    pst="sc1",
    ost="sc1",
    asch="aXeBvRMkfL4H66",
    touch=9,
    waux="",
    otouch="",
    pdist=4,
    dbl=0,
    ywin=41,
    st0=8,
    ctail=50,
    rot=1,
    thr=40.0,
    oearly=8,
    force_slow=0,
    zoom="",
    x_pad="",
    x_nodma=0, x_noex=0, x_nogelu=0, x_nost=0, x_fast=0,
)


def f32(x):
    return "0x%08x" % struct.unpack("<I", struct.pack("<f", x))[0]


WS_KV, WS_KN, WS_E, WS_F, WS_WO, WS_O, WS_P = 0, 147456, 0x28000, 0x30000, 0x40000, 0x100000, 0x400000
WS_DIAG, WS_SIZE = 0x3000000, 0x4000000
OBLK = 36 * KB
SL = 4096
XREG = [72 * KB, 88 * KB, 104 * KB, 120 * KB, 136 * KB]
EX1, EX2, EX2H = 104 * KB, 116 * KB, 132 * KB
QSCR, MISC = 140 * KB, 152 * KB
L_B1, L_GATE, WOSCR = MISC, MISC + 2048, MISC + 4096
L_GT, L_DUMMY = MISC + 2048 + 1152, MISC + 1536
L_STG, L_N9 = 40 * KB, 50 * KB

sX, sW1, sW2, sWS, sDBG, sOUT, sWO, sB1, sB2, sG = (f"s[{a}:{a + 3}]" for a in range(32, 72, 4))
s_w, s_p, s_hf, s_tt, s_j = "s72", "s73", "s74", "s75", "s76"
s_xo, s_m, s_w1o, s_who, s_rc = "s77", "s78", "s79", "s80", "s81"
s_w2a, s_w2b, s_fl, s_cq, s_pst, s_oun = "s82", "s83", "s84", "s85", "s86", "s87"
s_t0, s_t1, s_d0, s_d1 = "s88", "s89", "s90", "s91"
s_msk, s_slow = "s[92:93]", "s[94:95]"
s_t2 = "s3"
s_wj, s_wo = "s68", "s69"
s_tw = ["s0", "s1", "s92", "s60", "s61", "s62", "s63", "s70", "s71"]
s_non, s_our = "s93", "s69"
s_tag, s_w9 = "s68", "s81"
s_wh2 = "s70"
s_w9r, s_fc = "s60", "s61"

L16, C0, AW, A16, DW1, AWH, AQ, TMP = 0, 1, 2, 6, 7, 8, 9, 12
ZERO, DQ, SQ, DW2, AEXW, LANE, DWH = 11, 16, 18, 20, 21, 22, 23
QN2, AFP, AFW = 23, 1, 5
ABUF, ACC, HOWN, HH, XO = 24, 40, 72, 104, 112
TOUT, TW2, WJD, WJA, WJV, EPO = 99, 100, 101, 102, 92, 103
GTA, GTB = 80, 84
AQ2 = 56
GADDR, GBUF, GACC, T, GP = 128, 136, 144, 200, 208
QM, QRA, QRB, KM, KR, IDX, VA, VB = 40, 44, 46, 48, 52, 54, 56, 60
SREG, OREG, PREG, WREG, ATM = 64, 6, 100, 172, 38
AK, AV, AR = 2, 3, 4
BIA, BI9 = 96, 98


def X(ks, t):
    return XO + 72 * t + 4 * ks


LOG2E = math.log2(math.e)
GC0 = -2.0 * LOG2E * math.sqrt(2.0 / math.pi)
GC1 = GC0 * 0.044715
QSCALE = LOG2E / math.sqrt(18.0)


def ds(text, off, **kw):
    return I(text, off=off, **kw)


def mf16(d, a, b, c=None):
    c = vr(d, 4) if c is None else c
    return I(f"v_mfma_f32_16x16x32_bf16 {vr(d, 4)}, {vr(a, 4)}, {vr(b, 4)}, {c}")


class Gen:
    def __init__(self, **kw):
        self.o = dict(DEFAULTS)
        self.o.update(kw)
        self.nl = 0
        self.nts = 0
        self.tsnames = []

    def lab(self, s):
        self.nl += 1
        return f"L_{s}_{self.nl}"

    def ts(self, name, nopad=False):
        if self.o["x_pad"] == name and not nopad:
            l = self.lab("pad")
            sync = "s_and_b32 s96, s96, 0xfffff000" if self.o["diag"] else "s_nop 0"
            return [raw(f"""    {sync}
{l}:
    s_memrealtime s[100:101]
    s_waitcnt lgkmcnt(0)
    s_sub_u32 s100, s100, s96
    s_cmp_lt_u32 s100, 10000
    s_cbranch_scc1 {l}"""), self.ts(name, True)]
        if self.o["zoom"] == "tail":
            if name not in ("aend", "oflag", "t_sum", "t_b2", "opoll", "oland", "t_mm", "t_wr", "t_b4", "t_st", "end"):
                return []
        elif not self.o["diag"] or (self.o["zoom"] and name[0] != "z" and name != "end") or name[:2] == "t_":
            return []
        if name not in self.tsnames:
            self.tsnames.append(name)
            self.nts += 1
        k = self.tsnames.index(name)
        assert k < 14
        op = "s_memtime" if self.o["diag"] == 2 else "s_memrealtime"
        return [raw(f"    {op} s[{4 + 2 * k}:{5 + 2 * k}]")]

    def cond(self, cmp, body):
        l = self.lab("skip")
        return [cmp, f"s_cbranch_scc0 {l}", opt_begin(), body, opt_end(), label(l)]

    def spin(self, load, test, sleep=2):
        lo, ld = self.lab("ok"), self.lab("spin")
        nl = "\n    "
        return [test, "s_cmp_eq_u64 vcc, 0", f"s_cbranch_scc1 {lo}", opt_begin(),
                raw(f"""    s_mov_b32 {s_t2}, 0x8000
{ld}:
    s_sleep {sleep}
    {nl.join(load)}
    s_waitcnt vmcnt(0)
    {nl.join(test)}
    s_nop 1
    s_cmp_eq_u64 vcc, 0
    s_cbranch_scc1 {lo}
    s_sub_u32 {s_t2}, {s_t2}, 1
    s_cmp_lg_u32 {s_t2}, 0
    s_cbranch_scc1 {ld}"""), opt_end(), label(lo)]

    def lane0(self, *ins):
        return ["s_mov_b64 exec, 1", list(ins), "s_mov_b64 exec, -1"]

    def touch(self, vaddr, srd, soff):
        return [f"s_mov_b32 m0, {L_DUMMY}", I(f"buffer_load_dword v{vaddr}, {srd}, {soff} offen lds")]

    def prologue(self):
        o = self.o
        b, tch = o["b"], o["touch"]
        zp = o["zoom"] == "pro"
        assert b == 4 or not tch & 8
        nb, lb = 16 // b, b.bit_length() - 1
        t = HOWN + 5
        l3, l7, g, tok, r, c4, w1 = (f"v{t + i}" for i in range(7))
        a, bb, cc = f"v{t + 7}", f"v{t + 8}", f"v{t + 9}"
        DX = HOWN + 4
        s_bf, s_mw = s_pst, s_oun
        p = []
        if o["diag"] or o["x_pad"]:
            p += [raw("    s_memrealtime s[96:97]\n    s_memtime s[98:99]")]
        p += [f"""
    s_cmp_ge_u32 s2, 256
    s_cbranch_scc1 L_end""", raw("""    s_load_dwordx16 s[4:19], s[0:1], 0
    s_load_dwordx8 s[20:27], s[0:1], 64
    s_load_dwordx4 s[28:31], s[0:1], 96""")]
        if tch & 1:
            p += [raw("""    s_getpc_b64 s[92:93]
L_pc:"""), f"""
    s_bfe_u32 {s_t0}, s2, 0x30003
    v_lshrrev_b32 {a}, 3, v0
    v_and_b32 {bb}, 7, v0
    v_or_b32 {bb}, {a}, {bb}
    v_lshl_add_u32 {bb}, {bb}, 3, {s_t0}
    v_lshlrev_b32 {bb}, 7, {bb}
    v_min_u32 {bb}, L_end-L_pc, {bb}
    s_mov_b32 m0, {L_DUMMY}
    s_mov_b64 exec, 0xff""", I(f"global_load_lds_dword {bb}, s[92:93]"), "s_mov_b64 exec, -1"]
        p += [f"""
    v_lshrrev_b32 {a}, 6, v0
    v_and_b32 v{LANE}, 63, v0
    v_readfirstlane_b32 {s_w}, {a}"""]
        if tch & 2:
            p += [raw("""    s_getpc_b64 s[92:93]
L_pc:"""), f"""
    s_andn2_b32 {s_t0}, s2, 7
    s_add_u32 {s_t0}, {s_t0}, {s_w}
    s_lshl_b32 {s_t0}, {s_t0}, 7
    s_add_u32 {s_t1}, {s_t0}, 0x8000
    s_min_u32 {s_t1}, {s_t1}, L_end-L_pc""", raw(f"""    s_load_dword {s_d0}, s[92:93], {s_t0}
    s_load_dword {s_d1}, s[92:93], {s_t1}""")]
        p += [f"""
    v_lshrrev_b32 {l3}, 3, v{LANE}
    v_and_b32 {l7}, 7, v{LANE}
    v_lshrrev_b32 {g}, 4, v{LANE}
    v_and_b32 {w1}, 1, {a}
    v_lshlrev_b32 {w1}, 2, {w1}
    s_and_b32 {s_t0}, s2, {nb - 1}
    s_lshl_b32 {s_j}, {s_t0}, {lb}
    s_lshr_b32 {s_t0}, s2, 3
    s_and_b32 {s_t1}, {s_t0}, {b - 1}
    s_add_u32 {s_j}, {s_j}, {s_t1}
    s_lshr_b32 {s_tt}, {s_t0}, {lb}"""]
        if o["rot"]:
            m = (s_t1, s_tt) if b <= 4 else (s_tt, s_t1)
            p += [f"""
    s_lshl1_add_u32 {s_rc}, {m[0]}, {m[1]}
    s_sub_u32 {s_t1}, {s_rc}, 9
    s_min_u32 {s_rc}, {s_rc}, {s_t1}"""]
            assert b in (4, 8)
        else:
            p += [f"s_mov_b32 {s_rc}, 0"]
        p += [f"""
    s_bfe_u32 {s_t0}, s2, {((3 - (nb.bit_length() - 1)) << 16) | (nb.bit_length() - 1):#x}
    s_mul_i32 {s_t0}, {s_t0}, {32 // b}
    s_add_u32 {s_tt}, {s_tt}, {s_t0}
    s_lshl_b32 {s_mw}, {s_w}, 10
    s_lshl4_add_u32 {s_t0}, {s_tt}, {s_w}
    s_mul_i32 {s_xo}, {s_t0}, {8 * 1152}
    s_and_b32 {s_t1}, {s_j}, 1
    s_mul_i32 {s_t0}, {s_j}, 576
    s_lshl_b32 {s_t2}, {s_t1}, 6
    s_add_u32 {s_bf}, {s_t0}, {s_t2}
    s_mul_i32 {s_w1o}, {s_w}, {8 * 9216}
    s_add_u32 {s_w1o}, {s_w1o}, {s_bf}
    v_add_u32 {a}, {w1}, {g}
    v_xor_b32 {a}, {a}, {l7}
    v_mul_u32_u24 {bb}, 1152, {l3}
    v_lshl_add_u32 v{DX}, {a}, 4, {bb}
    v_and_b32 {a}, 1, {g}
    v_lshl_add_u32 {a}, {a}, 1, {w1}
    v_xor_b32 {cc}, {a}, {l7}
    v_mul_u32_u24 v{DW1}, 9216, {l3}
    v_lshl_add_u32 v{DW1}, {cc}, 4, v{DW1}
    s_mov_b32 s34, {2048 * 1152}
    s_mov_b32 s35, 0x20000
    s_mov_b32 s38, {576 * 9216}
    s_mov_b32 s39, 0x20000
    s_mov_b32 {s_fl}, {s_rc}""", raw("    s_waitcnt lgkmcnt(0)"), raw("    s_memrealtime s[94:95]") if zp else [], """
    s_mov_b32 s32, s4
    s_mov_b32 s33, s5
    s_mov_b32 s36, s16
    s_mov_b32 s37, s17"""]
        pre = [q for q in self.P if q["issue"] < 0]
        burst = []
        for q, z in zip(pre[0::2], pre[1::2]):
            assert (q["h"], z["h"], z["at"] - q["at"]) == (0, 1, SL)
            burst.append(self.dma_code(q, s_mw if len(burst) < o["early"] else s_t0, z["pc"]))
        assert max(q["pc"][2] for q in pre if q["pc"][0] == "w") < 6
        p += [burst[:3], f"""
    v_lshl_add_u32 v{t + 10}, v0, 1, {s_t2}
    s_mul_i32 {s_t2}, {s_t1}, 576
    v_subrev_u32 {a}, {s_t2}, v{t + 10}
    v_cmp_gt_u32 vcc, 0x100, v0
    s_mov_b32 s60, s18
    s_mov_b32 s61, s19
    s_mov_b32 s62, 9216
    s_mov_b32 s63, 0x20000
    v_cndmask_b32 v{t + 10}, {a}, v{t + 10}, vcc""",
              I(f"buffer_load_ushort v{t + 14}, v{t + 10}, {sB1}, {s_t0} offen"), f"""
    s_lshl_b32 {s_t2}, {s_fl}, 7
    v_lshlrev_b32 v{t + 11}, 2, v0
    v_add_u32 v{t + 10}, {s_t2}, v{t + 11}
    v_subrev_u32 {a}, 1152, v{t + 10}
    v_min_u32 v{t + 10}, {a}, v{t + 10}
    s_mov_b32 s68, s24
    s_mov_b32 s69, s25
    s_mov_b32 s70, 1152
    s_mov_b32 s71, 0x20000""",
              I(f"buffer_load_dword v{t + 15}, v{t + 10}, {sG}, 0 offen"), burst[3:o["early"]], raw("    s_memrealtime s[100:101]") if zp else []]
        p += [f"""
    s_lshl3_add_u32 {s_t0}, {s_fl}, {s_w}
    s_lshl_b32 {s_t0}, {s_t0}, 3
    v_add_u32 {tok}, {s_t0}, {l3}
    s_mul_i32 {s_t0}, {s_j}, 72
    s_and_b32 {s_t0}, {s_t0}, 0xfffffff0
    v_mul_u32_u24 {a}, 1152, {tok}
    v_lshl_add_u32 {a}, {cc}, 4, {a}
    v_add_u32 {a}, {s_t0}, {a}
    s_lshl_b32 {s_t0}, {s_t1}, 4
    v_mov_b32 {r}, {s_t0}
    v_cmp_eq_u32 vcc, 5, {cc}
    v_cndmask_b32 {r}, 20, {r}, vcc
    v_mad_u32_u24 {r}, {tok}, 36, {r}
    s_bitcmp1_b32 {s_j}, 1
    s_cselect_b32 s8, s10, s8
    s_cselect_b32 s9, s11, s9
    v_cmp_gt_u32 vcc, 5, {cc}
    v_cndmask_b32 v{SQ}, {r}, {a}, vcc
    v_mov_b32 v{SQ + 1}, 0
    v_mov_b32 {a}, s6
    v_mov_b32 {r}, s8
    v_cndmask_b32 v{DQ}, {r}, {a}, vcc
    v_mov_b32 {a}, s7
    v_mov_b32 {r}, s9
    v_cndmask_b32 v{DQ + 1}, {r}, {a}, vcc
    v_lshl_add_u64 {vr(DQ, 2)}, {vr(SQ, 2)}, 0, {vr(DQ, 2)}
    v_mov_b32 {a}, {64 * 1152}
    v_mov_b32 {r}, {64 * 36}
    v_cndmask_b32 v{SQ}, {r}, {a}, vcc
    s_mov_b32 s40, s20
    s_mov_b32 s41, s21
    s_mov_b32 s42, {4608 * 1152}
    s_mov_b32 s43, 0x20000
    s_mov_b32 s44, s30
    s_mov_b32 s45, s31
    s_mov_b32 s46, {WS_SIZE:#x}
    s_mov_b32 s47, 0x20000
    s_mov_b32 s48, s28
    s_mov_b32 s49, s29
    s_mov_b32 s50, 256
    s_mov_b32 s51, 0x20000
    s_mov_b32 s52, s26
    s_mov_b32 s53, s27
    s_mov_b32 s54, {2048 * 1152}
    s_mov_b32 s55, 0x20000
    s_mov_b32 s56, s12
    s_mov_b32 s57, s13
    s_mov_b32 s58, {576 * 1152}
    s_mov_b32 s59, 0x20000
    s_mov_b32 s64, s22
    s_mov_b32 s65, s23
    s_mov_b32 s66, 1152
    s_mov_b32 s67, 0x20000
    s_mov_b32 {s_non}, 1
    s_and_b32 {s_p}, {s_w}, 3
    s_lshr_b32 {s_hf}, {s_w}, 2
    s_lshl_b32 {s_m}, {s_p}, 10
    s_and_b32 {s_cq}, {s_j}, 3
    s_mul_i32 {s_t0}, {s_j}, 576
    s_xor_b32 {s_t2}, {s_t1}, 1
    s_lshl_b32 {s_t2}, {s_t2}, 9
    s_add_u32 {s_t0}, {s_t0}, {s_t2}
    s_mul_i32 {s_who}, {s_p}, {16 * 9216}
    s_add_u32 {s_who}, {s_who}, {s_t0}
    s_sub_u32 {s_who}, {s_who}, {s_w1o}
    s_lshl4_add_u32 {s_t0}, {s_p}, {s_t0}
    s_mul_i32 {s_w2b}, {s_t0}, 576
    s_lshl4_add_u32 {s_t0}, {s_p}, {s_bf}
    s_mul_i32 {s_w2a}, {s_t0}, 576
    s_lshl2_add_u32 {s_t0}, {s_tt}, {s_p}
    s_mul_i32 {s_pst}, {s_t0}, {36 * 16384}
    s_lshl_b32 {s_t2}, {s_hf}, 15
    s_add_u32 {s_pst}, {s_pst}, {s_t2}
    s_lshl_b32 {s_t2}, {s_j}, 10
    s_add_u32 {s_pst}, {s_pst}, {s_t2}
    s_add_u32 {s_pst}, {s_pst}, {WS_P:#x}
    s_lshl1_add_u32 {s_fl}, {s_t0}, {s_hf}
    s_lshl4_add_u32 {s_fl}, {s_fl}, {s_j}
    s_lshl_b32 {s_fl}, {s_fl}, 2
    s_add_u32 {s_fl}, {s_fl}, {WS_F:#x}
    s_mul_i32 {s_oun}, {s_t0}, 36
    s_lshl1_add_u32 {s_oun}, {s_j}, {s_oun}
    s_add_u32 {s_oun}, {s_oun}, {s_hf}
    s_lshl_b32 {s_oun}, {s_oun}, 10
    s_add_u32 {s_oun}, {s_oun}, {WS_O:#x}
    v_and_b32 {tok}, 15, v{LANE}
    v_bfe_u32 {r}, v{LANE}, 2, 2
    v_and_b32 {c4}, 3, v{LANE}
    v_lshlrev_b32 v{L16}, 4, v{LANE}
    v_mov_b32 v{C0}, {f32(GC0)}
    s_add_u32 {s_t0}, {s_m}, {EX1}
    v_add_u32 v{AEXW}, {s_t0}, v{L16}
    v_lshlrev_b32 v{A16}, 4, {g}
    v_add_u32 v{A16}, {MISC}, v{A16}
    v_lshlrev_b32 {a}, 1, {g}
    v_xor_b32 {a}, {a}, {l7}
    v_lshl_add_u32 v{DW2}, {a}, 4, {bb}
    v_lshlrev_b32 v{WJD}, 4, {a}
    v_lshrrev_b32 {a}, 5, v{LANE}
    v_lshlrev_b32 {a}, 1, {a}
    v_xor_b32 {a}, {a}, {c4}
    v_lshrrev_b32 v{DWH}, 2, v{LANE}
    v_mul_u32_u24 v{DWH}, 9216, v{DWH}
    v_lshl_add_u32 v{DWH}, {a}, 4, v{DWH}""", setbase(f"v{AEXW}", EX1), setbase(f"v{A16}", MISC),
              f"""
    v_lshrrev_b32 {a}, 1, {tok}
    v_xor_b32 {a}, {a}, {g}
    v_lshlrev_b32 {a}, 4, {a}
    v_lshl_add_u32 {a}, {tok}, 7, {a}
    s_lshl1_add_u32 {s_t0}, {s_p}, {s_hf}
    s_lshl_b32 {s_t0}, {s_t0}, 11
    s_add_u32 {s_t0}, {s_t0}, {XREG[0]}
    v_add_u32 v{HOWN}, {s_t0}, {a}
    v_xor_b32 v{HOWN + 1}, 64, v{HOWN}
    v_xor_b32 v{HOWN + 2}, 0x800, v{HOWN}
    v_xor_b32 v{HOWN + 3}, 0x840, v{HOWN}""", [setbase(f"v{HOWN + i}", XREG[0]) for i in range(4)],
              f"""
    v_lshrrev_b32 {a}, 1, {r}
    v_and_b32 {l3}, 1, {g}
    v_lshl_add_u32 {l3}, {l3}, 1, {a}
    v_lshlrev_b32 {l3}, 5, {l3}
    v_lshl_add_u32 {l7}, {g}, 3, {r}
    v_lshlrev_b32 {w1}, 3, {c4}
    s_lshl_b32 {s_t0}, {s_hf}, 6
    v_add_u32 {a}, {s_t0}, {w1}
    v_xor_b32 {a}, {a}, {l3}
    v_lshl_add_u32 v{AW}, {l7}, 7, {a}
    v_xor_b32 v{AW + 1}, 32, v{AW}
    v_add_u32 v{AW + 2}, 0x10000, v{AW}
    v_add_u32 v{AW + 3}, 0x10000, v{AW + 1}
    v_and_b32 {a}, 1, {g}
    v_xor_b32 {a}, {s_hf}, {a}
    v_lshl_add_u32 {a}, {a}, 5, {w1}
    v_lshl_add_u32 v{AWH}, {l7}, 6, {a}
    s_lshl2_add_u32 {s_t2}, {s_hf}, {s_t1}
    s_lshl_b32 {s_t2}, {s_t2}, 3
    v_add_u32 {a}, {s_t2}, {w1}
    v_xor_b32 v{AQ}, {a}, {l3}
    v_lshl_add_u32 v{AQ}, {l7}, 7, v{AQ}
    s_lshl_b32 {s_t0}, {s_t1}, 3
    v_add_u32 {a}, 72, {w1}
    s_add_u32 {s_t2}, {s_t0}, 64
    v_mov_b32 {bb}, {s_t2}
    v_cmp_eq_u32 vcc, 0, {c4}
    v_cndmask_b32 {a}, {a}, {bb}, vcc
    s_sub_u32 {s_t2}, 104, {s_t0}
    v_mov_b32 {bb}, {s_t2}
    v_cmp_eq_u32 vcc, 3, {c4}
    v_cndmask_b32 {a}, {a}, {bb}, vcc
    v_xor_b32 {a}, {a}, {l3}
    v_lshl_add_u32 v{AQ + 1}, {l7}, 7, {a}""",
              [setbase(f"v{x}", 0) for x in (AW, AW + 1, AWH, AQ, AQ + 1)],
              [setbase(f"v{x}", 65536) for x in (AW + 2, AW + 3)]]
        if tch & 8:
            p += [f"""
    s_and_b32 {s_t2}, {s_tt}, 7
    s_lshl3_add_u32 {s_t0}, {s_j}, {s_t2}
    s_mul_i32 {s_t0}, {s_t0}, {36 * 1152}
    s_mul_i32 {s_t2}, {s_w}, {41 * 128}
    s_add_u32 {s_t0}, {s_t0}, {s_t2}
    v_min_u32 v{TW2}, 40, v{LANE}
    v_lshl_add_u32 v{TW2}, v{TW2}, 7, {s_t0}"""]
        if o["otouch"] and not o["otouch"].isdigit():
            p += [f"""
    s_lshr_b32 {s_t0}, {s_j}, 2
    s_lshl2_add_u32 {s_t0}, {s_tt}, {s_t0}
    s_lshl3_add_u32 {s_t0}, {s_t0}, {s_w}
    s_mul_i32 {s_t0}, {s_t0}, {4 * 1152}
    s_mul_i32 {s_t2}, {s_cq}, 288
    s_add_u32 {s_t0}, {s_t0}, {s_t2}
    v_mul_u32_u24 {a}, 1152, {r}
    v_mul_u32_u24 {bb}, 92, {c4}
    v_add3_u32 v{TOUT}, {a}, {bb}, {s_t0}"""]
        p += [self.wo_setup(a, bb)]
        if zp:
            self.ts("zarg"), self.ts("zburst")
            p += [raw("    s_waitcnt lgkmcnt(0)\n    s_mov_b32 s4, s94\n    s_mov_b32 s6, s100"), self.ts("zpro")]
        p += [f"s_lshl_b32 {s_t0}, {s_w}, 10", burst[o["early"]:], f"""
    v_lshlrev_b32 v{t + 14}, 16, v{t + 14}
    v_add_u32 v{t + 11}, {MISC}, v{t + 11}
    ds_write_b32 v{t + 11}, v{t + 14}
    ds_write_b32 v{t + 11}, v{t + 15} offset:2048"""]
        return p

    def gelu_quad(self, src, dst):
        pr = [(f"v{TMP + i}", f"v{src + i}") for i in range(4)]
        o = [f"v_mul_f32 {t}, {x}, {x}" for t, x in pr]
        o += [f"v_fmamk_f32 {t}, {t}, {f32(GC1)}, v{C0}" for t, x in pr]
        o += [f"v_mul_f32 {t}, {t}, {x}" for t, x in pr]
        o += [f"v_exp_f32 {t}, {t}" for t, x in pr]
        o += [f"v_add_f32 {t}, 1.0, {t}" for t, x in pr]
        o += [f"v_rcp_f32 {t}, {t}" for t, x in pr]
        o += [f"v_mul_f32 {t}, {t}, {x}" for t, x in pr]
        o += [f"v_cvt_pk_bf16_f32 v{dst + i}, {pr[2 * i][0]}, {pr[2 * i + 1][0]}" for i in range(2)]
        return o

    def bias(self, h, r, tt2, t):
        if r < 4:
            return ds(f"ds_read_b128 {vr(ACC + 16 * (r & 1) + 8 * tt2 + 4 * t, 4)}, v{A16}",
                      L_B1 + 256 * r + 128 * h + 64 * tt2)
        return ds(f"ds_read_b128 {vr(ACC + 4 * t, 4)}, v{A16}", L_B1 + 1024 + 64 * h)

    def q_epilogue(self, h):
        a0, a2 = ACC + 8, AQ2
        tok, g, row, sc, aS = (f"v{64 + i}" for i in range(5))
        x0, x1 = "v69", "v70"
        p1 = [f"""
    v_and_b32 {tok}, 15, v{LANE}
    v_lshrrev_b32 {g}, 4, v{LANE}
    s_mul_i32 {s_t0}, {s_p}, 3072
    s_add_u32 {s_t0}, {s_t0}, {QSCR}
    v_mov_b32 {sc}, {f32(QSCALE)}
    v_cmp_eq_u32 vcc, 0, {g}
    v_mul_u32_u24 {row}, 96, {tok}
    v_add_u32 {row}, {s_t0}, {row}
    v_cndmask_b32 {x0}, 1.0, {sc}, vcc
    v_lshl_add_u32 {aS}, {g}, 3, {row}"""]
        p1 += [f"v_mul_f32 v{a2 + i}, v{a2 + i}, {x0}" for i in range(4)]
        p1 += [f"v_cvt_pk_bf16_f32 v{T + 4 + i}, v{a2 + 2 * i}, v{a2 + 2 * i + 1}" for i in range(2)]
        p1 += [f"ds_write_b64 {aS}, {vr(T + 4, 2)} offset:{64 + 1536 * h}"]
        kblk = [f"""
    s_mul_i32 {s_t0}, {s_tt}, 9216
    s_lshl_b32 {s_t1}, {s_p}, 1
    s_add_u32 {s_t1}, {s_t1}, {s_j}
    s_lshl_b32 {s_t1}, {s_t1}, 1
    s_add_u32 {s_t1}, {s_t1}, {s_hf}
    s_lshl_b32 {s_t1}, {s_t1}, 8
    s_add_u32 {s_t1}, {s_t1}, {s_t0}
    v_lshlrev_b32 {x0}, 3, {g}
    v_lshl_add_u32 {x0}, {tok}, 4, {x0}
    v_subrev_u32 {x0}, 8, {x0}
    v_mov_b32 {x1}, 0
    s_mov_b32 exec_lo, 0xffff0000
    s_mov_b32 exec_hi, 0x0000ffff""",
                I(f"buffer_store_dwordx2 {vr(T + 4, 2)}, {x0}, {sWS}, {s_t1} offen sc1", tag="kvst"), f"""
    v_fmac_f32 {x1}, v{a2}, v{a2}
    v_fmac_f32 {x1}, v{a2 + 1}, v{a2 + 1}""",
                self.cond(f"s_cmp_eq_u32 {s_j}, 0", [f"""
    s_lshl_b32 {s_t1}, {s_p}, 1
    s_add_u32 {s_t1}, {s_t1}, {s_hf}
    s_lshl_b32 {s_t1}, {s_t1}, 6
    s_add_u32 {s_t1}, {s_t1}, {s_t0}
    s_add_u32 {s_t1}, {s_t1}, 8704
    s_mov_b32 exec_lo, 0
    s_mov_b32 exec_hi, 0xffff0000
    v_lshlrev_b32 {x0}, 2, {tok}""",
                    I(f"buffer_store_dword v{T + 5}, {x0}, {sWS}, {s_t1} offen sc1", tag="kvst"),
                    "s_mov_b32 exec_lo, 0xffff0000", "s_mov_b32 exec_hi, -1"]), f"""
    v_fmac_f32 {x1}, v{a2 + 2}, v{a2 + 2}
    v_fmac_f32 {x1}, v{a2 + 3}, v{a2 + 3}
    s_mov_b64 exec, -1
    v_mov_b32 {x0}, {x1}
    s_lshl_b32 {s_t1}, {s_j}, 4
    s_add_u32 {s_t1}, {s_t1}, {s_tt}
    v_permlane32_swap_b32 {x0}, {x1}
    v_add_f32 {x1}, {x0}, {x1}
    v_mov_b32 {x0}, {x1}
    s_lshl_b32 {s_t1}, {s_t1}, 3
    s_add_u32 {s_t1}, {s_t1}, {s_w}
    v_permlane16_swap_b32 {x0}, {x1}
    v_add_f32 {x1}, {x0}, {x1}
    s_lshl_b32 {s_t1}, {s_t1}, 2
    s_add_u32 {s_t1}, {s_t1}, {WS_KN}"""]
        kblk += [f"v_max_f32_dpp {x1}, {x1}, {x1} row_ror:{n} row_mask:0xf bank_mask:0xf" for n in (8, 4, 2, 1)]
        kblk += ["s_mov_b64 exec, 1", I(f"buffer_store_dword {x1}, v{L16}, {sWS}, {s_t1} offen sc1", tag="kvst"),
                 "s_mov_b64 exec, -1"]
        vblk = [f"""
    s_mul_i32 {s_t0}, {s_p}, 3072
    s_add_u32 {s_t0}, {s_t0}, {QSCR + 72 + 1536 * h}
    v_and_b32 {x0}, 3, v{LANE}
    v_min_u32 {x0}, 2, {x0}
    v_lshl_add_u32 {x0}, {x0}, 3, {s_t0}
    v_lshrrev_b32 {x1}, 2, v{LANE}
    v_mul_u32_u24 {x1}, 96, {x1}
    v_add_u32 {x0}, {x0}, {x1}
    ds_read_b64_tr_b16 {vr(T + 6, 2)}, {x0}
    s_and_b32 {s_t1}, {s_j}, 1
    s_lshl_b32 {s_t0}, {s_t1}, 3
    v_add_u32 {x0}, {s_t0}, {tok}
    v_add_u32 {x1}, 6, {tok}
    v_cmp_gt_u32 vcc, 8, {tok}
    s_mul_i32 {s_t0}, {s_tt}, 9216
    s_lshl_b32 {s_t2}, {s_p}, 1
    v_cndmask_b32 {x0}, {x1}, {x0}, vcc
    v_and_b32 {x1}, 1, {g}
    s_add_u32 {s_t2}, {s_t2}, {s_hf}
    s_mul_i32 {s_t2}, {s_t2}, 576
    v_lshlrev_b32 {x1}, 3, {x1}
    v_lshl_add_u32 {x0}, {x0}, 4, {x1}
    s_add_u32 {s_t0}, {s_t0}, {s_t2}
    s_add_u32 {s_t0}, {s_t0}, {WS_KV + 4096}
    v_lshrrev_b32 {x1}, 1, {g}
    v_mul_u32_u24 {x1}, 288, {x1}
    s_mov_b32 {s_t2}, 0x0cff0cff
    s_cmp_eq_u32 {s_t1}, 0
    v_add_u32 {x0}, {x0}, {x1}
    s_cselect_b32 {s_t2}, {s_t2}, 0x00ff00ff
    s_mov_b32 exec_lo, {s_t2}
    s_mov_b32 exec_hi, {s_t2}""",
                I(f"buffer_store_dwordx2 {vr(T + 6, 2)}, {x0}, {sWS}, {s_t0} offen sc1", tag="kvst"),
                "s_mov_b64 exec, -1"]
        p1 += [self.cond(f"s_cmp_lt_u32 {s_j}, 4", [
            self.cond(f"s_cmp_lt_u32 {s_j}, 2", kblk), self.cond(f"s_cmp_ge_u32 {s_j}, 2", vblk)])]
        p2 = [f"v_mul_f32 v{a0 + i}, v{a0 + i}, {sc}" for i in range(8)]
        p2 += [f"v_cvt_pk_bf16_f32 v{T + i}, v{a0 + 2 * i}, v{a0 + 2 * i + 1}" for i in range(4)]
        p2 += [I(f"ds_write_b64 {aS}, {vr(T + 2 * t, 2)} offset:{32 * h + 1536 * (h ^ t)}", tag="qwr") for t in range(2)]
        p2r = [f"""
    v_and_b32 {x0}, 1, {g}
    v_mad_u32_u24 {x0}, {x0}, 36, {row}
    v_add_u32 {x0}, {1536 * h}, {x0}
    v_lshrrev_b32 {x1}, 1, {g}
    v_lshl_add_u32 {x1}, {x1}, 4, {x0}
    ds_read2_b32 {vr(QM, 2)}, {x1} offset0:0 offset1:1
    ds_read2_b32 {vr(QM + 2, 2)}, {x1} offset0:2 offset1:3""", I(f"ds_read_b32 v{QRA}, {x0} offset:32", tag="qrd")]
        p3 = [f"v_lshlrev_b32 v{T + i}, 16, v{QM + i}" for i in range(5)]
        p3 += [f"v_mul_f32 v{QN2}, v{QM}, v{QM}"] + [f"v_fmac_f32 v{QN2}, v{QM + i}, v{QM + i}" for i in range(1, 4)]
        p3 += [f"v_fmac_f32 v{QN2}, v{T + i}, v{T + i}" for i in range(4)]
        p3 += [f"""
    v_mov_b32 {x0}, v{QN2}
    v_cmp_gt_u32 vcc, 32, v{LANE}
    v_mov_b32 {x1}, 0
    v_permlane32_swap_b32 {x0}, v{QN2}
    v_add_f32 v{QN2}, v{QN2}, {x0}
    v_fmac_f32 v{QN2}, v{QRA}, v{QRA}
    v_fmac_f32 v{QN2}, v{T + 4}, v{T + 4}
    v_cndmask_b32 v{QRB}, v{QRA}, {x1}, vcc
    v_cndmask_b32 v{QRA}, 0, v{QRA}, vcc"""]
        return p1, p2, p2r, p3

    def gate(self, h):
        x = f"v{GTA}"
        return f"""
    v_mul_f32 {x}, {f32(-LOG2E)}, {x}
    v_and_b32 v{GTA + 1}, 15, v{LANE}
    v_exp_f32 {x}, {x}
    s_lshl_b32 {s_t0}, {s_p}, 7
    s_add_u32 {s_t0}, {s_t0}, {L_GT + 64 * h}
    v_lshl_add_u32 v{GTA + 1}, v{GTA + 1}, 2, {s_t0}
    v_add_f32 {x}, 1.0, {x}
    v_rcp_f32 {x}, {x}
    ds_write_b32 v{GTA + 1}, {x}"""

    def wo_setup(self, x0, x1):
        return [f"""
    v_lshrrev_b32 {x0}, 5, v{LANE}
    v_bfe_u32 {x1}, v{LANE}, 3, 2
    v_mad_u32_u24 {x0}, {x0}, 18, {x1}
    s_mul_i32 {s_t0}, {s_j}, 36
    s_lshl_b32 {s_t1}, {s_p}, 2
    s_add_u32 {s_t0}, {s_t0}, {s_t1}
    s_mul_i32 {s_t0}, {s_t0}, 1152
    s_lshl_b32 {s_t1}, {s_tt}, 7
    s_add_u32 {s_wj}, {s_t0}, {s_t1}""", self.cond(f"s_cmp_ge_u32 {s_tt}, 9", [f"""
    v_lshrrev_b32 {x0}, 5, v{LANE}
    v_bfe_u32 {x1}, v{LANE}, 4, 1
    v_lshl_add_u32 {x0}, {x0}, 2, {x1}
    v_bfe_u32 {x1}, v{LANE}, 3, 1
    v_mad_u32_u24 {x0}, {x0}, 18, {x1}
    s_sub_u32 {s_t0}, {s_tt}, 9
    s_lshl_b32 {s_t0}, {s_t0}, 1
    s_and_b32 {s_t1}, {s_p}, 1
    s_add_u32 {s_t0}, {s_t0}, {s_t1}
    s_lshl_b32 {s_t0}, {s_t0}, 3
    s_and_b32 {s_t1}, {s_p}, 2
    s_add_u32 {s_t0}, {s_t0}, {s_t1}
    s_mul_i32 {s_t0}, {s_t0}, 18
    s_add_u32 {s_t0}, {s_t0}, 16
    s_mul_i32 {s_t0}, {s_t0}, 1152
    s_lshl_b32 {s_t1}, {s_j}, 7
    s_add_u32 {s_wj}, {s_t0}, {s_t1}"""]), f"""
    v_mul_u32_u24 {x0}, 1152, {x0}
    v_add_u32 v{WJD}, v{WJD}, {x0}
    v_bfe_u32 {x0}, v{LANE}, 3, 2
    v_xor_b32 {x0}, {s_p}, {x0}
    v_lshlrev_b32 {x0}, 5, {x0}
    v_and_b32 {x1}, 3, v{LANE}
    v_lshl_add_u32 {x0}, {x1}, 3, {x0}
    v_lshrrev_b32 {x1}, 2, v{LANE}
    v_lshl_add_u32 {x0}, {x1}, 7, {x0}
    v_add_u32 v{WJA}, {WOSCR}, {x0}
    s_add_u32 {s_t0}, {s_tt}, 7
    s_cmp_ge_u32 {s_tt}, 9
    s_cselect_b32 {s_t0}, {s_t0}, {s_j}
    s_cselect_b32 {s_t1}, {s_j}, {s_tt}
    s_lshl_b32 {s_t1}, {s_t1}, 2
    s_add_u32 {s_t1}, {s_t1}, {s_p}
    s_mul_i32 {s_t1}, {s_t1}, 18
    s_add_u32 {s_t0}, {s_t0}, {s_t1}
    s_lshl_b32 {s_t0}, {s_t0}, 10
    s_add_u32 {s_wo}, {s_t0}, {WS_WO:#x}
    s_cmp_lt_u32 {s_j}, 9
    s_cselect_b32 {s_t0}, 11, 9
    s_cmp_lt_u32 {s_tt}, {s_t0}
    s_cselect_b32 {s_wo}, {s_wo}, -1"""]

    def wo_job(self):
        c = f"s_cmp_lg_u32 {s_wo}, -1"
        return (self.cond(c, [f"s_add_u32 m0, {s_m}, {WOSCR}",
                              I(f"buffer_load_dwordx4 v{WJD}, {sWO}, {s_wj} offen lds", tag="wodma")]),
                [f"ds_read_b64_tr_b16 {vr(WJV, 2)}, v{WJA}", f"ds_read_b64_tr_b16 {vr(WJV + 2, 2)}, v{WJA} offset:2048"],
                self.cond(c, [I(f"buffer_store_dwordx4 {vr(WJV, 4)}, v{L16}, {sWS}, {s_wo} offen sc1", tag="wost")]))

    def shift_setup(self):
        x = f"v{T}"
        o = [f"v_max3_f32 {x}, {x}, v{T + 1}, v{T + 2}", f"v_max_f32 {x}, {x}, v{T + 3}"]
        o += [f"v_max_f32_dpp {x}, {x}, {x} row_ror:{n} row_mask:0xf bank_mask:0xf" for n in (8, 4, 2, 1)]
        o += [[f"""
    v_readlane_b32 {s_t0}, {x}, 0
    v_readlane_b32 {s_t1}, {x}, 16
    v_readlane_b32 {s_t2}, {x}, 32
    v_readlane_b32 {s_d1}, {x}, 48
    s_max_u32 {s_t0}, {s_t0}, {s_t1}
    s_max_u32 {s_t2}, {s_t2}, {s_d1}
    v_mov_b32 {x}, {s_t0}
    v_add_f32 {x}, {s_t2}, {x}"""], f"""
    v_mul_f32 {x}, {x}, v{QN2}
    v_sqrt_f32 {x}, {x}
    v_mov_b32 v{T + 1}, {f32(0.01)}
    v_fmamk_f32 {x}, {x}, {f32(1.02)}, v{T + 1}
    v_mov_b32 v{T + 1}, {f32(self.o['thr'] if not self.o['force_slow'] else -1.0)}
    v_cmp_nle_f32 {s_slow}, {x}, v{T + 1}
    v_mov_b32 v{T + 1}, 0
    v_cvt_pk_bf16_f32 {x}, -{x}, v{T + 1}
    v_cmp_gt_u32 vcc, 32, v{LANE}
    v_cndmask_b32 v{QRA + 1}, 0, {x}, vcc
    v_cndmask_b32 v{QRB + 1}, {x}, v{T + 1}, vcc"""]
        return o

    def att_consts(self):
        x = f"v{T}"
        o = [f"""
    v_mov_b32 v{KR + 1}, 0x3f80
    v_mov_b32 v{IDX}, 0xdddddddd
    v_and_b32 {x}, 27, v{LANE}
    v_cmp_eq_u32 vcc, 18, {x}
    v_mov_b32 {x}, 0x3f803f80"""]
        o += [f"v_cndmask_b32 v{VA + i}, 0, {x}, vcc" for i in range(8)]
        o += [f"""
    v_mov_b32 v{AK}, v{L16}
    v_lshlrev_b32 v{AR}, 2, v{LANE}
    v_and_b32 {x}, 31, v{LANE}
    v_lshrrev_b32 v{AV}, 5, v{LANE}
    v_mul_u32_u24 v{AV}, 288, v{AV}
    v_lshl_add_u32 v{AV}, {x}, 4, v{AV}
    v_lshlrev_b32 v{AFP}, 2, {x}
    s_mov_b32 s92, 0x3ffff
    s_mov_b32 s93, 0x3ffff""", [setbase(f"v{AK}"), setbase(f"v{AV}"), setbase(f"v{AR}")]]
        return o

    def wo_flag_addr(self):
        x, y = f"v{T}", f"v{T + 1}"
        return f"""
    s_mul_i32 {s_t0}, {s_cq}, 9
    s_add_u32 {s_t1}, {s_t0}, 8
    s_add_u32 {s_t0}, {s_t0}, {s_w}
    v_and_b32 {x}, 16, v{LANE}
    v_cmp_eq_u32 vcc, 0, {x}
    v_mov_b32 {x}, {s_t0}
    v_mov_b32 {y}, {s_t1}
    v_cndmask_b32 {x}, {y}, {x}, vcc
    v_and_b32 {y}, 15, v{LANE}
    v_lshl_add_u32 v{AFW}, {x}, 5, {y}
    v_and_b32 {y}, 1, v{LANE}
    v_lshl_add_u32 {y}, {y}, 2, 36
    v_and_or_b32 {y}, {x}, 3, {y}
    v_lshrrev_b32 {x}, 2, {x}
    v_lshl_add_u32 {x}, {y}, 5, {x}
    v_cmp_gt_u32 vcc, 32, v{LANE}
    v_cndmask_b32 v{AFW}, {x}, v{AFW}, vcc
    v_lshlrev_b32 v{AFW}, 2, v{AFW}
    v_add_u32 v{AFW}, {WS_F:#x}, v{AFW}"""

    def poison(self, h):
        x = f"v{T + 4}"
        return [[f"v_mov_b32 v{T + i}, -1" for i in range(4)],
                I(f"buffer_store_dwordx4 {vr(T, 4)}, v{L16}, {sWS}, {s_oun} offen sc1"), f"""
    s_lshl2_add_u32 {s_t0}, {s_tt}, {s_p}
    s_mul_i32 {s_t0}, {s_t0}, {OBLK}
    s_lshl_b32 {s_our}, {s_j}, 8
    s_add_u32 {s_our}, {s_our}, {s_t0}
    s_add_u32 {s_our}, {s_our}, {WS_O + 32 * KB + 128 * h:#x}
    s_mov_b64 exec, 0xff""", I(f"buffer_store_dwordx4 {vr(T, 4)}, v{L16}, {sWS}, {s_our} offen sc1"),
                "s_mov_b64 exec, -1"]

    START = [f"x{c}" for c in range(9)] + ["r1_0"]

    def stream(self, h, where):
        o = self.o
        ops = []

        def tr(buf, i, areg, off, win=False):
            if win:
                areg += 2 * (off >> 16)
            return ds(f"ds_read_b64_tr_b16 {vr(buf + 2 * i, 2)}, v{areg}", off)

        ring, nring = [ABUF + 4 * i for i in range(4)], [0]

        def nb():
            nring[0] += 1
            return ring[(nring[0] - 1) % len(ring)]

        def new_ring(extra):
            base = [x for x in ring[nring[0] % len(ring):] + ring[:nring[0] % len(ring)] if x < ABUF + 16]
            ring[:] = extra[:o["nbuf"] - 4] + base
            nring[0] = 0

        for r in range(4):
            if r == 0:
                new_ring([HH, HH + 4])
            for ks in range(18):
                for tt2 in range(2):
                    buf, pc = nb(), ("w", r, ks)
                    op = dict(buf=buf, rd=[tr(buf, i, AW + tt2, where(pc) + 512 * i, True) for i in range(2)], pc=pc,
                              mf=[mf16(ACC + 16 * (r & 1) + 8 * tt2 + 4 * t, buf, X(ks, t)) for t in range(2)], rate=1)
                    if tt2 == 0 and r == 0 and ks % 2 == 0:
                        c = ks // 2
                        op["step"] = f"x{c}"
                        op["pre"] = [ds(f"ds_read_b128 {vr(X(ks + k, t), 4)}, v{HOWN + 2 * t + k}", XREG[c % 5],
                                        tag=("xr", c)) for k in range(2) for t in range(2)]
                        if c < 2:
                            op["pre"] = [self.bias(h, c, a, t) for a in range(2) for t in range(2)] + op["pre"]
                    if tt2 == 0 and r > 0 and ks % (18 // o["rsteps"]) == 0:
                        op["step"] = f"r{r}_{ks * o['rsteps'] // 18}"
                    ops.append(op)
        h0 = len(ops)
        for ks in range(18):
            buf, pc = nb(), ("h", 0, ks // 2)
            op = dict(buf=buf, rd=[tr(buf, i, AWH, where(pc) + 2048 * (ks & 1) + 256 * i) for i in range(2)], pc=pc,
                      mf=[mf16(ACC + 4 * t, buf, X(ks, t)) for t in range(2)], rate=1)
            if ks in (0, 8):
                op["step"] = f"h{ks // 8}"
            ops.append(op)
        q0 = len(ops)
        for ks in range(18):
            if ks == 6:
                new_ring([X(3, 0), X(3, 1)])
            if ks == 12:
                new_ring([GBUF, GBUF + 4])
            c = "0" if ks == 0 else None
            for a in range(2):
                buf, pc = nb(), ("q", 0, ks)
                mf = [mf16(AQ2, buf, X(ks, 0), c)] if a else [mf16(ACC + 8 + 4 * t, buf, X(ks, t), c) for t in range(2)]
                op = dict(buf=buf, rd=[tr(buf, i, AQ + a, where(pc) + 512 * i) for i in range(2)], mf=mf, pc=pc,
                          rate=1 + a, after={6: q0 + 7, 12: q0 + 15}.get(ks, -1))
                if a == 0 and ks % 6 == 0:
                    op["step"] = f"q{ks // 6}"
                ops.append(op)
        for R in range(9):
            for q in range(9):
                for tt2 in range(2):
                    buf, pc = nb(), ("g", R, q)
                    rd = [tr(buf, i, GADDR + tt2, where(pc) + 2048 * (i ^ (h if q == 8 else 0)), True) for i in range(2)]
                    hb = [HH + 4 * t if q == 8 else HOWN + 8 * (q >> 1) + 4 * t if (q & 1) == h else X(q >> 1, t)
                          for t in range(2)]
                    op = dict(buf=buf, rd=rd, pc=pc, rate=1,
                              mf=[mf16(GACC + 16 * (R & 1) + 8 * tt2 + 4 * t, buf, hb[t], "0" if q == 0 else None)
                                  for t in range(2)])
                    if q == 0 and tt2 == 0:
                        op["step"] = f"g{R}"
                    if R == 0 and q == o["gx"] and tt2 == 0:
                        op["step"] = "gx"
                    ops.append(op)

        G = [dict(m=[], mem=[])]
        B, use0, lastm, reads = {}, {}, {}, {}
        last_user, prev = {}, []
        for k, op in enumerate(ops):
            prev.append(last_user.get(op["buf"], -1))
            last_user[op["buf"]] = k
        ro, rr, cur = 0, 0, None

        def issue_one():
            nonlocal ro, rr, cur
            op = ops[ro]
            if rr == 0 and "step" in op:
                cur = op["step"]
                B[cur] = len(G) - 1
                G[-1]["mem"].append(("boundary", cur))
            if rr == 0:
                G[-1]["mem"] += op.get("pre", [])
                use0.setdefault(op["pc"], cur)
                assert use0[op["pc"]] == cur
            x = op["rd"][rr]
            G[-1]["mem"].append(x)
            reads.setdefault(cur, []).append(x[0] if isinstance(x, list) else x)
            rr += 1
            if rr == len(op["rd"]):
                ro, rr = ro + 1, 0

        while ro < o["nbuf"] - 1:
            issue_one()
        for k, op in enumerate(ops):
            while ro <= k:
                issue_one()
            for mi, m in enumerate(op["mf"]):
                G.append(dict(m=[m], mem=[]))
                lastm[op["pc"]] = len(G) - 1
                done = k if mi == len(op["mf"]) - 1 else k - 1
                cnt = 0
                while ro < len(ops) and prev[ro] <= k - 1 and ops[ro].get("after", -1) <= done \
                        and cnt < op["rate"] + (op["rate"] == 1 and ro + 1 < len(ops) and prev[ro + 1] <= k - 1):
                    issue_one()
                    cnt += 1
        return G, B, use0, lastm, reads

    def dma_code(self, q, mbase=s_m, tag2=None):
        k, a, b = q["pc"]
        m0 = f"s_add_u32 m0, {mbase}, {q['at']}"
        tag = q["pc"] if tag2 is None else ("both", q["pc"], tag2)
        nxt = [f"s_add_u32 {s_rc}, {s_rc}, 1", f"s_cmp_eq_u32 {s_rc}, 9"]
        wrap = [f"s_cselect_b32 {s_rc}, 0, {s_rc}"]
        if k == "q":
            code = [m0, I(f"global_load_lds_dwordx4 {vr(DQ, 2)}, off", tag=tag)]
            if b < 16:
                code = [m0] + nxt + code[1:] + [f"s_cselect_b32 {s_d0}, -8, 1"] + wrap + [
                    f"v_mad_i64_i32 {vr(DQ, 2)}, {s_slow}, v{SQ}, {s_d0}, {vr(DQ, 2)}"]
            return code

        def ld(v, srd, so, aux=""):
            aux = aux or " " + self.o["waux"].replace("+", " ")
            return I(f"buffer_load_dwordx4 v{v}, {srd}, {so} offen{aux} lds", tag=tag)

        if k == "x":
            if b < 2:
                return [m0, f"s_lshl_b32 {s_d1}, {s_rc}, 7", f"s_add_u32 {s_d1}, {s_d1}, {s_xo}", ld(HOWN + 4, sX, s_d1)]
            return [m0, f"s_add_u32 {s_d1}, {s_d1}, {64 * 1152}", ld(HOWN + 4, sX, s_d1)]
        if k == "w" and a == 0:
            tw = s_tw[b // 2]
            return [m0, f"s_mul_i32 {tw}, {s_rc}, {64 * 9216}", f"s_add_u32 {tw}, {tw}, {s_w1o}", ld(DW1, sW1, tw),
                    nxt, wrap]
        v, srd, base, off, aux = {
            "w": (DW1, sW1, s_tw[b // 2 % 9], 128 * a, ""),
            "h": (DWH, sW1, s_tw[b % 9], s_who, ""),
            "g": (DW2, sW2, s_w2a if b < 8 else s_w2b, (32 * b * 1152 if b < 8 else 0) + 128 * a, ""),
            "kv": (L16, sWS, s_m, WS_KV + SL * b, " sc1"),
        }[k]
        return [m0, f"s_add_u32 {s_d0}, {base}, {off}", ld(v, srd, s_d0, aux)]

    def plan(self):
        o = self.o
        G, B, use0, lastm, _ = self.stream(1, lambda pc: 0)
        steps = sorted(B, key=B.get) + ["a0", "a1", "end"]
        idx = {s: i for i, s in enumerate(steps)}
        self.steps, self.idx = steps, idx

        def last_abs(pc):
            return max(idx[s] for s in B if B[s] - (0 if s in self.START else o["hoist"]) < lastm[pc])

        def slots(lo, n):
            return range(lo // SL, (lo + n + SL - 1) // SL)

        res = [(slots(XREG[i], 4 * SL), -1, idx[f"x{i + 5 if i < 4 else i}"]) for i in range(5)]
        res += [(slots(EX1 + 4 * SL * r, 4 * SL), idx[f"r{r + 1}_0"], idx["q1"]) for r in range(3)]
        res += [(slots(EX2, 6 * SL), idx["q2"], idx["gx"]), (slots(QSCR, 3 * SL), idx["g0"], idx["g2"])]
        for i, (sa, a0, a1) in enumerate(res):
            for sb, b0, b1 in res[:i]:
                assert not set(sa) & set(sb) or a1 < b0 or b1 < a0
        P = []
        for c in range(9):
            P += [dict(pc=("x", c, q), h=q & 1, at=XREG[c % 5] + SL * q, u0=c, e=c - 4 if c >= 5 else -1) for q in range(4)]
            P += [dict(pc=("w", 0, 2 * c + k), h=k) for k in range(2)]
        P += [dict(pc=("w", r, ks), h=ks & 1) for r in range(1, 4) for ks in range(18)]
        P += [dict(pc=("h", 0, u), h=(u + 1) & 1) for u in range(9)]
        P += [dict(pc=("q", 0, ks), h=ks & 1) for ks in range(18)]
        P += [dict(pc=("g", R, q), h=(9 * R + q + 1) & 1) for R in range(9) for q in range(9)]
        cap = {"q2": 6, "g0": 4, "gx": 4}
        free = [-1] * 38
        cur, ptr = -1, 0
        for k, q in enumerate(P):
            fixed = "at" in q
            if not fixed:
                q["u0"], q["u1"] = idx[use0[q["pc"]]], last_abs(q["pc"])
            top = 36 if q["pc"][0] == "g" else 26
            while True:
                ahead = sum(1 for z in P[:k] if z["u0"] > cur)
                ok = ahead < (o["burst"] if cur < idx["x5"] else o["lead"]) and cur >= q.get("e", -1)
                if cur >= 0:
                    ok = ok and sum(1 for z in P[:k] if z["issue"] == cur) < cap.get(steps[cur], 10)
                if ok and not fixed:
                    cand = [x % top for x in range(ptr, ptr + top) if free[x % top] <= cur and not any(
                        x % top in sl and not (b < cur or q["u1"] < a) for sl, a, b in res)]
                    ok = bool(cand)
                if ok:
                    break
                cur += 1
            if not fixed:
                q["at"], free[cand[0]], ptr = cand[0] * SL, q["u1"] + 1, cand[0] + 1
            q["issue"] = cur
            assert cur < q["u0"], (q, steps[cur])
        nb4 = idx[o["kvpoll"]] + 1
        av = [max([free[x], nb4] + [b + 1 for sl, a, b in res if x in sl]) for x in range(36)]
        self.kv_order = sorted(range(16), key=lambda g: max(av[x] for x in slots(9216 * g, 9216)))
        grp = {x: min(n for n, g in enumerate(self.kv_order) if x in slots(9216 * g, 9216)) for x in range(36)}
        todo = sorted(range(36), key=lambda x: grp[x])
        while todo:
            room = o["kvcap"] - sum(1 for z in P if z["issue"] == cur) if cur < idx["a0"] else 99
            for x in [x for x in todo if av[x] <= cur][:max(room, 0)]:
                todo.remove(x)
                P.append(dict(pc=("kv", 0, x), h=len(todo) & 1, at=x * SL, issue=cur, grp=grp[x]))
            cur += 1
        late = [q["grp"] for q in P if "grp" in q and q["issue"] >= idx["g8"]]
        n0 = max(min(late), o["kv0"])
        for q in P:
            if "grp" in q:
                q["u0"] = idx["a0"] if q["grp"] < n0 else idx["a1"]
                assert q["issue"] < q["u0"]
        self.b1tile = 4 * n0 - 2
        self.P = P
        self.planinfo = " ".join(f"{q['pc'][0]}{q['pc'][1]}.{q['pc'][2]}@{q['at'] // SL}:"
                                 f"{steps[q['issue']] if q['issue'] >= 0 else 'pre'}" for q in P)

    def p_store(self, u):
        R, tt2 = divmod(u, 2)
        d = GP + 8 * (R % 6) + 4 * tt2
        return [f"s_add_u32 {s_d1}, {s_pst}, {(4 * R + tt2) * 16384}",
                I(f"buffer_store_dwordx4 {vr(d, 4)}, v{L16}, {sWS}, {s_d1} offen {self.o['pst'].replace('+', ' ')}",
                  tag=("p", u))]

    def p_pack(self, R, h):
        return [f"v_cvt_pk_bf16_f32 v{GP + 8 * (R % 6) + (i ^ (2 * h))}, v{GACC + 16 * (R & 1) + 2 * i}, "
                f"v{GACC + 16 * (R & 1) + 2 * i + 1}" for i in range(8)]

    def ffn(self, h):
        o = self.o
        steps, idx = self.steps, self.idx
        at = {q["pc"]: q["at"] for q in self.P}
        G, B, use0, lastm, reads = self.stream(h, at.get)
        NG = len(G)
        blk = {s: [] for s in steps}
        head = {s: [] for s in steps}
        post = {s: [] for s in steps}
        mb0 = {s: [] for s in steps}
        mb1 = {s: [] for s in steps}
        need = {s: [q["pc"] for q in self.P if q["h"] == h and steps[q["u0"]] == s] for s in steps}

        def lines(items):
            return [x for e in items for x in (e.strip().split("\n") if isinstance(e, str) else [e])]

        def pos(s):
            return steps[idx[s] - h]

        def split(items, names, wts):
            items, k, acc = lines(items), 0, 0.0
            cost = [2 - (o["mlds"] == 3) if isinstance(x, list) else 2 if "exp" in x or "rcp" in x else 1 for x in items]
            for nm, w in zip(names, wts):
                acc += w / sum(wts)
                e = min(range(k, len(items) + 1, 2), key=lambda e: abs(sum(cost[:e]) - acc * sum(cost)))
                for x in items[k:e]:
                    if isinstance(x, list) and o["mlds"]:
                        x = list(flat(x))
                        nxt = steps[idx[nm] + 1]
                        mb0[nxt] += [y for y in x[1:] if y.W and o["mlds"] & 1]
                        mb1[nxt] += [y for y in x[1:] if not y.W and o["mlds"] & 2]
                        x = [x[0]] + [y for y in x[1:] if not o["mlds"] & (1 if y.W else 2)]
                    blk[nm].append(x)
                k = e
            assert k == len(items)

        def exw(text, off, tag):
            return ds(text, off + SL * h, tag=tag)

        for r in range(3):
            items = []
            for t in range(2):
                for tt2 in range(2):
                    items += self.gelu_quad(ACC + 16 * (r & 1) + 8 * tt2 + 4 * t, HOWN + 8 * r + 4 * t + 2 * tt2)
                    if r < 2 or tt2 == 0:
                        items[-1] = [items[-1], self.bias(h, r + 2, tt2, t)]
                    if o["ex64"]:
                        items[-1] = [items[-1], exw(f"ds_write_b64 v{AEXW}, {vr(HOWN + 8 * r + 4 * t + 2 * tt2, 2)}",
                                                    EX1 + U * (2 * r + t) + 8 * tt2, "ex1")]
                if not o["ex64"]:
                    items[-1] = [items[-1], exw(f"ds_write_b128 v{AEXW}, {vr(HOWN + 8 * r + 4 * t, 4)}",
                                                EX1 + U * (2 * r + t), "ex1")]
            split(items, [f"r{r + 1}_{i}" for i in range(o["rsteps"])], [1] * o["rsteps"])
        need["h1"].append("ex1")
        items = []
        for t in range(2):
            for tt2 in range(2):
                items += self.gelu_quad(ACC + 16 + 8 * tt2 + 4 * t, HOWN + 24 + 4 * t + 2 * tt2)
        for t in range(2):
            items += self.gelu_quad(ACC + 4 * t, HH + 4 * t)
        split(items, ["h0", "h1", "q0", "q1", "q2"], [float(x) for x in o["hqw"].split("+")])
        assert sum(isinstance(x, str) and "cvt" in x for s in ("h0", "h1") for x in blk[s]) >= 2
        mb1["q1"] += [ds(f"ds_read_b128 {vr(X(r, t), 4)}, v{AEXW}",
                         EX1 + U * (2 * r + 1 - t) + SL * (1 - h), tag="ex1r") for r in range(3) for t in range(2)]
        need["q2"].append("ex1r")
        a, bb = f"v{GADDR + 6}", f"v{GADDR + 7}"
        blk["q1"] += lines([f"""
    v_bfe_u32 {a}, v{LANE}, 3, 2
    v_xor_b32 {a}, {2 * h}, {a}
    v_lshlrev_b32 {a}, 5, {a}
    v_and_b32 {bb}, 3, v{LANE}
    v_lshl_add_u32 {a}, {bb}, 3, {a}
    v_lshrrev_b32 {bb}, 2, v{LANE}
    v_lshl_add_u32 v{GADDR}, {bb}, 7, {a}
    v_xor_b32 v{GADDR + 1}, 32, v{GADDR}"""] + [f"v_add_u32 v{GADDR + 2 + i}, 0x10000, v{GADDR + i}" for i in range(4)]
                           + [[setbase(f"v{GADDR + i}", 65536 * (i >> 1)) for i in range(6)]])
        assert lastm[("q", 0, 2)] <= B["q1"] and lastm[("q", 0, 5)] <= B["q2"] and lastm[("q", 0, 11)] <= B["g0"]
        assert lastm[("q", 0, 17)] <= B["gx"]
        assert not any(isinstance(x, str) and f"bf16_f32 v{HH}," in x for s in ("h0", "h1", "q0") for x in blk[s])
        blk["q2"] += [exw(f"ds_write_b128 v{AEXW}, {vr(HOWN + 24 + 4 * t, 4)}", EX2 + U * t, "ex2") for t in range(2)]
        blk["q2"] += [exw(f"ds_write_b64 v{AEXW}, {vr(HH + 4 * t, 2)}", EX2H + 8 * t, "ex2") for t in range(2)]
        need[("g0", "gx")[h]].append("ex2")
        ex2r = [ds(f"ds_read_b128 {vr(X(3, t), 4)}, v{AEXW}", EX2 + U * (1 - t) + SL * (1 - h), tag="ex2r")
                for t in range(2)]
        ex2r += [ds(f"ds_read_b64 {vr(HH + 4 * t + 2, 2)}, v{AEXW}", EX2H + 8 * (1 - t) + SL * (1 - h), tag="ex2r")
                 for t in range(2)]
        (blk["q2"] if h else post["gx"]).extend(ex2r)
        need["g1"].append("ex2r")
        assert o["gx"] <= 6
        q1, q2, q2r, q3 = self.q_epilogue(h)
        head["g0"] += q1
        blk["gx"] += lines(q2)
        need[("g1", "g2")[h]].append("qwr")
        blk[pos("g2")] += lines(q2r)
        need["g3"].append("qrd")
        blk["g3"] += lines(q3)
        blk["g1" if h == 0 else "g2"].append(self.poison(h))
        blk["g1"] += lines([self.wo_flag_addr()])
        blk["g2"] += lines(self.att_consts())
        head["r1_0"].append(self.gate(h))
        for c in range(10):
            gm = [mf16(GTA, GTB + 4 * k, X(2 * c - 2 + k, 0), "0" if 2 * c - 2 + k == 0 else None) for k in range(2)]
            gr = [f"ds_read_b128 {vr(GTB + 4 * k, 4)}, v{A16} offset:{L_GATE - MISC + 128 * c + 64 * k}" for k in range(2)]
            post[steps[c]] += [f"s_lshr_b32 {s_t0}, {s_j}, 2", self.cond(
                f"s_cmp_eq_u32 {s_t0}, {s_p}", [gm if c else [], gr if c < 9 else []])]
        gst = [range(o["nst"] * R // 8, o["nst"] * (R + 1) // 8) for R in range(8)]
        for R in range(7):
            assert lastm[("g", R, 8)] <= B[f"g{R + 2}"]
            blk[f"g{R + 1}"] += self.p_pack(R, h) + [self.p_store(u) for u in gst[R]]
        if h == 0:
            w1, w2, w3 = self.wo_job()
            post["x7"].append(w1)
            need["r1_1"].append("wodma")
            mb0["r1_1"] += w2
            blk["r1_1"].append(w3)
            blk["g5"].append([f"s_add_u32 m0, {s_m}, {WOSCR}", f"s_min_u32 {s_d0}, {s_m}, 1024",
                              I(f"buffer_load_dwordx4 v{L16}, {sB2}, {s_d0} offen lds", tag="b2")])
            need["a0"].append("b2")
            first = [f"s_or_b32 {s_t0}, {s_tt}, {s_j}", f"s_or_b32 {s_t0}, {s_t0}, {s_w}", f"s_mov_b32 {s_t1}, {WS_E:#x}"]
            c = f"s_cmp_eq_u32 {s_t0}, 0"
            post["x6"] += [first, self.cond(c, [I(f"buffer_load_dword v{EPO}, v{SQ + 1}, {sWS}, {s_t1} offen sc1")])]
            head["r2_0"] += [first, self.cond(c, [f"""
    v_readfirstlane_b32 {s_non}, v{EPO}
    s_mul_i32 {s_non}, {s_non}, 0x9e3779b1
    s_add_u32 {s_non}, {s_non}, 0x7f4a7c15
    v_mov_b32 v{EPO}, {s_non}""", self.lane0(I(f"buffer_store_dword v{EPO}, v{L16}, {sWS}, {s_t1} offen sc1")),
                f"s_or_b32 {s_non}, {s_non}, 1"])]
            post[o["kvsig"]] += [f"s_lshr_b32 {s_t0}, {s_j}, 2", f"s_or_b32 {s_t0}, {s_t0}, {s_w}", self.cond(c, [
                f"s_lshl2_add_u32 {s_t0}, {s_tt}, {s_j}", f"s_lshl_b32 {s_t0}, {s_t0}, 2", f"v_mov_b32 v{TMP}, {s_non}",
                self.lane0(I(f"buffer_store_dword v{TMP}, v{L16}, {sDBG}, {s_t0} offen sc1"))])]
        need[o["kvsig"]].append("kvst")
        assert idx[o["kvsig"]] <= idx["g2"]
        if o["touch"] & 8:
            for k in range(4):
                head[steps[idx["r1_0"] + (2 * k + 1 - h) * o["rsteps"] // 3]].append(
                    self.cond(f"s_cmp_eq_u32 {s_p}, {k}", self.touch(TW2, sW2, 0)))
        if o["otouch"].isdigit():
            blk["g5"] += lines([f"""
    s_lshr_b32 {s_t0}, {s_j}, 2
    s_lshl2_add_u32 {s_t0}, {s_tt}, {s_t0}
    s_lshl3_add_u32 {s_t0}, {s_t0}, {s_w}
    s_mul_i32 {s_t0}, {s_t0}, {4 * 1152}
    s_mul_i32 {s_t2}, {s_cq}, 288
    s_add_u32 {s_t0}, {s_t0}, {s_t2}
    v_lshrrev_b32 v55, 2, v{LANE}
    v_mul_u32_u24 v55, 1152, v55
    v_and_b32 v{T}, 3, v{LANE}
    v_mul_u32_u24 v{T}, 92, v{T}
    v_add3_u32 v55, v55, v{T}, {s_t0}"""])
        elif o["otouch"]:
            head[o["otouch"]] += ["s_mov_b64 exec, 0xffff", self.touch(TOUT, sOUT, 0), "s_mov_b64 exec, -1"]
        k = idx[o["kvpoll"]]
        load = [f"buffer_load_dword v{T + 4}, v{T + 5}, {sDBG}, 0 offen sc1"]
        head[pos(steps[k])] += [f"v_lshlrev_b32 v{T + 5}, 2, v{LANE}", load]
        head[pos(steps[k + 1])] += [self.spin(load, [f"v_cmp_eq_u32 vcc, 0, v{T + 4}"]),
                                    f"v_readfirstlane_b32 {s_tag}, v{T + 4}", f"s_mov_b32 {s_d1}, {WS_KN}",
                                    I(f"buffer_load_dwordx4 {vr(T, 4)}, v{L16}, {sWS}, {s_d1} offen sc1"),
                                    f"s_andn2_b32 {s_tag}, {s_tag}, 15"]
        blk["g4"] += [f"v_mov_b32 v{OREG + i}, 0" for i in range(16) if OREG + i != DW2]
        blk[pos(steps[k + 2])] += lines(self.shift_setup())
        blk["g7"].append(f"v_mov_b32 v{DW2}, 0")
        su = lines(self.bg_setup())
        for i, x in enumerate(blk["g4"]):
            blk["g4"][i] = [x, su[i:i + 1]]
        blk["g4"] += su[len(blk["g4"]):]
        assert all(q["issue"] <= idx["g7"] - 1 + h for q in self.P if q["pc"][0] == "g" and q["h"] == h)
        assert idx["g4"] <= idx[pos(steps[k])] and idx["g4"] < idx[pos(steps[k + 1])] < idx["g8"]

        dma = {s: [] for s in steps}
        for si in range(-1, idx["a0"] + 1):
            mine = [self.dma_code(q) for q in self.P if q["issue"] == si and q["h"] == h]
            s = steps[si] if si >= 0 else None
            if s is None or s == "a0":
                pass
            elif s in self.START[:-1] or (s == "r1_0" and h == 1):
                lo, hi = B[s] + 1, B[steps[si + 1]] - (o["hoist"] if s == "r1_0" else 0)
                for i, c in enumerate(mine):
                    if hi > lo:
                        G[lo + (i * (hi - lo)) // len(mine)]["mem"].append(c)
                    else:
                        m = G[B[s]]["mem"]
                        m.insert(m.index(("boundary", steps[si + 1])) if hi < lo else len(m), c)
            else:
                n = o["mdma"] if idx[s] < idx["q0"] else 0
                if h:
                    n = len(mine) - min(n, len(mine))
                    dma[pos(s)] = mine[:n]
                    mb1[s] = mine[n:] + mb1[s]
                else:
                    mb1[s] = mine[:n] + mb1[s]
                    dma[s] = mine[n:]
        for s in steps[:-4]:
            for i, x in enumerate(mb0[s]):
                G[B[s] + 1 + i]["mem"].append(x)
            lo, hi = B[s] + 2 + len(mb0[s]), B[steps[idx[s] + 1]] - o["hoist"] - 2
            for i, x in enumerate(mb1[s]):
                G[lo + (i * (hi - lo)) // len(mb1[s])]["mem"].append(x)

        def gblock(s, nxt):
            items, d = list(blk[s]), dma[s]
            z = s in o["zoom"].split("+")
            out = (self.ts(f"z{s}.G") if z else []) + list(head[s])
            zz = o["zoom"] == "z" + s
            out = (self.ts("zG") if zz else []) + out
            for i, c in enumerate(d):
                out += self.ts(f"z{i}a") if zz else []
                out.append(c)
                out += self.ts(f"z{i}b") if zz else []
                out += items[(i * len(items)) // (2 * len(d)) * 1:((i + 1) * len(items)) // (2 * len(d))]
            out += self.ts(f"z{s}.D") if z else []
            out += items[(len(items) // 2 if d else 0):]
            out += self.ts(f"z{s}.E") if z or zz else []
            for reg in sorted({x.addr for x in reads.get(nxt, [])}):
                offs = [x.off for x in reads[nxt] if x.addr == reg]
                lo = min(offs) if max(offs) - min(offs) < 65536 else offs[0]
                out.append(rebase(reg, lo & ~4095, max(x for x in offs if x - (lo & ~4095) < 65536)))
            return out

        stamps = {"x0": "x0", "r1_0": "r1", "r2_0": "r2", "h0": "h", "g0": "g0", "g4": "g4"}
        if h:
            for s in steps[:-3]:
                if s not in self.START:
                    G[B[s] - o["hoist"]]["mem"].insert(0, barrier(need=need[s], drain_lds=False))
                    G[B[s] - o["hoist"] - 1]["mem"].append("s_setprio 1")
                    post[s].append("s_setprio 0")
            G[NG - 2]["mem"] += ["s_setprio 1", barrier(need=need["a0"])]
            for i, x in enumerate(self.p_pack(7, h)):
                G[NG - 10 + i]["mem"].insert(0, x)
        body = []
        for g in G:
            body.append(g["m"])
            for x in g["mem"]:
                if isinstance(x, tuple):
                    s = x[1]
                    if s not in self.START:
                        body.append(gblock(steps[idx[s] - 1], s))
                    if s in self.START:
                        body.append(barrier(need=need[s] + ([("xr", idx[s] - 1)] if idx[s] else []), drain_lds=s == "x0"))
                    elif h == 0:
                        last = reads[steps[idx[s] - 1]][-1]
                        last.tag = ("rd", s)
                        body.append(barrier(need=need[s] + [last.tag], drain_lds=False))
                    if o["zoom"] == "pro" and s in self.START:
                        body += self.ts("z" + s)
                    if steps[idx[s] - 1] in o["zoom"].split("+"):
                        body += self.ts(f"z{s}.M")
                    body += [self.ts(stamps[s]) if s in stamps else [], post[s]]
                else:
                    body.append(x)
        if h:
            body += [[self.p_store(u) for u in gst[7]], self.p_pack(8, h), "s_setprio 0"]
        else:
            body += [gblock("g8", None), self.p_pack(7, h), [self.p_store(u) for u in gst[7]], self.p_pack(8, h), barrier(need=need["a0"])]
        return body

    def kv_off(self, t):
        return 9216 * self.kv_order[t // 4], t & 3

    def k_reads(self, t):
        base, q = self.kv_off(t)
        o = [ds(f"ds_read_b128 {vr(KM, 4)}, v{AK}", base + 1024 * q)]
        if q % 2 == 0:
            o.append(ds(f"ds_read_b32 v{KR}, v{AR}", base + 8704 + 128 * q))
        return o

    def v_reads(self, t):
        base, q = self.kv_off(t)
        a = ds(f"ds_read_b128 {vr(VA, 4)}, v{AV}", base + 4096 + 1152 * q)
        a.span = 576
        return [f"s_mov_b64 exec, {s_msk}", a, ds(f"ds_read_b128 {vr(VB, 4)}, v{AV}", base + 4096 + 1152 * q + 576),
                "s_mov_b64 exec, -1"]

    def qk(self, t):
        s = SREG + 16 * (t & 1)
        return (I(f"v_mfma_f32_32x32x8_bf16 {vr(s, 16)}, {vr(KR, 2)}, {vr(QRB if t & 1 else QRA, 2)}, 0",
                  needregs={("v", KM)}),
                I(f"v_mfma_f32_32x32x16_bf16 {vr(s, 16)}, {vr(KM, 4)}, {vr(QM, 4)}, {vr(s, 16)}"))

    def pv(self, t):
        s = SREG + 16 * (t & 1)
        return (I(f"v_smfmac_f32_32x32x32_bf16 {vr(OREG, 16)}, {vr(VA, 4)}, {vr(s, 8)}, v{IDX}", needregs={("v", VB)}),
                I(f"v_smfmac_f32_32x32x32_bf16 {vr(OREG, 16)}, {vr(VB, 4)}, {vr(s + 8, 8)}, v{IDX}"))

    def bg_setup(self):
        return f"""
    s_mul_i32 {s_t2}, {s_cq}, 9
    s_lshr_b32 {s_t0}, {s_j}, 2
    s_lshl_b32 {s_t1}, {s_tt}, 2
    s_add_u32 {s_t0}, {s_t0}, {s_t1}
    s_lshl_b32 {s_fc}, {s_t0}, 7
    s_add_u32 {s_fc}, {s_fc}, {WS_F:#x}
    s_mul_i32 {s_t0}, {s_t0}, 36
    s_add_u32 {s_t0}, {s_t0}, {s_t2}
    s_lshl_b32 {s_t0}, {s_t0}, 14
    s_add_u32 {s_t0}, {s_t0}, {WS_P:#x}
    s_lshl_b32 {s_t1}, {s_w}, 11
    s_add_u32 {s_w1o}, {s_t0}, {s_t1}
    s_add_u32 {s_w1o}, {s_w1o}, {8 * 16384}
    s_lshl_b32 {s_xo}, {s_w}, 14
    s_add_u32 {s_xo}, {s_xo}, {s_t0}
    s_mul_i32 {s_t0}, {s_t2}, {18 * KB}
    s_add_u32 {s_t0}, {s_t0}, {WS_WO:#x}
    s_mul_i32 {s_who}, {s_w}, {18 * KB}
    s_add_u32 {s_who}, {s_who}, {s_t0}
    s_add_u32 {s_t0}, {s_t0}, {8 * 18 * KB}
    s_add_u32 {s_w9}, {s_t0}, {s_t1}
    s_lshl_b32 {s_t1}, {s_w}, 8
    s_add_u32 {s_w9r}, {s_t0}, {s_t1}
    s_add_u32 {s_w9r}, {s_w9r}, {16 * KB}
    s_add_u32 {s_wh2}, {s_who}, {16 * KB}""", [f"""
    s_cmp_lt_u32 {s_cq}, 2
    s_cselect_b32 {s_t0}, {s_xo}, {s_who}
    s_cselect_b32 {s_who}, {s_who}, {s_xo}
    s_cselect_b32 {s_t1}, {s_w1o}, {s_wh2}
    s_cselect_b32 {s_wh2}, {s_wh2}, {s_w1o}
    s_mov_b32 {s_xo}, {s_t0}
    s_mov_b32 {s_w1o}, {s_t1}"""]

    def a0_dma(self):
        at = [q["at"] for q in self.P if self.steps[q["issue"]] == "a0" and q["issue"] >= 0]
        o = []
        for i in range(0, len(at), 2):
            x, y = at[i], at[min(i + 1, len(at) - 1)]
            o.append([f"s_mul_i32 {s_d0}, {s_hf}, {(y - x) & 0xFFFFFFFF:#x}", f"s_add_u32 {s_d0}, {s_d0}, {s_m}",
                      f"s_add_u32 m0, {s_d0}, {x}", f"s_add_u32 {s_d0}, {s_d0}, {WS_KV + x}",
                      I(f"buffer_load_dwordx4 v{L16}, {sWS}, {s_d0} offen sc1 lds", tag="kvl")])
        return o

    def bg_loads(self):
        def ld(reg, sbase, off):
            pre, so = [], sbase
            if off >= 4096:
                pre, so = [f"s_add_u32 {s_d0}, {sbase}, {off & ~4095}"], s_d0
            oo = f" offset:{off % 4096}" if off % 4096 else ""
            return reg, pre + [I(f"buffer_load_dwordx4 {vr(reg, 4)}, v{L16}, {sWS}, {so} offen{oo} sc1")]

        a1, a2 = ([ld(r + 4 * k, b0, KB * k) for k in range(16)] + [ld(r + 64 + 4 * k, b1, KB * k) for k in range(2)]
                  for r, b0, b1 in ((PREG, s_xo, s_w1o), (WREG, s_who, s_wh2)))
        wo = [ld(WREG + 72 + 4 * k, s_w9, KB * k) for k in range(2)]
        wo.append((WREG + 80, [f"v_and_b32 v{WREG + 82}, 0xf0, v{L16}", f"v_lshrrev_b32 v{WREG + 83}, 5, v{LANE}",
                               f"v_lshl_add_u32 v{WREG + 82}, v{WREG + 83}, 3, v{WREG + 82}",
                               I(f"buffer_load_dwordx2 {vr(WREG + 80, 2)}, v{WREG + 82}, {sWS}, {s_w9r} offen sc1")]))
        return a1, a2, wo

    def p_poll(self, val, wo=False, reg=ATM + 1):
        load = [f"buffer_load_dword v{reg}, v{AFW if wo else AFP}, {sWS}, {0 if wo else s_fc} offen sc1"]
        if isinstance(val, tuple):
            pre = [f"s_cmp_lt_u32 {s_cq}, 2", f"s_cselect_b32 {s_t1}, {val[0]}, {val[1]}", f"s_add_u32 {s_t1}, {s_tag}, {s_t1}"]
        else:
            pre = [f"s_add_u32 {s_t1}, {s_tag}, {val}"]
        return load, [pre, self.spin(load, [f"v_subrev_u32 v{reg}, {s_t1}, v{reg}", f"v_cmp_lt_u32 vcc, 8, v{reg}"])]

    def p_flag(self, val, need, reg=ATM):
        return [f"s_add_u32 {s_t1}, {s_tag}, {val}", f"v_mov_b32 v{reg}, {s_t1}", wait(need=need),
                self.lane0(I(f"buffer_store_dword v{reg}, v{L16}, {sWS}, {s_fl} offen sc1"))]

    def attention(self):
        o = self.o
        ex = [([], []) for _ in range(64)]
        used = [0] * 64

        def put(t, code, slot=1, force=False):
            while not force and (ex[t][slot] or (used[t] and t >= o["dbl"])):
                t += 1
            used[t] += 1
            ex[t][slot].append(code)
            return t

        st = {u: put(0, self.p_store(u)) for u in range(o["nst"], 10)}
        for x in self.a0_dma():
            put(0, x)
        t5 = put(st.get(9, 0) + o["fdelay"], self.p_flag(5, [("p", 9)]))
        u0 = max(o["nst"], 10)
        (pa, pb), (pc, pd) = self.p_poll((5, 1)), self.p_poll(1, True, ATM)
        tx = put(t5 + o["cdelay"] - 1 - o["pdist"], pa)
        tx = put(tx, pc) + o["pdist"]
        ex[tx - 1][0].append(pb)
        ex[tx][0].append(pd)
        st.update({u: put(int(o["st0"] + (u - u0) * o["pace"]), self.p_store(u)) for u in range(u0, 18)})
        t9 = put(st[17] + o["fdelay"], self.p_flag(9, [("p", 17)]))
        assert t9 > tx
        pa, pb = self.p_poll((5, 9))
        ty = put(max(t9 + o["cdelay"] - 2, o["ywin"] - 2), pa) + 2
        ex[ty][0].append(pb)
        a1, a2, wo = self.bg_loads()
        l2 = [put(ty + i * (o["plast"] - ty) // 17, x[1], force=True) for i, x in enumerate(a2)]
        l1 = [put(tx + i * (ty - 1 - tx) // 18, x[1]) for i, x in enumerate(a1)]
        l3 = [put(max(tx, st[17] + 1), x[1]) for x in wo]
        if o["otouch"].isdigit():
            put(int(o["otouch"]), ["s_mov_b64 exec, 0xffff", self.touch(55, sOUT, 0), "s_mov_b64 exec, -1"], 0, True)
        if o["ctail"]:
            l = self.lab("pc")
            put(o["ctail"], [raw(f"    s_getpc_b64 s[62:63]\n{l}:"), f"""
    v_lshlrev_b32 v{ATM}, 7, v{LANE}
    v_min_u32 v{ATM}, L_end-L_att_done, v{ATM}
    v_add_u32 v{ATM}, L_att_done-{l}, v{ATM}
    s_mov_b32 m0, {L_DUMMY}""", self.cond(f"s_cmp_eq_u32 {s_w}, 3", [I(f"global_load_lds_dword v{ATM}, s[62:63]")])], 0, True)
        self.planinfo += f" | stores {st} | flags {t5} {t9} checks {tx} {ty} | loads {l1} {l2} {l3} | used {used}"
        p = [self.k_reads(0), self.qk(0), self.k_reads(1)]
        sch = o["asch"]
        for t in range(64):
            e = [f"v_exp_f32 v{SREG + 16 * (t & 1) + i}, v{SREG + 16 * (t & 1) + i}" for i in range(16)]
            if t == self.b1tile:
                p += [barrier(need=["kvl"], drain_lds=False),
                      self.ts("b1")]
            if o["zoom"] == "att" and t % 5 == 0:
                p += self.ts(f"z{t}")
            k = 0
            for c in sch:
                if c.isdigit():
                    p += e[k:k + int(c)]
                    k += int(c)
                elif c in "aB" and t > 0:
                    p.append(self.pv(t - 1)[c == "B"])
                elif c == "A":
                    p.append(self.pv(t)[0])
                elif c in "RM" and t < 63:
                    p.append(self.qk(t + 1)[c == "M"])
                elif c == "v":
                    p += self.v_reads(t)
                elif c == "k" and t < 62:
                    p += self.k_reads(t + 2)
                elif c in "ef":
                    p += ex[t][c == "f"]
                elif c in "LHX":
                    p.append(f"s_setprio {'LHX'.index(c)}")
            assert k == 16
        if "a" in sch:
            p += [self.pv(63)[0], "s_setprio 2"]
        p += [self.pv(63)[1]]
        return p

    def slow_path(self):
        S = SREG
        mx, ak, av, ar = f"v{ATM}", f"v{AK}", f"v{AV}", f"v{AR}"

        def qk(q):
            o = f"    ds_read_b128 {vr(KM, 4)}, {ak} offset:{1024 * q}\n"
            o += f"    ds_read_b32 v{KR}, {ar} offset:{8704 + 256 * (q >> 1)}\n"
            o += "    s_waitcnt lgkmcnt(0)\n"
            o += "    " + self.qk(q)[0].text.replace(vr(S + 16, 16), vr(S, 16)) + "\n"
            o += "    " + self.qk(0)[1].text + "\n    s_nop 15\n"
            return o

        adv = f"""    v_add_u32 {ak}, 9216, {ak}
    v_add_u32 {av}, 9216, {av}
    v_add_u32 {ar}, 9216, {ar}
    s_sub_u32 {s_t0}, {s_t0}, 1
    s_cmp_lg_u32 {s_t0}, 0
"""
        s = f"""    v_mov_b32 v{QRA + 1}, 0
    v_mov_b32 v{QRB + 1}, 0
    v_mov_b32 {mx}, 0xff800000
    s_mov_b32 {s_t0}, 16
L_slow1:
"""
        for q in range(4):
            s += qk(q)
            for i in range(8):
                s += f"    v_max3_f32 {mx}, {mx}, v{S + 2 * i}, v{S + 2 * i + 1}\n"
        s += adv + f"""    s_cbranch_scc1 L_slow1
    v_mov_b32 v{ATM + 1}, {mx}
    s_nop 1
    v_permlane32_swap_b32 v{ATM + 1}, {mx}
    s_nop 1
    v_max_f32 {mx}, {mx}, v{ATM + 1}
    v_subrev_u32 {ak}, {16 * 9216}, {ak}
    v_subrev_u32 {av}, {16 * 9216}, {av}
    v_subrev_u32 {ar}, {16 * 9216}, {ar}
    s_mov_b32 {s_t0}, 16
L_slow2:
"""
        for q in range(4):
            s += f"""    s_mov_b64 exec, {s_msk}
    ds_read_b128 {vr(VA, 4)}, {av} offset:{4096 + 1152 * q}
    ds_read_b128 {vr(VB, 4)}, {av} offset:{4096 + 1152 * q + 576}
    s_mov_b64 exec, -1
"""
            s += qk(q)
            for i in range(16):
                s += f"    v_sub_f32 v{S + i}, v{S + i}, {mx}\n"
            for i in range(16):
                s += f"    v_exp_f32 v{S + i}, v{S + i}\n"
            s += "    s_nop 1\n    " + self.pv(0)[0].text + "\n    " + self.pv(0)[1].text + "\n    s_nop 3\n"
        s += adv + "    s_cbranch_scc1 L_slow2\n"
        pa, pb = self.p_poll(9), self.p_poll(1, True)
        return [label("L_slow"), self.a0_dma(), [self.p_store(u) for u in range(self.o["nst"], 18)],
                raw("    s_waitcnt vmcnt(0) lgkmcnt(0)\n    s_barrier"), self.p_flag(9, []), raw(s),
                pa, pb, [c for l in self.bg_loads() for _, c in l],
                raw("    s_waitcnt vmcnt(0) lgkmcnt(0)\n    s_nop 15\n    s_branch L_att_done")]

    def final(self, PB, WB):
        O, ost = OREG, self.o["ost"].replace("+", " ")
        tok, g, x0, x1 = "v34", "v35", "v36", "v37"
        SEL, SIX, GG, G1 = 24, 32, 2, 58
        AB, AA, NB_, NA = 64, 72, 80, 88
        BB, OL, W9 = PB, 40, WREG + 80
        p = [f"""
    v_and_b32 {tok}, 15, v{LANE}
    v_lshrrev_b32 {g}, 4, v{LANE}
    v_lshlrev_b32 {x0}, 3, {tok}
    v_lshl_add_u32 {x0}, {g}, 2, {x0}
    s_lshr_b32 {s_t0}, {s_j}, 2
    s_lshl2_add_u32 {s_t0}, {s_tt}, {s_t0}
    s_mul_i32 {s_t0}, {s_t0}, {OBLK}
    s_add_u32 {s_t0}, {s_t0}, {WS_O:#x}
    s_lshl_b32 {s_t1}, {s_w}, 9
    s_lshl3_add_u32 {s_d0}, {s_t1}, {s_t0}
    s_add_u32 {s_d1}, {s_t1}, {s_t0}
    s_add_u32 {s_d1}, {s_d1}, {32 * KB}
    v_rcp_f32 v{O + 10}, v{O + 10}"""]
        p += [f"v_mul_f32 v{O + i}, v{O + i}, v{O + 10}" for i in range(8)]
        p += [f"v_cvt_pk_bf16_f32 v{O + 12 + i}, v{O + 2 * i}, v{O + 2 * i + 1}" for i in range(4)]
        p += [I(f"buffer_store_dwordx4 {vr(O + 12, 4)}, v{L16}, {sWS}, {s_oun} offen sc1"),
              [f"v_mul_f32 v{O + i}, v{O + i}, v{O + 10}" for i in (8, 9)],
              f"v_cvt_pk_bf16_f32 v{O + 11}, v{O + 8}, v{O + 9}",
              "s_mov_b32 exec_hi, 0",
              I(f"buffer_store_dword v{O + 11}, {x0}, {sWS}, {s_our} offen sc1"),
              "s_mov_b64 exec, -1", "s_setprio 0", self.ts("oflag")]
        l8, aw, ar, ast, an9 = "v4", "v5", "v38", "v39", "v1"
        awr, ard, a9r, go, go9 = (f"v{O + i}" for i in range(5))
        p += [f"""
    s_mul_i32 {s_t0}, {s_cq}, 288
    s_add_u32 {s_t0}, {s_t0}, {WOSCR}
    v_lshl_add_u32 {x1}, {g}, 3, {s_t0}
    s_lshl_b32 {s_t1}, {s_w}, 5
    v_add_u32 {x0}, {s_t1}, {x1}
    s_lshr_b32 {s_t1}, {s_j}, 2
    s_lshl_b32 {s_t1}, {s_t1}, 7
    s_add_u32 {s_t1}, {s_t1}, {L_GT}
    v_lshl_add_u32 {l8}, {tok}, 2, {s_t1}
    ds_read_b64 {vr(BIA, 2)}, {x0}
    ds_read_b64 {vr(BI9, 2)}, {x1} offset:256
    ds_read2_b32 {vr(GG, 2)}, {l8} offset0:0 offset1:16
    v_lshrrev_b32 {x0}, 2, {tok}
    v_and_b32 {x1}, 1, {g}
    v_lshlrev_b32 {x1}, 1, {x1}
    v_cmp_eq_u32 vcc, {x0}, {x1}
    v_mov_b32 {l8}, 0x3f80
    v_add_u32 {x1}, 1, {x1}
    v_cndmask_b32 v{SEL}, 0, {l8}, vcc
    v_cndmask_b32 v{SEL + 5}, 0, {l8}, vcc
    v_cmp_eq_u32 vcc, {x0}, {x1}
    v_and_b32 {x0}, 3, {tok}
    v_mul_u32_u24 v{SIX}, 0x5555, {x0}
    v_cndmask_b32 v{SEL + 2}, 0, {l8}, vcc
    v_cndmask_b32 v{SEL + 7}, 0, {l8}, vcc
    v_cmp_eq_u32 vcc, 1, {x1}
    v_mov_b32 v{SEL + 1}, 0
    v_mov_b32 v{SEL + 3}, 0
    v_mov_b32 v{SEL + 4}, 0
    v_mov_b32 v{SEL + 6}, 0
    v_lshlrev_b32 {l8}, 3, v{LANE}
    s_cmp_eq_u32 {s_w}, 0
    s_cselect_b32 {s_t0}, -1, 0""", barrier(drain_lds=False), self.ts("t_b2")]
        common, p = p, []
        init = []
        for acc, b, m in ((AB, BIA, None), (NB_, BI9, s_t0)):
            if m:
                init += [f"v_and_b32 v{b + i}, {m}, v{b + i}" for i in range(2)]
            for t in range(2):
                for i in range(2):
                    init += [f"v_lshlrev_b32 v{acc + 4 * t + 2 * i}, 16, v{b + i}",
                             f"v_and_b32 v{acc + 4 * t + 2 * i + 1}, 0xffff0000, v{b + i}"]
        sums = [I(f"v_smfmac_f32_16x16x64_bf16 {vr((AB if k < 8 else NB_) + 4 * t, 4)}, {vr(SEL + 4 * t, 4)}, "
                  f"{vr(PB + 8 * k, 8)}, v{SIX}") for k in range(9) for t in range(2)]
        load = [f"buffer_load_dwordx4 {vr(OL + 4 * k, 4)}, v{L16}, {sWS}, {s_d0} offen offset:{KB * k} sc1" for k in range(4)]
        load.append(f"buffer_load_dwordx2 {vr(OL + 16, 2)}, {l8}, {sWS}, {s_d1} offen sc1")
        test = [f"v_max3_u32 {x0}, v{OL}, v{OL + 1}, v{OL + 2}", f"v_max3_u32 {x1}, v{OL + 3}, v{OL + 4}, v{OL + 5}"]
        test += [f"v_max3_u32 {(x0, x1)[i & 1]}, {(x0, x1)[i & 1]}, v{OL + 6 + 2 * i}, v{OL + 7 + 2 * i}" for i in range(6)]
        test += [f"v_max_u32 {x0}, {x0}, {x1}", f"v_cmp_eq_u32 vcc, -1, {x0}"]
        addr = f"""
    v_cndmask_b32 v{W9 + 2}, v{W9}, v{SEL + 1}, vcc
    v_cndmask_b32 v{W9 + 3}, v{W9 + 1}, v{SEL + 1}, vcc
    v_cndmask_b32 v{W9}, 0, v{W9}, vcc
    v_cndmask_b32 v{W9 + 1}, 0, v{W9 + 1}, vcc
    v_sub_f32 v{G1}, 1.0, v{GG}
    v_sub_f32 v{G1 + 1}, 1.0, v{GG + 1}
    s_lshl_b32 {s_t1}, {s_w}, 12
    v_add_u32 {aw}, {s_t1}, v{L16}
    s_lshl_b32 {s_t1}, {s_w}, 9
    v_add_u32 {awr}, {s_t1}, {l8}
    v_lshlrev_b32 {ar}, 9, {g}
    v_lshl_add_u32 {ar}, {tok}, 3, {ar}
    v_mul_u32_u24 {ast}, 272, {tok}
    v_lshl_add_u32 {ast}, {g}, 3, {ast}
    s_lshl_b32 {s_t1}, {s_w}, 5
    v_add_u32 {ast}, {s_t1}, {ast}
    v_lshlrev_b32 {an9}, 6, {tok}
    v_lshl_add_u32 {an9}, {g}, 4, {an9}
    s_lshl_b32 {s_t1}, {s_w}, 11
    v_add_u32 {an9}, {s_t1}, {an9}
    s_lshl_b32 {s_t1}, {s_w}, 2
    v_add_u32 {go}, {s_t1}, {g}
    v_mul_u32_u24 {ard}, 272, {go}
    v_lshl_add_u32 {ard}, {tok}, 4, {ard}
    s_lshl_b32 {s_t1}, {s_w}, 8
    s_add_u32 {s_t1}, {s_t1}, {L_N9}
    v_lshl_add_u32 {a9r}, v{LANE}, 2, {s_t1}
    v_mul_u32_u24 {go}, 1152, {go}
    v_lshl_add_u32 {go9}, {tok}, 1, {go}
    v_lshl_add_u32 {go}, {tok}, 4, {go}
    s_lshr_b32 {s_t0}, {s_j}, 2
    s_lshl2_add_u32 {s_t0}, {s_tt}, {s_t0}
    s_mul_i32 {s_t0}, {s_t0}, {32 * 1152}
    s_mul_i32 {s_t1}, {s_cq}, 288
    s_add_u32 {s_t0}, {s_t0}, {s_t1}""".strip().split("\n")
        n0 = self.o["oearly"]
        fill = init[8:] + addr
        p += init[:8]
        for i, m in enumerate(sums):
            p += [load if i == n0 else [], m, fill[2 * i:2 * i + 2]]
        p += [load if n0 >= len(sums) else [], fill[36:]]
        p += [f"v_mul_f32 v{a + 4 * t + i}, v{a + 4 * t + i}, v{G1 + t}" for a in (AB, NB_) for t in range(2) for i in range(4)]
        p += [self.ts("t_sum"), self.spin(load, test, sleep=1), self.ts("opoll")]
        p += [I(f"v_mfma_f32_16x16x16_bf16 {vr(NA + 4 * t, 4)}, {vr(W9 + 2 * t, 2)}, {vr(OL + 16, 2)}, 0") for t in range(2)]
        for k in range(4):
            p += [mf16(NA + 4 * (k & 1), WREG + 72 + 4 * (k >> 1), OL + 4 * k)]
        p += [f"ds_write_b128 {aw}, {vr(OL + 4 * k, 4)} offset:{KB * k}" for k in range(4)]
        p += [f"ds_write_b64 {awr}, {vr(OL + 16, 2)} offset:{32 * KB}"]
        for t in range(2):
            p += [f"v_fmac_f32 v{NB_ + 4 * t + i}, v{NA + 4 * t + i}, v{GG + t}" for i in range(4)]
            p.append(f"ds_write_b128 {an9}, {vr(NB_ + 4 * t, 4)} offset:{L_N9 + 1024 * t}")
        p += [barrier(), self.ts("oland")]
        seq = []
        NBUF, N9 = 10, NB_
        for k in range(18):
            for t in range(2):
                b = BB + 4 * (len(seq) % NBUF)
                m = mf16(AA + 4 * t, WB + 4 * k, b, "0" if k == 0 else None)
                if t == 0:
                    m.needregs = {("v", b + 7)}
                if k < 16:
                    seq.append(([f"ds_read_b128 {vr(b, 4)}, v{L16} offset:{2048 * k + 1024 * t}"], m))
                else:
                    seq.append(([f"ds_read_b64 {vr(b + 2 * i, 2)}, {ar} offset:{2048 * k + 128 * t + 256 * i}"
                                 for i in range(2)], m))
        nine = [f"v_add_f32 v{N9 + 2 * i}, v{N9 + 2 * i}, v{N9 + 1 + 2 * i}" for i in range(4)]
        nine += [f"v_add_f32 v{N9}, v{N9}, v{N9 + 2}", f"v_add_f32 v{N9 + 4}, v{N9 + 4}, v{N9 + 6}",
                 f"v_add_f32 v{N9}, v{N9}, v{N9 + 4}", f"v_cvt_pk_bf16_f32 v{N9}, v{N9}, v{N9}",
                 I(f"buffer_store_short v{N9}, {go9}, {sOUT}, {s_t0} offen offset:256 {ost}")]
        rd = [x[0] for x in seq]
        p += rd[:NBUF]
        p += [f"ds_read2st64_b32 {vr(N9 + 2 * i, 2)}, {a9r} offset0:{16 * i} offset1:{16 * i + 8}" for i in range(4)]
        for i in range(len(seq)):
            p += [seq[i][1], rd[i + NBUF:i + NBUF + 1], nine[i - 27:i - 26] if i >= 27 else []]
        p += self.ts("t_mm")
        for t in range(2):
            p += [f"v_fmac_f32 v{AB + 4 * t + i}, v{AA + 4 * t + i}, v{GG + t}" for i in range(4)]
            p += [f"v_cvt_pk_bf16_f32 v{AA + 4 * t + i}, v{AB + 4 * t + 2 * i}, v{AB + 4 * t + 2 * i + 1}" for i in range(2)]
            p.append(f"ds_write_b64 {ast}, {vr(AA + 4 * t, 2)} offset:{L_STG + 16 * 272 * t}")
        p += [self.ts("t_wr"), barrier(), self.ts("t_b4"), f"ds_read_b128 {vr(OL, 4)}, {ard} offset:{L_STG}",
              I(f"buffer_store_dwordx4 {vr(OL, 4)}, {go}, {sOUT}, {s_t0} offen {ost}"), self.ts("t_st")]
        return common, p

    def diag_dump(self):
        if not self.o["diag"]:
            return self.ts("end")
        s = "    s_waitcnt vmcnt(0)\n"
        p = [raw(s), self.ts("end")]
        s = f"""    s_memtime s[100:101]
    s_waitcnt lgkmcnt(0)
    s_sub_u32 s100, s100, s98
    s_lshl_b32 {s_t0}, s2, 3
    s_add_u32 {s_t0}, {s_t0}, {s_w}
    s_lshl_b32 {s_t0}, {s_t0}, 6
    s_add_u32 {s_t0}, {s_t0}, {WS_DIAG:#x}
    s_mov_b64 exec, 1
"""
        srcs = ["s98" if self.o["diag"] == 2 else "s96", "s100"] + [f"s{4 + 2 * k}" for k in range(self.nts)]
        for i, r in enumerate(srcs):
            s += f"    v_mov_b32 v1, {r}\n    buffer_store_dword v1, v{L16}, {sWS}, {s_t0} offen offset:{4 * i}\n"
        return p + [raw(s)]

    def experiments(self, text):
        o = self.o
        out = []
        nb = 0
        for l in text.split("\n"):
            if "s_barrier" in l:
                nb += 1
            if o["x_nodma"] and nb > 9 and (" lds" in l or "load_lds" in l):
                continue
            if o["x_nost"] and nb > 9 and "buffer_store_dwordx4" in l:
                continue
            if o["x_noex"] and nb < 20 and "ds_write_b" in l and nb > 9:
                continue
            if o["x_nogelu"] and nb < 25 and any(f" v{TMP + i}," in l for i in range(4)) and l.strip().startswith("v_") \
                    and "mfma" not in l:
                continue
            out.append(l)
        return "\n".join(out)

    def build(self):
        self.plan()
        t0, f0 = finalize([self.prologue(), f"s_cmp_eq_u32 {s_hf}, 0", "s_cbranch_scc1 L_half0"], want_state=True)
        th, fh = [], []
        for h in (1, 0):
            t, f = finalize([label(f"L_half{h}"), self.ffn(h), "s_branch L_join" if h else []],
                            init=[f0], want_state=True)
            th.append(self.experiments(t))
            fh.append(f)
        slow = [] if self.o["x_fast"] else [f"s_cmp_lg_u64 {s_slow}, 0", "s_cbranch_scc1 L_slow"]
        t1, f1 = finalize([label("L_join"), self.ts("a0"), slow, self.attention(), label("L_att_done"), self.ts("aend"),
                           self.final(PREG, WREG)[0], f"s_cmp_lt_u32 {s_cq}, 2", "s_cbranch_scc0 L_fin2"],
                          init=fh, want_state=True)
        ta, _ = finalize([self.final(PREG, WREG)[1], "s_branch L_out" if self.o["diag"] or self.o["x_pad"] else "s_endpgm"],
                         init=[f1])
        tb, stats = finalize([label("L_fin2"), self.final(WREG, PREG)[1], label("L_out"), self.diag_dump(),
                              label("L_end"), "s_endpgm"], init=[f1])
        t1 += ta + tb
        text = t0 + th[0] + th[1] + t1
        text2, _ = finalize(self.slow_path())
        self.stats = stats
        ref = open(f"cdna_kernels/{NAME}.s.ref").read().split("\n")
        head = [l for l in ref if l.startswith(";") and "@launch" not in l and "Override launch" not in l
                and "grid=ceil" not in l]
        out = "\n".join(head) + f"""
; @launch grid=(256,1,1) block=(512,1,1) lds=163840
; Generated by gen/gen.py. One workgroup per CU: 128 tokens x (288 hidden units, 2 heads).
.amdgcn_target "amdgcn-amd-amdhsa--gfx950"
.text
.globl {NAME}_kernel
.p2align 8
.type {NAME}_kernel,@function
{NAME}_kernel:
{text}{text2}
.section .rodata,"a"
.p2align 6
.amdhsa_kernel {NAME}_kernel
  .amdhsa_next_free_vgpr 256
  .amdhsa_next_free_sgpr 102
  .amdhsa_accum_offset 256
  .amdhsa_group_segment_fixed_size 0
  .amdhsa_kernarg_size 112
  .amdhsa_user_sgpr_count 2
  .amdhsa_user_sgpr_kernarg_segment_ptr 1
  .amdhsa_system_sgpr_workgroup_id_x 1
.end_amdhsa_kernel
"""
        return out


def parse_opts(args):
    kw = {}
    for a in args:
        k, v = a.split("=", 1)
        d = DEFAULTS[k]
        kw[k] = type(d)(v)
    return kw


if __name__ == "__main__":
    out = sys.argv[1]
    g = Gen(**parse_opts(sys.argv[2:]))
    open(out, "w").write(g.build())
    print(g.stats, g.tsnames)
```

```python
import re

_RE_RANGE = re.compile(r"^([vsa])\[(\d+):(\d+)\]$")
_RE_ONE = re.compile(r"^([vsa])(\d+)$")
TRANS = ("v_exp_", "v_log_", "v_rcp_", "v_rsq_", "v_sqrt_", "v_sin_", "v_cos_")


def regs(op):
    op = op.strip()
    if op.startswith("-"):
        op = op[1:]
    if op.startswith("abs(") or op.startswith("neg("):
        op = op[4:-1]
    if op.startswith("|"):
        op = op[1:-1]
    m = _RE_RANGE.match(op)
    if m:
        return {(m.group(1), i) for i in range(int(m.group(2)), int(m.group(3)) + 1)}
    m = _RE_ONE.match(op)
    if m:
        return {(m.group(1), int(m.group(2)))}
    if op in ("vcc", "vcc_lo", "vcc_hi"):
        return {("s", "vcc")}
    if op in ("exec", "exec_lo", "exec_hi"):
        return {("s", "exec")}
    if op == "m0":
        return {("s", "m0")}
    return set()


def vr(a, n=1):
    return f"v{a}" if n == 1 else f"v[{a}:{a + n - 1}]"


def sr(a, n=1):
    return f"s{a}" if n == 1 else f"s[{a}:{a + n - 1}]"


class I:
    def __init__(self, text, tag=None, need=(), off=None, pseudo=None, needregs=()):
        self.text = text
        self.tag = tag
        self.need = list(need)
        self.off = off
        self.pseudo = pseudo
        self.needregs = set(needregs)
        if pseudo is None:
            self.parse()

    def parse(self):
        t = self.text.split(";")[0].strip()
        mn, _, rest = t.partition(" ")
        self.mn = mn
        ops = [o.strip() for o in rest.split(",")] if rest.strip() else []
        mods = ""
        if ops:
            last = ops[-1].split()
            ops[-1] = last[0] if last else ""
            mods = " ".join(last[1:])
        self.ops, self.mods = ops, mods
        R, W = set(), set()
        self.cls = "other"
        self.passes = 0
        self.srcC = set()
        self.srcAB = set()
        self.wide_store = set()
        self.lds_dma = False
        if mn.startswith("v_mfma") or mn.startswith("v_smfmac"):
            self.cls = "mfma"
            self.passes = 4 if "16x16" in mn else 8
            if "_2b_" in mn:
                self.passes = 16
            W = regs(ops[0])
            self.srcAB = regs(ops[1]) | regs(ops[2])
            if mn.startswith("v_smfmac"):
                self.srcC = set(W)
                self.srcAB |= regs(ops[3])
            else:
                self.srcC = regs(ops[3])
            R = self.srcAB | self.srcC
        elif mn.startswith("v_"):
            self.cls = "valu"
            W = regs(ops[0]) if ops else set()
            k = 1
            if "_co_" in mn or mn.startswith(("v_mad_u64", "v_mad_i64")):
                W |= regs(ops[1])
                k = 2
            for o in ops[k:]:
                R |= regs(o)
            if "swap" in mn:
                W |= regs(ops[1])
                R |= regs(ops[0])
            if mn.startswith(("v_fmac", "v_dot2c", "v_writelane")) or "dpp" in mn:
                R |= regs(ops[0])
            if mn.startswith("v_cmpx"):
                W |= {("s", "exec")}
        elif mn.startswith("ds_"):
            self.cls = "ds"
            if mn.startswith("ds_read"):
                W = regs(ops[0])
                R = regs(ops[1])
                self.addr = ops[1]
            else:
                for o in ops:
                    R |= regs(o)
                self.addr = ops[0]
        elif mn.startswith(("buffer_", "global_")):
            self.cls = "vm"
            self.lds_dma = "lds" in mods.split() or "_lds_" in mn
            if "load" in mn and not self.lds_dma:
                W = regs(ops[0])
                for o in ops[1:]:
                    R |= regs(o)
            else:
                for o in ops:
                    R |= regs(o)
                if "atomic" in mn and "sc0" in mods.split():
                    W = regs(ops[0])
                if "store_dwordx4" in mn or "store_dwordx3" in mn:
                    self.wide_store = regs(ops[0] if mn.startswith("buffer_") else ops[1])
            if self.lds_dma:
                R |= {("s", "m0")}
        elif mn.startswith("s_"):
            self.cls = "salu"
            if mn.startswith(("s_cmp", "s_waitcnt", "s_nop", "s_barrier", "s_cbranch", "s_branch", "s_setprio",
                              "s_sleep", "s_endpgm", "s_bitcmp")):
                for o in ops:
                    R |= regs(o)
            else:
                if ops:
                    W = regs(ops[0])
                for o in ops[1:]:
                    R |= regs(o)
                if "saveexec" in mn:
                    W |= {("s", "exec")}
        self.R, self.W = R, W
        self.trans = mn.startswith(TRANS)


def label(name):
    return I(name + ":", pseudo="label")


def raw(text):
    return I(text, pseudo="raw")


def barrier(need=(), drain_lds=True):
    i = I("s_barrier", pseudo="barrier", need=need)
    i.drain = drain_lds
    return i


def wait(need=(), needregs=(), all_vm=False, all_ds=False):
    i = I("", pseudo="wait", need=need, needregs=needregs)
    i.all_vm, i.all_ds = all_vm, all_ds
    return i


def opt_begin():
    return I("", pseudo="opt_begin")


def opt_end():
    return I("", pseudo="opt_end")


def divert(on):
    i = I("", pseudo="divert")
    i.on = on
    return i


def setbase(reg, base=0):
    i = I("", pseudo="setbase")
    i.reg, i.base = reg, base
    return i


def rebase(reg, lo, hi):
    i = I("", pseudo="rebase")
    i.reg, i.lo, i.hi = reg, lo, hi
    return i


def _need_states(p, c):
    n = 0
    pv = {r for r in p.W if r[0] != "s"}
    ps = {r for r in p.W if r[0] == "s"}
    if p.cls == "valu":
        if c.cls == "mfma" and pv & c.R:
            n = max(n, 2)
        if c.cls == "mfma" and ("s", "exec") in ps:
            n = max(n, 4)
        if c.cls == "valu":
            if p.trans and not c.trans and pv & (c.R | c.W):
                n = max(n, 1)
            if c.mn.startswith(("v_readfirstlane", "v_readlane")) and pv & c.R:
                n = max(n, 1)
            if ("dpp" in c.mn or "permlane" in c.mn) and pv & c.R:
                n = max(n, 2)
            if ps & c.R:
                n = max(n, 4 if c.mn.startswith(("v_readlane", "v_writelane")) else 2)
            if p.mn.startswith("v_dot") and pv & (c.R | c.W):
                n = max(n, 3)
        if p.mn.startswith("v_dot") and c.cls in ("mfma", "vm", "ds") and pv & c.R:
            n = max(n, 3)
        if c.cls == "vm" and ps & c.R:
            n = max(n, 5)
        if c.cls == "salu" and ps & c.R:
            n = max(n, 1)
        if p.trans and c.cls in ("vm", "ds") and pv & c.R:
            n = max(n, 1)
    if p.cls == "mfma":
        long_ = {4: 8, 8: 12, 16: 20}[p.passes]
        if c.cls == "mfma":
            if pv & c.srcAB:
                n = max(n, long_)
            if pv & c.srcC and not (pv == c.srcC and p.passes == c.passes):
                n = max(n, long_ - 2)
            if pv & c.W and not (pv == c.W and p.passes == c.passes):
                n = max(n, long_ - 2)
        elif pv & (c.R | c.W):
            n = max(n, long_)
        if c.cls in ("valu", "ds", "vm") and p.srcC & c.W:
            n = max(n, p.passes - 1)
    if p.cls == "vm" and p.wide_store and p.wide_store & c.W:
        n = max(n, 2)
    if p.cls == "salu" and ("s", "m0") in ps and c.cls == "vm" and c.lds_dma:
        n = max(n, 1)
    return n


class Fin:
    def __init__(self):
        self.out = self.main = []
        self.side = []
        self.ds = []
        self.vm = []
        self.hist = []
        self.base = {}
        self.stack = []
        self.seen = set()
        self.stats = {"nop": 0, "wait": 0, "rebase": 0}

    def _emit(self, text, states=1, ins=None):
        self.out.append("    " + text)
        for h in self.hist:
            h[1] += states
        self.hist = [h for h in self.hist if h[1] < 24]
        if ins is not None and (ins.W or ins.cls in ("mfma", "vm")):
            self.hist.append([ins, 0])

    def _count(self, fifo, idx):
        depth = len(self.stack)
        return sum(1 for e in fifo[idx + 1:] if not e[2])

    def _waits(self, tags, rset, is_ds_load=False, wset=frozenset(), all_vm=False, all_ds=False):
        for t in tags:
            assert t in self.seen, f"wait for unknown tag {t}"
        parts = []
        for name, fifo, mx, allf in (("vmcnt", self.vm, 63, all_vm), ("lgkmcnt", self.ds, 15, all_ds)):
            idx = -1
            for i, e in enumerate(fifo):
                names = e[0][1:] if isinstance(e[0], tuple) and e[0][0] == "both" else (e[0],)
                hit = allf or any(x is not None and x in tags for x in names) or (e[1] & rset)
                if not hit and (e[1] & wset) and not (name == "lgkmcnt" and is_ds_load):
                    hit = True
                if hit:
                    idx = i
            if idx >= 0:
                n = min(self._count(fifo, idx), mx - 1)
                parts.append(f"{name}({n})")
                del fifo[: idx + 1]
        if parts:
            self.stats["wait"] += 1
            self._emit("s_waitcnt " + " ".join(parts))

    def _hazard(self, ins):
        n = 0
        for p, st in self.hist:
            n = max(n, _need_states(p, ins) - st)
        while n > 0:
            k = min(n, 16)
            self.stats["nop"] += k
            self._emit(f"s_nop {k - 1}", states=k)
            n -= k

    def add(self, ins):
        ps = ins.pseudo
        if ps == "label":
            self.out.append(ins.text)
            return
        if ps == "raw":
            for line in ins.text.strip("\n").split("\n"):
                self.out.append(line)
            return
        if ps == "setbase":
            self.base[ins.reg] = ins.base
            return
        if ps == "divert":
            self.out = self.side if ins.on else self.main
            return
        if ps == "rebase":
            b = self.base[ins.reg]
            if not (b <= ins.lo and ins.hi - b <= 65535):
                self.stats["rebase"] += 1
                self.add(I(f"v_add_u32 {ins.reg}, {(ins.lo - b) & 0xFFFFFFFF:#x}, {ins.reg}"))
                self.base[ins.reg] = ins.lo
            return
        if ps == "copybase":
            self.base[ins.dst] = self.base[ins.src]
            assert self.base[ins.src] % 8192 == 0
            return
        if ps == "wait":
            self._waits(ins.need, ins.needregs, all_vm=ins.all_vm, all_ds=ins.all_ds)
            return
        if ps == "barrier":
            self._waits(ins.need, set(), all_ds=ins.drain)
            self._emit("s_barrier")
            return
        if ps == "opt_begin":
            self.stack.append(([list(e) for e in self.ds], [list(e) for e in self.vm],
                               [list(h) for h in self.hist], dict(self.base), self.ds + self.vm))
            return
        if ps == "opt_end":
            ds0, vm0, h0, b0, keep = self.stack.pop()
            ids = set(map(id, keep))
            self.ds = ds0 + [[e[0], e[1], True] for e in self.ds if id(e) not in ids]
            self.vm = vm0 + [[e[0], e[1], True] for e in self.vm if id(e) not in ids]
            known = {id(h[0]) for h in h0}
            self.hist = h0 + [h for h in self.hist if id(h[0]) not in known]
            for k, v in b0.items():
                assert self.base.get(k) == v, f"address register {k} re-based inside an optional block"
            return
        text = ins.text
        if ins.off is not None:
            b = self.base[ins.addr]
            span = getattr(ins, "span", 0)
            if not (0 <= ins.off - b <= 65535 - span):
                nb = getattr(ins, "rebase_to", None)
                if nb is None:
                    nb = ins.off & ~1023
                self.stats["rebase"] += 1
                self.add(I(f"v_add_u32 {ins.addr}, {(nb - b) & 0xFFFFFFFF:#x}, {ins.addr}"))
                self.base[ins.addr] = b = nb
            if ins.off - b:
                text += f" offset:{ins.off - b}"
        is_ds_load = ins.cls == "ds" and bool(ins.W)
        self._waits(ins.need, {r for r in ins.R if r[0] != "s"} | ins.needregs, is_ds_load,
                    {r for r in ins.W if r[0] != "s"})
        self._hazard(ins)
        states = 1
        if ins.mn == "s_nop":
            states = int(ins.ops[0], 0) + 1
        self._emit(text, states, ins)
        if ins.tag is not None:
            self.seen.add(ins.tag)
            if isinstance(ins.tag, tuple) and ins.tag[0] == "both":
                self.seen.update(ins.tag[1:])
        if ins.cls == "ds":
            self.ds.append([ins.tag, set(ins.W), False])
        elif ins.cls == "vm":
            self.vm.append([ins.tag, set(ins.W), False])
            assert len(self.vm) <= 63 + 40


def flat(x):
    for e in x:
        if isinstance(e, (list, tuple)):
            yield from flat(e)
        elif isinstance(e, str):
            for line in e.strip().split("\n"):
                line = line.strip()
                if line:
                    yield I(line)
        else:
            yield e


def finalize(prog, init=(), want_state=False, side=None):
    f = Fin()
    for g in init:
        many = len(init) > 1
        f.ds += [[e[0], set(e[1]), e[2] or many] for e in g.ds]
        f.vm += [[e[0], set(e[1]), e[2] or many] for e in g.vm]
        f.hist += [list(h) for h in g.hist]
        f.seen |= g.seen
        for k, v in g.base.items():
            if f.base.setdefault(k, v) != v:
                f.base[k] = None
        for k in f.stats:
            f.stats[k] += g.stats[k]
    for ins in flat(prog):
        f.add(ins)
    text = "\n".join(f.main) + "\n"
    if f.side:
        side.extend(f.side)
    return (text, f) if want_state else (text, f.stats)
```

```python
import math
import struct
import sys

from asmlib import I, barrier, divert, finalize, flat, label, opt_begin, opt_end, raw, rebase, setbase, vr, wait

NAME = "gated_mix__grouped_kv_mqa__dense_activation_gelu__prompt"
KB = 1024
U = 8192

DEFAULTS = dict(
    b=4,
    diag=0,
    early=3,
    burst=18,
    lead=22,
    hoist=2,
    mdma=0,
    ex64=0,
    rsteps=3,
    mlds=1,
    nbuf=6,
    hqa="1+1+1+1+1+0+1",
    hqb="1+1+1+1+1.5+0.5+0",
    kvsig="g2",
    kvpoll="g6",
    kv0=2,
    pace=2.0,
    fdelay=7,
    cdelay=11,
    nst=8,
    plast=61,
    kvcap=14,
    pst="sc1",
    ost="sc1",
    asch="aXeBvRMkfL4H66",
    touch=9,
    waux="",
    otouch="",
    pdist=4,
    dbl=0,
    ywin=41,
    st0=8,
    ctouch="48",
    qtouch="r2_0", qmask="-1", top=32, tstep=2, wojob="r1_1+r2_1", r1t=0, nstart=2, first=3, mid=6, capx=5, capr=8, dsp=1, dspg=1, dlast=1, capq=6, capg=10,
    rot=1,
    thr=40.0,
    oearly=8,
    force_slow=0,
    zoom="",
    x_pad="",
    x_s=0, x_nodma=0, x_noex=0, x_nogelu=0, x_nost=0, x_fast=0,
)


def f32(x):
    return "0x%08x" % struct.unpack("<I", struct.pack("<f", x))[0]


WS_KV, WS_KN, WS_E, WS_F, WS_WO, WS_O, WS_P = 0, 147456, 0x28000, 0x30000, 0x40000, 0x100000, 0x400000
WS_DIAG, WS_SIZE = 0x3000000, 0x4000000
OBLK = 36 * KB
SL = 4096
XREG = [88 * KB, 104 * KB, 120 * KB, 136 * KB]
EX1, EX2, EX2H = 104 * KB, 116 * KB, 132 * KB
QSCR, MISC = 140 * KB, 152 * KB
L_B1, L_GATE, WOSCR = MISC, MISC + 2048, MISC + 4096
L_GT, L_DUMMY = MISC + 2048 + 1152, MISC + 1536
L_STG, L_N9 = 40 * KB, 50 * KB
QP = 104

sX, sW1, sW2, sWS, sDBG, sOUT, sWO, sB1, sB2, sG = (f"s[{a}:{a + 3}]" for a in range(32, 72, 4))
s_w, s_p, s_hf, s_tt, s_j = "s72", "s73", "s74", "s75", "s76"
s_xo, s_m, s_w1o, s_who, s_rc = "s77", "s78", "s79", "s80", "s81"
s_w2a, s_w2b, s_fl, s_cq, s_pst, s_oun = "s82", "s83", "s84", "s85", "s86", "s87"
s_t0, s_t1, s_d0, s_d1 = "s88", "s89", "s90", "s91"
s_msk, s_slow = "s[92:93]", "s[94:95]"
s_t2 = "s3"
s_wj, s_wo = "s68", "s69"
s_tw = ["s0", "s1", "s92", "s60", "s61", "s62", "s63", "s70", "s71"]
s_non, s_our = "s93", "s69"
s_tag, s_w9 = "s68", "s81"
s_wh2 = "s70"
s_w9r, s_fc = "s60", "s61"

L16, C0, AW, A16, DW1, AWH, AQ, TMP = 0, 1, 2, 6, 7, 8, 9, 12
AKV, DQ, SQ, AKN, DW2, AEXW, LANE, DWH = 11, 16, 18, 19, 20, 21, 22, 23
QN2, AFP, AFW = 23, 1, 5
ABUF, ACC, HOWN, HH, XO = 24, 40, 72, 104, 112
TOUT, TW2, WJD, WJA, WJV, EPO = 99, 100, 101, 102, 92, 103
GTA, GTB = 80, 84
AQ2 = 56
GADDR, GBUF, GACC, T, GP = 128, 136, 144, 200, 208
QM, QRA, QRB, KM, KR, IDX, VA, VB = 40, 44, 46, 48, 52, 54, 56, 60
SREG, OREG, PREG, WREG, ATM = 64, 6, 100, 172, 38
AK, AV, AR = 2, 3, 4
BIA, BI9 = 96, 98


def X(ks, t):
    return XO + 72 * t + 4 * ks


LOG2E = math.log2(math.e)
GC0 = -2.0 * LOG2E * math.sqrt(2.0 / math.pi)
GC1 = GC0 * 0.044715
QSCALE = LOG2E / math.sqrt(18.0)


def ds(text, off, **kw):
    return I(text, off=off, **kw)


def mf16(d, a, b, c=None):
    c = vr(d, 4) if c is None else c
    return I(f"v_mfma_f32_16x16x32_bf16 {vr(d, 4)}, {vr(a, 4)}, {vr(b, 4)}, {c}")


class Gen:
    def __init__(self, **kw):
        self.o = dict(DEFAULTS)
        self.o.update(kw)
        self.nl = 0
        self.nts = 0
        self.tsnames = []
        self.gload = {}

    def lab(self, s):
        self.nl += 1
        return f"L_{s}_{self.nl}"

    def ts(self, name, nopad=False):
        if self.o["x_pad"] == name and not nopad:
            l = self.lab("pad")
            sync = "s_and_b32 s96, s96, 0xfffff000" if self.o["diag"] else "s_nop 0"
            return [raw(f"""    {sync}
{l}:
    s_memrealtime s[100:101]
    s_waitcnt lgkmcnt(0)
    s_sub_u32 s100, s100, s96
    s_cmp_lt_u32 s100, 10000
    s_cbranch_scc1 {l}"""), self.ts(name, True)]
        if self.o["zoom"] == "tail":
            if name not in ("aend", "oflag", "t_sum", "t_b2", "opoll", "oland", "t_mm", "t_wr", "t_b4", "t_st", "end"):
                return []
        elif not self.o["diag"] or (self.o["zoom"] and name[0] != "z" and name != "end") or name[:2] == "t_":
            return []
        if name not in self.tsnames:
            self.tsnames.append(name)
            self.nts += 1
        k = self.tsnames.index(name)
        assert k < 14
        op = "s_memtime" if self.o["diag"] == 2 else "s_memrealtime"
        return [raw(f"    {op} s[{4 + 2 * k}:{5 + 2 * k}]")]

    def cond(self, cmp, body):
        l = self.lab("skip")
        return [cmp, f"s_cbranch_scc0 {l}", opt_begin(), body, opt_end(), label(l)]

    def far(self, cmp, body):
        lf, lb = self.lab("far"), self.lab("back")
        return [cmp, f"s_cbranch_scc1 {lf}", opt_begin(), divert(True), label(lf), body, f"s_branch {lb}",
                divert(False), opt_end(), label(lb)]

    def spin(self, load, test, sleep=2, far=True):
        lo, ld = self.lab("ok"), self.lab("spin")
        nl = "\n    "
        return [test, (self.far if far else self.cond)("s_cmp_lg_u64 vcc, 0", [
                raw(f"""    s_mov_b32 {s_t2}, 0x8000
{ld}:
    s_sleep {sleep}
    {nl.join(load)}
    s_waitcnt vmcnt(0)
    {nl.join(test)}
    s_nop 1
    s_cmp_eq_u64 vcc, 0
    s_cbranch_scc1 {lo}
    s_sub_u32 {s_t2}, {s_t2}, 1
    s_cmp_lg_u32 {s_t2}, 0
    s_cbranch_scc1 {ld}
{lo}:""")])]

    def lane0(self, *ins):
        return ["s_mov_b64 exec, 1", list(ins), "s_mov_b64 exec, -1"]

    def touch(self, vaddr, srd, soff):
        return [f"s_mov_b32 m0, {L_DUMMY}", I(f"buffer_load_dword v{vaddr}, {srd}, {soff} offen lds")]

    def retouch(self, tmp):
        l = self.lab("pc")
        return [raw(f"    s_getpc_b64 s[32:33]\n{l}:"), f"""
    s_bfe_u32 {s_t0}, s2, 0x30003
    s_lshl_b32 {s_t1}, {s_w}, 6
    s_add_u32 {s_t0}, {s_t0}, {s_t1}
    s_lshl_b32 {s_t0}, {s_t0}, 7
    s_sub_u32 s32, s32, {l}-L_pc
    s_subb_u32 s33, s33, 0
    v_lshl_add_u32 v{tmp}, v{L16}, 6, {s_t0}
    s_mov_b32 m0, {L_DUMMY}
    s_mov_b64 exec, 0xff""", I(f"global_load_lds_dword v{tmp}, s[32:33]"), "s_mov_b64 exec, -1"]

    def prologue(self):
        o = self.o
        b, tch = o["b"], o["touch"]
        zp = o["zoom"] == "pro"
        assert b in (4, 8) or not tch & 8
        nb, lb = 16 // b, b.bit_length() - 1
        t = HOWN + 5
        l3, l7, g, tok, r, c4, w1 = (f"v{t + i}" for i in range(7))
        a, bb, cc = f"v{t + 7}", f"v{t + 8}", f"v{t + 9}"
        DX = HOWN + 4
        s_bf, s_mw = s_pst, s_oun
        p = []
        if o["diag"] or o["x_pad"]:
            p += [raw("    s_memrealtime s[96:97]\n    s_memtime s[98:99]")]
        p += [f"""
    s_cmp_ge_u32 s2, 256
    s_cbranch_scc1 L_end""", raw("""    s_load_dwordx16 s[4:19], s[0:1], 0
    s_load_dwordx8 s[20:27], s[0:1], 64
    s_load_dwordx4 s[28:31], s[0:1], 96""")]
        if tch & 1 and not tch & 16:
            p += [raw("""    s_getpc_b64 s[92:93]
L_pc:"""), f"""
    s_bfe_u32 {s_t0}, s2, 0x30003
    v_lshrrev_b32 {a}, 3, v0
    v_and_b32 {bb}, 7, v0
    v_or_b32 {bb}, {a}, {bb}
    v_lshl_add_u32 {bb}, {bb}, 3, {s_t0}
    v_lshlrev_b32 {bb}, 7, {bb}
    s_mov_b32 m0, {L_DUMMY}
    s_mov_b64 exec, 0xff""", I(f"global_load_lds_dword {bb}, s[92:93]"), "s_mov_b64 exec, -1"]
        p += [f"""
    v_lshrrev_b32 {a}, 6, v0
    v_and_b32 v{LANE}, 63, v0
    v_readfirstlane_b32 {s_w}, {a}"""]
        if tch & 1 and tch & 16:
            p += [self.cond(f"s_cmp_eq_u32 {s_w}, 7", [raw("""    s_getpc_b64 s[92:93]
L_pc:"""), f"""
    s_bfe_u32 {s_t0}, s2, 0x30003
    v_lshl_add_u32 {bb}, v{LANE}, 3, {s_t0}
    v_lshlrev_b32 {bb}, 7, {bb}
    s_mov_b32 m0, {L_DUMMY}""", I(f"global_load_lds_dword {bb}, s[92:93]")])]
        p += [f"""
    v_lshrrev_b32 {l3}, 3, v{LANE}
    v_and_b32 {l7}, 7, v{LANE}
    v_lshrrev_b32 {g}, 4, v{LANE}
    v_and_b32 {w1}, 1, {a}
    v_lshlrev_b32 {w1}, 2, {w1}
    s_and_b32 {s_t0}, s2, {nb - 1}
    s_lshl_b32 {s_j}, {s_t0}, {lb}
    s_lshr_b32 {s_t0}, s2, 3
    s_and_b32 {s_t1}, {s_t0}, {b - 1}
    s_add_u32 {s_j}, {s_j}, {s_t1}
    s_lshr_b32 {s_tt}, {s_t0}, {lb}"""]
        if o["rot"]:
            m = (s_t1, s_tt) if b <= 4 else (s_tt, s_t1)
            p += [f"""
    s_lshl1_add_u32 {s_rc}, {m[0]}, {m[1]}
    s_sub_u32 {s_t1}, {s_rc}, 9
    s_min_u32 {s_rc}, {s_rc}, {s_t1}"""]
            assert b in (4, 8)
        else:
            p += [f"s_mov_b32 {s_rc}, 0"]
        p += [f"""
    s_bfe_u32 {s_t0}, s2, {((3 - (nb.bit_length() - 1)) << 16) | (nb.bit_length() - 1):#x}
    s_mul_i32 {s_t0}, {s_t0}, {32 // b}
    s_add_u32 {s_tt}, {s_tt}, {s_t0}
    s_lshl_b32 {s_mw}, {s_w}, 10
    s_lshl4_add_u32 {s_t0}, {s_tt}, {s_w}
    s_mul_i32 {s_xo}, {s_t0}, {8 * 1152}
    s_and_b32 {s_t1}, {s_j}, 1
    s_mul_i32 {s_t0}, {s_j}, 576
    s_lshl_b32 {s_t2}, {s_t1}, 6
    s_add_u32 {s_bf}, {s_t0}, {s_t2}
    s_mul_i32 {s_w1o}, {s_w}, {8 * 9216}
    s_add_u32 {s_w1o}, {s_w1o}, {s_bf}
    v_add_u32 {a}, {w1}, {g}
    v_xor_b32 {a}, {a}, {l7}
    v_mul_u32_u24 {bb}, 1152, {l3}
    v_lshl_add_u32 v{DX}, {a}, 4, {bb}
    v_and_b32 {a}, 1, {g}
    v_lshl_add_u32 {a}, {a}, 1, {w1}
    v_xor_b32 {cc}, {a}, {l7}
    v_mul_u32_u24 v{DW1}, 9216, {l3}
    v_lshl_add_u32 v{DW1}, {cc}, 4, v{DW1}
    s_mov_b32 s34, {2048 * 1152}
    s_mov_b32 s35, 0x20000
    s_mov_b32 s38, {576 * 9216}
    s_mov_b32 s39, 0x20000
    s_mov_b32 {s_fl}, {s_rc}""", raw("    s_waitcnt lgkmcnt(0)"), raw("    s_memrealtime s[94:95]") if zp else [], """
    s_mov_b32 s32, s4
    s_mov_b32 s33, s5
    s_mov_b32 s36, s16
    s_mov_b32 s37, s17"""]
        pre = [q for q in self.P if q["issue"] < 0]
        burst = []
        for q, z in zip(pre[0::2], pre[1::2]):
            assert (q["h"], z["h"], z["at"] - q["at"]) == (0, 1, SL)
            burst.append(self.dma_code(q, s_mw if len(burst) < o["mid"] else s_t0, z["pc"]))
        assert max(q["pc"][2] for q in pre if q["pc"][0] == "w") < 6
        t1 = [f"s_add_u32 {s_d0}, {s_tw[0]}, 128", "s_mov_b32 exec_lo, 0x01010101", "s_mov_b32 exec_hi, 0x01010101",
              self.touch(DW1, sW1, s_d0), "s_mov_b64 exec, -1"]
        p += [burst[:o["first"]], f"""
    v_lshl_add_u32 v{t + 10}, v0, 1, {s_t2}
    s_mul_i32 {s_t2}, {s_t1}, 576
    v_subrev_u32 {a}, {s_t2}, v{t + 10}
    v_cmp_gt_u32 vcc, 0x100, v0
    s_mov_b32 s60, s18
    s_mov_b32 s61, s19
    s_mov_b32 s62, 9216
    s_mov_b32 s63, 0x20000
    v_cndmask_b32 v{t + 13}, {a}, v{t + 10}, vcc
    s_lshl_b32 {s_t2}, {s_fl}, 7
    v_lshlrev_b32 v{t + 11}, 2, v0
    v_add_u32 v{t + 10}, {s_t2}, v{t + 11}
    v_subrev_u32 {a}, 1152, v{t + 10}
    v_min_u32 v{t + 10}, {a}, v{t + 10}
    s_mov_b32 s68, s24
    s_mov_b32 s69, s25
    s_mov_b32 s70, 1152
    s_mov_b32 s71, 0x20000""",
              self.cond(f"s_cmp_lt_u32 {s_w}, 5", [
                  I(f"buffer_load_ushort v{t + 14}, v{t + 13}, {sB1}, {s_t0} offen"),
                  I(f"buffer_load_dword v{t + 15}, v{t + 10}, {sG}, 0 offen")]), burst[o["first"]:o["early"]], raw("    s_memrealtime s[100:101]") if zp else []]
        p += [f"""
    s_lshl3_add_u32 {s_t0}, {s_fl}, {s_w}
    s_lshl_b32 {s_t0}, {s_t0}, 3
    v_add_u32 {tok}, {s_t0}, {l3}
    s_mul_i32 {s_t0}, {s_j}, 72
    s_and_b32 {s_t0}, {s_t0}, 0xfffffff0
    v_mul_u32_u24 {a}, 1152, {tok}
    v_lshl_add_u32 {a}, {cc}, 4, {a}
    v_add_u32 {a}, {s_t0}, {a}
    s_lshl_b32 {s_t0}, {s_t1}, 4
    v_mov_b32 {r}, {s_t0}
    v_cmp_eq_u32 vcc, 5, {cc}
    v_cndmask_b32 {r}, 20, {r}, vcc
    v_mad_u32_u24 {r}, {tok}, 36, {r}
    s_bitcmp1_b32 {s_j}, 1
    s_cselect_b32 s8, s10, s8
    s_cselect_b32 s9, s11, s9
    v_cmp_gt_u32 vcc, 5, {cc}
    v_cndmask_b32 v{SQ}, {r}, {a}, vcc
    v_mov_b32 v{SQ + 1}, 0
    v_mov_b32 {a}, s6
    v_mov_b32 {r}, s8
    v_cndmask_b32 v{DQ}, {r}, {a}, vcc
    v_mov_b32 {a}, s7
    v_mov_b32 {r}, s9
    v_cndmask_b32 v{DQ + 1}, {r}, {a}, vcc
    v_lshl_add_u64 {vr(DQ, 2)}, {vr(SQ, 2)}, 0, {vr(DQ, 2)}
    v_mov_b32 {a}, {64 * 1152}
    v_mov_b32 {r}, {64 * 36}
    v_cndmask_b32 v{SQ}, {r}, {a}, vcc
    s_mov_b32 s40, s20
    s_mov_b32 s41, s21
    s_mov_b32 s42, {4608 * 1152}
    s_mov_b32 s43, 0x20000
    s_mov_b32 s44, s30
    s_mov_b32 s45, s31
    s_mov_b32 s46, {WS_SIZE:#x}
    s_mov_b32 s47, 0x20000
    s_mov_b32 s48, s28
    s_mov_b32 s49, s29
    s_mov_b32 s50, 256
    s_mov_b32 s51, 0x20000
    s_mov_b32 s52, s26
    s_mov_b32 s53, s27
    s_mov_b32 s54, {2048 * 1152}
    s_mov_b32 s55, 0x20000
    s_mov_b32 s56, s12
    s_mov_b32 s57, s13
    s_mov_b32 s58, {576 * 1152}
    s_mov_b32 s59, 0x20000
    s_mov_b32 s64, s22
    s_mov_b32 s65, s23
    s_mov_b32 s66, 1152
    s_mov_b32 s67, 0x20000
    s_mov_b32 {s_non}, 1""", burst[o["early"]:o["mid"]], t1 if o["r1t"] == 1 else [], f"""
    s_and_b32 {s_p}, {s_w}, 3
    s_lshr_b32 {s_hf}, {s_w}, 2
    s_lshl_b32 {s_m}, {s_p}, 10
    s_and_b32 {s_cq}, {s_j}, 3
    s_mul_i32 {s_t0}, {s_j}, 576
    s_xor_b32 {s_t2}, {s_t1}, 1
    s_lshl_b32 {s_t2}, {s_t2}, 9
    s_add_u32 {s_t0}, {s_t0}, {s_t2}
    s_mul_i32 {s_who}, {s_p}, {16 * 9216}
    s_add_u32 {s_who}, {s_who}, {s_t0}
    s_sub_u32 {s_who}, {s_who}, {s_w1o}
    s_lshl4_add_u32 {s_t0}, {s_p}, {s_t0}
    s_mul_i32 {s_w2b}, {s_t0}, 576
    s_lshl4_add_u32 {s_t0}, {s_p}, {s_bf}
    s_mul_i32 {s_w2a}, {s_t0}, 576
    s_lshl2_add_u32 {s_t0}, {s_tt}, {s_p}
    s_mul_i32 {s_pst}, {s_t0}, {36 * 16384}
    s_lshl_b32 {s_t2}, {s_hf}, 15
    s_add_u32 {s_pst}, {s_pst}, {s_t2}
    s_lshl_b32 {s_t2}, {s_j}, 10
    s_add_u32 {s_pst}, {s_pst}, {s_t2}
    s_add_u32 {s_pst}, {s_pst}, {WS_P:#x}
    s_lshl1_add_u32 {s_fl}, {s_t0}, {s_hf}
    s_lshl4_add_u32 {s_fl}, {s_fl}, {s_j}
    s_lshl_b32 {s_fl}, {s_fl}, 2
    s_add_u32 {s_fl}, {s_fl}, {WS_F:#x}
    s_mul_i32 {s_oun}, {s_t0}, 36
    s_lshl1_add_u32 {s_oun}, {s_j}, {s_oun}
    s_add_u32 {s_oun}, {s_oun}, {s_hf}
    s_lshl_b32 {s_oun}, {s_oun}, 10
    s_add_u32 {s_oun}, {s_oun}, {WS_O:#x}
    v_and_b32 {tok}, 15, v{LANE}
    v_bfe_u32 {r}, v{LANE}, 2, 2
    v_and_b32 {c4}, 3, v{LANE}
    v_lshlrev_b32 v{L16}, 4, v{LANE}
    v_mov_b32 v{C0}, {f32(GC0)}
    s_add_u32 {s_t0}, {s_m}, {EX1}
    v_add_u32 v{AEXW}, {s_t0}, v{L16}
    v_lshlrev_b32 v{A16}, 4, {g}
    v_add_u32 v{A16}, {MISC}, v{A16}
    v_lshlrev_b32 {a}, 1, {g}
    v_xor_b32 {a}, {a}, {l7}
    v_lshl_add_u32 v{DW2}, {a}, 4, {bb}
    v_lshlrev_b32 v{WJD}, 4, {a}
    v_lshrrev_b32 {a}, 5, v{LANE}
    v_lshlrev_b32 {a}, 1, {a}
    v_xor_b32 {a}, {a}, {c4}
    v_lshrrev_b32 v{DWH}, 2, v{LANE}
    v_mul_u32_u24 v{DWH}, 9216, v{DWH}
    v_lshl_add_u32 v{DWH}, {a}, 4, v{DWH}""", setbase(f"v{AEXW}", EX1), setbase(f"v{A16}", MISC),
              f"""
    v_lshrrev_b32 {a}, 1, {tok}
    v_xor_b32 {a}, {a}, {g}
    v_lshlrev_b32 {a}, 4, {a}
    v_lshl_add_u32 {a}, {tok}, 7, {a}
    s_lshl1_add_u32 {s_t0}, {s_p}, {s_hf}
    s_lshl_b32 {s_t0}, {s_t0}, 11
    s_add_u32 {s_t0}, {s_t0}, {XREG[0]}
    v_add_u32 v{HOWN}, {s_t0}, {a}
    v_xor_b32 v{HOWN + 1}, 64, v{HOWN}
    v_xor_b32 v{HOWN + 2}, 0x800, v{HOWN}
    v_xor_b32 v{HOWN + 3}, 0x840, v{HOWN}""", [setbase(f"v{HOWN + i}", XREG[0]) for i in range(4)],
              f"""
    v_lshrrev_b32 {a}, 1, {r}
    v_and_b32 {l3}, 1, {g}
    v_lshl_add_u32 {l3}, {l3}, 1, {a}
    v_lshlrev_b32 {l3}, 5, {l3}
    v_lshl_add_u32 {l7}, {g}, 3, {r}
    v_lshlrev_b32 {w1}, 3, {c4}
    s_lshl_b32 {s_t0}, {s_hf}, 6
    v_add_u32 {a}, {s_t0}, {w1}
    v_xor_b32 {a}, {a}, {l3}
    v_lshl_add_u32 v{AW}, {l7}, 7, {a}
    v_xor_b32 v{AW + 1}, 32, v{AW}
    v_add_u32 v{AW + 2}, 0x10000, v{AW}
    v_add_u32 v{AW + 3}, 0x10000, v{AW + 1}
    v_and_b32 {a}, 1, {g}
    v_xor_b32 {a}, {s_hf}, {a}
    v_lshl_add_u32 {a}, {a}, 5, {w1}
    v_lshl_add_u32 v{AWH}, {l7}, 6, {a}
    s_lshl2_add_u32 {s_t2}, {s_hf}, {s_t1}
    s_lshl_b32 {s_t2}, {s_t2}, 3
    v_add_u32 {a}, {s_t2}, {w1}
    v_xor_b32 v{AQ}, {a}, {l3}
    v_lshl_add_u32 v{AQ}, {l7}, 7, v{AQ}
    s_lshl_b32 {s_t0}, {s_t1}, 3
    v_add_u32 {a}, 72, {w1}
    s_add_u32 {s_t2}, {s_t0}, 64
    v_mov_b32 {bb}, {s_t2}
    v_cmp_eq_u32 vcc, 0, {c4}
    v_cndmask_b32 {a}, {a}, {bb}, vcc
    s_sub_u32 {s_t2}, 104, {s_t0}
    v_mov_b32 {bb}, {s_t2}
    v_cmp_eq_u32 vcc, 3, {c4}
    v_cndmask_b32 {a}, {a}, {bb}, vcc
    v_xor_b32 {a}, {a}, {l3}
    v_lshl_add_u32 v{AQ + 1}, {l7}, 7, {a}""",
              [setbase(f"v{x}", 0) for x in (AW, AW + 1, AWH, AQ, AQ + 1)],
              [setbase(f"v{x}", 65536) for x in (AW + 2, AW + 3)]]
        if tch & 8:
            p += [f"""
    s_and_b32 {s_t2}, {s_tt}, {32 // b - 1}
    s_lshl{5 - lb}_add_u32 {s_t0}, {s_j}, {s_t2}
    s_mul_i32 {s_t0}, {s_t0}, {9 * b * 1152}
    s_mul_i32 {s_t2}, {s_w}, {41 * 128}
    s_add_u32 {s_t0}, {s_t0}, {s_t2}
    v_min_u32 v{TW2}, 40, v{LANE}
    v_lshl_add_u32 v{TW2}, v{TW2}, 7, {s_t0}"""]
        if o["otouch"] and not o["otouch"].isdigit():
            p += [f"""
    s_lshr_b32 {s_t0}, {s_j}, 2
    s_lshl2_add_u32 {s_t0}, {s_tt}, {s_t0}
    s_lshl3_add_u32 {s_t0}, {s_t0}, {s_w}
    s_mul_i32 {s_t0}, {s_t0}, {4 * 1152}
    s_mul_i32 {s_t2}, {s_cq}, 288
    s_add_u32 {s_t0}, {s_t0}, {s_t2}
    v_mul_u32_u24 {a}, 1152, {r}
    v_mul_u32_u24 {bb}, 92, {c4}
    v_add3_u32 v{TOUT}, {a}, {bb}, {s_t0}"""]
        p += [f"""
    s_mul_i32 {s_t0}, {s_tt}, 9216
    s_lshl1_add_u32 {s_d0}, {s_p}, {s_hf}
    s_mul_i32 {s_t2}, {s_d0}, 576
    s_add_u32 {s_t2}, {s_t2}, {s_t0}
    s_add_u32 {s_t2}, {s_t2}, {WS_KV + 4096}
    v_bfrev_b32 {l3}, 1
    v_lshrrev_b32 {a}, 1, {g}
    v_mul_u32_u24 {a}, 288, {a}
    v_and_b32 {bb}, 1, {g}
    v_lshl_add_u32 {a}, {bb}, 3, {a}
    v_lshl_add_u32 {a}, {tok}, 4, {a}
    v_add_u32 {a}, {s_t2}, {a}
    s_lshl_b32 {s_t2}, {s_t1}, 7
    v_add_u32 v{AKV}, {s_t2}, {a}
    v_add_u32 {a}, 96, {a}
    v_cmp_gt_u32 vcc, 8, {tok}
    v_lshrrev_b32 {bb}, 1, {tok}
    v_or_b32 {bb}, {s_t2}, {bb}
    v_cndmask_b32 v{AKV}, {l3}, v{AKV}, vcc
    v_cmp_eq_u32 vcc, 5, {bb}
    v_mov_b32 v{AKN}, {l3}
    v_cndmask_b32 v{AKV}, v{AKV}, {a}, vcc""", self.cond(f"s_cmp_lt_u32 {s_j}, 2", [f"""
    s_lshl1_add_u32 {s_t2}, {s_p}, {s_j}
    s_lshl1_add_u32 {s_t2}, {s_t2}, {s_hf}
    s_lshl_b32 {s_t2}, {s_t2}, 8
    s_add_u32 {s_t2}, {s_t2}, {s_t0}
    v_subrev_u32 {bb}, 1, {g}
    v_lshl_add_u32 {a}, {bb}, 3, {s_t2}
    v_cmp_gt_u32 vcc, 2, {bb}
    v_lshl_add_u32 {a}, {tok}, 4, {a}
    s_lshl_b32 {s_d0}, {s_d0}, 6
    s_add_u32 {s_d0}, {s_d0}, {s_t0}
    v_cndmask_b32 v{AKV}, {l3}, {a}, vcc
    s_add_u32 {s_d0}, {s_d0}, {WS_KV + 8704}
    v_lshl_add_u32 {a}, {tok}, 2, {s_d0}
    s_lshl2_add_u32 {s_t2}, {s_j}, 3
    v_cmp_eq_u32 vcc, {s_t2}, {g}
    s_lshl4_add_u32 {s_t2}, {s_j}, {s_tt}
    s_lshl3_add_u32 {s_t2}, {s_t2}, {s_w}
    v_cndmask_b32 v{AKN}, {l3}, {a}, vcc
    s_lshl2_add_u32 {s_t2}, {s_t2}, {WS_KN}
    v_writelane_b32 v{AKN}, {s_t2}, 0"""])]
        p += [self.wo_setup(a, bb)]
        if zp:
            self.ts("zarg"), self.ts("zburst")
            p += [raw("    s_waitcnt lgkmcnt(0)\n    s_mov_b32 s4, s94\n    s_mov_b32 s6, s100"), self.ts("zpro")]
        p += [f"s_lshl_b32 {s_t0}, {s_w}, 10", t1 if o["r1t"] == 2 else [], burst[o["mid"]:], t1 if o["r1t"] == 3 else [], f"""
    v_lshlrev_b32 v{t + 14}, 16, v{t + 14}
    v_add_u32 v{t + 11}, {MISC}, v{t + 11}
    ds_write_b32 v{t + 11}, v{t + 14}
    ds_write_b32 v{t + 11}, v{t + 15} offset:2048"""]
        return p

    def gelu_quad(self, src, dst):
        pr = [(f"v{TMP + i}", f"v{src + i}") for i in range(4)]
        o = [f"v_mul_f32 {t}, {x}, {x}" for t, x in pr]
        o += [f"v_fmamk_f32 {t}, {t}, {f32(GC1)}, v{C0}" for t, x in pr]
        o += [f"v_mul_f32 {t}, {t}, {x}" for t, x in pr]
        o += [f"v_exp_f32 {t}, {t}" for t, x in pr]
        o += [f"v_add_f32 {t}, 1.0, {t}" for t, x in pr]
        o += [f"v_rcp_f32 {t}, {t}" for t, x in pr]
        o += [f"v_mul_f32 {t}, {t}, {x}" for t, x in pr]
        o += [f"v_cvt_pk_bf16_f32 v{dst + i}, {pr[2 * i][0]}, {pr[2 * i + 1][0]}" for i in range(2)]
        return o

    def bias(self, h, r, tt2, t):
        if r < 4:
            return ds(f"ds_read_b128 {vr(ACC + 16 * (r & 1) + 8 * tt2 + 4 * t, 4)}, v{A16}",
                      L_B1 + 256 * r + 128 * h + 64 * tt2)
        return ds(f"ds_read_b128 {vr(ACC + 4 * t, 4)}, v{A16}", L_B1 + 1024 + 64 * h)

    def q_epilogue(self, h):
        a0, a2 = ACC + 8, AQ2
        tok, g, row, sc, aS = (f"v{64 + i}" for i in range(5))
        x0, x1 = "v69", "v70"
        p1 = [f"""
    v_and_b32 {tok}, 15, v{LANE}
    v_lshrrev_b32 {g}, 4, v{LANE}
    s_mul_i32 {s_t0}, {s_p}, {32 * QP}
    s_add_u32 {s_t0}, {s_t0}, {QSCR}
    v_mov_b32 {sc}, {f32(QSCALE)}
    v_cmp_eq_u32 vcc, 0, {g}
    v_mul_u32_u24 {row}, {QP}, {tok}
    v_add_u32 {row}, {s_t0}, {row}
    v_cndmask_b32 {x0}, 1.0, {sc}, vcc
    v_lshl_add_u32 {aS}, {g}, 3, {row}"""]
        p1 += [f"v_mul_f32 v{a2 + i}, v{a2 + i}, {x0}" for i in range(4)]
        p1 += [f"v_cvt_pk_bf16_f32 v{T + 4 + i}, v{a2 + 2 * i}, v{a2 + 2 * i + 1}" for i in range(2)]
        p1 += [f"ds_write_b64 {aS}, {vr(T + 4, 2)} offset:{64 + 16 * QP * h}"]
        kblk = [f"""
    v_mov_b32 {x1}, 0
    s_mov_b32 exec_lo, 0xffff0000
    s_mov_b32 exec_hi, 0x0000ffff
    v_fmac_f32 {x1}, v{a2}, v{a2}
    v_fmac_f32 {x1}, v{a2 + 1}, v{a2 + 1}
    s_cmp_eq_u32 {s_j}, 0
    s_cselect_b32 exec_hi, -1, exec_hi
    v_fmac_f32 {x1}, v{a2 + 2}, v{a2 + 2}
    v_fmac_f32 {x1}, v{a2 + 3}, v{a2 + 3}
    s_mov_b64 exec, -1
    v_mov_b32 {x0}, {x1}
    v_permlane32_swap_b32 {x0}, {x1}
    v_add_f32 {x1}, {x0}, {x1}
    v_mov_b32 {x0}, {x1}
    v_permlane16_swap_b32 {x0}, {x1}
    v_add_f32 {x1}, {x0}, {x1}"""]
        kblk += [f"v_max_f32_dpp {x1}, {x1}, {x1} row_ror:{n} row_mask:0xf bank_mask:0xf" for n in (8, 4, 2, 1)]
        kblk += [f"v_cndmask_b32 {x1}, v{T + 5}, {x1}, vcc",
                 I(f"buffer_store_dword {x1}, v{AKN}, {sWS}, 0 offen sc1", tag="kvst")]
        vblk = [f"""
    v_and_b32 {x0}, 3, v{LANE}
    v_min_u32 {x0}, 2, {x0}
    v_lshl_add_u32 {x0}, {x0}, 3, {s_t0}
    v_lshrrev_b32 {x1}, 2, v{LANE}
    v_mul_u32_u24 {x1}, {QP}, {x1}
    v_add_u32 {x0}, {x0}, {x1}
    ds_read_b64_tr_b16 {vr(T + 4, 2)}, {x0} offset:{72 + 16 * QP * h}"""]
        p1 += [self.cond(f"s_cmp_lt_u32 {s_j}, 4", [
            self.cond(f"s_cmp_ge_u32 {s_j}, 2", vblk),
            I(f"buffer_store_dwordx2 {vr(T + 4, 2)}, v{AKV}, {sWS}, 0 offen sc1", tag="kvst"),
            self.cond(f"s_cmp_lt_u32 {s_j}, 2", kblk)])]
        p2 = [f"v_mul_f32 v{a0 + i}, v{a0 + i}, {sc}" for i in range(8)]
        p2 += [f"v_cvt_pk_bf16_f32 v{T + i}, v{a0 + 2 * i}, v{a0 + 2 * i + 1}" for i in range(4)]
        p2 += [I(f"ds_write_b64 {aS}, {vr(T + 2 * t, 2)} offset:{32 * h + 16 * QP * (h ^ t)}", tag="qwr") for t in range(2)]
        p2r = [f"""
    v_and_b32 {x0}, 1, {g}
    v_mad_u32_u24 {x0}, {x0}, 36, {row}
    v_add_u32 {x0}, {16 * QP * h}, {x0}
    v_lshrrev_b32 {x1}, 1, {g}
    v_lshl_add_u32 {x1}, {x1}, 4, {x0}
    ds_read2_b32 {vr(QM, 2)}, {x1} offset0:0 offset1:1
    ds_read2_b32 {vr(QM + 2, 2)}, {x1} offset0:2 offset1:3""", I(f"ds_read_b32 v{QRA}, {x0} offset:32", tag="qrd")]
        p3 = [f"v_lshlrev_b32 v{T + i}, 16, v{QM + i}" for i in range(5)]
        p3 += [f"v_mul_f32 v{QN2}, v{QM}, v{QM}"] + [f"v_fmac_f32 v{QN2}, v{QM + i}, v{QM + i}" for i in range(1, 4)]
        p3 += [f"v_fmac_f32 v{QN2}, v{T + i}, v{T + i}" for i in range(4)]
        p3 += [f"""
    v_mov_b32 {x0}, v{QN2}
    v_cmp_gt_u32 vcc, 32, v{LANE}
    v_mov_b32 {x1}, 0
    v_permlane32_swap_b32 {x0}, v{QN2}
    v_add_f32 v{QN2}, v{QN2}, {x0}
    v_fmac_f32 v{QN2}, v{QRA}, v{QRA}
    v_fmac_f32 v{QN2}, v{T + 4}, v{T + 4}
    v_cndmask_b32 v{QRB}, v{QRA}, {x1}, vcc
    v_cndmask_b32 v{QRA}, 0, v{QRA}, vcc"""]
        return p1, p2, p2r, p3

    def gate(self, h):
        x = f"v{GTA}"
        return f"""
    v_mul_f32 {x}, {f32(-LOG2E)}, {x}
    v_and_b32 v{GTA + 1}, 15, v{LANE}
    v_exp_f32 {x}, {x}
    s_lshl_b32 {s_t0}, {s_p}, 7
    s_add_u32 {s_t0}, {s_t0}, {L_GT + 64 * h}
    v_lshl_add_u32 v{GTA + 1}, v{GTA + 1}, 2, {s_t0}
    v_add_f32 {x}, 1.0, {x}
    v_rcp_f32 {x}, {x}
    ds_write_b32 v{GTA + 1}, {x}"""

    def wo_setup(self, x0, x1):
        return [f"""
    v_lshrrev_b32 {x0}, 5, v{LANE}
    v_bfe_u32 {x1}, v{LANE}, 3, 2
    v_mad_u32_u24 {x0}, {x0}, 18, {x1}
    s_mul_i32 {s_t0}, {s_j}, 36
    s_lshl_b32 {s_t1}, {s_p}, 2
    s_add_u32 {s_t0}, {s_t0}, {s_t1}
    s_mul_i32 {s_t0}, {s_t0}, 1152
    s_lshl_b32 {s_t1}, {s_tt}, 7
    s_add_u32 {s_wj}, {s_t0}, {s_t1}""", self.cond(f"s_cmp_ge_u32 {s_tt}, 9", [f"""
    v_lshrrev_b32 {x0}, 5, v{LANE}
    v_bfe_u32 {x1}, v{LANE}, 4, 1
    v_lshl_add_u32 {x0}, {x0}, 2, {x1}
    v_bfe_u32 {x1}, v{LANE}, 3, 1
    v_mad_u32_u24 {x0}, {x0}, 18, {x1}
    s_sub_u32 {s_t0}, {s_tt}, 9
    s_lshl_b32 {s_t0}, {s_t0}, 1
    s_and_b32 {s_t1}, {s_p}, 1
    s_add_u32 {s_t0}, {s_t0}, {s_t1}
    s_lshl_b32 {s_t0}, {s_t0}, 3
    s_and_b32 {s_t1}, {s_p}, 2
    s_add_u32 {s_t0}, {s_t0}, {s_t1}
    s_mul_i32 {s_t0}, {s_t0}, 18
    s_add_u32 {s_t0}, {s_t0}, 16
    s_mul_i32 {s_t0}, {s_t0}, 1152
    s_lshl_b32 {s_t1}, {s_j}, 7
    s_add_u32 {s_wj}, {s_t0}, {s_t1}"""]), f"""
    v_mul_u32_u24 {x0}, 1152, {x0}
    v_add_u32 v{WJD}, v{WJD}, {x0}
    v_bfe_u32 {x0}, v{LANE}, 3, 2
    v_xor_b32 {x0}, {s_p}, {x0}
    v_lshlrev_b32 {x0}, 5, {x0}
    v_and_b32 {x1}, 3, v{LANE}
    v_lshl_add_u32 {x0}, {x1}, 3, {x0}
    v_lshrrev_b32 {x1}, 2, v{LANE}
    v_lshl_add_u32 {x0}, {x1}, 7, {x0}
    v_add_u32 v{WJA}, {WOSCR}, {x0}
    s_add_u32 {s_t0}, {s_tt}, 7
    s_cmp_ge_u32 {s_tt}, 9
    s_cselect_b32 {s_t0}, {s_t0}, {s_j}
    s_cselect_b32 {s_t1}, {s_j}, {s_tt}
    s_lshl_b32 {s_t1}, {s_t1}, 2
    s_add_u32 {s_t1}, {s_t1}, {s_p}
    s_mul_i32 {s_t1}, {s_t1}, 18
    s_add_u32 {s_t0}, {s_t0}, {s_t1}
    s_lshl_b32 {s_t0}, {s_t0}, 10
    s_add_u32 {s_wo}, {s_t0}, {WS_WO:#x}
    s_cmp_lt_u32 {s_j}, 9
    s_cselect_b32 {s_t0}, 11, 9
    s_cmp_lt_u32 {s_tt}, {s_t0}
    s_cselect_b32 {s_wo}, {s_wo}, -1"""]

    def wo_job(self):
        c = f"s_cmp_lg_u32 {s_wo}, -1"
        return (self.cond(c, [f"s_add_u32 m0, {s_m}, {WOSCR}",
                              I(f"buffer_load_dwordx4 v{WJD}, {sWO}, {s_wj} offen lds", tag="wodma")]),
                [f"ds_read_b64_tr_b16 {vr(WJV, 2)}, v{WJA}", f"ds_read_b64_tr_b16 {vr(WJV + 2, 2)}, v{WJA} offset:2048"],
                self.cond(c, [I(f"buffer_store_dwordx4 {vr(WJV, 4)}, v{L16}, {sWS}, {s_wo} offen sc1", tag="wost")]))

    def shift_setup(self):
        x = f"v{T}"
        o = [f"v_max3_f32 {x}, {x}, v{T + 1}, v{T + 2}", f"v_max_f32 {x}, {x}, v{T + 3}"]
        o += [f"v_max_f32_dpp {x}, {x}, {x} row_ror:{n} row_mask:0xf bank_mask:0xf" for n in (8, 4, 2, 1)]
        o += [[f"""
    v_readlane_b32 {s_t0}, {x}, 0
    v_readlane_b32 {s_t1}, {x}, 16
    v_readlane_b32 {s_t2}, {x}, 32
    v_readlane_b32 {s_d1}, {x}, 48
    s_max_u32 {s_t0}, {s_t0}, {s_t1}
    s_max_u32 {s_t2}, {s_t2}, {s_d1}
    v_mov_b32 {x}, {s_t0}
    v_add_f32 {x}, {s_t2}, {x}"""], f"""
    v_mul_f32 {x}, {x}, v{QN2}
    v_sqrt_f32 {x}, {x}
    v_mov_b32 v{T + 1}, {f32(0.01)}
    v_fmamk_f32 {x}, {x}, {f32(1.02)}, v{T + 1}
    v_mov_b32 v{T + 1}, {f32(self.o['thr'] if not self.o['force_slow'] else -1.0)}
    v_cmp_nle_f32 {s_slow}, {x}, v{T + 1}
    v_mov_b32 v{T + 1}, 0
    v_cvt_pk_bf16_f32 {x}, -{x}, v{T + 1}
    v_cmp_gt_u32 vcc, 32, v{LANE}
    v_cndmask_b32 v{QRA + 1}, 0, {x}, vcc
    v_cndmask_b32 v{QRB + 1}, {x}, v{T + 1}, vcc"""]
        return o

    def att_consts(self):
        x = f"v{T}"
        o = [f"""
    v_mov_b32 v{KR + 1}, 0x3f80
    v_mov_b32 v{IDX}, 0xdddddddd
    v_and_b32 {x}, 27, v{LANE}
    v_cmp_eq_u32 vcc, 18, {x}
    v_mov_b32 {x}, 0x3f803f80"""]
        o += [f"v_cndmask_b32 v{VA + i}, 0, {x}, vcc" for i in range(8)]
        o += [f"""
    v_mov_b32 v{AK}, v{L16}
    v_lshlrev_b32 v{AR}, 2, v{LANE}
    v_and_b32 {x}, 31, v{LANE}
    v_lshrrev_b32 v{AV}, 5, v{LANE}
    v_mul_u32_u24 v{AV}, 288, v{AV}
    v_lshl_add_u32 v{AV}, {x}, 4, v{AV}
    v_lshlrev_b32 v{AFP}, 2, {x}
    s_mov_b32 s92, 0x3ffff
    s_mov_b32 s93, 0x3ffff""", [setbase(f"v{AK}"), setbase(f"v{AV}"), setbase(f"v{AR}")]]
        return o

    def wo_flag_addr(self):
        x, y = f"v{T}", f"v{T + 1}"
        return f"""
    s_mul_i32 {s_t0}, {s_cq}, 9
    s_add_u32 {s_t1}, {s_t0}, 8
    s_add_u32 {s_t0}, {s_t0}, {s_w}
    v_and_b32 {x}, 16, v{LANE}
    v_cmp_eq_u32 vcc, 0, {x}
    v_mov_b32 {x}, {s_t0}
    v_mov_b32 {y}, {s_t1}
    v_cndmask_b32 {x}, {y}, {x}, vcc
    v_and_b32 {y}, 15, v{LANE}
    v_lshl_add_u32 v{AFW}, {x}, 5, {y}
    v_and_b32 {y}, 1, v{LANE}
    v_lshl_add_u32 {y}, {y}, 2, 36
    v_and_or_b32 {y}, {x}, 3, {y}
    v_lshrrev_b32 {x}, 2, {x}
    v_lshl_add_u32 {x}, {y}, 5, {x}
    v_cmp_gt_u32 vcc, 32, v{LANE}
    v_cndmask_b32 v{AFW}, {x}, v{AFW}, vcc
    v_lshlrev_b32 v{AFW}, 2, v{AFW}
    v_add_u32 v{AFW}, {WS_F:#x}, v{AFW}"""

    def poison(self, h):
        x = f"v{T + 4}"
        return [[f"v_mov_b32 v{T + i}, -1" for i in range(4)],
                I(f"buffer_store_dwordx4 {vr(T, 4)}, v{L16}, {sWS}, {s_oun} offen sc1"), f"""
    s_lshl2_add_u32 {s_t0}, {s_tt}, {s_p}
    s_mul_i32 {s_t0}, {s_t0}, {OBLK}
    s_lshl_b32 {s_our}, {s_j}, 8
    s_add_u32 {s_our}, {s_our}, {s_t0}
    s_add_u32 {s_our}, {s_our}, {WS_O + 32 * KB + 128 * h:#x}
    s_mov_b64 exec, 0xff""", I(f"buffer_store_dwordx4 {vr(T, 4)}, v{L16}, {sWS}, {s_our} offen sc1"),
                "s_mov_b64 exec, -1"]

    @property
    def START(self):
        return ([f"x{c}" for c in range(9)] + ["r1_0"])[:self.o["nstart"]]

    def x_reads(self, c):
        return [ds(f"ds_read_b128 {vr(X(2 * c + k, t), 4)}, v{HOWN + 2 * t + k}", XREG[c % 4], tag=("xr", c))
                for k in range(2) for t in range(2)]

    @staticmethod
    def g_order():
        return [(R, q) for R in range(2) for q in range(8)] + [(0, 8), (1, 8)] + \
            [(R, q) for R in range(2, 9) for q in range(9)]

    @staticmethod
    def gacc(R):
        return GP + 32 if R == 2 else GACC + 16 * ((R if R < 2 else R - 1) & 1)

    def stream(self, h, where):
        o = self.o
        ops = []

        def tr(buf, i, areg, off, win=False):
            if win:
                areg += 2 * (off >> 16)
            return ds(f"ds_read_b64_tr_b16 {vr(buf + 2 * i, 2)}, v{areg}", off)

        ring, nring = [ABUF + 4 * i for i in range(4)], [0]

        def nb():
            nring[0] += 1
            return ring[(nring[0] - 1) % len(ring)]

        def new_ring(extra):
            base = [x for x in ring[nring[0] % len(ring):] + ring[:nring[0] % len(ring)] if x < ABUF + 16]
            ring[:] = extra[:o["nbuf"] - 4] + base
            nring[0] = 0

        for r in range(4):
            if r == 0:
                new_ring([HH, HH + 4])
            for ks in range(18):
                for tt2 in range(2):
                    buf, pc = nb(), ("w", r, ks)
                    op = dict(buf=buf, rd=[tr(buf, i, AW + tt2, where(pc) + 512 * i, True) for i in range(2)], pc=pc,
                              mf=[mf16(ACC + 16 * (r & 1) + 8 * tt2 + 4 * t, buf, X(ks, t)) for t in range(2)], rate=1)
                    if tt2 == 0 and r == 0 and ks % 2 == 0:
                        c = ks // 2
                        op["step"] = f"x{c}"
                        op["pre"] = self.x_reads(c) if c < o["nstart"] else []
                        if c < 2:
                            op["pre"] = [self.bias(h, c, a, t) for a in range(2) for t in range(2)] + op["pre"]
                    if tt2 == 0 and r > 0 and ks % (18 // o["rsteps"]) == 0:
                        op["step"] = f"r{r}_{ks * o['rsteps'] // 18}"
                    ops.append(op)
        h0 = len(ops)
        for ks in range(18):
            buf, pc = nb(), ("h", 0, ks // 2)
            op = dict(buf=buf, rd=[tr(buf, i, AWH, where(pc) + 2048 * (ks & 1) + 256 * i) for i in range(2)], pc=pc,
                      mf=[mf16(ACC + 4 * t, buf, X(ks, t)) for t in range(2)], rate=1)
            if ks in (0, 8):
                op["step"] = f"h{ks // 8}"
            ops.append(op)
        q0 = len(ops)
        for ks in range(18):
            if ks == 6:
                new_ring([X(3, 0), X(3, 1)])
            if ks == 12:
                new_ring([GBUF, GBUF + 4])
            c = "0" if ks == 0 else None
            for a in range(2):
                buf, pc = nb(), ("q", 0, ks)
                mf = [mf16(AQ2, buf, X(ks, 0), c)] if a else [mf16(ACC + 8 + 4 * t, buf, X(ks, t), c) for t in range(2)]
                op = dict(buf=buf, rd=[tr(buf, i, AQ + a, where(pc) + 512 * i) for i in range(2)], mf=mf, pc=pc,
                          rate=1 + a, after={6: q0 + 7, 12: q0 + 15}.get(ks, -1))
                if a == 0 and ks % 6 == 0:
                    op["step"] = f"q{ks // 6}"
                ops.append(op)
        for R, q in self.g_order():
            if True:
                for tt2 in range(2):
                    buf, pc = nb(), ("g", R, q)
                    rd = [tr(buf, i, GADDR + tt2, where(pc) + 2048 * (i ^ (h if q == 8 else 0)), True) for i in range(2)]
                    hb = [HH + 4 * t if q == 8 else HOWN + 8 * (q >> 1) + 4 * t if (q & 1) == h else X(q >> 1, t)
                          for t in range(2)]
                    op = dict(buf=buf, rd=rd, pc=pc, rate=1,
                              mf=[mf16(self.gacc(R) + 8 * tt2 + 4 * t, buf, hb[t], "0" if q == 0 else None)
                                  for t in range(2)])
                    if tt2 == 0 and ((q == 0 and R != 2) or (R, q) == (0, 8)):
                        op["step"] = f"g{R if q == 0 else 2}"
                    ops.append(op)

        G = [dict(m=[], mem=[])]
        B, use0, lastm, reads = {}, {}, {}, {}
        last_user, prev = {}, []
        for k, op in enumerate(ops):
            prev.append(last_user.get(op["buf"], -1))
            last_user[op["buf"]] = k
        ro, rr, cur = 0, 0, None

        def issue_one():
            nonlocal ro, rr, cur
            op = ops[ro]
            if rr == 0 and "step" in op:
                cur = op["step"]
                B[cur] = len(G) - 1
                G[-1]["mem"].append(("boundary", cur))
            if rr == 0:
                G[-1]["mem"] += op.get("pre", [])
                use0.setdefault(op["pc"], cur)
                assert use0[op["pc"]] == cur
            x = op["rd"][rr]
            G[-1]["mem"].append(x)
            reads.setdefault(cur, []).append(x[0] if isinstance(x, list) else x)
            rr += 1
            if rr == len(op["rd"]):
                ro, rr = ro + 1, 0

        while ro < o["nbuf"] - 1:
            issue_one()
        for k, op in enumerate(ops):
            while ro <= k:
                issue_one()
            for mi, m in enumerate(op["mf"]):
                G.append(dict(m=[m], mem=[]))
                lastm[op["pc"]] = len(G) - 1
                done = k if mi == len(op["mf"]) - 1 else k - 1
                cnt = 0
                while ro < len(ops) and prev[ro] <= k - 1 and ops[ro].get("after", -1) <= done \
                        and cnt < op["rate"] + (op["rate"] == 1 and ro + 1 < len(ops) and prev[ro + 1] <= k - 1):
                    issue_one()
                    cnt += 1
        return G, B, use0, lastm, reads

    def dma_code(self, q, mbase=s_m, tag2=None):
        k, a, b = q["pc"]
        m0 = f"s_add_u32 m0, {mbase}, {q['at']}"
        tag = q["pc"] if tag2 is None else ("both", q["pc"], tag2)
        nxt = [f"s_add_u32 {s_rc}, {s_rc}, 1", f"s_cmp_eq_u32 {s_rc}, 9"]
        wrap = [f"s_cselect_b32 {s_rc}, 0, {s_rc}"]
        if k == "q":
            code = [m0, I(f"global_load_lds_dwordx4 {vr(DQ, 2)}, off", tag=tag)]
            if b < 16:
                code = [m0] + nxt + code[1:] + [f"s_cselect_b32 {s_d0}, -8, 1"] + wrap + [
                    f"v_mad_i64_i32 {vr(DQ, 2)}, {s_slow}, v{SQ}, {s_d0}, {vr(DQ, 2)}"]
            return code

        def ld(v, srd, so, aux=""):
            aux = aux or " " + self.o["waux"].replace("+", " ")
            return I(f"buffer_load_dwordx4 v{v}, {srd}, {so} offen{aux} lds", tag=tag)

        if k == "x":
            if b < 2:
                return [m0, f"s_lshl_b32 {s_d1}, {s_rc}, 7", f"s_add_u32 {s_d1}, {s_d1}, {s_xo}", ld(HOWN + 4, sX, s_d1)]
            return [m0, f"s_add_u32 {s_d1}, {s_d1}, {64 * 1152}", ld(HOWN + 4, sX, s_d1)]
        if k == "w" and a == 0:
            tw = s_tw[b // 2]
            return [m0, f"s_mul_i32 {tw}, {s_rc}, {64 * 9216}", f"s_add_u32 {tw}, {tw}, {s_w1o}", ld(DW1, sW1, tw),
                    nxt, wrap]
        v, srd, base, off, aux = {
            "w": (DW1, sW1, s_tw[b // 2 % 9], 128 * a, ""),
            "h": (DWH, sW1, s_tw[b % 9], s_who, ""),
            "g": (DW2, sW2, s_w2a if b < 8 else s_w2b, (32 * b * 1152 if b < 8 else 0) + 128 * a, ""),
            "kv": (L16, sWS, s_m, WS_KV + SL * b, " sc1"),
        }[k]
        return [m0, f"s_add_u32 {s_d0}, {base}, {off}", ld(v, srd, s_d0, aux)]

    def plan(self):
        o = self.o
        G, B, use0, lastm, _ = self.stream(1, lambda pc: 0)
        steps = sorted(B, key=B.get) + ["a0", "a1", "end"]
        idx = {s: i for i, s in enumerate(steps)}
        self.steps, self.idx = steps, idx

        def last_abs(pc):
            return max(idx[s] for s in B if B[s] - (0 if s in self.START else o["hoist"]) < lastm[pc])

        def slots(lo, n):
            return range(lo // SL, (lo + n + SL - 1) // SL)

        res = [(slots(XREG[i], 4 * SL), -1, idx[f"x{i + 4 if i else 8}"]) for i in range(4)]
        res += [(slots(EX1 + 4 * SL * (2 - r), 4 * SL), idx[f"r{r + 1}_{o['rsteps'] // 3}"], idx["q1"]) for r in range(3)]
        res += [(slots(EX2, 4 * SL), idx["q2"], idx["g0"]), (slots(EX2H, 2 * SL), idx["g1"], idx["g2"]),
                (slots(QSCR, 3 * SL), idx["g0"], idx["g4"])]
        for i, (sa, a0, a1) in enumerate(res):
            for sb, b0, b1 in res[:i]:
                assert not set(sa) & set(sb) or a1 < b0 or b1 < a0
        P = []
        for c in range(9):
            P += [dict(pc=("x", c, q), h=q & 1, at=XREG[c % 4] + SL * q, u0=c, e=c - 3 if c >= 4 else -1) for q in range(4)]
            P += [dict(pc=("w", 0, 2 * c + k), h=k) for k in range(2)]
        P += [dict(pc=("w", r, ks), h=ks & 1) for r in range(1, 4) for ks in range(18)]
        P += [dict(pc=("h", 0, u), h=(u + 1) & 1) for u in range(9)]
        P += [dict(pc=("q", 0, ks), h=ks & 1) for ks in range(18)]
        P += [dict(pc=("g", R, q), h=(n + 1) & 1) for n, (R, q) in enumerate(self.g_order())]
        cap = {"x5": 6, "x6": o["capx"], "x7": o["capx"], "x8": o["capx"], "r1_0": o["capr"], "r1_1": o["capr"],
               "r1_2": o["capr"], "r2_0": o["capr"], "r2_1": o["capr"], "q2": o["capq"], "g0": o["capg"], "g1": o["capg"]}
        free = [-1] * 38
        cur, ptr = -1, 0
        for k, q in enumerate(P):
            fixed = "at" in q
            if not fixed:
                q["u0"], q["u1"] = idx[use0[q["pc"]]], last_abs(q["pc"])
            top = 36 if q["pc"][0] == "g" else o["top"]
            while True:
                ahead = sum(1 for z in P[:k] if z["u0"] > cur)
                ok = ahead < (o["burst"] if cur < idx["x5"] else o["lead"]) and cur >= q.get("e", -1)
                if cur >= 0:
                    ok = ok and sum(1 for z in P[:k] if z["issue"] == cur) < cap.get(steps[cur], 10)
                if ok and not fixed:
                    cand = [x % top for x in range(ptr, ptr + top) if free[x % top] <= cur and not any(
                        x % top in sl and not (b < cur or q["u1"] < a) for sl, a, b in res)]
                    ok = bool(cand)
                if ok:
                    break
                cur += 1
            if not fixed:
                q["at"], free[cand[0]], ptr = cand[0] * SL, q["u1"] + 1, cand[0] + 1
            q["issue"] = cur
            assert cur < q["u0"], (q, steps[cur])
        for c in range(idx["r1_1"], idx["a0"]):
            here = [q for q in P if q["issue"] == c]
            flex = [q for q in here if q["pc"][0] in "gh"]
            nb_ = (len(here) + 1) // 2 - sum(q["h"] for q in here if q not in flex)
            for n, q in enumerate(flex):
                q["h"] = int(n < nb_ or q["u0"] == c + 1)
        self.tight = [(q["pc"], steps[q["issue"]], q["h"]) for q in P if q["u0"] == q["issue"] + 1]
        nb4 = idx[o["kvpoll"]] + 1
        av = [max([free[x], nb4] + [b + 1 for sl, a, b in res if x in sl]) for x in range(36)]
        self.kv_order = sorted(range(16), key=lambda g: max(av[x] for x in slots(9216 * g, 9216)))
        grp = {x: min(n for n, g in enumerate(self.kv_order) if x in slots(9216 * g, 9216)) for x in range(36)}
        todo = sorted(range(36), key=lambda x: grp[x])
        while todo:
            room = o["kvcap"] - sum(1 for z in P if z["issue"] == cur) if cur < idx["a0"] else 99
            for x in [x for x in todo if av[x] <= cur][:max(room, 0)]:
                todo.remove(x)
                P.append(dict(pc=("kv", 0, x), h=len(todo) & 1, at=x * SL, issue=cur, grp=grp[x]))
            cur += 1
        late = [q["grp"] for q in P if "grp" in q and q["issue"] >= idx["g8"]]
        n0 = max(min(late), o["kv0"])
        for q in P:
            if "grp" in q:
                q["u0"] = idx["a0"] if q["grp"] < n0 else idx["a1"]
                assert q["issue"] < q["u0"]
        self.b1tile = 4 * n0 - 2
        self.P = P
        self.planinfo = " ".join(f"{q['pc'][0]}{q['pc'][1]}.{q['pc'][2]}@{q['at'] // SL}:"
                                 f"{steps[q['issue']] if q['issue'] >= 0 else 'pre'}" for q in P)

    def p_store(self, u):
        R, tt2 = divmod(u, 2)
        d = GP + 8 * (R % 6) + 4 * tt2
        return [f"s_add_u32 {s_d1}, {s_pst}, {(4 * R + tt2) * 16384}",
                I(f"buffer_store_dwordx4 {vr(d, 4)}, v{L16}, {sWS}, {s_d1} offen {self.o['pst'].replace('+', ' ')}",
                  tag=("p", u))]

    def p_pack(self, R, h):
        return [f"v_cvt_pk_bf16_f32 v{GP + 8 * (R % 6) + (i ^ (2 * h))}, v{self.gacc(R) + 2 * i}, "
                f"v{self.gacc(R) + 2 * i + 1}" for i in range(8)]

    def ffn(self, h):
        o = self.o
        steps, idx = self.steps, self.idx
        at = {q["pc"]: q["at"] for q in self.P}
        G, B, use0, lastm, reads = self.stream(h, at.get)
        NG = len(G)
        blk = {s: [] for s in steps}
        head = {s: [] for s in steps}
        post = {s: [] for s in steps}
        mb0 = {s: [] for s in steps}
        mb1 = {s: [] for s in steps}
        need = {s: [q["pc"] for q in self.P if q["h"] == h and steps[q["u0"]] == s] for s in steps}

        def lines(items):
            return [x for e in items for x in (e.strip().split("\n") if isinstance(e, str) else [e])]

        def pos(s):
            return steps[idx[s] - h]

        def split(items, names, wts):
            items, k, acc = lines(items), 0, 0.0
            cost = [2 - (o["mlds"] in (3, 5)) if isinstance(x, list) else 2 if "exp" in x or "rcp" in x else 1 for x in items]
            for nm, w in zip(names, wts):
                acc += w / sum(wts)
                e = min(range(k, len(items) + 1, 2), key=lambda e: abs(sum(cost[:e]) - acc * sum(cost)))
                for x in items[k:e]:
                    if isinstance(x, list) and o["mlds"]:
                        x = list(flat(x))
                        nxt = steps[idx[nm] + 1]
                        mb0[nxt] += [y for y in x[1:] if y.W and o["mlds"] & 1]
                        mb1[nxt] += [y for y in x[1:] if not y.W and o["mlds"] & 2]
                        head[nxt] += [y for y in x[1:] if not y.W and o["mlds"] & 4]
                        x = [x[0]] + [y for y in x[1:] if not o["mlds"] & (1 if y.W else 6)]
                    blk[nm].append(x)
                k = e
            assert k == len(items)

        def exw(text, off, tag):
            return ds(text, off + SL * h, tag=tag)

        for r in range(3):
            items = []
            for t in range(2):
                for tt2 in range(2):
                    items += self.gelu_quad(ACC + 16 * (r & 1) + 8 * tt2 + 4 * t, HOWN + 8 * r + 4 * t + 2 * tt2)
                    if r < 2 or tt2 == 0:
                        items[-1] = [items[-1], self.bias(h, r + 2, tt2, t)]
                    if o["ex64"]:
                        items[-1] = [items[-1], exw(f"ds_write_b64 v{AEXW}, {vr(HOWN + 8 * r + 4 * t + 2 * tt2, 2)}",
                                                    EX1 + U * (4 - 2 * r + t) + 8 * tt2, "ex1")]
                if not o["ex64"]:
                    items[-1] = [items[-1], exw(f"ds_write_b128 v{AEXW}, {vr(HOWN + 8 * r + 4 * t, 4)}",
                                                EX1 + U * (4 - 2 * r + t), "ex1")]
            split(items, [f"r{r + 1}_{i}" for i in range(o["rsteps"])], [1] * o["rsteps"])
        need["q0"].append("ex1")
        items = []
        for t in range(2):
            for tt2 in range(2):
                items += self.gelu_quad(ACC + 16 + 8 * tt2 + 4 * t, HOWN + 24 + 4 * t + 2 * tt2)
        for t in range(2):
            items += self.gelu_quad(ACC + 4 * t, HH + 4 * t)
        hq = ["h0", "h1", "q0", "q1", "q2", "g0", "g1"]
        split(items, hq, [float(x) for x in o["hqb" if h else "hqa"].split("+")])

        def ncvt(last):
            return sum(isinstance(x, str) and "cvt" in x for s in hq[:hq.index(last) + 1] for x in blk[s]) // 2

        assert ncvt("h1") >= 1 and ncvt("q0") <= 4 and ncvt(pos("q2")) >= 4 and ncvt(pos("g1")) == 6
        mb1["q1"] += [ds(f"ds_read_b128 {vr(X(r, t), 4)}, v{AEXW}",
                         EX1 + U * (5 - 2 * r - t) + SL * (1 - h), tag="ex1r") for r in range(3) for t in range(2)]
        need["q2"].append("ex1r")
        blk["q2" if h else "q1"] += [f"v_and_b32 v{GADDR + 6}, 0x300, v{L16}"] + [
            f"v_mad_i32_i24 v{GADDR + i}, v{GADDR + 6}, -2, v{AW + i}" for i in range(4)] + [
            f"v_add_u32 v{GADDR + 4 + i}, 0x20000, v{GADDR + i}" for i in range(2)] + [
            [setbase(f"v{GADDR + i}", 65536 * (i >> 1)) for i in range(6)]]
        assert lastm[("q", 0, 2)] <= B["q1"] and lastm[("q", 0, 5)] <= B["q2"] and lastm[("q", 0, 11)] <= B["g0"]
        assert lastm[("q", 0, 17)] <= B["g1"] and lastm[("h", 0, 8)] <= B["q1"]
        wr = [exw(f"ds_write_b128 v{AEXW}, {vr(HOWN + 24 + 4 * t, 4)}", EX2 + U * t, "ex2") for t in range(2)]
        (blk["q1"] if h else head["q2"] if ncvt("q1") >= 4 else blk["q2"]).extend(wr)
        need["g0"].append("ex2")
        mb0["g0"] += [ds(f"ds_read_b128 {vr(X(3, t), 4)}, v{AEXW}", EX2 + U * (1 - t) + SL * (1 - h), tag="ex2r")
                      for t in range(2)]
        need["g1"].append("ex2r")
        blk[pos("g1")] += [exw(f"ds_write_b64 v{AEXW}, {vr(HH + 4 * t, 2)}", EX2H + 8 * t, "ex3") for t in range(2)]
        need["g2"].append("ex3")
        mb0["g2"] += [ds(f"ds_read_b64 {vr(HH + 4 * t + 2, 2)}, v{AEXW}", EX2H + 8 * (1 - t) + SL * (1 - h), tag="ex3r")
                      for t in range(2)]
        need["g3"].append("ex3r")
        q1, q2, q2r, q3 = self.q_epilogue(h)
        head["g0"] += q1
        blk["g1" if h else "g2"] += lines(q2)
        need["g3"].append("qwr")
        blk["g3"] += lines(q2r)
        need["g5"].append("qrd")
        blk["g4"] += lines(q3)
        blk["g1" if h else "g0"].append(self.poison(h))
        blk["g2" if h else "g6"] += lines([self.wo_flag_addr()])
        blk["g3"] += lines(self.att_consts())
        for c in range(10):
            gm = [mf16(GTA, GTB + 4 * k, X(2 * c - 2 + k, 0), "0" if 2 * c - 2 + k == 0 else None) for k in range(2)]
            gr = [f"ds_read_b128 {vr(GTB + 4 * k, 4)}, v{A16} offset:{L_GATE - MISC + 128 * c + 64 * k}" for k in range(2)]
            where = post[steps[c]] if c < o["nstart"] else head[pos(steps[c])]
            if o["nstart"] <= c < 9:
                where += self.x_reads(c)
                assert h or lastm[("w", 0, 2 * c - 1)] >= B[steps[c + 1]]
            where += [f"s_lshr_b32 {s_t0}, {s_j}, 2", self.cond(
                f"s_cmp_eq_u32 {s_t0}, {s_p}", [gm if c else [], gr if c < 9 else []])]
            if c:
                need[steps[c]].append(("xr", c - 1))
        blk["r1_0"].append([self.gate(h)])
        gst = [[]] + [range(-(-o["nst"] * R // 7), -(-o["nst"] * (R + 1) // 7)) for R in range(7)]
        for R in range(7):
            assert lastm[("g", R, 8)] <= B[f"g{max(R + 2, 3)}"]
            blk[f"g{max(R + 1, 2)}"] += self.p_pack(R, h) + [self.p_store(u) for u in gst[R]]
        if h == 0:
            w1, w2, w3 = self.wo_job()
            wa, wb = o["wojob"].split("+")
            (post if wa in self.START[:-1] else head)[wa].append(w1)
            need[wb].append("wodma")
            mb0[wb] += w2
            blk[wb].append(w3)
            blk["g5"].append([f"s_add_u32 m0, {s_m}, {WOSCR}", f"s_min_u32 {s_d0}, {s_m}, 1024",
                              I(f"buffer_load_dwordx4 v{L16}, {sB2}, {s_d0} offen lds", tag="b2")])
            need["a0"].append("b2")
            first = [f"s_or_b32 {s_t0}, {s_tt}, {s_j}", f"s_or_b32 {s_t0}, {s_t0}, {s_w}", f"s_mov_b32 {s_t1}, {WS_E:#x}"]
            c = f"s_cmp_eq_u32 {s_t0}, 0"
            (post if "x6" in self.START[:-1] else head)["x6"] += [first, self.far(c, self.lane0(I(f"buffer_load_dword v{EPO}, v{L16}, {sWS}, {s_t1} offen sc1")))]
            head["r2_0"] += [first, self.far(c, [f"""
    v_readfirstlane_b32 {s_non}, v{EPO}
    s_mul_i32 {s_non}, {s_non}, 0x9e3779b1
    s_add_u32 {s_non}, {s_non}, 0x7f4a7c15
    v_mov_b32 v{EPO}, {s_non}""", self.lane0(I(f"buffer_store_dword v{EPO}, v{L16}, {sWS}, {s_t1} offen sc1")),
                f"s_or_b32 {s_non}, {s_non}, 1"])]
            post[o["kvsig"]] += [f"s_lshr_b32 {s_t0}, {s_j}, 2", f"s_or_b32 {s_t0}, {s_t0}, {s_w}", self.cond(c, [
                f"s_lshl2_add_u32 {s_t0}, {s_tt}, {s_j}", f"s_lshl_b32 {s_t0}, {s_t0}, 2", f"v_mov_b32 v{AKV}, {s_non}",
                self.lane0(I(f"buffer_store_dword v{AKV}, v{L16}, {sDBG}, {s_t0} offen sc1"))])]
        need[o["kvsig"]].append("kvst")
        assert idx[o["kvsig"]] <= idx["g3"]
        if o["touch"] & 8:
            for k in range(4):
                cold = [q["issue"] for q in self.P if q["pc"] == (("w", 2, h), ("w", 3, h), ("h", 0, 0), ("q", 0, h))[k]]
                head[pos(steps[cold[0]]) if o["tstep"] < 0 else
                     steps[idx["r1_0"] + (o["tstep"] * k + 1 - h) * o["rsteps"] // 3]].append(
                    self.cond(f"s_cmp_eq_u32 {s_p}, {k}", self.touch(TW2, sW2, 0)))
                if o["b"] == 8:
                    head[steps[idx["r1_0"] + k + 5 - h]].append(self.cond(f"s_cmp_eq_u32 {s_p}, {k}", [
                        f"s_mov_b32 {s_t0}, {36 * 1152}", self.touch(TW2, sW2, s_t0)]))
        if o["touch"] & 4:
            (post if o["qtouch"][0] == "x" else head)[o["qtouch"]] += [
                f"s_mov_b32 m0, {L_DUMMY}", f"s_mov_b64 exec, {o['qmask']}",
                I(f"global_load_lds_dword {vr(DQ, 2)}, off"), "s_mov_b64 exec, -1"]
        if o["otouch"].isdigit():
            blk["g5"] += lines([f"""
    s_lshr_b32 {s_t0}, {s_j}, 2
    s_lshl2_add_u32 {s_t0}, {s_tt}, {s_t0}
    s_lshl3_add_u32 {s_t0}, {s_t0}, {s_w}
    s_mul_i32 {s_t0}, {s_t0}, {4 * 1152}
    s_mul_i32 {s_t2}, {s_cq}, 288
    s_add_u32 {s_t0}, {s_t0}, {s_t2}
    v_lshrrev_b32 v55, 2, v{LANE}
    v_mul_u32_u24 v55, 1152, v55
    v_and_b32 v{T}, 3, v{LANE}
    v_mul_u32_u24 v{T}, 92, v{T}
    v_add3_u32 v55, v55, v{T}, {s_t0}"""])
        elif o["otouch"]:
            head[o["otouch"]] += ["s_mov_b64 exec, 0xffff", self.touch(TOUT, sOUT, 0), "s_mov_b64 exec, -1"]
        for x in o["ctouch"].split("+"):
            if x in head:
                head[x].append(self.retouch(DW1))
                assert idx["r3_1"] <= idx[x] <= idx["g5"]
        k = idx[o["kvpoll"]]
        load = [f"buffer_load_dword v{T + 4}, v{T + 5}, {sDBG}, 0 offen sc1"]
        head[pos(steps[k])] += [f"v_lshlrev_b32 v{T + 5}, 2, v{LANE}", load]
        head[pos(steps[k + 1])] += [self.spin(load, [f"v_cmp_eq_u32 vcc, 0, v{T + 4}"]),
                                    f"v_readfirstlane_b32 {s_tag}, v{T + 4}", f"s_mov_b32 {s_d1}, {WS_KN}",
                                    I(f"buffer_load_dwordx4 {vr(T, 4)}, v{L16}, {sWS}, {s_d1} offen sc1"),
                                    f"s_andn2_b32 {s_tag}, {s_tag}, 15"]
        blk["g5"] += [f"v_mov_b32 v{OREG + i}, 0" for i in range(16) if OREG + i != DW2]
        blk[pos(steps[k + 2])] += lines(self.shift_setup())
        blk["g7"].append(f"v_mov_b32 v{DW2}, 0")
        su = lines(self.bg_setup())
        sb = "g4" if h else "g5"
        for i, x in enumerate(blk[sb]):
            blk[sb][i] = [x, su[i:i + 1]]
        blk[sb] += su[len(blk[sb]):]
        assert all(q["issue"] <= idx["g7"] - 1 + h for q in self.P if q["pc"][0] == "g" and q["h"] == h)
        assert idx["g4"] < idx[pos(steps[k])] and idx[pos(steps[k + 1])] < idx["g8"]

        dma = {s: [] for s in steps}
        for si in range(-1, idx["a0"] + 1):
            mine = [self.dma_code(q) for q in self.P if q["issue"] == si and q["h"] == h]
            s = steps[si] if si >= 0 else None
            if s is None or s == "a0":
                pass
            elif s in self.START[:-1] or (s == self.START[-1] and h == 1):
                lo, hi = B[s] + 1, B[steps[si + 1]] - (o["hoist"] + 1 if s == self.START[-1] else 0)
                for i, c in enumerate(mine):
                    if hi > lo:
                        G[lo + (i * (hi - lo)) // len(mine)]["mem"].append(c)
                    else:
                        m = G[B[s]]["mem"]
                        m.insert(m.index(("boundary", steps[si + 1])) if hi < lo else len(m), c)
            else:
                n = o["mdma"] if idx[s] < idx["q0"] else 0
                if h:
                    n = len(mine) - min(n, len(mine))
                    dma[pos(s)] = mine[:n]
                    mb1[s] = mine[n:] + mb1[s]
                else:
                    mb1[s] = mine[:n] + mb1[s]
                    dma[s] = mine[n:]
        for s in steps[:-4]:
            for i, x in enumerate(mb0[s]):
                G[B[s] + 1 + i]["mem"].append(x)
            lo, hi = B[s] + 2 + len(mb0[s]), B[steps[idx[s] + 1]] - o["hoist"] - 2
            for i, x in enumerate(mb1[s]):
                G[lo + (i * (hi - lo)) // len(mb1[s])]["mem"].append(x)

        def gblock(s, nxt):
            items, d = list(blk[s]), dma[s]
            z = s in o["zoom"].split("+")
            out = (self.ts(f"z{s}.G") if z else []) + list(head[s])
            wr = [i for i, x in enumerate(items) if any(y.pseudo is None and y.cls == "ds" and not y.W for y in flat([x]))]
            if o["dlast"] and wr and s[0] == "g":
                out += items[:wr[-1] + 1]
                items = items[wr[-1] + 1:]
            sp = o["dsp"] if s[0] != "g" else o["dspg"]
            zz = o["zoom"] == "z" + s
            out = (self.ts("zG") if zz else []) + out
            for i, c in enumerate(d):
                out += self.ts(f"z{i}a") if zz else []
                out.append(c)
                out += self.ts(f"z{i}b") if zz else []
                out += items[(i * len(items)) // (sp * len(d)):((i + 1) * len(items)) // (sp * len(d))]
            out += items[(len(items) // sp if d else 0):]
            out += self.ts(f"z{s}.E") if z or zz else []
            c = 0
            for x in flat(out):
                if x.pseudo is None:
                    c += {"valu": 16 if x.trans else 8, "vm": 24, "ds": 30 if not x.W else 10}.get(x.cls, 3)
            self.gload[(s, h)] = c
            for reg in sorted({x.addr for x in reads.get(nxt, [])}):
                offs = [x.off for x in reads[nxt] if x.addr == reg]
                lo = min(offs) if max(offs) - min(offs) < 65536 else offs[0]
                out.append(rebase(reg, lo & ~4095, max(x for x in offs if x - (lo & ~4095) < 65536)))
            return out

        stamps = {"x0": "x0", "r1_0": "r1", "r2_0": "r2", "h0": "h", "g0": "g0", "g4": "g4"}
        if h:
            for s in steps[:-3]:
                if s not in self.START:
                    z = steps[idx[s] - 1] in o["zoom"].split("+")
                    G[B[s] - o["hoist"]]["mem"].insert(0, [self.ts(f"z{s}.W") if z else [],
                                                           barrier(need=need[s], drain_lds=False)])
                    G[B[s] - o["hoist"] - 1]["mem"].append("s_setprio 1")
                    post[s].append("s_setprio 0")
            G[NG - 2]["mem"] += ["s_setprio 1", barrier(need=need["a0"])]
            for i, x in enumerate(self.p_pack(7, h)):
                G[NG - 10 + i]["mem"].insert(0, x)
        body = []
        for g in G:
            body.append(g["m"])
            for x in g["mem"]:
                if isinstance(x, tuple):
                    s = x[1]
                    if s not in self.START:
                        body.append(gblock(steps[idx[s] - 1], s))
                    if s in self.START:
                        body.append(barrier(need=need[s], drain_lds=s == "x0"))
                    elif h == 0:
                        last = reads[steps[idx[s] - 1]][-1]
                        last.tag = ("rd", s)
                        if steps[idx[s] - 1] in o["zoom"].split("+"):
                            body += [wait(need=need[s] + [last.tag]), self.ts(f"z{s}.W")]
                        body.append(barrier(need=need[s] + [last.tag], drain_lds=False))
                    if o["zoom"] == "pro" and idx[s] < 10:
                        body += self.ts("z" + s)
                    if steps[idx[s] - 1] in o["zoom"].split("+"):
                        body += self.ts(f"z{s}.M")
                    body += [self.ts(stamps[s]) if s in stamps else [], post[s]]
                else:
                    body.append(x)
        if h:
            body += [[self.p_store(u) for u in gst[7]], self.p_pack(8, h), "s_setprio 0"]
        else:
            body += [gblock("g8", None), self.p_pack(7, h), [self.p_store(u) for u in gst[7]], self.p_pack(8, h), barrier(need=need["a0"])]
        return body

    def kv_off(self, t):
        return 9216 * self.kv_order[t // 4], t & 3

    def k_reads(self, t):
        base, q = self.kv_off(t)
        o = [ds(f"ds_read_b128 {vr(KM, 4)}, v{AK}", base + 1024 * q)]
        if q % 2 == 0:
            o.append(ds(f"ds_read_b32 v{KR}, v{AR}", base + 8704 + 128 * q))
        return o

    def v_reads(self, t):
        base, q = self.kv_off(t)
        a = ds(f"ds_read_b128 {vr(VA, 4)}, v{AV}", base + 4096 + 1152 * q)
        a.span = 576
        return [f"s_mov_b64 exec, {s_msk}", a, ds(f"ds_read_b128 {vr(VB, 4)}, v{AV}", base + 4096 + 1152 * q + 576),
                "s_mov_b64 exec, -1"]

    def qk(self, t):
        s = SREG + 16 * (t & 1)
        return (I(f"v_mfma_f32_32x32x8_bf16 {vr(s, 16)}, {vr(KR, 2)}, {vr(QRB if t & 1 else QRA, 2)}, 0",
                  needregs={("v", KM)}),
                I(f"v_mfma_f32_32x32x16_bf16 {vr(s, 16)}, {vr(KM, 4)}, {vr(QM, 4)}, {vr(s, 16)}"))

    def pv(self, t):
        s = SREG + 16 * (t & 1)
        return (I(f"v_smfmac_f32_32x32x32_bf16 {vr(OREG, 16)}, {vr(VA, 4)}, {vr(s, 8)}, v{IDX}", needregs={("v", VB)}),
                I(f"v_smfmac_f32_32x32x32_bf16 {vr(OREG, 16)}, {vr(VB, 4)}, {vr(s + 8, 8)}, v{IDX}"))

    def bg_setup(self):
        return f"""
    s_mul_i32 {s_t2}, {s_cq}, 9
    s_lshr_b32 {s_t0}, {s_j}, 2
    s_lshl_b32 {s_t1}, {s_tt}, 2
    s_add_u32 {s_t0}, {s_t0}, {s_t1}
    s_lshl_b32 {s_fc}, {s_t0}, 7
    s_add_u32 {s_fc}, {s_fc}, {WS_F:#x}
    s_mul_i32 {s_t0}, {s_t0}, 36
    s_add_u32 {s_t0}, {s_t0}, {s_t2}
    s_lshl_b32 {s_t0}, {s_t0}, 14
    s_add_u32 {s_t0}, {s_t0}, {WS_P:#x}
    s_lshl_b32 {s_t1}, {s_w}, 11
    s_add_u32 {s_w1o}, {s_t0}, {s_t1}
    s_add_u32 {s_w1o}, {s_w1o}, {8 * 16384}
    s_lshl_b32 {s_xo}, {s_w}, 14
    s_add_u32 {s_xo}, {s_xo}, {s_t0}
    s_mul_i32 {s_t0}, {s_t2}, {18 * KB}
    s_add_u32 {s_t0}, {s_t0}, {WS_WO:#x}
    s_mul_i32 {s_who}, {s_w}, {18 * KB}
    s_add_u32 {s_who}, {s_who}, {s_t0}
    s_add_u32 {s_t0}, {s_t0}, {8 * 18 * KB}
    s_add_u32 {s_w9}, {s_t0}, {s_t1}
    s_lshl_b32 {s_t1}, {s_w}, 8
    s_add_u32 {s_w9r}, {s_t0}, {s_t1}
    s_add_u32 {s_w9r}, {s_w9r}, {16 * KB}
    s_add_u32 {s_wh2}, {s_who}, {16 * KB}""", [f"""
    s_cmp_lt_u32 {s_cq}, 2
    s_cselect_b32 {s_t0}, {s_xo}, {s_who}
    s_cselect_b32 {s_who}, {s_who}, {s_xo}
    s_cselect_b32 {s_t1}, {s_w1o}, {s_wh2}
    s_cselect_b32 {s_wh2}, {s_wh2}, {s_w1o}
    s_mov_b32 {s_xo}, {s_t0}
    s_mov_b32 {s_w1o}, {s_t1}"""]

    def a0_dma(self):
        at = [q["at"] for q in self.P if self.steps[q["issue"]] == "a0" and q["issue"] >= 0]
        o = []
        for i in range(0, len(at), 2):
            x, y = at[i], at[min(i + 1, len(at) - 1)]
            o.append([f"s_mul_i32 {s_d0}, {s_hf}, {(y - x) & 0xFFFFFFFF:#x}", f"s_add_u32 {s_d0}, {s_d0}, {s_m}",
                      f"s_add_u32 m0, {s_d0}, {x}", f"s_add_u32 {s_d0}, {s_d0}, {WS_KV + x}",
                      I(f"buffer_load_dwordx4 v{L16}, {sWS}, {s_d0} offen sc1 lds", tag="kvl")])
        return o

    def bg_loads(self):
        def ld(reg, sbase, off):
            pre, so = [], sbase
            if off >= 4096:
                pre, so = [f"s_add_u32 {s_d0}, {sbase}, {off & ~4095}"], s_d0
            oo = f" offset:{off % 4096}" if off % 4096 else ""
            return reg, pre + [I(f"buffer_load_dwordx4 {vr(reg, 4)}, v{L16}, {sWS}, {so} offen{oo} sc1")]

        a1, a2 = ([ld(r + 4 * k, b0, KB * k) for k in range(16)] + [ld(r + 64 + 4 * k, b1, KB * k) for k in range(2)]
                  for r, b0, b1 in ((PREG, s_xo, s_w1o), (WREG, s_who, s_wh2)))
        wo = [ld(WREG + 72 + 4 * k, s_w9, KB * k) for k in range(2)]
        wo.append((WREG + 80, [f"v_and_b32 v{WREG + 82}, 0xf0, v{L16}", f"v_lshrrev_b32 v{WREG + 83}, 5, v{LANE}",
                               f"v_lshl_add_u32 v{WREG + 82}, v{WREG + 83}, 3, v{WREG + 82}",
                               I(f"buffer_load_dwordx2 {vr(WREG + 80, 2)}, v{WREG + 82}, {sWS}, {s_w9r} offen sc1")]))
        return a1, a2, wo

    def p_poll(self, val, wo=False, reg=ATM + 1):
        load = [f"buffer_load_dword v{reg}, v{AFW if wo else AFP}, {sWS}, {0 if wo else s_fc} offen sc1"]
        if isinstance(val, tuple):
            pre = [f"s_cmp_lt_u32 {s_cq}, 2", f"s_cselect_b32 {s_t1}, {val[0]}, {val[1]}", f"s_add_u32 {s_t1}, {s_tag}, {s_t1}"]
        else:
            pre = [f"s_add_u32 {s_t1}, {s_tag}, {val}"]
        return load, [pre, self.spin(load, [f"v_subrev_u32 v{reg}, {s_t1}, v{reg}", f"v_cmp_lt_u32 vcc, 8, v{reg}"])]

    def p_flag(self, val, need, reg=ATM):
        return [f"s_add_u32 {s_t1}, {s_tag}, {val}", f"v_mov_b32 v{reg}, {s_t1}", wait(need=need),
                self.lane0(I(f"buffer_store_dword v{reg}, v{L16}, {sWS}, {s_fl} offen sc1"))]

    def attention(self):
        o = self.o
        ex = [([], []) for _ in range(64)]
        used = [0] * 64

        def put(t, code, slot=1, force=False):
            while not force and (ex[t][slot] or (used[t] and t >= o["dbl"])):
                t += 1
            used[t] += 1
            ex[t][slot].append(code)
            return t

        st = {u: put(0, self.p_store(u)) for u in range(o["nst"], 10)}
        for x in self.a0_dma():
            put(0, x)
        t5 = put(st.get(9, 0) + o["fdelay"], self.p_flag(5, [("p", 9)]))
        u0 = max(o["nst"], 10)
        (pa, pb), (pc, pd) = self.p_poll((5, 1)), self.p_poll(1, True, ATM)
        tx = put(t5 + o["cdelay"] - 1 - o["pdist"], pa)
        tx = put(tx, pc) + o["pdist"]
        ex[tx - 1][0].append(pb)
        ex[tx][0].append(pd)
        st.update({u: put(int(o["st0"] + (u - u0) * o["pace"]), self.p_store(u)) for u in range(u0, 18)})
        t9 = put(st[17] + o["fdelay"], self.p_flag(9, [("p", 17)]))
        assert t9 > tx
        pa, pb = self.p_poll((5, 9))
        ty = put(max(t9 + o["cdelay"] - 2, o["ywin"] - 2), pa) + 2
        ex[ty][0].append(pb)
        a1, a2, wo = self.bg_loads()
        l2 = [put(ty + i * (o["plast"] - ty) // 17, x[1], force=True) for i, x in enumerate(a2)]
        l1 = [put(tx + i * (ty - 1 - tx) // 18, x[1]) for i, x in enumerate(a1)]
        l3 = [put(max(tx, st[17] + 1), x[1]) for x in wo]
        if o["otouch"].isdigit():
            put(int(o["otouch"]), ["s_mov_b64 exec, 0xffff", self.touch(55, sOUT, 0), "s_mov_b64 exec, -1"], 0, True)
        for x in o["ctouch"].split("+"):
            if x.isdigit():
                put(int(x), self.retouch(55), 0, True)
        self.planinfo += f" | stores {st} | flags {t5} {t9} checks {tx} {ty} | loads {l1} {l2} {l3} | used {used}"
        p = [self.k_reads(0), self.qk(0), self.k_reads(1)]
        sch = o["asch"]
        for t in range(64):
            e = [f"v_exp_f32 v{SREG + 16 * (t & 1) + i}, v{SREG + 16 * (t & 1) + i}" for i in range(16)]
            if t == self.b1tile:
                p += [barrier(need=["kvl"], drain_lds=False),
                      self.ts("b1")]
            if o["zoom"] == "att" and t % 5 == 0:
                p += self.ts(f"z{t}")
            k = 0
            for c in sch:
                if c.isdigit():
                    p += e[k:k + int(c)]
                    k += int(c)
                elif c in "aB" and t > 0:
                    p.append(self.pv(t - 1)[c == "B"])
                elif c == "A":
                    p.append(self.pv(t)[0])
                elif c in "RM" and t < 63:
                    p.append(self.qk(t + 1)[c == "M"])
                elif c == "v":
                    p += self.v_reads(t)
                elif c == "k" and t < 62:
                    p += self.k_reads(t + 2)
                elif c in "ef":
                    p += ex[t][c == "f"]
                elif c in "LHX":
                    p.append(f"s_setprio {'LHX'.index(c)}")
            assert k == 16
        if "a" in sch:
            p += [self.pv(63)[0], "s_setprio 2"]
        p += [self.pv(63)[1]]
        return p

    def slow_path(self):
        S = SREG
        mx, ak, av, ar = f"v{ATM}", f"v{AK}", f"v{AV}", f"v{AR}"

        def qk(q):
            o = f"    ds_read_b128 {vr(KM, 4)}, {ak} offset:{1024 * q}\n"
            o += f"    ds_read_b32 v{KR}, {ar} offset:{8704 + 256 * (q >> 1)}\n"
            o += "    s_waitcnt lgkmcnt(0)\n"
            o += "    " + self.qk(q)[0].text.replace(vr(S + 16, 16), vr(S, 16)) + "\n"
            o += "    " + self.qk(0)[1].text + "\n    s_nop 15\n"
            return o

        adv = f"""    v_add_u32 {ak}, 9216, {ak}
    v_add_u32 {av}, 9216, {av}
    v_add_u32 {ar}, 9216, {ar}
    s_sub_u32 {s_t0}, {s_t0}, 1
    s_cmp_lg_u32 {s_t0}, 0
"""
        s = f"""    v_mov_b32 v{QRA + 1}, 0
    v_mov_b32 v{QRB + 1}, 0
    v_mov_b32 {mx}, 0xff800000
    s_mov_b32 {s_t0}, 16
L_slow1:
"""
        for q in range(4):
            s += qk(q)
            for i in range(8):
                s += f"    v_max3_f32 {mx}, {mx}, v{S + 2 * i}, v{S + 2 * i + 1}\n"
        s += adv + f"""    s_cbranch_scc1 L_slow1
    v_mov_b32 v{ATM + 1}, {mx}
    s_nop 1
    v_permlane32_swap_b32 v{ATM + 1}, {mx}
    s_nop 1
    v_max_f32 {mx}, {mx}, v{ATM + 1}
    v_subrev_u32 {ak}, {16 * 9216}, {ak}
    v_subrev_u32 {av}, {16 * 9216}, {av}
    v_subrev_u32 {ar}, {16 * 9216}, {ar}
    s_mov_b32 {s_t0}, 16
L_slow2:
"""
        for q in range(4):
            s += f"""    s_mov_b64 exec, {s_msk}
    ds_read_b128 {vr(VA, 4)}, {av} offset:{4096 + 1152 * q}
    ds_read_b128 {vr(VB, 4)}, {av} offset:{4096 + 1152 * q + 576}
    s_mov_b64 exec, -1
"""
            s += qk(q)
            for i in range(16):
                s += f"    v_sub_f32 v{S + i}, v{S + i}, {mx}\n"
            for i in range(16):
                s += f"    v_exp_f32 v{S + i}, v{S + i}\n"
            s += "    s_nop 1\n    " + self.pv(0)[0].text + "\n    " + self.pv(0)[1].text + "\n    s_nop 3\n"
        s += adv + "    s_cbranch_scc1 L_slow2\n"
        pa, pb = self.p_poll(9), self.p_poll(1, True)
        return [label("L_slow"), self.a0_dma(), [self.p_store(u) for u in range(self.o["nst"], 18)],
                raw("    s_waitcnt vmcnt(0) lgkmcnt(0)\n    s_barrier"), self.p_flag(9, []), raw(s),
                pa, pb, [c for l in self.bg_loads() for _, c in l],
                raw("    s_waitcnt vmcnt(0) lgkmcnt(0)\n    s_nop 15\n    s_branch L_att_done")]

    def final(self, PB, WB):
        O, ost = OREG, self.o["ost"].replace("+", " ")
        tok, g, x0, x1 = "v34", "v35", "v36", "v37"
        SEL, SIX, GG, G1 = 24, 32, 2, 58
        AB, AA, NB_, NA = 64, 72, 80, 88
        BB, OL, W9 = PB, 40, WREG + 80
        p = [f"""
    v_and_b32 {tok}, 15, v{LANE}
    v_lshrrev_b32 {g}, 4, v{LANE}
    v_lshlrev_b32 {x0}, 3, {tok}
    v_lshl_add_u32 {x0}, {g}, 2, {x0}
    s_lshr_b32 {s_t0}, {s_j}, 2
    s_lshl2_add_u32 {s_t0}, {s_tt}, {s_t0}
    s_mul_i32 {s_t0}, {s_t0}, {OBLK}
    s_add_u32 {s_t0}, {s_t0}, {WS_O:#x}
    s_lshl_b32 {s_t1}, {s_w}, 9
    s_lshl3_add_u32 {s_d0}, {s_t1}, {s_t0}
    s_add_u32 {s_d1}, {s_t1}, {s_t0}
    s_add_u32 {s_d1}, {s_d1}, {32 * KB}
    v_rcp_f32 v{O + 10}, v{O + 10}"""]
        p += [f"v_mul_f32 v{O + i}, v{O + i}, v{O + 10}" for i in range(8)]
        p += [f"v_cvt_pk_bf16_f32 v{O + 12 + i}, v{O + 2 * i}, v{O + 2 * i + 1}" for i in range(4)]
        p += [I(f"buffer_store_dwordx4 {vr(O + 12, 4)}, v{L16}, {sWS}, {s_oun} offen sc1"),
              [f"v_mul_f32 v{O + i}, v{O + i}, v{O + 10}" for i in (8, 9)],
              f"v_cvt_pk_bf16_f32 v{O + 11}, v{O + 8}, v{O + 9}",
              "s_mov_b32 exec_hi, 0",
              I(f"buffer_store_dword v{O + 11}, {x0}, {sWS}, {s_our} offen sc1"),
              "s_mov_b64 exec, -1", "s_setprio 0", self.ts("oflag")]
        l8, aw, ar, ast, an9 = "v4", "v5", "v38", "v39", "v1"
        awr, ard, a9r, go, go9 = (f"v{O + i}" for i in range(5))
        p += [f"""
    s_mul_i32 {s_t0}, {s_cq}, 288
    s_add_u32 {s_t0}, {s_t0}, {WOSCR}
    v_lshl_add_u32 {x1}, {g}, 3, {s_t0}
    s_lshl_b32 {s_t1}, {s_w}, 5
    v_add_u32 {x0}, {s_t1}, {x1}
    s_lshr_b32 {s_t1}, {s_j}, 2
    s_lshl_b32 {s_t1}, {s_t1}, 7
    s_add_u32 {s_t1}, {s_t1}, {L_GT}
    v_lshl_add_u32 {l8}, {tok}, 2, {s_t1}
    ds_read_b64 {vr(BIA, 2)}, {x0}
    ds_read_b64 {vr(BI9, 2)}, {x1} offset:256
    ds_read2_b32 {vr(GG, 2)}, {l8} offset0:0 offset1:16
    v_lshrrev_b32 {x0}, 2, {tok}
    v_and_b32 {x1}, 1, {g}
    v_lshlrev_b32 {x1}, 1, {x1}
    v_cmp_eq_u32 vcc, {x0}, {x1}
    v_mov_b32 {l8}, 0x3f80
    v_add_u32 {x1}, 1, {x1}
    v_cndmask_b32 v{SEL}, 0, {l8}, vcc
    v_cndmask_b32 v{SEL + 5}, 0, {l8}, vcc
    v_cmp_eq_u32 vcc, {x0}, {x1}
    v_and_b32 {x0}, 3, {tok}
    v_mul_u32_u24 v{SIX}, 0x5555, {x0}
    v_cndmask_b32 v{SEL + 2}, 0, {l8}, vcc
    v_cndmask_b32 v{SEL + 7}, 0, {l8}, vcc
    v_cmp_eq_u32 vcc, 1, {x1}
    v_mov_b32 v{SEL + 1}, 0
    v_mov_b32 v{SEL + 3}, 0
    v_mov_b32 v{SEL + 4}, 0
    v_mov_b32 v{SEL + 6}, 0
    v_lshlrev_b32 {l8}, 3, v{LANE}
    s_cmp_eq_u32 {s_w}, 0
    s_cselect_b32 {s_t0}, -1, 0""", barrier(drain_lds=False), self.ts("t_b2")]
        common, p = p, []
        init = []
        for acc, b, m in ((AB, BIA, None), (NB_, BI9, s_t0)):
            if m:
                init += [f"v_and_b32 v{b + i}, {m}, v{b + i}" for i in range(2)]
            for t in range(2):
                for i in range(2):
                    init += [f"v_lshlrev_b32 v{acc + 4 * t + 2 * i}, 16, v{b + i}",
                             f"v_and_b32 v{acc + 4 * t + 2 * i + 1}, 0xffff0000, v{b + i}"]
        sums = [I(f"v_smfmac_f32_16x16x64_bf16 {vr((AB if k < 8 else NB_) + 4 * t, 4)}, {vr(SEL + 4 * t, 4)}, "
                  f"{vr(PB + 8 * k, 8)}, v{SIX}") for k in range(9) for t in range(2)]
        load = [f"buffer_load_dwordx4 {vr(OL + 4 * k, 4)}, v{L16}, {sWS}, {s_d0} offen offset:{KB * k} sc1" for k in range(4)]
        load.append(f"buffer_load_dwordx2 {vr(OL + 16, 2)}, {l8}, {sWS}, {s_d1} offen sc1")
        test = [f"v_max3_u32 {x0}, v{OL}, v{OL + 1}, v{OL + 2}", f"v_max3_u32 {x1}, v{OL + 3}, v{OL + 4}, v{OL + 5}"]
        test += [f"v_max3_u32 {(x0, x1)[i & 1]}, {(x0, x1)[i & 1]}, v{OL + 6 + 2 * i}, v{OL + 7 + 2 * i}" for i in range(6)]
        test += [f"v_max_u32 {x0}, {x0}, {x1}", f"v_cmp_eq_u32 vcc, -1, {x0}"]
        addr = f"""
    v_cndmask_b32 v{W9 + 2}, v{W9}, v{SEL + 1}, vcc
    v_cndmask_b32 v{W9 + 3}, v{W9 + 1}, v{SEL + 1}, vcc
    v_cndmask_b32 v{W9}, 0, v{W9}, vcc
    v_cndmask_b32 v{W9 + 1}, 0, v{W9 + 1}, vcc
    v_sub_f32 v{G1}, 1.0, v{GG}
    v_sub_f32 v{G1 + 1}, 1.0, v{GG + 1}
    s_lshl_b32 {s_t1}, {s_w}, 12
    v_add_u32 {aw}, {s_t1}, v{L16}
    s_lshl_b32 {s_t1}, {s_w}, 9
    v_add_u32 {awr}, {s_t1}, {l8}
    v_lshlrev_b32 {ar}, 9, {g}
    v_lshl_add_u32 {ar}, {tok}, 3, {ar}
    v_mul_u32_u24 {ast}, 272, {tok}
    v_lshl_add_u32 {ast}, {g}, 3, {ast}
    s_lshl_b32 {s_t1}, {s_w}, 5
    v_add_u32 {ast}, {s_t1}, {ast}
    v_lshlrev_b32 {an9}, 6, {tok}
    v_lshl_add_u32 {an9}, {g}, 4, {an9}
    s_lshl_b32 {s_t1}, {s_w}, 11
    v_add_u32 {an9}, {s_t1}, {an9}
    s_lshl_b32 {s_t1}, {s_w}, 2
    v_add_u32 {go}, {s_t1}, {g}
    v_mul_u32_u24 {ard}, 272, {go}
    v_lshl_add_u32 {ard}, {tok}, 4, {ard}
    s_lshl_b32 {s_t1}, {s_w}, 8
    s_add_u32 {s_t1}, {s_t1}, {L_N9}
    v_lshl_add_u32 {a9r}, v{LANE}, 2, {s_t1}
    v_mul_u32_u24 {go}, 1152, {go}
    v_lshl_add_u32 {go9}, {tok}, 1, {go}
    v_lshl_add_u32 {go}, {tok}, 4, {go}
    s_lshr_b32 {s_t0}, {s_j}, 2
    s_lshl2_add_u32 {s_t0}, {s_tt}, {s_t0}
    s_mul_i32 {s_t0}, {s_t0}, {32 * 1152}
    s_mul_i32 {s_t1}, {s_cq}, 288
    s_add_u32 {s_t0}, {s_t0}, {s_t1}""".strip().split("\n")
        n0 = self.o["oearly"]
        fill = init[8:] + addr
        p += init[:8]
        for i, m in enumerate(sums):
            p += [load if i == n0 else [], m, fill[2 * i:2 * i + 2]]
        p += [load if n0 >= len(sums) else [], fill[36:]]
        p += [f"v_mul_f32 v{a + 4 * t + i}, v{a + 4 * t + i}, v{G1 + t}" for a in (AB, NB_) for t in range(2) for i in range(4)]
        p += [self.ts("t_sum"), self.spin(load, test, sleep=1, far=False), self.ts("opoll")]
        p += [I(f"v_mfma_f32_16x16x16_bf16 {vr(NA + 4 * t, 4)}, {vr(W9 + 2 * t, 2)}, {vr(OL + 16, 2)}, 0") for t in range(2)]
        for k in range(4):
            p += [mf16(NA + 4 * (k & 1), WREG + 72 + 4 * (k >> 1), OL + 4 * k)]
        p += [f"ds_write_b128 {aw}, {vr(OL + 4 * k, 4)} offset:{KB * k}" for k in range(4)]
        p += [f"ds_write_b64 {awr}, {vr(OL + 16, 2)} offset:{32 * KB}"]
        for t in range(2):
            p += [f"v_fmac_f32 v{NB_ + 4 * t + i}, v{NA + 4 * t + i}, v{GG + t}" for i in range(4)]
            p.append(f"ds_write_b128 {an9}, {vr(NB_ + 4 * t, 4)} offset:{L_N9 + 1024 * t}")
        p += [barrier(), self.ts("oland")]
        seq = []
        NBUF, N9 = 10, NB_
        for k in range(18):
            for t in range(2):
                b = BB + 4 * (len(seq) % NBUF)
                m = mf16(AA + 4 * t, WB + 4 * k, b, "0" if k == 0 else None)
                if t == 0:
                    m.needregs = {("v", b + 7)}
                if k < 16:
                    seq.append(([f"ds_read_b128 {vr(b, 4)}, v{L16} offset:{2048 * k + 1024 * t}"], m))
                else:
                    seq.append(([f"ds_read_b64 {vr(b + 2 * i, 2)}, {ar} offset:{2048 * k + 128 * t + 256 * i}"
                                 for i in range(2)], m))
        nine = [f"v_add_f32 v{N9 + 2 * i}, v{N9 + 2 * i}, v{N9 + 1 + 2 * i}" for i in range(4)]
        nine += [f"v_add_f32 v{N9}, v{N9}, v{N9 + 2}", f"v_add_f32 v{N9 + 4}, v{N9 + 4}, v{N9 + 6}",
                 f"v_add_f32 v{N9}, v{N9}, v{N9 + 4}", f"v_cvt_pk_bf16_f32 v{N9}, v{N9}, v{N9}",
                 I(f"buffer_store_short v{N9}, {go9}, {sOUT}, {s_t0} offen offset:256 {ost}")]
        rd = [x[0] for x in seq]
        p += rd[:NBUF]
        p += [f"ds_read2st64_b32 {vr(N9 + 2 * i, 2)}, {a9r} offset0:{16 * i} offset1:{16 * i + 8}" for i in range(4)]
        for i in range(len(seq)):
            p += [seq[i][1], rd[i + NBUF:i + NBUF + 1], nine[i - 27:i - 26] if i >= 27 else []]
        p += self.ts("t_mm")
        for t in range(2):
            p += [f"v_fmac_f32 v{AB + 4 * t + i}, v{AA + 4 * t + i}, v{GG + t}" for i in range(4)]
            p += [f"v_cvt_pk_bf16_f32 v{AA + 4 * t + i}, v{AB + 4 * t + 2 * i}, v{AB + 4 * t + 2 * i + 1}" for i in range(2)]
            p.append(f"ds_write_b64 {ast}, {vr(AA + 4 * t, 2)} offset:{L_STG + 16 * 272 * t}")
        p += [self.ts("t_wr"), barrier(), self.ts("t_b4"), f"ds_read_b128 {vr(OL, 4)}, {ard} offset:{L_STG}",
              I(f"buffer_store_dwordx4 {vr(OL, 4)}, {go}, {sOUT}, {s_t0} offen {ost}"), self.ts("t_st")]
        return common, p

    def diag_dump(self):
        if not self.o["diag"]:
            return self.ts("end")
        s = "    s_waitcnt vmcnt(0)\n"
        p = [raw(s), self.ts("end")]
        s = f"""    s_memtime s[100:101]
    s_waitcnt lgkmcnt(0)
    s_sub_u32 s100, s100, s98
    s_lshl_b32 {s_t0}, s2, 3
    s_add_u32 {s_t0}, {s_t0}, {s_w}
    s_lshl_b32 {s_t0}, {s_t0}, 6
    s_add_u32 {s_t0}, {s_t0}, {WS_DIAG:#x}
    s_mov_b64 exec, 1
"""
        srcs = ["s98" if self.o["diag"] == 2 else "s96", "s100"] + [f"s{4 + 2 * k}" for k in range(self.nts)]
        for i, r in enumerate(srcs):
            s += f"    v_mov_b32 v1, {r}\n    buffer_store_dword v1, v{L16}, {sWS}, {s_t0} offen offset:{4 * i}\n"
        return p + [raw(s)]

    def experiments(self, text):
        o = self.o
        out = []
        nb = 0
        for l in text.split("\n"):
            if "s_barrier" in l:
                nb += 1
            if o["x_nodma"] and nb > 9 and (" lds" in l or "load_lds" in l):
                continue
            if o["x_nost"] and nb > 9 and "buffer_store_dwordx4" in l:
                continue
            if nb < 10 and any(o["x_s"] >> i & 1 and k in l for i, k in enumerate(("mfma", "read_b128", "_tr_", " lds"))):
                continue
            if o["x_noex"] and nb < 20 and "ds_write_b" in l and nb > 9:
                continue
            if o["x_nogelu"] and nb < 25 and any(f" v{TMP + i}," in l for i in range(4)) and l.strip().startswith("v_") \
                    and "mfma" not in l:
                continue
            out.append(l)
        return "\n".join(out)

    def build(self):
        self.plan()
        side = []
        t0, f0 = finalize([self.prologue(), f"s_cmp_eq_u32 {s_hf}, 0", "s_cbranch_scc1 L_half0"], want_state=True)
        th, fh = [], []
        for h in (1, 0):
            t, f = finalize([label(f"L_half{h}"), self.ffn(h), "s_branch L_join" if h else []],
                            init=[f0], want_state=True, side=side)
            th.append(self.experiments(t))
            fh.append(f)
        slow = [] if self.o["x_fast"] else [f"s_cmp_lg_u64 {s_slow}, 0", "s_cbranch_scc1 L_slow"]
        t1, f1 = finalize([label("L_join"), self.ts("a0"), slow, self.attention(), label("L_att_done"), self.ts("aend"),
                           self.final(PREG, WREG)[0], f"s_cmp_lt_u32 {s_cq}, 2", "s_cbranch_scc0 L_fin2"],
                          init=fh, want_state=True, side=side)
        ta, _ = finalize([self.final(PREG, WREG)[1], "s_branch L_out" if self.o["diag"] or self.o["x_pad"] else "s_endpgm"],
                         init=[f1])
        tb, stats = finalize([label("L_fin2"), self.final(WREG, PREG)[1], label("L_out"), self.diag_dump(),
                              label("L_end"), "s_endpgm"], init=[f1])
        t1 += ta + tb
        text = t0 + th[0] + th[1] + t1
        text2, _ = finalize(self.slow_path(), side=side)
        text2 = "\n".join(side) + "\n" + text2
        self.stats = stats
        ref = open(f"cdna_kernels/{NAME}.s.ref").read().split("\n")
        head = [l for l in ref if l.startswith(";") and "@launch" not in l and "Override launch" not in l
                and "grid=ceil" not in l]
        out = "\n".join(head) + f"""
; @launch grid=(256,1,1) block=(512,1,1) lds=163840
; Generated by gen/gen.py. One workgroup per CU: 128 tokens x (288 hidden units, 2 heads).
.amdgcn_target "amdgcn-amd-amdhsa--gfx950"
.text
.globl {NAME}_kernel
.p2align 8
.type {NAME}_kernel,@function
{NAME}_kernel:
{text}{text2}L_pad:
    .fill (65536 + 256 - (L_pad - {NAME}_kernel) + 3) / 4, 4, 0xbf810000
.section .rodata,"a"
.p2align 6
.amdhsa_kernel {NAME}_kernel
  .amdhsa_next_free_vgpr 256
  .amdhsa_next_free_sgpr 102
  .amdhsa_accum_offset 256
  .amdhsa_group_segment_fixed_size 0
  .amdhsa_kernarg_size 112
  .amdhsa_user_sgpr_count 2
  .amdhsa_user_sgpr_kernarg_segment_ptr 1
  .amdhsa_system_sgpr_workgroup_id_x 1
.end_amdhsa_kernel
"""
        return out


def parse_opts(args):
    kw = {}
    for a in args:
        k, v = a.split("=", 1)
        d = DEFAULTS[k]
        kw[k] = type(d)(v)
    return kw


if __name__ == "__main__":
    out = sys.argv[1]
    g = Gen(**parse_opts(sys.argv[2:]))
    open(out, "w").write(g.build())
    print(g.stats, g.tsnames)
```

```python
import math
import struct
import sys

from asmlib import I, barrier, divert, finalize, flat, label, opt_begin, opt_end, raw, rebase, setbase, vr, wait

NAME = "gated_mix__grouped_kv_mqa__dense_activation_gelu__prompt"
KB = 1024
U = 8192

DEFAULTS = dict(
    b=4,
    diag=0,
    early=3,
    burst=18,
    lead=22,
    hoist=1,
    mdma=0,
    ex64=0,
    rsteps=3,
    mlds=1,
    nbuf=6,
    hqa="1+1+1+1+1+0+1",
    hqb="1+1+1+1+1.5+0.5+0",
    kvsig="g2",
    kvpoll="g6",
    kv0=2,
    pace=2.5,
    fdelay=7,
    xwin=23,
    nst=7,
    plast=61,
    kvcap=12,
    pst="sc1",
    ost="sc1",
    asch="aXeBvRMkfL4H66",
    touch=9,
    waux="",
    otouch="r1_2",
    pdist=3,
    dbl=0,
    ywin=43,
    st0=0,
    ctouch="48",
    qtouch="r2_0", qmask="-1", top=32, tstep=2, wojob="r1_1+r2_1", r1t=0, b1split=1, mdmaq=0, mdmag=0, sink=0, sinkq=0, odma=0, olate=1, even=1, chain=1, nstart=2, first=3, mid=6, capx=5, capr=8, dsp=1, dspg=1, dlast=1, capq=6, capg=10,
    rot=1,
    thr=40.0,
    oearly=8,
    force_slow=0,
    zoom="",
    x_pad="",
    x_s=0, x_nodma=0, x_noex=0, x_nogelu=0, x_nost=0, x_fast=0,
)


def f32(x):
    return "0x%08x" % struct.unpack("<I", struct.pack("<f", x))[0]


WS_KV, WS_KN, WS_E, WS_F, WS_WO, WS_O, WS_P = 0, 147456, 0x28000, 0x30000, 0x40000, 0x100000, 0x400000
WS_DIAG, WS_SIZE = 0x3000000, 0x4000000
OBLK = 36 * KB
SL = 4096
XREG = [88 * KB, 104 * KB, 120 * KB, 136 * KB]
EX1, EX2, EX2H = 104 * KB, 116 * KB, 132 * KB
QSCR, MISC = 140 * KB, 152 * KB
L_B1, L_GATE, WOSCR = MISC, MISC + 2048, MISC + 4096
L_GT, L_DUMMY = MISC + 2048 + 1152, MISC + 1536
L_STG, L_N9 = 40 * KB, 50 * KB
QP = 104

sX, sW1, sW2, sWS, sDBG, sOUT, sWO, sB1, sB2, sG = (f"s[{a}:{a + 3}]" for a in range(32, 72, 4))
s_w, s_p, s_hf, s_tt, s_j = "s72", "s73", "s74", "s75", "s76"
s_xo, s_m, s_w1o, s_who, s_rc = "s77", "s78", "s79", "s80", "s81"
s_w2a, s_w2b, s_fl, s_cq, s_pst, s_oun = "s82", "s83", "s84", "s85", "s86", "s87"
s_t0, s_t1, s_d0, s_d1 = "s88", "s89", "s90", "s91"
s_msk, s_slow = "s[92:93]", "s[94:95]"
s_t2 = "s3"
s_wj, s_wo = "s68", "s69"
s_tw = ["s0", "s1", "s92", "s60", "s61", "s62", "s63", "s70", "s71"]
s_non, s_our = "s93", "s69"
s_tag, s_w9 = "s68", "s81"
s_wh2 = "s70"
s_w9r, s_fc = "s60", "s61"

L16, C0, AW, A16, DW1, AWH, AQ, TMP = 0, 1, 2, 6, 7, 8, 9, 12
AKV, DQ, SQ, AKN, DW2, AEXW, LANE, DWH = 11, 16, 18, 19, 20, 21, 22, 23
QN2, AFP, AFW = 23, 1, 5
ABUF, ACC, HOWN, HH, XO = 24, 40, 72, 104, 112
TOUT, TW2, WJD, WJA, WJV, EPO = 99, 100, 101, 102, 92, 103
GTA, GTB = 80, 84
AQ2 = 56
GADDR, GBUF, GACC, T, GP = 128, 136, 144, 200, 208
QM, QRA, QRB, KM, KR, IDX, VA, VB = 40, 44, 46, 48, 52, 54, 56, 60
SREG, OREG, PREG, WREG, ATM = 64, 6, 100, 172, 38
AK, AV, AR = 2, 3, 4
BIA, BI9 = 96, 98


def X(ks, t):
    return XO + 72 * t + 4 * ks


LOG2E = math.log2(math.e)
GC0 = -2.0 * LOG2E * math.sqrt(2.0 / math.pi)
GC1 = GC0 * 0.044715
QSCALE = LOG2E / math.sqrt(18.0)


def ds(text, off, **kw):
    return I(text, off=off, **kw)


def mf16(d, a, b, c=None):
    c = vr(d, 4) if c is None else c
    return I(f"v_mfma_f32_16x16x32_bf16 {vr(d, 4)}, {vr(a, 4)}, {vr(b, 4)}, {c}")


class Gen:
    def __init__(self, **kw):
        self.o = dict(DEFAULTS)
        self.o.update(kw)
        self.nl = 0
        self.nts = 0
        self.tsnames = []
        self.gload = {}
        self.safe = {}

    def lab(self, s):
        self.nl += 1
        return f"L_{s}_{self.nl}"

    def ts(self, name, nopad=False):
        if self.o["x_pad"] == name and not nopad:
            l = self.lab("pad")
            sync = "s_and_b32 s96, s96, 0xfffff000" if self.o["diag"] else "s_nop 0"
            return [raw(f"""    {sync}
{l}:
    s_memrealtime s[100:101]
    s_waitcnt lgkmcnt(0)
    s_sub_u32 s100, s100, s96
    s_cmp_lt_u32 s100, 10000
    s_cbranch_scc1 {l}"""), self.ts(name, True)]
        if self.o["zoom"] == "tail":
            if name not in ("aend", "oflag", "t_sum", "t_b2", "opoll", "oland", "t_mm", "t_wr", "t_b4", "t_st", "end"):
                return []
        elif not self.o["diag"] or (self.o["zoom"] and name[0] != "z" and name != "end") or name[:2] == "t_":
            return []
        if name not in self.tsnames:
            self.tsnames.append(name)
            self.nts += 1
        k = self.tsnames.index(name)
        assert k < 14
        op = "s_memtime" if self.o["diag"] == 2 else "s_memrealtime"
        return [raw(f"    {op} s[{4 + 2 * k}:{5 + 2 * k}]")]

    def cond(self, cmp, body):
        l = self.lab("skip")
        return [cmp, f"s_cbranch_scc0 {l}", opt_begin(), body, opt_end(), label(l)]

    def far(self, cmp, body):
        lf, lb = self.lab("far"), self.lab("back")
        return [cmp, f"s_cbranch_scc1 {lf}", opt_begin(), divert(True), label(lf), body, f"s_branch {lb}",
                divert(False), opt_end(), label(lb)]

    def spin(self, load, test, sleep=2, far=True, mid=()):
        lo, ld = self.lab("ok"), self.lab("spin")
        nl = "\n    "
        return [test, (self.far if far else self.cond)("s_cmp_lg_u64 vcc, 0", [
                raw(f"""    s_mov_b32 {s_t2}, 0x8000
{ld}:
    s_sleep {sleep}
    {nl.join(load)}
    s_waitcnt vmcnt(0)
    {nl.join(list(mid) + ["s_waitcnt lgkmcnt(0)"] * bool(mid) + test)}
    s_nop 1
    s_cmp_eq_u64 vcc, 0
    s_cbranch_scc1 {lo}
    s_sub_u32 {s_t2}, {s_t2}, 1
    s_cmp_lg_u32 {s_t2}, 0
    s_cbranch_scc1 {ld}
{lo}:""")])]

    def lane0(self, *ins):
        return ["s_mov_b64 exec, 1", list(ins), "s_mov_b64 exec, -1"]

    def touch(self, vaddr, srd, soff):
        return [f"s_mov_b32 m0, {L_DUMMY}", I(f"buffer_load_dword v{vaddr}, {srd}, {soff} offen lds")]

    def retouch(self, tmp):
        l = self.lab("pc")
        return [raw(f"    s_getpc_b64 s[32:33]\n{l}:"), f"""
    s_bfe_u32 {s_t0}, s2, 0x30003
    s_lshl_b32 {s_t1}, {s_w}, 6
    s_add_u32 {s_t0}, {s_t0}, {s_t1}
    s_lshl_b32 {s_t0}, {s_t0}, 7
    s_sub_u32 s32, s32, {l}-L_pc
    s_subb_u32 s33, s33, 0
    v_lshl_add_u32 v{tmp}, v{L16}, 6, {s_t0}
    s_mov_b32 m0, {L_DUMMY}
    s_mov_b64 exec, 0xff""", I(f"global_load_lds_dword v{tmp}, s[32:33]"), "s_mov_b64 exec, -1"]

    def prologue(self):
        o = self.o
        b, tch = o["b"], o["touch"]
        zp = o["zoom"] == "pro"
        assert b in (4, 8) or not tch & 8
        nb, lb = 16 // b, b.bit_length() - 1
        t = HOWN + 5
        l3, l7, g, tok, r, c4, w1 = (f"v{t + i}" for i in range(7))
        a, bb, cc = f"v{t + 7}", f"v{t + 8}", f"v{t + 9}"
        DX = HOWN + 4
        s_bf, s_mw = s_pst, s_oun
        p = []
        if o["diag"] or o["x_pad"]:
            p += [raw("    s_memrealtime s[96:97]\n    s_memtime s[98:99]")]
        p += [f"""
    s_cmp_ge_u32 s2, 256
    s_cbranch_scc1 L_end""", raw("""    s_load_dwordx16 s[4:19], s[0:1], 0
    s_load_dwordx8 s[20:27], s[0:1], 64
    s_load_dwordx4 s[28:31], s[0:1], 96""")]
        if tch & 1 and not tch & 16:
            p += [raw("""    s_getpc_b64 s[92:93]
L_pc:"""), f"""
    s_bfe_u32 {s_t0}, s2, 0x30003
    v_lshrrev_b32 {a}, 3, v0
    v_and_b32 {bb}, 7, v0
    v_or_b32 {bb}, {a}, {bb}
    v_lshl_add_u32 {bb}, {bb}, 3, {s_t0}
    v_lshlrev_b32 {bb}, 7, {bb}
    s_mov_b32 m0, {L_DUMMY}
    s_mov_b64 exec, 0xff""", I(f"global_load_lds_dword {bb}, s[92:93]"), "s_mov_b64 exec, -1"]
        p += [f"""
    v_lshrrev_b32 {a}, 6, v0
    v_and_b32 v{LANE}, 63, v0
    v_readfirstlane_b32 {s_w}, {a}"""]
        if tch & 1 and tch & 16:
            p += [self.cond(f"s_cmp_eq_u32 {s_w}, 7", [raw("""    s_getpc_b64 s[92:93]
L_pc:"""), f"""
    s_bfe_u32 {s_t0}, s2, 0x30003
    v_lshl_add_u32 {bb}, v{LANE}, 3, {s_t0}
    v_lshlrev_b32 {bb}, 7, {bb}
    s_mov_b32 m0, {L_DUMMY}""", I(f"global_load_lds_dword {bb}, s[92:93]")])]
        p += [f"""
    v_lshrrev_b32 {l3}, 3, v{LANE}
    v_and_b32 {l7}, 7, v{LANE}
    v_lshrrev_b32 {g}, 4, v{LANE}
    v_and_b32 {w1}, 1, {a}
    v_lshlrev_b32 {w1}, 2, {w1}
    s_and_b32 {s_t0}, s2, {nb - 1}
    s_lshl_b32 {s_j}, {s_t0}, {lb}
    s_lshr_b32 {s_t0}, s2, 3
    s_and_b32 {s_t1}, {s_t0}, {b - 1}
    s_add_u32 {s_j}, {s_j}, {s_t1}
    s_lshr_b32 {s_tt}, {s_t0}, {lb}"""]
        if o["rot"]:
            m = (s_t1, s_tt) if b <= 4 else (s_tt, s_t1)
            p += [f"""
    s_lshl1_add_u32 {s_rc}, {m[0]}, {m[1]}
    s_sub_u32 {s_t1}, {s_rc}, 9
    s_min_u32 {s_rc}, {s_rc}, {s_t1}"""]
            assert b in (4, 8)
        else:
            p += [f"s_mov_b32 {s_rc}, 0"]
        p += [f"""
    s_bfe_u32 {s_t0}, s2, {((3 - (nb.bit_length() - 1)) << 16) | (nb.bit_length() - 1):#x}
    s_mul_i32 {s_t0}, {s_t0}, {32 // b}
    s_add_u32 {s_tt}, {s_tt}, {s_t0}
    s_lshl_b32 {s_mw}, {s_w}, 10
    s_lshl4_add_u32 {s_t0}, {s_tt}, {s_w}
    s_mul_i32 {s_xo}, {s_t0}, {8 * 1152}
    s_and_b32 {s_t1}, {s_j}, 1
    s_mul_i32 {s_t0}, {s_j}, 576
    s_lshl_b32 {s_t2}, {s_t1}, 6
    s_add_u32 {s_bf}, {s_t0}, {s_t2}
    s_mul_i32 {s_w1o}, {s_w}, {8 * 9216}
    s_add_u32 {s_w1o}, {s_w1o}, {s_bf}
    v_add_u32 {a}, {w1}, {g}
    v_xor_b32 {a}, {a}, {l7}
    v_mul_u32_u24 {bb}, 1152, {l3}
    v_lshl_add_u32 v{DX}, {a}, 4, {bb}
    v_and_b32 {a}, 1, {g}
    v_lshl_add_u32 {a}, {a}, 1, {w1}
    v_xor_b32 {cc}, {a}, {l7}
    v_mul_u32_u24 v{DW1}, 9216, {l3}
    v_lshl_add_u32 v{DW1}, {cc}, 4, v{DW1}
    s_mov_b32 s34, {2048 * 1152}
    s_mov_b32 s35, 0x20000
    s_mov_b32 s38, {576 * 9216}
    s_mov_b32 s39, 0x20000
    s_mov_b32 {s_fl}, {s_rc}""", raw("    s_waitcnt lgkmcnt(0)"), raw("    s_memrealtime s[94:95]") if zp else [], """
    s_mov_b32 s32, s4
    s_mov_b32 s33, s5
    s_mov_b32 s36, s16
    s_mov_b32 s37, s17"""]
        pre = [q for q in self.P if q["issue"] < 0]
        burst = []
        for q, z in zip(pre[0::2], pre[1::2]):
            assert (q["h"], z["h"], z["at"] - q["at"]) == (0, 1, SL)
            burst.append(self.dma_code(q, s_mw if len(burst) < o["mid"] else s_t0, z["pc"]))
        assert max(q["pc"][2] for q in pre if q["pc"][0] == "w") < 6
        t1 = [f"s_add_u32 {s_d0}, {s_tw[0]}, 128", "s_mov_b32 exec_lo, 0x01010101", "s_mov_b32 exec_hi, 0x01010101",
              self.touch(DW1, sW1, s_d0), "s_mov_b64 exec, -1"]
        p += [burst[:o["first"]], f"""
    v_lshl_add_u32 v{t + 10}, v0, 1, {s_t2}
    s_mul_i32 {s_t2}, {s_t1}, 576
    v_subrev_u32 {a}, {s_t2}, v{t + 10}
    v_cmp_gt_u32 vcc, 0x100, v0
    s_mov_b32 s60, s18
    s_mov_b32 s61, s19
    s_mov_b32 s62, 9216
    s_mov_b32 s63, 0x20000
    v_cndmask_b32 v{t + 13}, {a}, v{t + 10}, vcc
    s_lshl_b32 {s_t2}, {s_fl}, 7
    v_lshlrev_b32 v{t + 11}, 2, v0
    v_add_u32 v{t + 10}, {s_t2}, v{t + 11}
    v_subrev_u32 {a}, 1152, v{t + 10}
    v_min_u32 v{t + 10}, {a}, v{t + 10}
    s_mov_b32 s68, s24
    s_mov_b32 s69, s25
    s_mov_b32 s70, 1152
    s_mov_b32 s71, 0x20000""",
              self.cond(f"s_cmp_lt_u32 {s_w}, 5", [
                  I(f"buffer_load_ushort v{t + 14}, v{t + 13}, {sB1}, {s_t0} offen"),
                  I(f"buffer_load_dword v{t + 15}, v{t + 10}, {sG}, 0 offen")]), burst[o["first"]:o["early"]], raw("    s_memrealtime s[100:101]") if zp else []]
        p += [f"""
    s_lshl3_add_u32 {s_t0}, {s_fl}, {s_w}
    s_lshl_b32 {s_t0}, {s_t0}, 3
    v_add_u32 {tok}, {s_t0}, {l3}
    s_mul_i32 {s_t0}, {s_j}, 72
    s_and_b32 {s_t0}, {s_t0}, 0xfffffff0
    v_mul_u32_u24 {a}, 1152, {tok}
    v_lshl_add_u32 {a}, {cc}, 4, {a}
    v_add_u32 {a}, {s_t0}, {a}
    s_lshl_b32 {s_t0}, {s_t1}, 4
    v_mov_b32 {r}, {s_t0}
    v_cmp_eq_u32 vcc, 5, {cc}
    v_cndmask_b32 {r}, 20, {r}, vcc
    v_mad_u32_u24 {r}, {tok}, 36, {r}
    s_bitcmp1_b32 {s_j}, 1
    s_cselect_b32 s8, s10, s8
    s_cselect_b32 s9, s11, s9
    v_cmp_gt_u32 vcc, 5, {cc}
    v_cndmask_b32 v{SQ}, {r}, {a}, vcc
    v_mov_b32 v{SQ + 1}, 0
    v_mov_b32 {a}, s6
    v_mov_b32 {r}, s8
    v_cndmask_b32 v{DQ}, {r}, {a}, vcc
    v_mov_b32 {a}, s7
    v_mov_b32 {r}, s9
    v_cndmask_b32 v{DQ + 1}, {r}, {a}, vcc
    v_lshl_add_u64 {vr(DQ, 2)}, {vr(SQ, 2)}, 0, {vr(DQ, 2)}
    v_mov_b32 {a}, {64 * 1152}
    v_mov_b32 {r}, {64 * 36}
    v_cndmask_b32 v{SQ}, {r}, {a}, vcc
    s_mov_b32 s40, s20
    s_mov_b32 s41, s21
    s_mov_b32 s42, {4608 * 1152}
    s_mov_b32 s43, 0x20000
    s_mov_b32 s44, s30
    s_mov_b32 s45, s31
    s_mov_b32 s46, {WS_SIZE:#x}
    s_mov_b32 s47, 0x20000
    s_mov_b32 s48, s28
    s_mov_b32 s49, s29
    s_mov_b32 s50, 256
    s_mov_b32 s51, 0x20000
    s_mov_b32 s52, s26
    s_mov_b32 s53, s27
    s_mov_b32 s54, {2048 * 1152}
    s_mov_b32 s55, 0x20000
    s_mov_b32 s56, s12
    s_mov_b32 s57, s13
    s_mov_b32 s58, {576 * 1152}
    s_mov_b32 s59, 0x20000
    s_mov_b32 s64, s22
    s_mov_b32 s65, s23
    s_mov_b32 s66, 1152
    s_mov_b32 s67, 0x20000
    s_mov_b32 {s_non}, 1""", burst[o["early"]:o["mid"]], t1 if o["r1t"] == 1 else [], f"""
    s_and_b32 {s_p}, {s_w}, 3
    s_lshr_b32 {s_hf}, {s_w}, 2
    s_lshl_b32 {s_m}, {s_p}, 10
    s_and_b32 {s_cq}, {s_j}, 3
    s_mul_i32 {s_t0}, {s_j}, 576
    s_xor_b32 {s_t2}, {s_t1}, 1
    s_lshl_b32 {s_t2}, {s_t2}, 9
    s_add_u32 {s_t0}, {s_t0}, {s_t2}
    s_mul_i32 {s_who}, {s_p}, {16 * 9216}
    s_add_u32 {s_who}, {s_who}, {s_t0}
    s_sub_u32 {s_who}, {s_who}, {s_w1o}
    s_lshl4_add_u32 {s_t0}, {s_p}, {s_t0}
    s_mul_i32 {s_w2b}, {s_t0}, 576
    s_lshl4_add_u32 {s_t0}, {s_p}, {s_bf}
    s_mul_i32 {s_w2a}, {s_t0}, 576
    s_lshl2_add_u32 {s_t0}, {s_tt}, {s_p}
    s_mul_i32 {s_pst}, {s_t0}, {36 * 16384}
    s_lshl_b32 {s_t2}, {s_hf}, 15
    s_add_u32 {s_pst}, {s_pst}, {s_t2}
    s_lshl_b32 {s_t2}, {s_j}, 10
    s_add_u32 {s_pst}, {s_pst}, {s_t2}
    s_add_u32 {s_pst}, {s_pst}, {WS_P:#x}
    s_lshl1_add_u32 {s_fl}, {s_t0}, {s_hf}
    s_lshl4_add_u32 {s_fl}, {s_fl}, {s_j}
    s_lshl_b32 {s_fl}, {s_fl}, 2
    s_add_u32 {s_fl}, {s_fl}, {WS_F:#x}
    s_mul_i32 {s_oun}, {s_t0}, 36
    s_lshl1_add_u32 {s_oun}, {s_j}, {s_oun}
    s_add_u32 {s_oun}, {s_oun}, {s_hf}
    s_lshl_b32 {s_oun}, {s_oun}, 10
    s_add_u32 {s_oun}, {s_oun}, {WS_O:#x}
    v_and_b32 {tok}, 15, v{LANE}
    v_bfe_u32 {r}, v{LANE}, 2, 2
    v_and_b32 {c4}, 3, v{LANE}
    v_lshlrev_b32 v{L16}, 4, v{LANE}
    v_mov_b32 v{C0}, {f32(GC0)}
    s_add_u32 {s_t0}, {s_m}, {EX1}
    v_add_u32 v{AEXW}, {s_t0}, v{L16}
    v_lshlrev_b32 v{A16}, 4, {g}
    v_add_u32 v{A16}, {MISC}, v{A16}
    v_lshlrev_b32 {a}, 1, {g}
    v_xor_b32 {a}, {a}, {l7}
    v_lshl_add_u32 v{DW2}, {a}, 4, {bb}
    v_lshlrev_b32 v{WJD}, 4, {a}
    v_lshrrev_b32 {a}, 5, v{LANE}
    v_lshlrev_b32 {a}, 1, {a}
    v_xor_b32 {a}, {a}, {c4}
    v_lshrrev_b32 v{DWH}, 2, v{LANE}
    v_mul_u32_u24 v{DWH}, 9216, v{DWH}
    v_lshl_add_u32 v{DWH}, {a}, 4, v{DWH}""", setbase(f"v{AEXW}", EX1), setbase(f"v{A16}", MISC),
              f"""
    v_lshrrev_b32 {a}, 1, {tok}
    v_xor_b32 {a}, {a}, {g}
    v_lshlrev_b32 {a}, 4, {a}
    v_lshl_add_u32 {a}, {tok}, 7, {a}
    s_lshl1_add_u32 {s_t0}, {s_p}, {s_hf}
    s_lshl_b32 {s_t0}, {s_t0}, 11
    s_add_u32 {s_t0}, {s_t0}, {XREG[0]}
    v_add_u32 v{HOWN}, {s_t0}, {a}
    v_xor_b32 v{HOWN + 1}, 64, v{HOWN}
    v_xor_b32 v{HOWN + 2}, 0x800, v{HOWN}
    v_xor_b32 v{HOWN + 3}, 0x840, v{HOWN}""", [setbase(f"v{HOWN + i}", XREG[0]) for i in range(4)],
              f"""
    v_lshrrev_b32 {a}, 1, {r}
    v_and_b32 {l3}, 1, {g}
    v_lshl_add_u32 {l3}, {l3}, 1, {a}
    v_lshlrev_b32 {l3}, 5, {l3}
    v_lshl_add_u32 {l7}, {g}, 3, {r}
    v_lshlrev_b32 {w1}, 3, {c4}
    s_lshl_b32 {s_t0}, {s_hf}, 6
    v_add_u32 {a}, {s_t0}, {w1}
    v_xor_b32 {a}, {a}, {l3}
    v_lshl_add_u32 v{AW}, {l7}, 7, {a}
    v_xor_b32 v{AW + 1}, 32, v{AW}
    v_add_u32 v{AW + 2}, 0x10000, v{AW}
    v_add_u32 v{AW + 3}, 0x10000, v{AW + 1}
    v_and_b32 {a}, 1, {g}
    v_xor_b32 {a}, {s_hf}, {a}
    v_lshl_add_u32 {a}, {a}, 5, {w1}
    v_lshl_add_u32 v{AWH}, {l7}, 6, {a}
    s_lshl2_add_u32 {s_t2}, {s_hf}, {s_t1}
    s_lshl_b32 {s_t2}, {s_t2}, 3
    v_add_u32 {a}, {s_t2}, {w1}
    v_xor_b32 v{AQ}, {a}, {l3}
    v_lshl_add_u32 v{AQ}, {l7}, 7, v{AQ}
    s_lshl_b32 {s_t0}, {s_t1}, 3
    v_add_u32 {a}, 72, {w1}
    s_add_u32 {s_t2}, {s_t0}, 64
    v_mov_b32 {bb}, {s_t2}
    v_cmp_eq_u32 vcc, 0, {c4}
    v_cndmask_b32 {a}, {a}, {bb}, vcc
    s_sub_u32 {s_t2}, 104, {s_t0}
    v_mov_b32 {bb}, {s_t2}
    v_cmp_eq_u32 vcc, 3, {c4}
    v_cndmask_b32 {a}, {a}, {bb}, vcc
    v_xor_b32 {a}, {a}, {l3}
    v_lshl_add_u32 v{AQ + 1}, {l7}, 7, {a}""",
              [setbase(f"v{x}", 0) for x in (AW, AW + 1, AWH, AQ, AQ + 1)],
              [setbase(f"v{x}", 65536) for x in (AW + 2, AW + 3)]]
        if tch & 8:
            p += [f"""
    s_and_b32 {s_t2}, {s_tt}, {32 // b - 1}
    s_lshl{5 - lb}_add_u32 {s_t0}, {s_j}, {s_t2}
    s_mul_i32 {s_t0}, {s_t0}, {9 * b * 1152}
    s_mul_i32 {s_t2}, {s_w}, {41 * 128}
    s_add_u32 {s_t0}, {s_t0}, {s_t2}
    v_min_u32 v{TW2}, 40, v{LANE}
    v_lshl_add_u32 v{TW2}, v{TW2}, 7, {s_t0}"""]
        if o["otouch"]:
            p += [f"""
    s_lshr_b32 {s_t0}, {s_j}, 2
    s_lshl2_add_u32 {s_t0}, {s_tt}, {s_t0}
    s_lshl3_add_u32 {s_t0}, {s_t0}, {s_w}
    s_mul_i32 {s_t0}, {s_t0}, {4 * 1152}
    s_mul_i32 {s_t2}, {s_cq}, 288
    s_add_u32 {s_t0}, {s_t0}, {s_t2}
    v_mul_u32_u24 {a}, 1152, {r}
    v_mul_u32_u24 {bb}, 92, {c4}
    v_add3_u32 v{TOUT}, {a}, {bb}, {s_t0}"""]
        p += [f"""
    s_mul_i32 {s_t0}, {s_tt}, 9216
    s_lshl1_add_u32 {s_d0}, {s_p}, {s_hf}
    s_mul_i32 {s_t2}, {s_d0}, 576
    s_add_u32 {s_t2}, {s_t2}, {s_t0}
    s_add_u32 {s_t2}, {s_t2}, {WS_KV + 4096}
    v_bfrev_b32 {l3}, 1
    v_lshrrev_b32 {a}, 1, {g}
    v_mul_u32_u24 {a}, 288, {a}
    v_and_b32 {bb}, 1, {g}
    v_lshl_add_u32 {a}, {bb}, 3, {a}
    v_lshl_add_u32 {a}, {tok}, 4, {a}
    v_add_u32 {a}, {s_t2}, {a}
    s_lshl_b32 {s_t2}, {s_t1}, 7
    v_add_u32 v{AKV}, {s_t2}, {a}
    v_add_u32 {a}, 96, {a}
    v_cmp_gt_u32 vcc, 8, {tok}
    v_lshrrev_b32 {bb}, 1, {tok}
    v_or_b32 {bb}, {s_t2}, {bb}
    v_cndmask_b32 v{AKV}, {l3}, v{AKV}, vcc
    v_cmp_eq_u32 vcc, 5, {bb}
    v_mov_b32 v{AKN}, {l3}
    v_cndmask_b32 v{AKV}, v{AKV}, {a}, vcc""", self.cond(f"s_cmp_lt_u32 {s_j}, 2", [f"""
    s_lshl1_add_u32 {s_t2}, {s_p}, {s_j}
    s_lshl1_add_u32 {s_t2}, {s_t2}, {s_hf}
    s_lshl_b32 {s_t2}, {s_t2}, 8
    s_add_u32 {s_t2}, {s_t2}, {s_t0}
    v_subrev_u32 {bb}, 1, {g}
    v_lshl_add_u32 {a}, {bb}, 3, {s_t2}
    v_cmp_gt_u32 vcc, 2, {bb}
    v_lshl_add_u32 {a}, {tok}, 4, {a}
    s_lshl_b32 {s_d0}, {s_d0}, 6
    s_add_u32 {s_d0}, {s_d0}, {s_t0}
    v_cndmask_b32 v{AKV}, {l3}, {a}, vcc
    s_add_u32 {s_d0}, {s_d0}, {WS_KV + 8704}
    v_lshl_add_u32 {a}, {tok}, 2, {s_d0}
    s_lshl2_add_u32 {s_t2}, {s_j}, 3
    v_cmp_eq_u32 vcc, {s_t2}, {g}
    s_lshl4_add_u32 {s_t2}, {s_j}, {s_tt}
    s_lshl3_add_u32 {s_t2}, {s_t2}, {s_w}
    v_cndmask_b32 v{AKN}, {l3}, {a}, vcc
    s_lshl2_add_u32 {s_t2}, {s_t2}, {WS_KN}
    v_writelane_b32 v{AKN}, {s_t2}, 0"""])]
        p += [self.wo_setup(a, bb)]
        if zp:
            self.ts("zarg"), self.ts("zburst")
            p += [raw("    s_waitcnt lgkmcnt(0)\n    s_mov_b32 s4, s94\n    s_mov_b32 s6, s100"), self.ts("zpro")]
        p += [f"s_lshl_b32 {s_t0}, {s_w}, 10", t1 if o["r1t"] == 2 else [], burst[o["mid"]:], t1 if o["r1t"] == 3 else [], f"""
    v_lshlrev_b32 v{t + 14}, 16, v{t + 14}
    v_add_u32 v{t + 11}, {MISC}, v{t + 11}
    ds_write_b32 v{t + 11}, v{t + 14}
    ds_write_b32 v{t + 11}, v{t + 15} offset:2048"""]
        return p

    def gelu_quad(self, src, dst):
        pr = [(f"v{TMP + i}", f"v{src + i}") for i in range(4)]
        o = [f"v_mul_f32 {t}, {x}, {x}" for t, x in pr]
        o += [f"v_fmamk_f32 {t}, {t}, {f32(GC1)}, v{C0}" for t, x in pr]
        o += [f"v_mul_f32 {t}, {t}, {x}" for t, x in pr]
        o += [f"v_exp_f32 {t}, {t}" for t, x in pr]
        o += [f"v_add_f32 {t}, 1.0, {t}" for t, x in pr]
        o += [f"v_rcp_f32 {t}, {t}" for t, x in pr]
        o += [f"v_mul_f32 {t}, {t}, {x}" for t, x in pr]
        o += [f"v_cvt_pk_bf16_f32 v{dst + i}, {pr[2 * i][0]}, {pr[2 * i + 1][0]}" for i in range(2)]
        return o

    def bias(self, h, r, tt2, t):
        if r < 4:
            return ds(f"ds_read_b128 {vr(ACC + 16 * (r & 1) + 8 * tt2 + 4 * t, 4)}, v{A16}",
                      L_B1 + 256 * r + 128 * h + 64 * tt2)
        return ds(f"ds_read_b128 {vr(ACC + 4 * t, 4)}, v{A16}", L_B1 + 1024 + 64 * h)

    def q_epilogue(self, h):
        a0, a2 = ACC + 8, AQ2
        tok, g, row, sc, aS = (f"v{64 + i}" for i in range(5))
        x0, x1 = "v69", "v70"
        p1 = [f"""
    v_and_b32 {tok}, 15, v{LANE}
    v_lshrrev_b32 {g}, 4, v{LANE}
    s_mul_i32 {s_t0}, {s_p}, {32 * QP}
    s_add_u32 {s_t0}, {s_t0}, {QSCR}
    v_mov_b32 {sc}, {f32(QSCALE)}
    v_cmp_eq_u32 vcc, 0, {g}
    v_mul_u32_u24 {row}, {QP}, {tok}
    v_add_u32 {row}, {s_t0}, {row}
    v_cndmask_b32 {x0}, 1.0, {sc}, vcc
    v_lshl_add_u32 {aS}, {g}, 3, {row}"""]
        p1 += [f"v_mul_f32 v{a2 + i}, v{a2 + i}, {x0}" for i in range(4)]
        p1 += [f"v_cvt_pk_bf16_f32 v{T + 4 + i}, v{a2 + 2 * i}, v{a2 + 2 * i + 1}" for i in range(2)]
        p1 += [f"ds_write_b64 {aS}, {vr(T + 4, 2)} offset:{64 + 16 * QP * h}"]
        kblk = [f"""
    v_mov_b32 {x1}, 0
    s_mov_b32 exec_lo, 0xffff0000
    s_mov_b32 exec_hi, 0x0000ffff
    v_fmac_f32 {x1}, v{a2}, v{a2}
    v_fmac_f32 {x1}, v{a2 + 1}, v{a2 + 1}
    s_cmp_eq_u32 {s_j}, 0
    s_cselect_b32 exec_hi, -1, exec_hi
    v_fmac_f32 {x1}, v{a2 + 2}, v{a2 + 2}
    v_fmac_f32 {x1}, v{a2 + 3}, v{a2 + 3}
    s_mov_b64 exec, -1
    v_mov_b32 {x0}, {x1}
    v_permlane32_swap_b32 {x0}, {x1}
    v_add_f32 {x1}, {x0}, {x1}
    v_mov_b32 {x0}, {x1}
    v_permlane16_swap_b32 {x0}, {x1}
    v_add_f32 {x1}, {x0}, {x1}"""]
        kblk += [f"v_max_f32_dpp {x1}, {x1}, {x1} row_ror:{n} row_mask:0xf bank_mask:0xf" for n in (8, 4, 2, 1)]
        kblk += [f"v_cndmask_b32 {x1}, v{T + 5}, {x1}, vcc",
                 I(f"buffer_store_dword {x1}, v{AKN}, {sWS}, 0 offen sc1", tag="kvst")]
        vblk = [f"""
    v_and_b32 {x0}, 3, v{LANE}
    v_min_u32 {x0}, 2, {x0}
    v_lshl_add_u32 {x0}, {x0}, 3, {s_t0}
    v_lshrrev_b32 {x1}, 2, v{LANE}
    v_mul_u32_u24 {x1}, {QP}, {x1}
    v_add_u32 {x0}, {x0}, {x1}
    ds_read_b64_tr_b16 {vr(T + 4, 2)}, {x0} offset:{72 + 16 * QP * h}"""]
        p1 += [self.cond(f"s_cmp_lt_u32 {s_j}, 4", [
            self.cond(f"s_cmp_ge_u32 {s_j}, 2", vblk),
            I(f"buffer_store_dwordx2 {vr(T + 4, 2)}, v{AKV}, {sWS}, 0 offen sc1", tag="kvst"),
            self.cond(f"s_cmp_lt_u32 {s_j}, 2", kblk)])]
        p2 = [f"v_mul_f32 v{a0 + i}, v{a0 + i}, {sc}" for i in range(8)]
        p2 += [f"v_cvt_pk_bf16_f32 v{T + i}, v{a0 + 2 * i}, v{a0 + 2 * i + 1}" for i in range(4)]
        p2 += [I(f"ds_write_b64 {aS}, {vr(T + 2 * t, 2)} offset:{32 * h + 16 * QP * (h ^ t)}", tag="qwr") for t in range(2)]
        p2r = [f"""
    v_and_b32 {x0}, 1, {g}
    v_mad_u32_u24 {x0}, {x0}, 36, {row}
    v_add_u32 {x0}, {16 * QP * h}, {x0}
    v_lshrrev_b32 {x1}, 1, {g}
    v_lshl_add_u32 {x1}, {x1}, 4, {x0}
    ds_read2_b32 {vr(QM, 2)}, {x1} offset0:0 offset1:1
    ds_read2_b32 {vr(QM + 2, 2)}, {x1} offset0:2 offset1:3""", I(f"ds_read_b32 v{QRA}, {x0} offset:32", tag="qrd")]
        p3 = [f"v_lshlrev_b32 v{T + i}, 16, v{QM + i}" for i in range(5)]
        p3 += [f"v_mul_f32 v{QN2}, v{QM}, v{QM}"] + [f"v_fmac_f32 v{QN2}, v{QM + i}, v{QM + i}" for i in range(1, 4)]
        p3 += [f"v_fmac_f32 v{QN2}, v{T + i}, v{T + i}" for i in range(4)]
        p3 += [f"""
    v_mov_b32 {x0}, v{QN2}
    v_cmp_gt_u32 vcc, 32, v{LANE}
    v_mov_b32 {x1}, 0
    v_permlane32_swap_b32 {x0}, v{QN2}
    v_add_f32 v{QN2}, v{QN2}, {x0}
    v_fmac_f32 v{QN2}, v{QRA}, v{QRA}
    v_fmac_f32 v{QN2}, v{T + 4}, v{T + 4}
    v_cndmask_b32 v{QRB}, v{QRA}, {x1}, vcc
    v_cndmask_b32 v{QRA}, 0, v{QRA}, vcc"""]
        return p1, p2, p2r, p3

    def gate(self, h):
        x = f"v{GTA}"
        return f"""
    v_mul_f32 {x}, {f32(-LOG2E)}, {x}
    v_and_b32 v{GTA + 1}, 15, v{LANE}
    v_exp_f32 {x}, {x}
    s_lshl_b32 {s_t0}, {s_p}, 7
    s_add_u32 {s_t0}, {s_t0}, {L_GT + 64 * h}
    v_lshl_add_u32 v{GTA + 1}, v{GTA + 1}, 2, {s_t0}
    v_add_f32 {x}, 1.0, {x}
    v_rcp_f32 {x}, {x}
    ds_write_b32 v{GTA + 1}, {x}"""

    def wo_setup(self, x0, x1):
        return [f"""
    v_lshrrev_b32 {x0}, 5, v{LANE}
    v_bfe_u32 {x1}, v{LANE}, 3, 2
    v_mad_u32_u24 {x0}, {x0}, 18, {x1}
    s_mul_i32 {s_t0}, {s_j}, 36
    s_lshl_b32 {s_t1}, {s_p}, 2
    s_add_u32 {s_t0}, {s_t0}, {s_t1}
    s_mul_i32 {s_t0}, {s_t0}, 1152
    s_lshl_b32 {s_t1}, {s_tt}, 7
    s_add_u32 {s_wj}, {s_t0}, {s_t1}""", self.cond(f"s_cmp_ge_u32 {s_tt}, 9", [f"""
    v_lshrrev_b32 {x0}, 5, v{LANE}
    v_bfe_u32 {x1}, v{LANE}, 4, 1
    v_lshl_add_u32 {x0}, {x0}, 2, {x1}
    v_bfe_u32 {x1}, v{LANE}, 3, 1
    v_mad_u32_u24 {x0}, {x0}, 18, {x1}
    s_sub_u32 {s_t0}, {s_tt}, 9
    s_lshl_b32 {s_t0}, {s_t0}, 1
    s_and_b32 {s_t1}, {s_p}, 1
    s_add_u32 {s_t0}, {s_t0}, {s_t1}
    s_lshl_b32 {s_t0}, {s_t0}, 3
    s_and_b32 {s_t1}, {s_p}, 2
    s_add_u32 {s_t0}, {s_t0}, {s_t1}
    s_mul_i32 {s_t0}, {s_t0}, 18
    s_add_u32 {s_t0}, {s_t0}, 16
    s_mul_i32 {s_t0}, {s_t0}, 1152
    s_lshl_b32 {s_t1}, {s_j}, 7
    s_add_u32 {s_wj}, {s_t0}, {s_t1}"""]), f"""
    v_mul_u32_u24 {x0}, 1152, {x0}
    v_add_u32 v{WJD}, v{WJD}, {x0}
    v_bfe_u32 {x0}, v{LANE}, 3, 2
    v_xor_b32 {x0}, {s_p}, {x0}
    v_lshlrev_b32 {x0}, 5, {x0}
    v_and_b32 {x1}, 3, v{LANE}
    v_lshl_add_u32 {x0}, {x1}, 3, {x0}
    v_lshrrev_b32 {x1}, 2, v{LANE}
    v_lshl_add_u32 {x0}, {x1}, 7, {x0}
    v_add_u32 v{WJA}, {WOSCR}, {x0}
    s_add_u32 {s_t0}, {s_tt}, 7
    s_cmp_ge_u32 {s_tt}, 9
    s_cselect_b32 {s_t0}, {s_t0}, {s_j}
    s_cselect_b32 {s_t1}, {s_j}, {s_tt}
    s_lshl_b32 {s_t1}, {s_t1}, 2
    s_add_u32 {s_t1}, {s_t1}, {s_p}
    s_mul_i32 {s_t1}, {s_t1}, 18
    s_add_u32 {s_t0}, {s_t0}, {s_t1}
    s_lshl_b32 {s_t0}, {s_t0}, 10
    s_add_u32 {s_wo}, {s_t0}, {WS_WO:#x}
    s_cmp_lt_u32 {s_j}, 9
    s_cselect_b32 {s_t0}, 11, 9
    s_cmp_lt_u32 {s_tt}, {s_t0}
    s_cselect_b32 {s_wo}, {s_wo}, -1"""]

    def wo_job(self):
        c = f"s_cmp_lg_u32 {s_wo}, -1"
        return (self.cond(c, [f"s_add_u32 m0, {s_m}, {WOSCR}",
                              I(f"buffer_load_dwordx4 v{WJD}, {sWO}, {s_wj} offen lds", tag="wodma")]),
                [f"ds_read_b64_tr_b16 {vr(WJV, 2)}, v{WJA}", f"ds_read_b64_tr_b16 {vr(WJV + 2, 2)}, v{WJA} offset:2048"],
                self.cond(c, [I(f"buffer_store_dwordx4 {vr(WJV, 4)}, v{L16}, {sWS}, {s_wo} offen sc1", tag="wost")]))

    def shift_setup(self):
        x = f"v{T}"
        o = [f"v_max3_f32 {x}, {x}, v{T + 1}, v{T + 2}", f"v_max_f32 {x}, {x}, v{T + 3}"]
        o += [f"v_max_f32_dpp {x}, {x}, {x} row_ror:{n} row_mask:0xf bank_mask:0xf" for n in (8, 4, 2, 1)]
        o += [[f"""
    v_readlane_b32 {s_t0}, {x}, 0
    v_readlane_b32 {s_t1}, {x}, 16
    v_readlane_b32 {s_t2}, {x}, 32
    v_readlane_b32 {s_d1}, {x}, 48
    s_max_u32 {s_t0}, {s_t0}, {s_t1}
    s_max_u32 {s_t2}, {s_t2}, {s_d1}
    v_mov_b32 {x}, {s_t0}
    v_add_f32 {x}, {s_t2}, {x}"""], f"""
    v_mul_f32 {x}, {x}, v{QN2}
    v_sqrt_f32 {x}, {x}
    v_mov_b32 v{T + 1}, {f32(0.01)}
    v_fmamk_f32 {x}, {x}, {f32(1.02)}, v{T + 1}
    v_mov_b32 v{T + 1}, {f32(self.o['thr'] if not self.o['force_slow'] else -1.0)}
    v_cmp_nle_f32 {s_slow}, {x}, v{T + 1}
    v_mov_b32 v{T + 1}, 0
    v_cvt_pk_bf16_f32 {x}, -{x}, v{T + 1}
    v_cmp_gt_u32 vcc, 32, v{LANE}
    v_cndmask_b32 v{QRA + 1}, 0, {x}, vcc
    v_cndmask_b32 v{QRB + 1}, {x}, v{T + 1}, vcc"""]
        return o

    def att_consts(self):
        x = f"v{T}"
        o = [f"""
    v_mov_b32 v{KR + 1}, 0x3f80
    v_mov_b32 v{IDX}, 0xdddddddd
    v_and_b32 {x}, 27, v{LANE}
    v_cmp_eq_u32 vcc, 18, {x}
    v_mov_b32 {x}, 0x3f803f80"""]
        o += [f"v_cndmask_b32 v{VA + i}, 0, {x}, vcc" for i in range(8)]
        o += [f"""
    v_mov_b32 v{AK}, v{L16}
    v_lshlrev_b32 v{AR}, 2, v{LANE}
    v_and_b32 {x}, 31, v{LANE}
    v_lshrrev_b32 v{AV}, 5, v{LANE}
    v_mul_u32_u24 v{AV}, 288, v{AV}
    v_lshl_add_u32 v{AV}, {x}, 4, v{AV}
    v_lshlrev_b32 v{AFP}, 2, {x}
    s_mov_b32 s92, 0x3ffff
    s_mov_b32 s93, 0x3ffff""", [setbase(f"v{AK}"), setbase(f"v{AV}"), setbase(f"v{AR}")]]
        return o

    def wo_flag_addr(self):
        x, y = f"v{T}", f"v{T + 1}"
        return f"""
    s_mul_i32 {s_t0}, {s_cq}, 9
    s_add_u32 {s_t1}, {s_t0}, 8
    s_add_u32 {s_t0}, {s_t0}, {s_w}
    v_and_b32 {x}, 16, v{LANE}
    v_cmp_eq_u32 vcc, 0, {x}
    v_mov_b32 {x}, {s_t0}
    v_mov_b32 {y}, {s_t1}
    v_cndmask_b32 {x}, {y}, {x}, vcc
    v_and_b32 {y}, 15, v{LANE}
    v_lshl_add_u32 v{AFW}, {x}, 5, {y}
    v_and_b32 {y}, 1, v{LANE}
    v_lshl_add_u32 {y}, {y}, 2, 36
    v_and_or_b32 {y}, {x}, 3, {y}
    v_lshrrev_b32 {x}, 2, {x}
    v_lshl_add_u32 {x}, {y}, 5, {x}
    v_cmp_gt_u32 vcc, 32, v{LANE}
    v_cndmask_b32 v{AFW}, {x}, v{AFW}, vcc
    v_lshlrev_b32 v{AFW}, 2, v{AFW}
    v_add_u32 v{AFW}, {WS_F:#x}, v{AFW}"""

    def poison(self, h):
        x = f"v{T + 4}"
        return [[f"v_mov_b32 v{T + i}, -1" for i in range(4)],
                I(f"buffer_store_dwordx4 {vr(T, 4)}, v{L16}, {sWS}, {s_oun} offen sc1"), f"""
    s_lshl2_add_u32 {s_t0}, {s_tt}, {s_p}
    s_mul_i32 {s_t0}, {s_t0}, {OBLK}
    s_lshl_b32 {s_our}, {s_j}, 8
    s_add_u32 {s_our}, {s_our}, {s_t0}
    s_add_u32 {s_our}, {s_our}, {WS_O + 32 * KB + 128 * h:#x}
    s_mov_b64 exec, 0xff""", I(f"buffer_store_dwordx4 {vr(T, 4)}, v{L16}, {sWS}, {s_our} offen sc1"),
                "s_mov_b64 exec, -1"]

    @property
    def START(self):
        return ([f"x{c}" for c in range(9)] + ["r1_0"])[:self.o["nstart"]]

    def x_reads(self, c):
        return [ds(f"ds_read_b128 {vr(X(2 * c + k, t), 4)}, v{HOWN + 2 * t + k}", XREG[c % 4], tag=("xr", c))
                for k in range(2) for t in range(2)]

    @staticmethod
    def g_order():
        return [(R, q) for R in range(2) for q in range(8)] + [(0, 8), (1, 8)] + \
            [(R, q) for R in range(2, 9) for q in range(9)]

    @staticmethod
    def gacc(R):
        return GP + 32 if R == 2 else GACC + 16 * ((R if R < 2 else R - 1) & 1)

    def stream(self, h, where):
        o = self.o
        ops = []

        def tr(buf, i, areg, off, win=False):
            if win:
                areg += 2 * (off >> 16)
            return ds(f"ds_read_b64_tr_b16 {vr(buf + 2 * i, 2)}, v{areg}", off)

        def order(ks):
            out, i = [], 0
            while i < len(ks):
                n = 2 if o["chain"] and ks[i][-1] % 2 == 0 and ks[i + 1:i + 2] == [ks[i][:-1] + (ks[i][-1] + 1,)] else 1
                out += [k + (t,) for t in range(2) for k in ks[i:i + n]]
                i += n
            return out

        ring, nring = [ABUF + 4 * i for i in range(4)], [0]

        def nb():
            nring[0] += 1
            return ring[(nring[0] - 1) % len(ring)]

        def new_ring(extra):
            base = [x for x in ring[nring[0] % len(ring):] + ring[:nring[0] % len(ring)] if x < ABUF + 16]
            ring[:] = extra[:o["nbuf"] - 4] + base
            nring[0] = 0

        for r in range(4):
            if r == 0:
                new_ring([HH, HH + 4])
            for ks, tt2 in order([(k,) for k in range(18)]):
                if True:
                    buf, pc = nb(), ("w", r, ks)
                    op = dict(buf=buf, rd=[tr(buf, i, AW + tt2, where(pc) + 512 * i, True) for i in range(2)], pc=pc,
                              mf=[mf16(ACC + 16 * (r & 1) + 8 * tt2 + 4 * t, buf, X(ks, t)) for t in range(2)], rate=1)
                    if tt2 == 0 and r == 0 and ks % 2 == 0:
                        c = ks // 2
                        op["step"] = f"x{c}"
                        op["pre"] = self.x_reads(c) if c < o["nstart"] else []
                        if c < 2:
                            op["pre"] = [self.bias(h, c, a, t) for a in range(2) for t in range(2)] + op["pre"]
                    if tt2 == 0 and r > 0 and ks % (18 // o["rsteps"]) == 0:
                        op["step"] = f"r{r}_{ks * o['rsteps'] // 18}"
                    ops.append(op)
        h0 = len(ops)
        for ks in range(18):
            buf, pc = nb(), ("h", 0, ks // 2)
            op = dict(buf=buf, rd=[tr(buf, i, AWH, where(pc) + 2048 * (ks & 1) + 256 * i) for i in range(2)], pc=pc,
                      mf=[mf16(ACC + 4 * t, buf, X(ks, t)) for t in range(2)], rate=1)
            if ks in (0, 8):
                op["step"] = f"h{ks // 8}"
            ops.append(op)
        q0 = len(ops)
        for ks, a in order([(k,) for k in range(18)]):
            if (ks, a) == (6, 0):
                new_ring([X(3, 0), X(3, 1)])
            if (ks, a) == (12, 0):
                new_ring([GBUF, GBUF + 4])
            c = "0" if ks == 0 else None
            if True:
                buf, pc = nb(), ("q", 0, ks)
                mf = [mf16(AQ2, buf, X(ks, 0), c)] if a else [mf16(ACC + 8 + 4 * t, buf, X(ks, t), c) for t in range(2)]
                op = dict(buf=buf, rd=[tr(buf, i, AQ + a, where(pc) + 512 * i) for i in range(2)], mf=mf, pc=pc,
                          rate=1 + a, after={6: q0 + 7, 12: q0 + 15}.get(ks, -1))
                if a == 0 and ks % 6 == 0:
                    op["step"] = f"q{ks // 6}"
                ops.append(op)
        for R, q, tt2 in order(self.g_order()):
            if True:
                if True:
                    buf, pc = nb(), ("g", R, q)
                    rd = [tr(buf, i, GADDR + tt2, where(pc) + 2048 * (i ^ (h if q == 8 else 0)), True) for i in range(2)]
                    hb = [HH + 4 * t if q == 8 else HOWN + 8 * (q >> 1) + 4 * t if (q & 1) == h else X(q >> 1, t)
                          for t in range(2)]
                    op = dict(buf=buf, rd=rd, pc=pc, rate=1,
                              mf=[mf16(self.gacc(R) + 8 * tt2 + 4 * t, buf, hb[t], "0" if q == 0 else None)
                                  for t in range(2)])
                    if tt2 == 0 and ((q == 0 and R != 2) or (R, q) == (0, 8)):
                        op["step"] = f"g{R if q == 0 else 2}"
                    ops.append(op)

        for op in ops:
            op["bufs"], op["pcs"] = [op["buf"]], [op["pc"]]
        if o["chain"]:
            ops = self.pair_ops(ops)
        G = [dict(m=[], mem=[])]
        B, use0, lastm, reads = {}, {}, {}, {}
        last_user, prev = {}, []
        for k, op in enumerate(ops):
            prev.append(max(last_user.get(b, -1) for b in op["bufs"]))
            last_user.update({b: k for b in op["bufs"]})
        ro, rr, cur = 0, 0, None

        def issue_one():
            nonlocal ro, rr, cur
            op = ops[ro]
            if rr == 0 and "step" in op:
                cur = op["step"]
                B[cur] = len(G) - 1
                G[-1]["mem"].append(("boundary", cur))
            if rr == 0:
                G[-1]["mem"] += op.get("pre", [])
                for pc in op["pcs"]:
                    assert use0.setdefault(pc, cur) == cur
            x = op["rd"][rr]
            G[-1]["mem"].append(x)
            reads.setdefault(cur, []).append(x[0] if isinstance(x, list) else x)
            rr += 1
            if rr == len(op["rd"]):
                ro, rr = ro + 1, 0

        while (ro, rr) < ((2, 1) if o["chain"] else (o["nbuf"] - 1, 0)):
            issue_one()
        for k, op in enumerate(ops):
            while ro <= k:
                issue_one()
            for mi, m in enumerate(op["mf"]):
                G.append(dict(m=[m], mem=[], last=mi == len(op["mf"]) - 1))
                lastm.update({pc: len(G) - 1 for pc in op["pcs"]})
                if mi == op.get("seen", 0):
                    self.safe.update({pc: len(G) - 1 for pc in op["pcs"]})
                done = k if mi == len(op["mf"]) - 1 else k - 1
                cnt = 0
                while ro < len(ops) and prev[ro] <= (done if o["chain"] else k - 1) and ops[ro].get("after", -1) <= done \
                        and cnt < op["rate"] + (op["rate"] == 1 and ro + 1 < len(ops) and prev[ro + 1] <= k - 1):
                    issue_one()
                    cnt += 1
        return G, B, use0, lastm, reads

    @staticmethod
    def pair_ops(ops):
        out = []
        for a, b in zip(ops[0::2], ops[1::2]):
            assert "step" not in b and len(a["mf"]) == len(b["mf"])
            same = a["mf"][0].W == b["mf"][0].W
            mf = [m for pr in zip(a["mf"], b["mf"]) for m in pr] if same else a["mf"] + b["mf"]
            mf[0].needregs = {("v", b["buf"] + 3)} if same else set()
            c = dict(a, bufs=[a["buf"], b["buf"]], pcs=[a["pc"], b["pc"]], rd=a["rd"] + b["rd"], mf=mf)
            c["seen"] = 0 if same else len(a["mf"])
            c["after"] = max(a.get("after", -1), b.get("after", -1)) // 2
            out.append(c)
        return out

    def dma_code(self, q, mbase=s_m, tag2=None):
        k, a, b = q["pc"]
        m0 = f"s_add_u32 m0, {mbase}, {q['at']}"
        tag = q["pc"] if tag2 is None else ("both", q["pc"], tag2)
        nxt = [f"s_add_u32 {s_rc}, {s_rc}, 1", f"s_cmp_eq_u32 {s_rc}, 9"]
        wrap = [f"s_cselect_b32 {s_rc}, 0, {s_rc}"]
        if k == "q":
            code = [m0, I(f"global_load_lds_dwordx4 {vr(DQ, 2)}, off", tag=tag)]
            if b < 16:
                code = [m0] + nxt + code[1:] + [f"s_cselect_b32 {s_d0}, -8, 1"] + wrap + [
                    f"v_mad_i64_i32 {vr(DQ, 2)}, {s_slow}, v{SQ}, {s_d0}, {vr(DQ, 2)}"]
            return code

        def ld(v, srd, so, aux=""):
            aux = aux or " " + self.o["waux"].replace("+", " ")
            return I(f"buffer_load_dwordx4 v{v}, {srd}, {so} offen{aux} lds", tag=tag)

        if k == "x":
            if b < 2:
                return [m0, f"s_lshl_b32 {s_d1}, {s_rc}, 7", f"s_add_u32 {s_d1}, {s_d1}, {s_xo}", ld(HOWN + 4, sX, s_d1)]
            return [m0, f"s_add_u32 {s_d1}, {s_d1}, {64 * 1152}", ld(HOWN + 4, sX, s_d1)]
        if k == "w" and a == 0:
            tw = s_tw[b // 2]
            return [m0, f"s_mul_i32 {tw}, {s_rc}, {64 * 9216}", f"s_add_u32 {tw}, {tw}, {s_w1o}", ld(DW1, sW1, tw),
                    nxt, wrap]
        v, srd, base, off, aux = {
            "w": (DW1, sW1, s_tw[b // 2 % 9], 128 * a, ""),
            "h": (DWH, sW1, s_tw[b % 9], s_who, ""),
            "g": (DW2, sW2, s_w2a if b < 8 else s_w2b, (32 * b * 1152 if b < 8 else 0) + 128 * a, ""),
            "kv": (L16, sWS, s_m, WS_KV + SL * b, " sc1"),
        }[k]
        return [m0, f"s_add_u32 {s_d0}, {base}, {off}", ld(v, srd, s_d0, aux)]

    def plan(self):
        o = self.o
        G, B, use0, lastm, _ = self.stream(1, lambda pc: 0)
        steps = sorted(B, key=B.get) + ["a0", "a1", "end"]
        idx = {s: i for i, s in enumerate(steps)}
        self.steps, self.idx = steps, idx

        def last_abs(pc):
            return max(idx[s] for s in B if B[s] - (0 if s in self.START else o["hoist"]) < self.safe[pc])

        def slots(lo, n):
            return range(lo // SL, (lo + n + SL - 1) // SL)

        res = [(slots(XREG[i], 4 * SL), -1, idx[f"x{i + 4 if i else 8}"]) for i in range(4)]
        res += [(slots(EX1 + 4 * SL * (2 - r), 4 * SL), idx[f"r{r + 1}_{o['rsteps'] // 3}"], idx["q1"]) for r in range(3)]
        res += [(slots(EX2, 4 * SL), idx["q2"], idx["g0"]), (slots(EX2H, 2 * SL), idx["g1"], idx["g2"]),
                (slots(QSCR, 3 * SL), idx["g0"], idx["g4"])]
        for i, (sa, a0, a1) in enumerate(res):
            for sb, b0, b1 in res[:i]:
                assert not set(sa) & set(sb) or a1 < b0 or b1 < a0
        P = []
        for c in range(9):
            P += [dict(pc=("x", c, q), h=q & 1, at=XREG[c % 4] + SL * q, u0=c, e=c - 3 if c >= 4 else -1) for q in range(4)]
            P += [dict(pc=("w", 0, 2 * c + k), h=k) for k in range(2)]
        P += [dict(pc=("w", r, ks), h=ks & 1) for r in range(1, 4) for ks in range(18)]
        P += [dict(pc=("h", 0, u), h=(u + 1) & 1) for u in range(9)]
        P += [dict(pc=("q", 0, ks), h=ks & 1) for ks in range(18)]
        P += [dict(pc=("g", R, q), h=(n + 1) & 1) for n, (R, q) in enumerate(self.g_order())]
        cap = {"x5": 6, "x6": o["capx"], "x7": o["capx"], "x8": o["capx"], "r1_0": o["capr"], "r1_1": o["capr"],
               "r1_2": o["capr"], "r2_0": o["capr"], "r2_1": o["capr"], "q2": o["capq"], "g0": o["capg"], "g1": o["capg"]}
        free = [-1] * 38
        cur, ptr = -1, 0
        for k, q in enumerate(P):
            fixed = "at" in q
            if not fixed:
                q["u0"], q["u1"] = idx[use0[q["pc"]]], last_abs(q["pc"])
            top = 36 if q["pc"][0] == "g" else o["top"]
            while True:
                ahead = sum(1 for z in P[:k] if z["u0"] > cur)
                ok = ahead < (o["burst"] if cur < idx["x5"] else o["lead"]) and cur >= q.get("e", -1)
                if cur >= 0:
                    ok = ok and sum(1 for z in P[:k] if z["issue"] == cur) < cap.get(steps[cur], 10)
                if ok and not fixed:
                    cand = [x % top for x in range(ptr, ptr + top) if free[x % top] <= cur and not any(
                        x % top in sl and not (b < cur or q["u1"] < a) for sl, a, b in res)]
                    if q["pc"][0] in "hq":
                        mate = [z["at"] // SL for z in P[:k] if z["u0"] == q["u0"]]
                        cand.sort(key=lambda x: max(mate + [x]) - min(mate + [x]) > 15)
                    ok = bool(cand)
                if ok:
                    break
                cur += 1
            if not fixed:
                q["at"], free[cand[0]], ptr = cand[0] * SL, q["u1"] + 1, cand[0] + 1
            q["issue"] = cur
            assert cur < q["u0"], (q, steps[cur])
        for c in range(idx["r1_1"], idx["a0"]):
            here = [q for q in P if q["issue"] == c]
            flex = [q for q in here if q["pc"][0] in "gh"]
            nb_ = (len(here) + 1) // 2 - sum(q["h"] for q in here if q not in flex)
            for n, q in enumerate(flex):
                q["h"] = int(n < nb_ or q["u0"] == c + 1)
        self.tight = [(q["pc"], steps[q["issue"]], q["h"]) for q in P if q["u0"] == q["issue"] + 1]
        nb4 = idx[o["kvpoll"]] + 1
        av = [max([free[x], nb4] + [b + 1 for sl, a, b in res if x in sl]) for x in range(36)]
        self.kv_order = sorted(range(16), key=lambda g: max(av[x] for x in slots(9216 * g, 9216)))
        grp = {x: min(n for n, g in enumerate(self.kv_order) if x in slots(9216 * g, 9216)) for x in range(36)}
        todo = sorted(range(36), key=lambda x: grp[x])
        while todo:
            room = o["kvcap"] - sum(1 for z in P if z["issue"] == cur) if cur < idx["a0"] else 99
            for x in [x for x in todo if av[x] <= cur][:max(room, 0)]:
                todo.remove(x)
                P.append(dict(pc=("kv", 0, x), h=len(todo) & 1, at=x * SL, issue=cur, grp=grp[x]))
            cur += 1
        late = [q["grp"] for q in P if "grp" in q and q["issue"] >= idx["g8"]]
        n0 = max(min(late), o["kv0"])
        for q in P:
            if "grp" in q:
                q["u0"] = idx["a0"] if q["grp"] < n0 else idx["a1"]
                assert q["issue"] < q["u0"]
        self.b1tile = 4 * n0 - 2
        self.P = P
        self.planinfo = " ".join(f"{q['pc'][0]}{q['pc'][1]}.{q['pc'][2]}@{q['at'] // SL}:"
                                 f"{steps[q['issue']] if q['issue'] >= 0 else 'pre'}" for q in P)

    def p_store(self, u):
        R, tt2 = divmod(u, 2)
        d = GP + 8 * (R % 6) + 4 * tt2
        return [f"s_add_u32 {s_d1}, {s_pst}, {(4 * R + tt2) * 16384}",
                I(f"buffer_store_dwordx4 {vr(d, 4)}, v{L16}, {sWS}, {s_d1} offen {self.o['pst'].replace('+', ' ')}",
                  tag=("p", u))]

    def p_pack(self, R, h):
        return [f"v_cvt_pk_bf16_f32 v{GP + 8 * (R % 6) + (i ^ (2 * h))}, v{self.gacc(R) + 2 * i}, "
                f"v{self.gacc(R) + 2 * i + 1}" for i in range(8)]

    def ffn(self, h):
        o = self.o
        steps, idx = self.steps, self.idx
        at = {q["pc"]: q["at"] for q in self.P}
        G, B, use0, lastm, reads = self.stream(h, at.get)
        NG = len(G)
        blk = {s: [] for s in steps}
        head = {s: [] for s in steps}
        post = {s: [] for s in steps}
        mb0 = {s: [] for s in steps}
        mb1 = {s: [] for s in steps}
        need = {s: [q["pc"] for q in self.P if q["h"] == h and steps[q["u0"]] == s] for s in steps}

        def lines(items):
            return [x for e in items for x in (e.strip().split("\n") if isinstance(e, str) else [e])]

        def pos(s):
            return steps[idx[s] - h]

        def split(items, names, wts):
            items, k, acc = lines(items), 0, 0.0
            cost = [2 - (o["mlds"] in (3, 5)) if isinstance(x, list) else 2 if "exp" in x or "rcp" in x else 1 for x in items]
            for nm, w in zip(names, wts):
                acc += w / sum(wts)
                e = min(range(k, len(items) + 1, 2), key=lambda e: abs(sum(cost[:e]) - acc * sum(cost)))
                for x in items[k:e]:
                    if isinstance(x, list) and o["mlds"]:
                        x = list(flat(x))
                        nxt = steps[idx[nm] + 1]
                        mb0[nxt] += [y for y in x[1:] if y.W and o["mlds"] & 1]
                        mb1[nxt] += [y for y in x[1:] if not y.W and o["mlds"] & 2]
                        head[nxt] += [y for y in x[1:] if not y.W and o["mlds"] & 4]
                        x = [x[0]] + [y for y in x[1:] if not o["mlds"] & (1 if y.W else 6)]
                    blk[nm].append(x)
                k = e
            assert k == len(items)

        def exw(text, off, tag):
            return ds(text, off + SL * h, tag=tag)

        for r in range(3):
            items = []
            for t in range(2):
                for tt2 in range(2):
                    items += self.gelu_quad(ACC + 16 * (r & 1) + 8 * tt2 + 4 * t, HOWN + 8 * r + 4 * t + 2 * tt2)
                    if r < 2 or tt2 == 0:
                        items[-1] = [items[-1], self.bias(h, r + 2, tt2, t)]
                    if o["ex64"]:
                        items[-1] = [items[-1], exw(f"ds_write_b64 v{AEXW}, {vr(HOWN + 8 * r + 4 * t + 2 * tt2, 2)}",
                                                    EX1 + U * (4 - 2 * r + t) + 8 * tt2, "ex1")]
                if not o["ex64"]:
                    items[-1] = [items[-1], exw(f"ds_write_b128 v{AEXW}, {vr(HOWN + 8 * r + 4 * t, 4)}",
                                                EX1 + U * (4 - 2 * r + t), "ex1")]
            split(items, [f"r{r + 1}_{i}" for i in range(o["rsteps"])], [1] * o["rsteps"])
        need["q0"].append("ex1")
        items = []
        for t in range(2):
            for tt2 in range(2):
                items += self.gelu_quad(ACC + 16 + 8 * tt2 + 4 * t, HOWN + 24 + 4 * t + 2 * tt2)
        for t in range(2):
            items += self.gelu_quad(ACC + 4 * t, HH + 4 * t)
        hq = ["h0", "h1", "q0", "q1", "q2", "g0", "g1"]
        split(items, hq, [float(x) for x in o["hqb" if h else "hqa"].split("+")])

        def ncvt(last):
            return sum(isinstance(x, str) and "cvt" in x for s in hq[:hq.index(last) + 1] for x in blk[s]) // 2

        assert ncvt("h1") >= 1 and ncvt("q0") <= 4 and ncvt(pos("q2")) >= 4 and ncvt(pos("g1")) == 6
        mb1["q1"] += [ds(f"ds_read_b128 {vr(X(r, t), 4)}, v{AEXW}",
                         EX1 + U * (5 - 2 * r - t) + SL * (1 - h), tag="ex1r") for r in range(3) for t in range(2)]
        need["q2"].append("ex1r")
        blk["q2" if h else "q1"] += [f"v_and_b32 v{GADDR + 6}, 0x300, v{L16}"] + [
            f"v_mad_i32_i24 v{GADDR + i}, v{GADDR + 6}, -2, v{AW + i}" for i in range(4)] + [
            f"v_add_u32 v{GADDR + 4 + i}, 0x20000, v{GADDR + i}" for i in range(2)] + [
            [setbase(f"v{GADDR + i}", 65536 * (i >> 1)) for i in range(6)]]
        assert lastm[("q", 0, 2)] <= B["q1"] and lastm[("q", 0, 5)] <= B["q2"] and lastm[("q", 0, 11)] <= B["g0"]
        assert lastm[("q", 0, 17)] <= B["g1"] and lastm[("h", 0, 8)] <= B["q1"]
        wr = [exw(f"ds_write_b128 v{AEXW}, {vr(HOWN + 24 + 4 * t, 4)}", EX2 + U * t, "ex2") for t in range(2)]
        (blk["q1"] if h else head["q2"] if ncvt("q1") >= 4 else blk["q2"]).extend(wr)
        need["g0"].append("ex2")
        mb0["g0"] += [ds(f"ds_read_b128 {vr(X(3, t), 4)}, v{AEXW}", EX2 + U * (1 - t) + SL * (1 - h), tag="ex2r")
                      for t in range(2)]
        need["g1"].append("ex2r")
        blk[pos("g1")] += [exw(f"ds_write_b64 v{AEXW}, {vr(HH + 4 * t, 2)}", EX2H + 8 * t, "ex3") for t in range(2)]
        need["g2"].append("ex3")
        mb0["g2"] += [ds(f"ds_read_b64 {vr(HH + 4 * t + 2, 2)}, v{AEXW}", EX2H + 8 * (1 - t) + SL * (1 - h), tag="ex3r")
                      for t in range(2)]
        need["g3"].append("ex3r")
        q1, q2, q2r, q3 = self.q_epilogue(h)
        head["g0"] += q1
        blk["g1" if h else "g2"] += lines(q2)
        need["g3"].append("qwr")
        blk["g3"] += lines(q2r)
        need["g5"].append("qrd")
        blk["g4"] += lines(q3)
        blk["g1" if h else "g0"].append(self.poison(h))
        blk["g2" if h else "g6"] += lines([self.wo_flag_addr()])
        blk["g3"] += lines(self.att_consts())
        for c in range(10):
            gm = [mf16(GTA, GTB + 4 * k, X(2 * c - 2 + k, 0), "0" if 2 * c - 2 + k == 0 else None) for k in range(2)]
            gr = [f"ds_read_b128 {vr(GTB + 4 * k, 4)}, v{A16} offset:{L_GATE - MISC + 128 * c + 64 * k}" for k in range(2)]
            where = post[steps[c]] if c < o["nstart"] else head[pos(steps[c])]
            if o["nstart"] <= c < 9:
                where += self.x_reads(c)
                assert h or lastm[("w", 0, 2 * c - 1)] >= B[steps[c + 1]]
            where += [f"s_lshr_b32 {s_t0}, {s_j}, 2", self.cond(
                f"s_cmp_eq_u32 {s_t0}, {s_p}", [gm if c else [], gr if c < 9 else []])]
            if c:
                need[steps[c]].append(("xr", c - 1))
        blk["r1_0"].append([self.gate(h)])
        gst = [[]] + [range(-(-o["nst"] * R // 7), -(-o["nst"] * (R + 1) // 7)) for R in range(7)]
        for R in range(7):
            assert lastm[("g", R, 8)] <= B[f"g{max(R + 2, 3)}"]
            blk[f"g{max(R + 1, 2)}"] += self.p_pack(R, h) + [self.p_store(u) for u in gst[R]]
        if h == 0:
            w1, w2, w3 = self.wo_job()
            wa, wb = o["wojob"].split("+")
            (post if wa in self.START[:-1] else head)[wa].append(w1)
            need[wb].append("wodma")
            mb0[wb] += w2
            blk[wb].append(w3)
            blk["g5"].append([f"s_add_u32 m0, {s_m}, {WOSCR}", f"s_min_u32 {s_d0}, {s_m}, 1024",
                              I(f"buffer_load_dwordx4 v{L16}, {sB2}, {s_d0} offen lds", tag="b2")])
            need["a0"].append("b2")
            first = [f"s_or_b32 {s_t0}, {s_tt}, {s_j}", f"s_or_b32 {s_t0}, {s_t0}, {s_w}", f"s_mov_b32 {s_t1}, {WS_E:#x}"]
            c = f"s_cmp_eq_u32 {s_t0}, 0"
            (post if "x6" in self.START[:-1] else head)["x6"] += [first, self.far(c, self.lane0(I(f"buffer_load_dword v{EPO}, v{L16}, {sWS}, {s_t1} offen sc1")))]
            head["r2_0"] += [first, self.far(c, [f"""
    v_readfirstlane_b32 {s_non}, v{EPO}
    s_mul_i32 {s_non}, {s_non}, 0x9e3779b1
    s_add_u32 {s_non}, {s_non}, 0x7f4a7c15
    v_mov_b32 v{EPO}, {s_non}""", self.lane0(I(f"buffer_store_dword v{EPO}, v{L16}, {sWS}, {s_t1} offen sc1")),
                f"s_or_b32 {s_non}, {s_non}, 1"])]
            post[o["kvsig"]] += [f"s_lshr_b32 {s_t0}, {s_j}, 2", f"s_or_b32 {s_t0}, {s_t0}, {s_w}", self.cond(c, [
                f"s_lshl2_add_u32 {s_t0}, {s_tt}, {s_j}", f"s_lshl_b32 {s_t0}, {s_t0}, 2", f"v_mov_b32 v{AKV}, {s_non}",
                self.lane0(I(f"buffer_store_dword v{AKV}, v{L16}, {sDBG}, {s_t0} offen sc1"))])]
        need[o["kvsig"]].append("kvst")
        assert idx[o["kvsig"]] <= idx["g3"]
        if o["touch"] & 8:
            for k in range(4):
                cold = [q["issue"] for q in self.P if q["pc"] == (("w", 2, h), ("w", 3, h), ("h", 0, 0), ("q", 0, h))[k]]
                head[pos(steps[cold[0]]) if o["tstep"] < 0 else
                     steps[idx["r1_0"] + (o["tstep"] * k + 1 - h) * o["rsteps"] // 3]].append(
                    self.cond(f"s_cmp_eq_u32 {s_p}, {k}", self.touch(TW2, sW2, 0)))
                if o["b"] == 8:
                    head[steps[idx["r1_0"] + k + 5 - h]].append(self.cond(f"s_cmp_eq_u32 {s_p}, {k}", [
                        f"s_mov_b32 {s_t0}, {36 * 1152}", self.touch(TW2, sW2, s_t0)]))
        if o["touch"] & 4:
            (post if o["qtouch"][0] == "x" else head)[o["qtouch"]] += [
                f"s_mov_b32 m0, {L_DUMMY}", f"s_mov_b64 exec, {o['qmask']}",
                I(f"global_load_lds_dword {vr(DQ, 2)}, off"), "s_mov_b64 exec, -1"]
        if o["otouch"]:
            head[o["otouch"]] += ["s_mov_b64 exec, 0xffff", self.touch(TOUT, sOUT, 0), "s_mov_b64 exec, -1"]
        for x in o["ctouch"].split("+"):
            if x in head:
                head[x].append(self.retouch(DW1))
                assert idx["r3_1"] <= idx[x] <= idx["g5"]
        k = idx[o["kvpoll"]]
        load = [f"buffer_load_dword v{T + 4}, v{T + 5}, {sDBG}, 0 offen sc1"]
        head[pos(steps[k])] += [f"v_lshlrev_b32 v{T + 5}, 2, v{LANE}", load]
        head[pos(steps[k + 1])] += [self.spin(load, [f"v_cmp_eq_u32 vcc, 0, v{T + 4}"]),
                                    f"v_readfirstlane_b32 {s_tag}, v{T + 4}", f"s_mov_b32 {s_d1}, {WS_KN}",
                                    I(f"buffer_load_dwordx4 {vr(T, 4)}, v{L16}, {sWS}, {s_d1} offen sc1"),
                                    f"s_andn2_b32 {s_tag}, {s_tag}, 15"]
        blk["g5"] += [f"v_mov_b32 v{OREG + i}, 0" for i in range(16) if OREG + i != DW2]
        blk[pos(steps[k + 2])] += lines(self.shift_setup())
        blk["g7"].append(f"v_mov_b32 v{DW2}, 0")
        su = lines(self.bg_setup())
        sb = "g4" if h else "g5"
        for i, x in enumerate(blk[sb]):
            blk[sb][i] = [x, su[i:i + 1]]
        blk[sb] += su[len(blk[sb]):]
        assert all(q["issue"] <= idx["g7"] - 1 + h for q in self.P if q["pc"][0] == "g" and q["h"] == h)
        assert idx["g4"] < idx[pos(steps[k])] and idx[pos(steps[k + 1])] < idx["g8"]

        dma = {s: [] for s in steps}
        for si in range(-1, idx["a0"] + 1):
            mine = [self.dma_code(q) for q in self.P if q["issue"] == si and q["h"] == h]
            s = steps[si] if si >= 0 else None
            if s is None or s == "a0":
                pass
            elif s in self.START[:-1] or (s == self.START[-1] and h == 1):
                lo, hi = B[s] + 1, B[steps[si + 1]] - (o["hoist"] + 1 if s == self.START[-1] else 0)
                for i, c in enumerate(mine):
                    if hi > lo:
                        G[lo + (i * (hi - lo)) // len(mine)]["mem"].append(c)
                    else:
                        m = G[B[s]]["mem"]
                        m.insert(m.index(("boundary", steps[si + 1])) if hi < lo else len(m), c)
            else:
                n = 0 if idx[s] < idx["r1_0"] else o["mdma"] if idx[s] < idx["q0"] else o["mdmaq"] if s[0] == "q" else \
                    o["mdmag"] if idx[s] <= idx[o["kvpoll"]] else 0
                if h:
                    n = len(mine) - min(n, len(mine))
                    dma[pos(s)] = mine[:n]
                    mb1[s] = mine[n:] + mb1[s]
                else:
                    mb1[s] = mine[:n] + mb1[s]
                    dma[s] = mine[n:]
        for s in steps[:-4]:
            for i, x in enumerate(mb0[s]):
                G[B[s] + 1 + i]["mem"].append(x)
            lo, hi = B[s] + 1 + len(mb0[s]), B[steps[idx[s] + 1]] - o["hoist"] - 1
            one = list(flat(mb1[s]))
            gaps = [i for i in range(lo, hi) if not G[i]["last"] and len(G[i]["mem"]) < 2]
            if len(gaps) < len(one):
                gaps = list(range(lo, hi))
            for i, x in enumerate(one):
                G[gaps[(i * len(gaps)) // len(one)]]["mem"].append(x)

        def sunk(s):
            if s is None or not idx["r1_1"] <= idx[s] <= idx["g0"]:
                return 0
            return o["sink"] if idx[s] <= idx["h0"] else o["sinkq"]

        def gblock(s, nxt):
            items, d = list(blk[s]), dma[s]
            z = s in o["zoom"].split("+")
            out = self.ts(f"z{s}.G") if z else []
            if h and sunk(nxt):
                n = sunk(nxt)
                n = min([n] + [i for i, x in enumerate(items) if any(y.cls != "valu" for y in flat([x]) if y.pseudo is None)])
                out += items[:n] + [barrier(need=need[nxt], drain_lds=False), "s_setprio 1"]
                items = items[n:]
            out += list(head[s])
            wr = [i for i, x in enumerate(items) if any(y.pseudo is None and y.cls == "ds" and not y.W for y in flat([x]))]
            if o["dlast"] and wr and s[0] == "g":
                out += items[:wr[-1] + 1]
                items = items[wr[-1] + 1:]
            sp = o["dsp"] if s[0] != "g" else o["dspg"]
            zz = o["zoom"] == "z" + s
            out = (self.ts("zG") if zz else []) + out
            for i, c in enumerate(d):
                out += self.ts(f"z{i}a") if zz else []
                out.append(c)
                out += self.ts(f"z{i}b") if zz else []
                out += items[(i * len(items)) // (sp * len(d)):((i + 1) * len(items)) // (sp * len(d))]
            out += items[(len(items) // sp if d else 0):]
            out += self.ts(f"z{s}.E") if z or zz else []
            c = 0
            for x in flat(out):
                if x.pseudo is None:
                    c += {"valu": 16 if x.trans else 8, "vm": 24, "ds": 30 if not x.W else 10}.get(x.cls, 3)
            self.gload[(s, h)] = c
            for reg in sorted({x.addr for x in reads.get(nxt, [])}):
                offs = [x.off for x in reads[nxt] if x.addr == reg]
                lo = min(offs) if max(offs) - min(offs) < 65536 else offs[0]
                out.append(rebase(reg, lo & ~4095, max(x for x in offs if x - (lo & ~4095) < 65536)))
            return out

        stamps = {"x0": "x0", "r1_0": "r1", "r2_0": "r2", "h0": "h", "g0": "g0", "g4": "g4"}
        if h:
            for s in steps[:-3]:
                if sunk(s):
                    post[s].append("s_setprio 0")
                elif s not in self.START:
                    z = steps[idx[s] - 1] in o["zoom"].split("+")
                    G[B[s] - o["hoist"]]["mem"].insert(0, [self.ts(f"z{s}.W") if z else [],
                                                           barrier(need=need[s], drain_lds=False)])
                    G[B[s] - o["hoist"] - 1]["mem"].append("s_setprio 1")
                    post[s].append("s_setprio 0")
            G[NG - 2]["mem"] += ["s_setprio 1", barrier(need=need["a0"])]
            for i, x in enumerate(self.p_pack(7, h)):
                G[NG - 10 + i]["mem"].insert(0, x)
        body = []
        for g in G:
            body.append(g["m"])
            for x in g["mem"]:
                if isinstance(x, tuple):
                    s = x[1]
                    if s not in self.START:
                        body.append(gblock(steps[idx[s] - 1], s))
                    if s in self.START:
                        body.append(barrier(need=need[s], drain_lds=s == "x0"))
                    elif h == 0:
                        last = reads[steps[idx[s] - 1]][-1]
                        last.tag = ("rd", s)
                        if steps[idx[s] - 1] in o["zoom"].split("+"):
                            body += [wait(need=need[s] + [last.tag]), self.ts(f"z{s}.W")]
                        body.append(barrier(need=need[s] + [last.tag], drain_lds=False))
                    if o["zoom"] == "pro" and idx[s] < 10:
                        body += self.ts("z" + s)
                    if steps[idx[s] - 1] in o["zoom"].split("+"):
                        body += self.ts(f"z{s}.M")
                    body += [self.ts(stamps[s]) if s in stamps else [], post[s]]
                else:
                    body.append(x)
        if h:
            body += [[self.p_store(u) for u in gst[7]], self.p_pack(8, h), "s_setprio 0"]
        else:
            body += [gblock("g8", None), self.p_pack(7, h), [self.p_store(u) for u in gst[7]], self.p_pack(8, h), barrier(need=need["a0"])]
        return body

    def kv_off(self, t):
        return 9216 * self.kv_order[t // 4], t & 3

    def k_reads(self, t):
        base, q = self.kv_off(t)
        o = [ds(f"ds_read_b128 {vr(KM, 4)}, v{AK}", base + 1024 * q)]
        if q % 2 == 0:
            o.append(ds(f"ds_read_b32 v{KR}, v{AR}", base + 8704 + 128 * q))
        return o

    def v_reads(self, t):
        base, q = self.kv_off(t)
        a = ds(f"ds_read_b128 {vr(VA, 4)}, v{AV}", base + 4096 + 1152 * q)
        a.span = 576
        return [f"s_mov_b64 exec, {s_msk}", a, ds(f"ds_read_b128 {vr(VB, 4)}, v{AV}", base + 4096 + 1152 * q + 576),
                "s_mov_b64 exec, -1"]

    def qk(self, t):
        s = SREG + 16 * (t & 1)
        return (I(f"v_mfma_f32_32x32x8_bf16 {vr(s, 16)}, {vr(KR, 2)}, {vr(QRB if t & 1 else QRA, 2)}, 0",
                  needregs={("v", KM)}),
                I(f"v_mfma_f32_32x32x16_bf16 {vr(s, 16)}, {vr(KM, 4)}, {vr(QM, 4)}, {vr(s, 16)}"))

    def pv(self, t):
        s = SREG + 16 * (t & 1)
        return (I(f"v_smfmac_f32_32x32x32_bf16 {vr(OREG, 16)}, {vr(VA, 4)}, {vr(s, 8)}, v{IDX}", needregs={("v", VB)}),
                I(f"v_smfmac_f32_32x32x32_bf16 {vr(OREG, 16)}, {vr(VB, 4)}, {vr(s + 8, 8)}, v{IDX}"))

    def bg_setup(self):
        return f"""
    s_mul_i32 {s_t2}, {s_cq}, 9
    s_lshr_b32 {s_t0}, {s_j}, 2
    s_lshl_b32 {s_t1}, {s_tt}, 2
    s_add_u32 {s_t0}, {s_t0}, {s_t1}
    s_lshl_b32 {s_fc}, {s_t0}, 7
    s_add_u32 {s_fc}, {s_fc}, {WS_F:#x}
    s_mul_i32 {s_t0}, {s_t0}, 36
    s_add_u32 {s_t0}, {s_t0}, {s_t2}
    s_lshl_b32 {s_t0}, {s_t0}, 14
    s_add_u32 {s_t0}, {s_t0}, {WS_P:#x}
    s_lshl_b32 {s_t1}, {s_w}, 11
    s_add_u32 {s_w1o}, {s_t0}, {s_t1}
    s_add_u32 {s_w1o}, {s_w1o}, {8 * 16384}
    s_lshl_b32 {s_xo}, {s_w}, 14
    s_add_u32 {s_xo}, {s_xo}, {s_t0}
    s_mul_i32 {s_t0}, {s_t2}, {18 * KB}
    s_add_u32 {s_t0}, {s_t0}, {WS_WO:#x}
    s_mul_i32 {s_who}, {s_w}, {18 * KB}
    s_add_u32 {s_who}, {s_who}, {s_t0}
    s_add_u32 {s_t0}, {s_t0}, {8 * 18 * KB}
    s_add_u32 {s_w9}, {s_t0}, {s_t1}
    s_lshl_b32 {s_t1}, {s_w}, 8
    s_add_u32 {s_w9r}, {s_t0}, {s_t1}
    s_add_u32 {s_w9r}, {s_w9r}, {16 * KB}
    s_add_u32 {s_wh2}, {s_who}, {16 * KB}""", [f"""
    s_cmp_lt_u32 {s_cq}, 2
    s_cselect_b32 {s_t0}, {s_xo}, {s_who}
    s_cselect_b32 {s_who}, {s_who}, {s_xo}
    s_cselect_b32 {s_t1}, {s_w1o}, {s_wh2}
    s_cselect_b32 {s_wh2}, {s_wh2}, {s_w1o}
    s_mov_b32 {s_xo}, {s_t0}
    s_mov_b32 {s_w1o}, {s_t1}"""]

    def a0_dma(self):
        at = [q["at"] for q in self.P if self.steps[q["issue"]] == "a0" and q["issue"] >= 0]
        o = []
        for i in range(0, len(at), 2):
            x, y = at[i], at[min(i + 1, len(at) - 1)]
            o.append([f"s_mul_i32 {s_d0}, {s_hf}, {(y - x) & 0xFFFFFFFF:#x}", f"s_add_u32 {s_d0}, {s_d0}, {s_m}",
                      f"s_add_u32 m0, {s_d0}, {x}", f"s_add_u32 {s_d0}, {s_d0}, {WS_KV + x}",
                      I(f"buffer_load_dwordx4 v{L16}, {sWS}, {s_d0} offen sc1 lds", tag="kvl")])
        return o

    def bg_loads(self):
        def ld(reg, sbase, off):
            pre, so = [], sbase
            if off >= 4096:
                pre, so = [f"s_add_u32 {s_d0}, {sbase}, {off & ~4095}"], s_d0
            oo = f" offset:{off % 4096}" if off % 4096 else ""
            return reg, pre + [I(f"buffer_load_dwordx4 {vr(reg, 4)}, v{L16}, {sWS}, {so} offen{oo} sc1")]

        a1, a2 = ([ld(r + 64 + 4 * k, b1, KB * k) for k in range(2)] + [ld(r + 4 * k, b0, KB * k) for k in range(16)]
                  for r, b0, b1 in ((PREG, s_xo, s_w1o), (WREG, s_who, s_wh2)))
        wo = [ld(WREG + 72 + 4 * k, s_w9, KB * k) for k in range(2)]
        wo.append((WREG + 80, [f"v_and_b32 v{WREG + 82}, 0xf0, v{L16}", f"v_lshrrev_b32 v{WREG + 83}, 5, v{LANE}",
                               f"v_lshl_add_u32 v{WREG + 82}, v{WREG + 83}, 3, v{WREG + 82}",
                               I(f"buffer_load_dwordx2 {vr(WREG + 80, 2)}, v{WREG + 82}, {sWS}, {s_w9r} offen sc1")]))
        return a1, a2, wo

    def p_poll(self, val, wo=False, reg=ATM + 1):
        load = [f"buffer_load_dword v{reg}, v{AFW if wo else AFP}, {sWS}, {0 if wo else s_fc} offen sc1"]
        if isinstance(val, tuple):
            pre = [f"s_cmp_lt_u32 {s_cq}, 2", f"s_cselect_b32 {s_t1}, {val[0]}, {val[1]}", f"s_add_u32 {s_t1}, {s_tag}, {s_t1}"]
        else:
            pre = [f"s_add_u32 {s_t1}, {s_tag}, {val}"]
        return load, [pre, self.spin(load, [f"v_subrev_u32 v{reg}, {s_t1}, v{reg}", f"v_cmp_lt_u32 vcc, 8, v{reg}"])]

    def p_flag(self, val, need, reg=ATM - 1):
        return [f"s_add_u32 {s_t1}, {s_tag}, {val}", f"v_mov_b32 v{reg}, {s_t1}", wait(need=need),
                self.lane0(I(f"buffer_store_dword v{reg}, v{L16}, {sWS}, {s_fl} offen sc1"))]

    def attention(self):
        o = self.o
        ex = [([], []) for _ in range(64)]
        used = [0] * 64

        def put(t, code, slot=1, force=False):
            while not force and (ex[t][slot] or (used[t] and t >= o["dbl"])):
                t += 1
            used[t] += 1
            ex[t][slot].append(code)
            return t

        if o["even"]:
            st = {u: put(int(o["st0"] + (u - o["nst"]) * o["pace"]), self.p_store(u)) for u in range(o["nst"], 18)}
        else:
            st = {u: put(0, self.p_store(u)) for u in range(o["nst"], 10)}
        for x in self.a0_dma():
            put(0, x)
        t5 = put(st.get(9, 0) + o["fdelay"], self.p_flag(5, [("p", 9)]))
        u0 = max(o["nst"], 10)
        (pa, pb), (pc, pd) = self.p_poll((5, 1)), self.p_poll(1, True, ATM)
        tx = put(o["xwin"] - 1 - o["pdist"], pa)
        tx = put(tx, pc) + o["pdist"]
        ex[tx - 1][0].append(pb)
        ex[tx][0].append(pd)
        st.update({u: put(int(o["st0"] + (u - u0) * o["pace"]), self.p_store(u)) for u in range(u0, 18) if u not in st})
        t9 = put(st[17] + o["fdelay"], self.p_flag(9, [("p", 17)]))
        pa, pb = self.p_poll((5, 9))
        ty = put(o["ywin"] - 2, pa) + 2
        assert t5 < tx - o["pdist"] - 1 and t9 < ty - 2
        ex[ty][0].append(pb)
        a1, a2, wo = self.bg_loads()
        l2 = [put(ty + i * (o["plast"] - ty) // 17, x[1], force=True) for i, x in enumerate(a2)]
        l1 = [put(tx + i * (ty - 1 - tx) // 18, x[1]) for i, x in enumerate(a1)]
        l3 = [put(max(tx, st[17] + 1), x[1]) if used[max(tx, st[17] + 1):62].count(0) else put(ty - 4 - 2 * i, x[1], 0, True)
              for i, x in enumerate(wo)]
        for x in o["ctouch"].split("+"):
            if x.isdigit():
                put(int(x), self.retouch(55), 0, True)
        self.planinfo += f" | stores {st} | flags {t5} {t9} checks {tx} {ty} | loads {l1} {l2} {l3} | used {used}"
        p = [self.k_reads(0), self.qk(0), self.k_reads(1)]
        sch = o["asch"]
        for t in range(64):
            e = [f"v_exp_f32 v{SREG + 16 * (t & 1) + i}, v{SREG + 16 * (t & 1) + i}" for i in range(16)]
            if t == self.b1tile:
                b1 = barrier(need=["kvl"], drain_lds=False)
                p += [self.cond(f"s_cmp_eq_u32 {s_hf}, 0", [b1]) if o["b1split"] else b1, self.ts("b1")]
            if o["zoom"] == "att" and t % 5 == 0:
                p += self.ts(f"z{t}")
            k = 0
            for c in sch:
                if c.isdigit():
                    p += e[k:k + int(c)]
                    k += int(c)
                elif c in "aB" and t > 0:
                    p.append(self.pv(t - 1)[c == "B"])
                elif c == "A":
                    p.append(self.pv(t)[0])
                elif c in "RM" and t < 63:
                    p.append(self.qk(t + 1)[c == "M"])
                elif c == "v":
                    p += self.v_reads(t)
                elif c == "k" and t < 62:
                    p += self.k_reads(t + 2)
                elif c in "ef":
                    p += ex[t][c == "f"]
                elif c == "L" and t == self.b1tile - 1 and o["b1split"]:
                    p += [self.cond(f"s_cmp_eq_u32 {s_hf}, 1", [barrier(need=["kvl"], drain_lds=False)]), "s_setprio 0"]
                elif c in "LHX":
                    p.append(f"s_setprio {'LHX'.index(c)}")
            assert k == 16
        if "a" in sch:
            p += [self.pv(63)[0], "s_setprio 2"]
        p += [self.pv(63)[1]]
        return p

    def slow_path(self):
        S = SREG
        mx, ak, av, ar = f"v{ATM}", f"v{AK}", f"v{AV}", f"v{AR}"

        def qk(q):
            o = f"    ds_read_b128 {vr(KM, 4)}, {ak} offset:{1024 * q}\n"
            o += f"    ds_read_b32 v{KR}, {ar} offset:{8704 + 256 * (q >> 1)}\n"
            o += "    s_waitcnt lgkmcnt(0)\n"
            o += "    " + self.qk(q)[0].text.replace(vr(S + 16, 16), vr(S, 16)) + "\n"
            o += "    " + self.qk(0)[1].text + "\n    s_nop 15\n"
            return o

        adv = f"""    v_add_u32 {ak}, 9216, {ak}
    v_add_u32 {av}, 9216, {av}
    v_add_u32 {ar}, 9216, {ar}
    s_sub_u32 {s_t0}, {s_t0}, 1
    s_cmp_lg_u32 {s_t0}, 0
"""
        s = f"""    v_mov_b32 v{QRA + 1}, 0
    v_mov_b32 v{QRB + 1}, 0
    v_mov_b32 {mx}, 0xff800000
    s_mov_b32 {s_t0}, 16
L_slow1:
"""
        for q in range(4):
            s += qk(q)
            for i in range(8):
                s += f"    v_max3_f32 {mx}, {mx}, v{S + 2 * i}, v{S + 2 * i + 1}\n"
        s += adv + f"""    s_cbranch_scc1 L_slow1
    v_mov_b32 v{ATM + 1}, {mx}
    s_nop 1
    v_permlane32_swap_b32 v{ATM + 1}, {mx}
    s_nop 1
    v_max_f32 {mx}, {mx}, v{ATM + 1}
    v_subrev_u32 {ak}, {16 * 9216}, {ak}
    v_subrev_u32 {av}, {16 * 9216}, {av}
    v_subrev_u32 {ar}, {16 * 9216}, {ar}
    s_mov_b32 {s_t0}, 16
L_slow2:
"""
        for q in range(4):
            s += f"""    s_mov_b64 exec, {s_msk}
    ds_read_b128 {vr(VA, 4)}, {av} offset:{4096 + 1152 * q}
    ds_read_b128 {vr(VB, 4)}, {av} offset:{4096 + 1152 * q + 576}
    s_mov_b64 exec, -1
"""
            s += qk(q)
            for i in range(16):
                s += f"    v_sub_f32 v{S + i}, v{S + i}, {mx}\n"
            for i in range(16):
                s += f"    v_exp_f32 v{S + i}, v{S + i}\n"
            s += "    s_nop 1\n    " + self.pv(0)[0].text + "\n    " + self.pv(0)[1].text + "\n    s_nop 3\n"
        s += adv + "    s_cbranch_scc1 L_slow2\n"
        pa, pb = self.p_poll(9), self.p_poll(1, True)
        return [label("L_slow"), self.a0_dma(), [self.p_store(u) for u in range(self.o["nst"], 18)],
                raw("    s_waitcnt vmcnt(0) lgkmcnt(0)\n    s_barrier"), self.p_flag(9, []), raw(s),
                pa, pb, [c for l in self.bg_loads() for _, c in l],
                raw("    s_waitcnt vmcnt(0) lgkmcnt(0)\n    s_nop 15\n    s_branch L_att_done")]

    def final(self, PB, WB):
        O, ost = OREG, self.o["ost"].replace("+", " ")
        tok, g, x0, x1 = "v34", "v35", "v36", "v37"
        SEL, SIX, GG, G1 = 24, 32, 2, 58
        AB, AA, NB_, NA = 64, 72, 80, 88
        BB, OL, W9 = PB, 40, WREG + 80
        p = [f"""
    v_and_b32 {tok}, 15, v{LANE}
    v_lshrrev_b32 {g}, 4, v{LANE}
    v_lshlrev_b32 {x0}, 3, {tok}
    v_lshl_add_u32 {x0}, {g}, 2, {x0}
    s_lshr_b32 {s_t0}, {s_j}, 2
    s_lshl2_add_u32 {s_t0}, {s_tt}, {s_t0}
    s_mul_i32 {s_t0}, {s_t0}, {OBLK}
    s_add_u32 {s_t0}, {s_t0}, {WS_O:#x}
    s_lshl_b32 {s_t1}, {s_w}, 9
    s_lshl3_add_u32 {s_d0}, {s_t1}, {s_t0}
    s_add_u32 {s_d1}, {s_t1}, {s_t0}
    s_add_u32 {s_d1}, {s_d1}, {32 * KB}
    v_rcp_f32 v{O + 10}, v{O + 10}"""]
        p += [f"v_mul_f32 v{O + i}, v{O + i}, v{O + 10}" for i in range(8)]
        p += [f"v_cvt_pk_bf16_f32 v{O + 12 + i}, v{O + 2 * i}, v{O + 2 * i + 1}" for i in range(4)]
        p += [I(f"buffer_store_dwordx4 {vr(O + 12, 4)}, v{L16}, {sWS}, {s_oun} offen sc1"),
              [f"v_mul_f32 v{O + i}, v{O + i}, v{O + 10}" for i in (8, 9)],
              f"v_cvt_pk_bf16_f32 v{O + 11}, v{O + 8}, v{O + 9}",
              "s_mov_b32 exec_hi, 0",
              I(f"buffer_store_dword v{O + 11}, {x0}, {sWS}, {s_our} offen sc1"),
              "s_mov_b64 exec, -1", "s_setprio 0", self.ts("oflag")]
        l8, aw, ar, ast, an9 = "v4", "v5", "v38", "v39", "v1"
        awr, ard, a9r, go, go9 = (f"v{O + i}" for i in range(5))
        p += [f"""
    s_mul_i32 {s_t0}, {s_cq}, 288
    s_add_u32 {s_t0}, {s_t0}, {WOSCR}
    v_lshl_add_u32 {x1}, {g}, 3, {s_t0}
    s_lshl_b32 {s_t1}, {s_w}, 5
    v_add_u32 {x0}, {s_t1}, {x1}
    s_lshr_b32 {s_t1}, {s_j}, 2
    s_lshl_b32 {s_t1}, {s_t1}, 7
    s_add_u32 {s_t1}, {s_t1}, {L_GT}
    v_lshl_add_u32 {l8}, {tok}, 2, {s_t1}
    ds_read_b64 {vr(BIA, 2)}, {x0}
    ds_read_b64 {vr(BI9, 2)}, {x1} offset:256
    ds_read2_b32 {vr(GG, 2)}, {l8} offset0:0 offset1:16
    v_lshrrev_b32 {x0}, 2, {tok}
    v_and_b32 {x1}, 1, {g}
    v_lshlrev_b32 {x1}, 1, {x1}
    v_cmp_eq_u32 vcc, {x0}, {x1}
    v_mov_b32 {l8}, 0x3f80
    v_add_u32 {x1}, 1, {x1}
    v_cndmask_b32 v{SEL}, 0, {l8}, vcc
    v_cndmask_b32 v{SEL + 5}, 0, {l8}, vcc
    v_cmp_eq_u32 vcc, {x0}, {x1}
    v_and_b32 {x0}, 3, {tok}
    v_mul_u32_u24 v{SIX}, 0x5555, {x0}
    v_cndmask_b32 v{SEL + 2}, 0, {l8}, vcc
    v_cndmask_b32 v{SEL + 7}, 0, {l8}, vcc
    v_cmp_eq_u32 vcc, 1, {x1}
    v_mov_b32 v{SEL + 1}, 0
    v_mov_b32 v{SEL + 3}, 0
    v_mov_b32 v{SEL + 4}, 0
    v_mov_b32 v{SEL + 6}, 0
    v_lshlrev_b32 {l8}, 3, v{LANE}
    s_cmp_eq_u32 {s_w}, 0
    s_cselect_b32 {s_t0}, -1, 0""", barrier(drain_lds=False), self.ts("t_b2")]
        common, p = p, []
        init = []
        for acc, b, m in ((AB, BIA, None), (NB_, BI9, s_t0)):
            if m:
                init += [f"v_and_b32 v{b + i}, {m}, v{b + i}" for i in range(2)]
            for t in range(2):
                for i in range(2):
                    init += [f"v_lshlrev_b32 v{acc + 4 * t + 2 * i}, 16, v{b + i}",
                             f"v_and_b32 v{acc + 4 * t + 2 * i + 1}, 0xffff0000, v{b + i}"]
        sums = [I(f"v_smfmac_f32_16x16x64_bf16 {vr((AB if k < 8 else NB_) + 4 * t, 4)}, {vr(SEL + 4 * t, 4)}, "
                  f"{vr(PB + 8 * k, 8)}, v{SIX}") for k in range(9) for t in range(2)]
        load = [f"buffer_load_dwordx4 {vr(OL + 4 * k, 4)}, v{L16}, {sWS}, {s_d0} offen offset:{KB * k} sc1" for k in range(4)]
        load.append(f"buffer_load_dwordx2 {vr(OL + 16, 2)}, {l8}, {sWS}, {s_d1} offen sc1")
        test = [f"v_max3_u32 {x0}, v{OL}, v{OL + 1}, v{OL + 2}", f"v_max3_u32 {x1}, v{OL + 3}, v{OL + 4}, v{OL + 5}"]
        test += [f"v_max3_u32 {(x0, x1)[i & 1]}, {(x0, x1)[i & 1]}, v{OL + 6 + 2 * i}, v{OL + 7 + 2 * i}" for i in range(6)]
        test += [f"v_max_u32 {x0}, {x0}, {x1}", f"v_cmp_eq_u32 vcc, -1, {x0}"]
        addr = f"""
    v_cndmask_b32 v{W9 + 2}, v{W9}, v{SEL + 1}, vcc
    v_cndmask_b32 v{W9 + 3}, v{W9 + 1}, v{SEL + 1}, vcc
    v_cndmask_b32 v{W9}, 0, v{W9}, vcc
    v_cndmask_b32 v{W9 + 1}, 0, v{W9 + 1}, vcc
    v_sub_f32 v{G1}, 1.0, v{GG}
    v_sub_f32 v{G1 + 1}, 1.0, v{GG + 1}
    s_lshl_b32 {s_t1}, {s_w}, 12
    v_add_u32 {aw}, {s_t1}, v{L16}
    s_lshl_b32 {s_t1}, {s_w}, 9
    v_add_u32 {awr}, {s_t1}, {l8}
    v_lshlrev_b32 {ar}, 9, {g}
    v_lshl_add_u32 {ar}, {tok}, 3, {ar}
    v_mul_u32_u24 {ast}, 272, {tok}
    v_lshl_add_u32 {ast}, {g}, 3, {ast}
    s_lshl_b32 {s_t1}, {s_w}, 5
    v_add_u32 {ast}, {s_t1}, {ast}
    v_lshlrev_b32 {an9}, 6, {tok}
    v_lshl_add_u32 {an9}, {g}, 4, {an9}
    s_lshl_b32 {s_t1}, {s_w}, 11
    v_add_u32 {an9}, {s_t1}, {an9}
    s_lshl_b32 {s_t1}, {s_w}, 2
    v_add_u32 {go}, {s_t1}, {g}
    v_mul_u32_u24 {ard}, 272, {go}
    v_lshl_add_u32 {ard}, {tok}, 4, {ard}
    s_lshl_b32 {s_t1}, {s_w}, 8
    s_add_u32 {s_t1}, {s_t1}, {L_N9}
    v_lshl_add_u32 {a9r}, v{LANE}, 2, {s_t1}
    v_mul_u32_u24 {go}, 1152, {go}
    v_lshl_add_u32 {go9}, {tok}, 1, {go}
    v_lshl_add_u32 {go}, {tok}, 4, {go}
    s_lshr_b32 {s_t0}, {s_j}, 2
    s_lshl2_add_u32 {s_t0}, {s_tt}, {s_t0}
    s_mul_i32 {s_t0}, {s_t0}, {32 * 1152}
    s_mul_i32 {s_t1}, {s_cq}, 288
    s_add_u32 {s_t0}, {s_t0}, {s_t1}""".strip().split("\n")
        n0, od = self.o["oearly"], self.o["odma"]
        back, first = [], load
        if od:
            load = [f"buffer_load_dwordx4 v{L16}, {sWS}, {s_d0} offen offset:{KB * k} sc1 lds" for k in range(4)] + load[4:]
            first = [f"s_lshl_b32 m0, {s_w}, 12"] + [I(x, tag="od") for x in load]
            back = [f"ds_read_b128 {vr(OL + 4 * k, 4)}, {aw} offset:{KB * k}" for k in range(4)]
        scale = [[f"v_mul_f32 v{a + 4 * t + i}, v{a + 4 * t + i}, v{G1 + t}" for t in range(2) for i in range(4)]
                 for a in (AB, NB_)]
        late = []
        if self.o["olate"]:
            k = next(i for i, x in enumerate(addr) if f"{ast}, 272" in x)
            k2 = next(i for i, x in enumerate(addr) if f"{s_w}, 2" in x and x.endswith(", 2"))
            keep = [x for x in addr[k2:] if a9r in x or f"{s_w}, 8" in x or str(L_N9) in x]
            late = addr[k:k + 4] + [x for x in addr[k2:] if x not in keep] + scale[0]
            addr = addr[:k] + addr[k + 4:k2] + keep
            scale[0] = []
            sums = sums[16:] + sums[:16]
            init = init[8:] + init[:8]
        n1 = 10 if self.o["olate"] else 8
        fill = init[n1:] + addr
        p += init[:n1]
        if self.o["olate"]:
            p += [sums[0], fill[:4], sums[1], fill[4:8]]
            sums, fill = sums[2:], fill[8:] + scale[1]
            scale[1] = []
        for i, m in enumerate(sums):
            p += [first if i == n0 else [], m, fill[2 * i:2 * i + 2]]
        p += [first if n0 >= len(sums) else [], fill[2 * len(sums):], scale]
        p += [self.ts("t_sum"), wait(need=["od"] if od else []), back,
              self.spin(load, test, sleep=1, far=False, mid=back), self.ts("opoll")]
        p += [I(f"v_mfma_f32_16x16x16_bf16 {vr(NA + 4 * t, 4)}, {vr(W9 + 2 * t, 2)}, {vr(OL + 16, 2)}, 0") for t in range(2)]
        for k in range(4):
            p += [mf16(NA + 4 * (k & 1), WREG + 72 + 4 * (k >> 1), OL + 4 * k)]
        p += [f"ds_write_b128 {aw}, {vr(OL + 4 * k, 4)} offset:{KB * k}" for k in range(4) if not od]
        p += [f"ds_write_b64 {awr}, {vr(OL + 16, 2)} offset:{32 * KB}"]
        for t in range(2):
            p += [f"v_fmac_f32 v{NB_ + 4 * t + i}, v{NA + 4 * t + i}, v{GG + t}" for i in range(4)]
            p.append(f"ds_write_b128 {an9}, {vr(NB_ + 4 * t, 4)} offset:{L_N9 + 1024 * t}")
        p += [barrier(), self.ts("oland")]
        seq = []
        NBUF, N9 = 10, NB_
        for k in range(18):
            for t in range(2):
                b = BB + 4 * (len(seq) % NBUF)
                m = mf16(AA + 4 * t, WB + 4 * k, b, "0" if k == 0 else None)
                if t == 0:
                    m.needregs = {("v", b + 7)}
                if k < 16:
                    seq.append(([f"ds_read_b128 {vr(b, 4)}, v{L16} offset:{2048 * k + 1024 * t}"], m))
                else:
                    seq.append(([f"ds_read_b64 {vr(b + 2 * i, 2)}, {ar} offset:{2048 * k + 128 * t + 256 * i}"
                                 for i in range(2)], m))
        nine = [f"v_add_f32 v{N9 + 2 * i}, v{N9 + 2 * i}, v{N9 + 1 + 2 * i}" for i in range(4)]
        nine += [f"v_add_f32 v{N9}, v{N9}, v{N9 + 2}", f"v_add_f32 v{N9 + 4}, v{N9 + 4}, v{N9 + 6}",
                 f"v_add_f32 v{N9}, v{N9}, v{N9 + 4}", f"v_cvt_pk_bf16_f32 v{N9}, v{N9}, v{N9}",
                 I(f"buffer_store_short v{N9}, {go9}, {sOUT}, {s_t0} offen offset:256 {ost}")]
        rd = [x[0] for x in seq]
        p += rd[:NBUF]
        p += [f"ds_read2st64_b32 {vr(N9 + 2 * i, 2)}, {a9r} offset0:{16 * i} offset1:{16 * i + 8}" for i in range(4)]
        p += late
        for i in range(len(seq)):
            p += [seq[i][1], rd[i + NBUF:i + NBUF + 1], nine[i - 27:i - 26] if i >= 27 else []]
        p += self.ts("t_mm")
        for t in range(2):
            p += [f"v_fmac_f32 v{AB + 4 * t + i}, v{AA + 4 * t + i}, v{GG + t}" for i in range(4)]
            p += [f"v_cvt_pk_bf16_f32 v{AA + 4 * t + i}, v{AB + 4 * t + 2 * i}, v{AB + 4 * t + 2 * i + 1}" for i in range(2)]
            p.append(f"ds_write_b64 {ast}, {vr(AA + 4 * t, 2)} offset:{L_STG + 16 * 272 * t}")
        p += [self.ts("t_wr"), barrier(), self.ts("t_b4"), f"ds_read_b128 {vr(OL, 4)}, {ard} offset:{L_STG}",
              I(f"buffer_store_dwordx4 {vr(OL, 4)}, {go}, {sOUT}, {s_t0} offen {ost}"), self.ts("t_st")]
        return common, p

    def diag_dump(self):
        if not self.o["diag"]:
            return self.ts("end")
        s = "    s_waitcnt vmcnt(0)\n"
        p = [raw(s), self.ts("end")]
        s = f"""    s_memtime s[100:101]
    s_waitcnt lgkmcnt(0)
    s_sub_u32 s100, s100, s98
    s_lshl_b32 {s_t0}, s2, 3
    s_add_u32 {s_t0}, {s_t0}, {s_w}
    s_lshl_b32 {s_t0}, {s_t0}, 6
    s_add_u32 {s_t0}, {s_t0}, {WS_DIAG:#x}
    s_mov_b64 exec, 1
"""
        srcs = ["s98" if self.o["diag"] == 2 else "s96", "s100"] + [f"s{4 + 2 * k}" for k in range(self.nts)]
        for i, r in enumerate(srcs):
            s += f"    v_mov_b32 v1, {r}\n    buffer_store_dword v1, v{L16}, {sWS}, {s_t0} offen offset:{4 * i}\n"
        return p + [raw(s)]

    def experiments(self, text):
        o = self.o
        out = []
        nb = 0
        for l in text.split("\n"):
            if "s_barrier" in l:
                nb += 1
            if o["x_nodma"] and nb > 9 and (" lds" in l or "load_lds" in l):
                continue
            if o["x_nost"] and nb > 9 and "buffer_store_dwordx4" in l:
                continue
            if nb < 10 and any(o["x_s"] >> i & 1 and k in l for i, k in enumerate(("mfma", "read_b128", "_tr_", " lds"))):
                continue
            if o["x_noex"] and nb < 20 and "ds_write_b" in l and nb > 9:
                continue
            if o["x_nogelu"] and nb < 25 and any(f" v{TMP + i}," in l for i in range(4)) and l.strip().startswith("v_") \
                    and "mfma" not in l:
                continue
            out.append(l)
        return "\n".join(out)

    def build(self):
        self.plan()
        side = []
        t0, f0 = finalize([self.prologue(), f"s_cmp_eq_u32 {s_hf}, 0", "s_cbranch_scc1 L_half0"], want_state=True)
        th, fh = [], []
        for h in (1, 0):
            t, f = finalize([label(f"L_half{h}"), self.ffn(h), "s_branch L_join" if h else []],
                            init=[f0], want_state=True, side=side)
            th.append(self.experiments(t))
            fh.append(f)
        slow = [] if self.o["x_fast"] else [f"s_cmp_lg_u64 {s_slow}, 0", "s_cbranch_scc1 L_slow"]
        t1, f1 = finalize([label("L_join"), self.ts("a0"), slow, self.attention(), label("L_att_done"), self.ts("aend"),
                           self.final(PREG, WREG)[0], f"s_cmp_lt_u32 {s_cq}, 2", "s_cbranch_scc0 L_fin2"],
                          init=fh, want_state=True, side=side)
        ta, _ = finalize([self.final(PREG, WREG)[1], "s_branch L_out" if self.o["diag"] or self.o["x_pad"] else "s_endpgm"],
                         init=[f1])
        tb, stats = finalize([label("L_fin2"), self.final(WREG, PREG)[1], label("L_out"), self.diag_dump(),
                              label("L_end"), "s_endpgm"], init=[f1])
        t1 += ta + tb
        text = t0 + th[0] + th[1] + t1
        text2, _ = finalize(self.slow_path(), side=side)
        text2 = "\n".join(side) + "\n" + text2
        self.stats = stats
        ref = open(f"cdna_kernels/{NAME}.s.ref").read().split("\n")
        head = [l for l in ref if l.startswith(";") and "@launch" not in l and "Override launch" not in l
                and "grid=ceil" not in l]
        out = "\n".join(head) + f"""
; @launch grid=(256,1,1) block=(512,1,1) lds=163840
; Generated by gen/gen.py. One workgroup per CU: 128 tokens x (288 hidden units, 2 heads).
.amdgcn_target "amdgcn-amd-amdhsa--gfx950"
.text
.globl {NAME}_kernel
.p2align 8
.type {NAME}_kernel,@function
{NAME}_kernel:
{text}{text2}L_pad:
    .fill (65536 + 256 - (L_pad - {NAME}_kernel) + 3) / 4, 4, 0xbf810000
.section .rodata,"a"
.p2align 6
.amdhsa_kernel {NAME}_kernel
  .amdhsa_next_free_vgpr 256
  .amdhsa_next_free_sgpr 102
  .amdhsa_accum_offset 256
  .amdhsa_group_segment_fixed_size 0
  .amdhsa_kernarg_size 112
  .amdhsa_user_sgpr_count 2
  .amdhsa_user_sgpr_kernarg_segment_ptr 1
  .amdhsa_system_sgpr_workgroup_id_x 1
.end_amdhsa_kernel
"""
        return out


def parse_opts(args):
    kw = {}
    for a in args:
        k, v = a.split("=", 1)
        d = DEFAULTS[k]
        kw[k] = type(d)(v)
    return kw


if __name__ == "__main__":
    out = sys.argv[1]
    g = Gen(**parse_opts(sys.argv[2:]))
    open(out, "w").write(g.build())
    print(g.stats, g.tsnames)
```

```python
import math
import struct
import sys

from asmlib import I, barrier, divert, finalize, flat, label, opt_begin, opt_end, raw, rebase, setbase, vr, wait

NAME = "gated_mix__grouped_kv_mqa__dense_activation_gelu__prompt"
KB = 1024
U = 8192

DEFAULTS = dict(
    b=4,
    diag=0,
    early=3,
    burst=18,
    lead=22,
    hoist=1,
    mdma=0,
    ex64=0,
    rsteps=3,
    mlds=1,
    nbuf=6,
    hqa="1+1+1+1+1+0+1",
    hqb="1+1+1+1+1.5+0.5+0",
    kvsig="g2",
    kvpoll="g6",
    kv0=2,
    pace=2.5,
    fdelay=7,
    xwin=23,
    nst=7,
    plast=61,
    kvcap=12,
    pst="sc1",
    ost="sc1",
    asch="aXeBvRMkfL4H66",
    touch=9,
    waux="",
    otouch="",
    pdist=3,
    dbl=0,
    ywin=43,
    st0=0,
    ctouch="48",
    qtouch="r2_0", qmask="-1", top=32, tstep=2, wojob="r1_1+r2_1", r1t=0, b1split=1, mdmaq=0, mdmag=0, sink=0, sinkq=0, odma=0, olate=1, even=1, chain=1, nstart=2, first=3, mid=6, capx=5, capr=8, dsp=1, dspg=1, dlast=1, capq=6, capg=10,
    rot=1,
    thr=40.0,
    oearly=8,
    force_slow=0,
    zoom="",
    x_pad="",
    x_skew=0, x_s=0, x_nodma=0, x_noex=0, x_nogelu=0, x_nost=0, x_fast=0,
)


def f32(x):
    return "0x%08x" % struct.unpack("<I", struct.pack("<f", x))[0]


WS_KV, WS_KN, WS_E, WS_F, WS_WO, WS_O, WS_P = 0, 147456, 0x28000, 0x30000, 0x40000, 0x100000, 0x400000
WS_DIAG, WS_SIZE = 0x3000000, 0x4000000
OBLK = 36 * KB
SL = 4096
XREG = [88 * KB, 104 * KB, 120 * KB, 136 * KB]
EX1, EX2, EX2H = 104 * KB, 116 * KB, 132 * KB
QSCR, MISC = 140 * KB, 152 * KB
L_B1, L_GATE, WOSCR = MISC, MISC + 2048, MISC + 4096
L_GT, L_DUMMY = MISC + 2048 + 1152, MISC + 1536
L_STG, L_N9 = 40 * KB, 50 * KB
QP = 104

sX, sW1, sW2, sWS, sDBG, sOUT, sWO, sB1, sB2, sG = (f"s[{a}:{a + 3}]" for a in range(32, 72, 4))
s_w, s_p, s_hf, s_tt, s_j = "s72", "s73", "s74", "s75", "s76"
s_xo, s_m, s_w1o, s_who, s_rc = "s77", "s78", "s79", "s80", "s81"
s_w2a, s_w2b, s_fl, s_cq, s_pst, s_oun = "s82", "s83", "s84", "s85", "s86", "s87"
s_t0, s_t1, s_d0, s_d1 = "s88", "s89", "s90", "s91"
s_msk, s_slow = "s[92:93]", "s[94:95]"
s_t2 = "s3"
s_wj, s_wo = "s68", "s69"
s_tw = ["s0", "s1", "s92", "s60", "s61", "s62", "s63", "s70", "s71"]
s_non, s_our = "s93", "s69"
s_tag, s_w9 = "s68", "s81"
s_wh2 = "s70"
s_w9r, s_fc = "s60", "s61"

L16, C0, AW, A16, DW1, AWH, AQ, TMP = 0, 1, 2, 6, 7, 8, 9, 12
AKV, DQ, SQ, AKN, DW2, AEXW, LANE, DWH = 11, 16, 18, 19, 20, 21, 22, 23
QN2, AFP, AFW = 23, 1, 5
ABUF, ACC, HOWN, HH, XO = 24, 40, 72, 104, 112
TOUT, TW2, WJD, WJA, WJV, EPO = 99, 100, 101, 102, 92, 103
GTA, GTB = 80, 84
AQ2 = 56
GADDR, GBUF, GACC, T, GP = 128, 136, 144, 200, 208
QM, QRA, QRB, KM, KR, IDX, VA, VB = 40, 44, 46, 48, 52, 54, 56, 60
SREG, OREG, PREG, WREG, ATM = 64, 6, 100, 172, 38
AK, AV, AR = 2, 3, 4
BIA, BI9 = 96, 98


def X(ks, t):
    return XO + 72 * t + 4 * ks


LOG2E = math.log2(math.e)
GC0 = -2.0 * LOG2E * math.sqrt(2.0 / math.pi)
GC1 = GC0 * 0.044715
QSCALE = LOG2E / math.sqrt(18.0)


def ds(text, off, **kw):
    return I(text, off=off, **kw)


def mf16(d, a, b, c=None):
    c = vr(d, 4) if c is None else c
    return I(f"v_mfma_f32_16x16x32_bf16 {vr(d, 4)}, {vr(a, 4)}, {vr(b, 4)}, {c}")


class Gen:
    def __init__(self, **kw):
        self.o = dict(DEFAULTS)
        self.o.update(kw)
        self.nl = 0
        self.nts = 0
        self.tsnames = []
        self.gload = {}
        self.safe = {}

    def lab(self, s):
        self.nl += 1
        return f"L_{s}_{self.nl}"

    def ts(self, name, nopad=False):
        if self.o["x_pad"] == name and not nopad:
            l = self.lab("pad")
            sync = "s_and_b32 s96, s96, 0xfffff000" if self.o["diag"] else "s_nop 0"
            return [raw(f"""    {sync}
{l}:
    s_memrealtime s[100:101]
    s_waitcnt lgkmcnt(0)
    s_sub_u32 s100, s100, s96
    s_cmp_lt_u32 s100, 10000
    s_cbranch_scc1 {l}"""), self.ts(name, True)]
        if self.o["zoom"] == "tail":
            if name not in ("aend", "oflag", "t_sum", "t_b2", "opoll", "oland", "t_mm", "t_wr", "t_b4", "t_st", "end"):
                return []
        elif not self.o["diag"] or (self.o["zoom"] and name[0] != "z" and name != "end") or name[:2] == "t_":
            return []
        if name not in self.tsnames:
            self.tsnames.append(name)
            self.nts += 1
        k = self.tsnames.index(name)
        assert k < 14
        op = "s_memtime" if self.o["diag"] == 2 else "s_memrealtime"
        return [raw(f"    {op} s[{4 + 2 * k}:{5 + 2 * k}]")]

    def cond(self, cmp, body):
        l = self.lab("skip")
        return [cmp, f"s_cbranch_scc0 {l}", opt_begin(), body, opt_end(), label(l)]

    def far(self, cmp, body):
        lf, lb = self.lab("far"), self.lab("back")
        return [cmp, f"s_cbranch_scc1 {lf}", opt_begin(), divert(True), label(lf), body, f"s_branch {lb}",
                divert(False), opt_end(), label(lb)]

    def spin(self, load, test, sleep=2, far=True, mid=()):
        lo, ld = self.lab("ok"), self.lab("spin")
        nl = "\n    "
        return [test, (self.far if far else self.cond)("s_cmp_lg_u64 vcc, 0", [
                raw(f"""    s_mov_b32 {s_t2}, 0x8000
{ld}:
    s_sleep {sleep}
    {nl.join(load)}
    s_waitcnt vmcnt(0)
    {nl.join(list(mid) + ["s_waitcnt lgkmcnt(0)"] * bool(mid) + test)}
    s_nop 1
    s_cmp_eq_u64 vcc, 0
    s_cbranch_scc1 {lo}
    s_sub_u32 {s_t2}, {s_t2}, 1
    s_cmp_lg_u32 {s_t2}, 0
    s_cbranch_scc1 {ld}
{lo}:""")])]

    def lane0(self, *ins):
        return ["s_mov_b64 exec, 1", list(ins), "s_mov_b64 exec, -1"]

    def touch(self, vaddr, srd, soff):
        return [f"s_mov_b32 m0, {L_DUMMY}", I(f"buffer_load_dword v{vaddr}, {srd}, {soff} offen lds")]

    def retouch(self, tmp):
        l = self.lab("pc")
        return [raw(f"    s_getpc_b64 s[32:33]\n{l}:"), f"""
    s_bfe_u32 {s_t0}, s2, 0x30003
    s_lshl_b32 {s_t1}, {s_w}, 6
    s_add_u32 {s_t0}, {s_t0}, {s_t1}
    s_lshl_b32 {s_t0}, {s_t0}, 7
    s_sub_u32 s32, s32, {l}-L_pc
    s_subb_u32 s33, s33, 0
    v_lshl_add_u32 v{tmp}, v{L16}, 6, {s_t0}
    s_mov_b32 m0, {L_DUMMY}
    s_mov_b64 exec, 0xff""", I(f"global_load_lds_dword v{tmp}, s[32:33]"), "s_mov_b64 exec, -1"]

    def prologue(self):
        o = self.o
        b, tch = o["b"], o["touch"]
        zp = o["zoom"] == "pro"
        assert b in (4, 8) or not tch & 8
        nb, lb = 16 // b, b.bit_length() - 1
        t = HOWN + 5
        l3, l7, g, tok, r, c4, w1 = (f"v{t + i}" for i in range(7))
        a, bb, cc = f"v{t + 7}", f"v{t + 8}", f"v{t + 9}"
        DX = HOWN + 4
        s_bf, s_mw = s_pst, s_oun
        p = []
        if o["diag"] or o["x_pad"]:
            p += [raw("    s_memrealtime s[96:97]\n    s_memtime s[98:99]")]
        p += [f"""
    s_cmp_ge_u32 s2, 256
    s_cbranch_scc1 L_end""", raw("""    s_load_dwordx16 s[4:19], s[0:1], 0
    s_load_dwordx8 s[20:27], s[0:1], 64
    s_load_dwordx4 s[28:31], s[0:1], 96""")]
        if tch & 1 and not tch & 16:
            p += [raw("""    s_getpc_b64 s[92:93]
L_pc:"""), f"""
    s_bfe_u32 {s_t0}, s2, 0x30003
    v_lshrrev_b32 {a}, 3, v0
    v_and_b32 {bb}, 7, v0
    v_or_b32 {bb}, {a}, {bb}
    v_lshl_add_u32 {bb}, {bb}, 3, {s_t0}
    v_lshlrev_b32 {bb}, 7, {bb}
    s_mov_b32 m0, {L_DUMMY}
    s_mov_b64 exec, 0xff""", I(f"global_load_lds_dword {bb}, s[92:93]"), "s_mov_b64 exec, -1"]
        p += [f"""
    v_lshrrev_b32 {a}, 6, v0
    v_and_b32 v{LANE}, 63, v0
    v_readfirstlane_b32 {s_w}, {a}"""]
        if tch & 1 and tch & 16:
            p += [self.cond(f"s_cmp_eq_u32 {s_w}, 7", [raw("""    s_getpc_b64 s[92:93]
L_pc:"""), f"""
    s_bfe_u32 {s_t0}, s2, 0x30003
    v_lshl_add_u32 {bb}, v{LANE}, 3, {s_t0}
    v_lshlrev_b32 {bb}, 7, {bb}
    s_mov_b32 m0, {L_DUMMY}""", I(f"global_load_lds_dword {bb}, s[92:93]")])]
        p += [f"""
    v_lshrrev_b32 {l3}, 3, v{LANE}
    v_and_b32 {l7}, 7, v{LANE}
    v_lshrrev_b32 {g}, 4, v{LANE}
    v_and_b32 {w1}, 1, {a}
    v_lshlrev_b32 {w1}, 2, {w1}
    s_and_b32 {s_t0}, s2, {nb - 1}
    s_lshl_b32 {s_j}, {s_t0}, {lb}
    s_lshr_b32 {s_t0}, s2, 3
    s_and_b32 {s_t1}, {s_t0}, {b - 1}
    s_add_u32 {s_j}, {s_j}, {s_t1}
    s_lshr_b32 {s_tt}, {s_t0}, {lb}"""]
        if o["rot"]:
            m = (s_t1, s_tt) if b <= 4 else (s_tt, s_t1)
            p += [f"""
    s_lshl1_add_u32 {s_rc}, {m[0]}, {m[1]}
    s_sub_u32 {s_t1}, {s_rc}, 9
    s_min_u32 {s_rc}, {s_rc}, {s_t1}"""]
            assert b in (4, 8)
        else:
            p += [f"s_mov_b32 {s_rc}, 0"]
        p += [f"""
    s_bfe_u32 {s_t0}, s2, {((3 - (nb.bit_length() - 1)) << 16) | (nb.bit_length() - 1):#x}
    s_mul_i32 {s_t0}, {s_t0}, {32 // b}
    s_add_u32 {s_tt}, {s_tt}, {s_t0}
    s_lshl_b32 {s_mw}, {s_w}, 10
    s_lshl4_add_u32 {s_t0}, {s_tt}, {s_w}
    s_mul_i32 {s_xo}, {s_t0}, {8 * 1152}
    s_and_b32 {s_t1}, {s_j}, 1
    s_mul_i32 {s_t0}, {s_j}, 576
    s_lshl_b32 {s_t2}, {s_t1}, 6
    s_add_u32 {s_bf}, {s_t0}, {s_t2}
    s_mul_i32 {s_w1o}, {s_w}, {8 * 9216}
    s_add_u32 {s_w1o}, {s_w1o}, {s_bf}
    v_add_u32 {a}, {w1}, {g}
    v_xor_b32 {a}, {a}, {l7}
    v_mul_u32_u24 {bb}, 1152, {l3}
    v_lshl_add_u32 v{DX}, {a}, 4, {bb}
    v_and_b32 {a}, 1, {g}
    v_lshl_add_u32 {a}, {a}, 1, {w1}
    v_xor_b32 {cc}, {a}, {l7}
    v_mul_u32_u24 v{DW1}, 9216, {l3}
    v_lshl_add_u32 v{DW1}, {cc}, 4, v{DW1}
    s_mov_b32 s34, {2048 * 1152}
    s_mov_b32 s35, 0x20000
    s_mov_b32 s38, {576 * 9216}
    s_mov_b32 s39, 0x20000
    s_mov_b32 {s_fl}, {s_rc}""", raw("    s_waitcnt lgkmcnt(0)"), raw("    s_memrealtime s[94:95]") if zp else [], """
    s_mov_b32 s32, s4
    s_mov_b32 s33, s5
    s_mov_b32 s36, s16
    s_mov_b32 s37, s17"""]
        pre = [q for q in self.P if q["issue"] < 0]
        burst = []
        for q, z in zip(pre[0::2], pre[1::2]):
            assert (q["h"], z["h"], z["at"] - q["at"]) == (0, 1, SL)
            burst.append(self.dma_code(q, s_mw if len(burst) < o["mid"] else s_t0, z["pc"]))
        assert max(q["pc"][2] for q in pre if q["pc"][0] == "w") < 6
        t1 = [f"s_add_u32 {s_d0}, {s_tw[0]}, 128", "s_mov_b32 exec_lo, 0x01010101", "s_mov_b32 exec_hi, 0x01010101",
              self.touch(DW1, sW1, s_d0), "s_mov_b64 exec, -1"]
        p += [burst[:o["first"]], f"""
    v_lshl_add_u32 v{t + 10}, v0, 1, {s_t2}
    s_mul_i32 {s_t2}, {s_t1}, 576
    v_subrev_u32 {a}, {s_t2}, v{t + 10}
    v_cmp_gt_u32 vcc, 0x100, v0
    s_mov_b32 s60, s18
    s_mov_b32 s61, s19
    s_mov_b32 s62, 9216
    s_mov_b32 s63, 0x20000
    v_cndmask_b32 v{t + 13}, {a}, v{t + 10}, vcc
    s_lshl_b32 {s_t2}, {s_fl}, 7
    v_lshlrev_b32 v{t + 11}, 2, v0
    v_add_u32 v{t + 10}, {s_t2}, v{t + 11}
    v_subrev_u32 {a}, 1152, v{t + 10}
    v_min_u32 v{t + 10}, {a}, v{t + 10}
    s_mov_b32 s68, s24
    s_mov_b32 s69, s25
    s_mov_b32 s70, 1152
    s_mov_b32 s71, 0x20000""",
              self.cond(f"s_cmp_lt_u32 {s_w}, 5", [
                  I(f"buffer_load_ushort v{t + 14}, v{t + 13}, {sB1}, {s_t0} offen"),
                  I(f"buffer_load_dword v{t + 15}, v{t + 10}, {sG}, 0 offen")]), burst[o["first"]:o["early"]], raw("    s_memrealtime s[100:101]") if zp else []]
        p += [f"""
    s_lshl3_add_u32 {s_t0}, {s_fl}, {s_w}
    s_lshl_b32 {s_t0}, {s_t0}, 3
    v_add_u32 {tok}, {s_t0}, {l3}
    s_mul_i32 {s_t0}, {s_j}, 72
    s_and_b32 {s_t0}, {s_t0}, 0xfffffff0
    v_mul_u32_u24 {a}, 1152, {tok}
    v_lshl_add_u32 {a}, {cc}, 4, {a}
    v_add_u32 {a}, {s_t0}, {a}
    s_lshl_b32 {s_t0}, {s_t1}, 4
    v_mov_b32 {r}, {s_t0}
    v_cmp_eq_u32 vcc, 5, {cc}
    v_cndmask_b32 {r}, 20, {r}, vcc
    v_mad_u32_u24 {r}, {tok}, 36, {r}
    s_bitcmp1_b32 {s_j}, 1
    s_cselect_b32 s8, s10, s8
    s_cselect_b32 s9, s11, s9
    v_cmp_gt_u32 vcc, 5, {cc}
    v_cndmask_b32 v{SQ}, {r}, {a}, vcc
    v_mov_b32 v{SQ + 1}, 0
    v_mov_b32 {a}, s6
    v_mov_b32 {r}, s8
    v_cndmask_b32 v{DQ}, {r}, {a}, vcc
    v_mov_b32 {a}, s7
    v_mov_b32 {r}, s9
    v_cndmask_b32 v{DQ + 1}, {r}, {a}, vcc
    v_lshl_add_u64 {vr(DQ, 2)}, {vr(SQ, 2)}, 0, {vr(DQ, 2)}
    v_mov_b32 {a}, {64 * 1152}
    v_mov_b32 {r}, {64 * 36}
    v_cndmask_b32 v{SQ}, {r}, {a}, vcc
    s_mov_b32 s40, s20
    s_mov_b32 s41, s21
    s_mov_b32 s42, {4608 * 1152}
    s_mov_b32 s43, 0x20000
    s_mov_b32 s44, s30
    s_mov_b32 s45, s31
    s_mov_b32 s46, {WS_SIZE:#x}
    s_mov_b32 s47, 0x20000
    s_mov_b32 s48, s28
    s_mov_b32 s49, s29
    s_mov_b32 s50, 256
    s_mov_b32 s51, 0x20000
    s_mov_b32 s52, s26
    s_mov_b32 s53, s27
    s_mov_b32 s54, {2048 * 1152}
    s_mov_b32 s55, 0x20000
    s_mov_b32 s56, s12
    s_mov_b32 s57, s13
    s_mov_b32 s58, {576 * 1152}
    s_mov_b32 s59, 0x20000
    s_mov_b32 s64, s22
    s_mov_b32 s65, s23
    s_mov_b32 s66, 1152
    s_mov_b32 s67, 0x20000
    s_mov_b32 {s_non}, 1""", burst[o["early"]:o["mid"]], t1 if o["r1t"] == 1 else [], f"""
    s_and_b32 {s_p}, {s_w}, 3
    s_lshr_b32 {s_hf}, {s_w}, 2
    s_lshl_b32 {s_m}, {s_p}, 10
    s_and_b32 {s_cq}, {s_j}, 3
    s_mul_i32 {s_t0}, {s_j}, 576
    s_xor_b32 {s_t2}, {s_t1}, 1
    s_lshl_b32 {s_t2}, {s_t2}, 9
    s_add_u32 {s_t0}, {s_t0}, {s_t2}
    s_mul_i32 {s_who}, {s_p}, {16 * 9216}
    s_add_u32 {s_who}, {s_who}, {s_t0}
    s_sub_u32 {s_who}, {s_who}, {s_w1o}
    s_lshl4_add_u32 {s_t0}, {s_p}, {s_t0}
    s_mul_i32 {s_w2b}, {s_t0}, 576
    s_lshl4_add_u32 {s_t0}, {s_p}, {s_bf}
    s_mul_i32 {s_w2a}, {s_t0}, 576
    s_lshl2_add_u32 {s_t0}, {s_tt}, {s_p}
    s_mul_i32 {s_pst}, {s_t0}, {36 * 16384}
    s_lshl_b32 {s_t2}, {s_hf}, 15
    s_add_u32 {s_pst}, {s_pst}, {s_t2}
    s_lshl_b32 {s_t2}, {s_j}, 10
    s_add_u32 {s_pst}, {s_pst}, {s_t2}
    s_add_u32 {s_pst}, {s_pst}, {WS_P:#x}
    s_lshl1_add_u32 {s_fl}, {s_t0}, {s_hf}
    s_lshl4_add_u32 {s_fl}, {s_fl}, {s_j}
    s_lshl_b32 {s_fl}, {s_fl}, 2
    s_add_u32 {s_fl}, {s_fl}, {WS_F:#x}
    s_mul_i32 {s_oun}, {s_t0}, 36
    s_lshl1_add_u32 {s_oun}, {s_j}, {s_oun}
    s_add_u32 {s_oun}, {s_oun}, {s_hf}
    s_lshl_b32 {s_oun}, {s_oun}, 10
    s_add_u32 {s_oun}, {s_oun}, {WS_O:#x}
    v_and_b32 {tok}, 15, v{LANE}
    v_bfe_u32 {r}, v{LANE}, 2, 2
    v_and_b32 {c4}, 3, v{LANE}
    v_lshlrev_b32 v{L16}, 4, v{LANE}
    v_mov_b32 v{C0}, {f32(GC0)}
    s_add_u32 {s_t0}, {s_m}, {EX1}
    v_add_u32 v{AEXW}, {s_t0}, v{L16}
    v_lshlrev_b32 v{A16}, 4, {g}
    v_add_u32 v{A16}, {MISC}, v{A16}
    v_lshlrev_b32 {a}, 1, {g}
    v_xor_b32 {a}, {a}, {l7}
    v_lshl_add_u32 v{DW2}, {a}, 4, {bb}
    v_lshlrev_b32 v{WJD}, 4, {a}
    v_lshrrev_b32 {a}, 5, v{LANE}
    v_lshlrev_b32 {a}, 1, {a}
    v_xor_b32 {a}, {a}, {c4}
    v_lshrrev_b32 v{DWH}, 2, v{LANE}
    v_mul_u32_u24 v{DWH}, 9216, v{DWH}
    v_lshl_add_u32 v{DWH}, {a}, 4, v{DWH}""", setbase(f"v{AEXW}", EX1), setbase(f"v{A16}", MISC),
              f"""
    v_lshrrev_b32 {a}, 1, {tok}
    v_xor_b32 {a}, {a}, {g}
    v_lshlrev_b32 {a}, 4, {a}
    v_lshl_add_u32 {a}, {tok}, 7, {a}
    s_lshl1_add_u32 {s_t0}, {s_p}, {s_hf}
    s_lshl_b32 {s_t0}, {s_t0}, 11
    s_add_u32 {s_t0}, {s_t0}, {XREG[0]}
    v_add_u32 v{HOWN}, {s_t0}, {a}
    v_xor_b32 v{HOWN + 1}, 64, v{HOWN}
    v_xor_b32 v{HOWN + 2}, 0x800, v{HOWN}
    v_xor_b32 v{HOWN + 3}, 0x840, v{HOWN}""", [setbase(f"v{HOWN + i}", XREG[0]) for i in range(4)],
              f"""
    v_lshrrev_b32 {a}, 1, {r}
    v_and_b32 {l3}, 1, {g}
    v_lshl_add_u32 {l3}, {l3}, 1, {a}
    v_lshlrev_b32 {l3}, 5, {l3}
    v_lshl_add_u32 {l7}, {g}, 3, {r}
    v_lshlrev_b32 {w1}, 3, {c4}
    s_lshl_b32 {s_t0}, {s_hf}, 6
    v_add_u32 {a}, {s_t0}, {w1}
    v_xor_b32 {a}, {a}, {l3}
    v_lshl_add_u32 v{AW}, {l7}, 7, {a}
    v_xor_b32 v{AW + 1}, 32, v{AW}
    v_add_u32 v{AW + 2}, 0x10000, v{AW}
    v_add_u32 v{AW + 3}, 0x10000, v{AW + 1}
    v_and_b32 {a}, 1, {g}
    v_xor_b32 {a}, {s_hf}, {a}
    v_lshl_add_u32 {a}, {a}, 5, {w1}
    v_lshl_add_u32 v{AWH}, {l7}, 6, {a}
    s_lshl2_add_u32 {s_t2}, {s_hf}, {s_t1}
    s_lshl_b32 {s_t2}, {s_t2}, 3
    v_add_u32 {a}, {s_t2}, {w1}
    v_xor_b32 v{AQ}, {a}, {l3}
    v_lshl_add_u32 v{AQ}, {l7}, 7, v{AQ}
    s_lshl_b32 {s_t0}, {s_t1}, 3
    v_add_u32 {a}, 72, {w1}
    s_add_u32 {s_t2}, {s_t0}, 64
    v_mov_b32 {bb}, {s_t2}
    v_cmp_eq_u32 vcc, 0, {c4}
    v_cndmask_b32 {a}, {a}, {bb}, vcc
    s_sub_u32 {s_t2}, 104, {s_t0}
    v_mov_b32 {bb}, {s_t2}
    v_cmp_eq_u32 vcc, 3, {c4}
    v_cndmask_b32 {a}, {a}, {bb}, vcc
    v_xor_b32 {a}, {a}, {l3}
    v_lshl_add_u32 v{AQ + 1}, {l7}, 7, {a}""",
              [setbase(f"v{x}", 0) for x in (AW, AW + 1, AWH, AQ, AQ + 1)],
              [setbase(f"v{x}", 65536) for x in (AW + 2, AW + 3)]]
        if tch & 8:
            p += [f"""
    s_and_b32 {s_t2}, {s_tt}, {32 // b - 1}
    s_lshl{5 - lb}_add_u32 {s_t0}, {s_j}, {s_t2}
    s_mul_i32 {s_t0}, {s_t0}, {9 * b * 1152}
    s_mul_i32 {s_t2}, {s_w}, {41 * 128}
    s_add_u32 {s_t0}, {s_t0}, {s_t2}
    v_min_u32 v{TW2}, 40, v{LANE}
    v_lshl_add_u32 v{TW2}, v{TW2}, 7, {s_t0}"""]
        if o["otouch"]:
            p += [f"""
    s_lshr_b32 {s_t0}, {s_j}, 2
    s_lshl2_add_u32 {s_t0}, {s_tt}, {s_t0}
    s_lshl3_add_u32 {s_t0}, {s_t0}, {s_w}
    s_mul_i32 {s_t0}, {s_t0}, {4 * 1152}
    s_mul_i32 {s_t2}, {s_cq}, 288
    s_add_u32 {s_t0}, {s_t0}, {s_t2}
    v_mul_u32_u24 {a}, 1152, {r}
    v_mul_u32_u24 {bb}, 92, {c4}
    v_add3_u32 v{TOUT}, {a}, {bb}, {s_t0}"""]
        p += [f"""
    s_mul_i32 {s_t0}, {s_tt}, 9216
    s_lshl1_add_u32 {s_d0}, {s_p}, {s_hf}
    s_mul_i32 {s_t2}, {s_d0}, 576
    s_add_u32 {s_t2}, {s_t2}, {s_t0}
    s_add_u32 {s_t2}, {s_t2}, {WS_KV + 4096}
    v_bfrev_b32 {l3}, 1
    v_lshrrev_b32 {a}, 1, {g}
    v_mul_u32_u24 {a}, 288, {a}
    v_and_b32 {bb}, 1, {g}
    v_lshl_add_u32 {a}, {bb}, 3, {a}
    v_lshl_add_u32 {a}, {tok}, 4, {a}
    v_add_u32 {a}, {s_t2}, {a}
    s_lshl_b32 {s_t2}, {s_t1}, 7
    v_add_u32 v{AKV}, {s_t2}, {a}
    v_add_u32 {a}, 96, {a}
    v_cmp_gt_u32 vcc, 8, {tok}
    v_lshrrev_b32 {bb}, 1, {tok}
    v_or_b32 {bb}, {s_t2}, {bb}
    v_cndmask_b32 v{AKV}, {l3}, v{AKV}, vcc
    v_cmp_eq_u32 vcc, 5, {bb}
    v_mov_b32 v{AKN}, {l3}
    v_cndmask_b32 v{AKV}, v{AKV}, {a}, vcc""", self.cond(f"s_cmp_lt_u32 {s_j}, 2", [f"""
    s_lshl1_add_u32 {s_t2}, {s_p}, {s_j}
    s_lshl1_add_u32 {s_t2}, {s_t2}, {s_hf}
    s_lshl_b32 {s_t2}, {s_t2}, 8
    s_add_u32 {s_t2}, {s_t2}, {s_t0}
    v_subrev_u32 {bb}, 1, {g}
    v_lshl_add_u32 {a}, {bb}, 3, {s_t2}
    v_cmp_gt_u32 vcc, 2, {bb}
    v_lshl_add_u32 {a}, {tok}, 4, {a}
    s_lshl_b32 {s_d0}, {s_d0}, 6
    s_add_u32 {s_d0}, {s_d0}, {s_t0}
    v_cndmask_b32 v{AKV}, {l3}, {a}, vcc
    s_add_u32 {s_d0}, {s_d0}, {WS_KV + 8704}
    v_lshl_add_u32 {a}, {tok}, 2, {s_d0}
    s_lshl2_add_u32 {s_t2}, {s_j}, 3
    v_cmp_eq_u32 vcc, {s_t2}, {g}
    s_lshl4_add_u32 {s_t2}, {s_j}, {s_tt}
    s_lshl3_add_u32 {s_t2}, {s_t2}, {s_w}
    v_cndmask_b32 v{AKN}, {l3}, {a}, vcc
    s_lshl2_add_u32 {s_t2}, {s_t2}, {WS_KN}
    v_writelane_b32 v{AKN}, {s_t2}, 0"""])]
        if o["x_skew"]:
            p += [f"s_lshl2_add_u32 {s_t0}, s2, {WS_DIAG:#x}", f"v_mov_b32 {a}, s96",
                  self.cond(f"s_cmp_eq_u32 {s_w}, 0", self.lane0(
                      I(f"buffer_store_dword {a}, v{L16}, {sWS}, {s_t0} offen sc1")))]
        p += [self.wo_setup(a, bb)]
        if zp:
            self.ts("zarg"), self.ts("zburst")
            p += [raw("    s_waitcnt lgkmcnt(0)\n    s_mov_b32 s4, s94\n    s_mov_b32 s6, s100"), self.ts("zpro")]
        p += [f"s_lshl_b32 {s_t0}, {s_w}, 10", t1 if o["r1t"] == 2 else [], burst[o["mid"]:], t1 if o["r1t"] == 3 else [], f"""
    v_lshlrev_b32 v{t + 14}, 16, v{t + 14}
    v_add_u32 v{t + 11}, {MISC}, v{t + 11}
    ds_write_b32 v{t + 11}, v{t + 14}
    ds_write_b32 v{t + 11}, v{t + 15} offset:2048"""]
        return p

    def gelu_quad(self, src, dst):
        pr = [(f"v{TMP + i}", f"v{src + i}") for i in range(4)]
        o = [f"v_mul_f32 {t}, {x}, {x}" for t, x in pr]
        o += [f"v_fmamk_f32 {t}, {t}, {f32(GC1)}, v{C0}" for t, x in pr]
        o += [f"v_mul_f32 {t}, {t}, {x}" for t, x in pr]
        o += [f"v_exp_f32 {t}, {t}" for t, x in pr]
        o += [f"v_add_f32 {t}, 1.0, {t}" for t, x in pr]
        o += [f"v_rcp_f32 {t}, {t}" for t, x in pr]
        o += [f"v_mul_f32 {t}, {t}, {x}" for t, x in pr]
        o += [f"v_cvt_pk_bf16_f32 v{dst + i}, {pr[2 * i][0]}, {pr[2 * i + 1][0]}" for i in range(2)]
        return o

    def bias(self, h, r, tt2, t):
        if r < 4:
            return ds(f"ds_read_b128 {vr(ACC + 16 * (r & 1) + 8 * tt2 + 4 * t, 4)}, v{A16}",
                      L_B1 + 256 * r + 128 * h + 64 * tt2)
        return ds(f"ds_read_b128 {vr(ACC + 4 * t, 4)}, v{A16}", L_B1 + 1024 + 64 * h)

    def q_epilogue(self, h):
        a0, a2 = ACC + 8, AQ2
        tok, g, row, sc, aS = (f"v{64 + i}" for i in range(5))
        x0, x1 = "v69", "v70"
        p1 = [f"""
    v_and_b32 {tok}, 15, v{LANE}
    v_lshrrev_b32 {g}, 4, v{LANE}
    s_mul_i32 {s_t0}, {s_p}, {32 * QP}
    s_add_u32 {s_t0}, {s_t0}, {QSCR}
    v_mov_b32 {sc}, {f32(QSCALE)}
    v_cmp_eq_u32 vcc, 0, {g}
    v_mul_u32_u24 {row}, {QP}, {tok}
    v_add_u32 {row}, {s_t0}, {row}
    v_cndmask_b32 {x0}, 1.0, {sc}, vcc
    v_lshl_add_u32 {aS}, {g}, 3, {row}"""]
        p1 += [f"v_mul_f32 v{a2 + i}, v{a2 + i}, {x0}" for i in range(4)]
        p1 += [f"v_cvt_pk_bf16_f32 v{T + 4 + i}, v{a2 + 2 * i}, v{a2 + 2 * i + 1}" for i in range(2)]
        p1 += [f"ds_write_b64 {aS}, {vr(T + 4, 2)} offset:{64 + 16 * QP * h}"]
        kblk = [f"""
    v_mov_b32 {x1}, 0
    s_mov_b32 exec_lo, 0xffff0000
    s_mov_b32 exec_hi, 0x0000ffff
    v_fmac_f32 {x1}, v{a2}, v{a2}
    v_fmac_f32 {x1}, v{a2 + 1}, v{a2 + 1}
    s_cmp_eq_u32 {s_j}, 0
    s_cselect_b32 exec_hi, -1, exec_hi
    v_fmac_f32 {x1}, v{a2 + 2}, v{a2 + 2}
    v_fmac_f32 {x1}, v{a2 + 3}, v{a2 + 3}
    s_mov_b64 exec, -1
    v_mov_b32 {x0}, {x1}
    v_permlane32_swap_b32 {x0}, {x1}
    v_add_f32 {x1}, {x0}, {x1}
    v_mov_b32 {x0}, {x1}
    v_permlane16_swap_b32 {x0}, {x1}
    v_add_f32 {x1}, {x0}, {x1}"""]
        kblk += [f"v_max_f32_dpp {x1}, {x1}, {x1} row_ror:{n} row_mask:0xf bank_mask:0xf" for n in (8, 4, 2, 1)]
        kblk += [f"v_cndmask_b32 {x1}, v{T + 5}, {x1}, vcc",
                 I(f"buffer_store_dword {x1}, v{AKN}, {sWS}, 0 offen sc1", tag="kvst")]
        vblk = [f"""
    v_and_b32 {x0}, 3, v{LANE}
    v_min_u32 {x0}, 2, {x0}
    v_lshl_add_u32 {x0}, {x0}, 3, {s_t0}
    v_lshrrev_b32 {x1}, 2, v{LANE}
    v_mul_u32_u24 {x1}, {QP}, {x1}
    v_add_u32 {x0}, {x0}, {x1}
    ds_read_b64_tr_b16 {vr(T + 4, 2)}, {x0} offset:{72 + 16 * QP * h}"""]
        p1 += [self.cond(f"s_cmp_lt_u32 {s_j}, 4", [
            self.cond(f"s_cmp_ge_u32 {s_j}, 2", vblk),
            I(f"buffer_store_dwordx2 {vr(T + 4, 2)}, v{AKV}, {sWS}, 0 offen sc1", tag="kvst"),
            self.cond(f"s_cmp_lt_u32 {s_j}, 2", kblk)])]
        p2 = [f"v_mul_f32 v{a0 + i}, v{a0 + i}, {sc}" for i in range(8)]
        p2 += [f"v_cvt_pk_bf16_f32 v{T + i}, v{a0 + 2 * i}, v{a0 + 2 * i + 1}" for i in range(4)]
        p2 += [I(f"ds_write_b64 {aS}, {vr(T + 2 * t, 2)} offset:{32 * h + 16 * QP * (h ^ t)}", tag="qwr") for t in range(2)]
        p2r = [f"""
    v_and_b32 {x0}, 1, {g}
    v_mad_u32_u24 {x0}, {x0}, 36, {row}
    v_add_u32 {x0}, {16 * QP * h}, {x0}
    v_lshrrev_b32 {x1}, 1, {g}
    v_lshl_add_u32 {x1}, {x1}, 4, {x0}
    ds_read2_b32 {vr(QM, 2)}, {x1} offset0:0 offset1:1
    ds_read2_b32 {vr(QM + 2, 2)}, {x1} offset0:2 offset1:3""", I(f"ds_read_b32 v{QRA}, {x0} offset:32", tag="qrd")]
        p3 = [f"v_lshlrev_b32 v{T + i}, 16, v{QM + i}" for i in range(5)]
        p3 += [f"v_mul_f32 v{QN2}, v{QM}, v{QM}"] + [f"v_fmac_f32 v{QN2}, v{QM + i}, v{QM + i}" for i in range(1, 4)]
        p3 += [f"v_fmac_f32 v{QN2}, v{T + i}, v{T + i}" for i in range(4)]
        p3 += [f"""
    v_mov_b32 {x0}, v{QN2}
    v_cmp_gt_u32 vcc, 32, v{LANE}
    v_mov_b32 {x1}, 0
    v_permlane32_swap_b32 {x0}, v{QN2}
    v_add_f32 v{QN2}, v{QN2}, {x0}
    v_fmac_f32 v{QN2}, v{QRA}, v{QRA}
    v_fmac_f32 v{QN2}, v{T + 4}, v{T + 4}
    v_cndmask_b32 v{QRB}, v{QRA}, {x1}, vcc
    v_cndmask_b32 v{QRA}, 0, v{QRA}, vcc"""]
        return p1, p2, p2r, p3

    def gate(self, h):
        x = f"v{GTA}"
        return f"""
    v_mul_f32 {x}, {f32(-LOG2E)}, {x}
    v_and_b32 v{GTA + 1}, 15, v{LANE}
    v_exp_f32 {x}, {x}
    s_lshl_b32 {s_t0}, {s_p}, 7
    s_add_u32 {s_t0}, {s_t0}, {L_GT + 64 * h}
    v_lshl_add_u32 v{GTA + 1}, v{GTA + 1}, 2, {s_t0}
    v_add_f32 {x}, 1.0, {x}
    v_rcp_f32 {x}, {x}
    ds_write_b32 v{GTA + 1}, {x}"""

    def wo_setup(self, x0, x1):
        return [f"""
    v_lshrrev_b32 {x0}, 5, v{LANE}
    v_bfe_u32 {x1}, v{LANE}, 3, 2
    v_mad_u32_u24 {x0}, {x0}, 18, {x1}
    s_mul_i32 {s_t0}, {s_j}, 36
    s_lshl_b32 {s_t1}, {s_p}, 2
    s_add_u32 {s_t0}, {s_t0}, {s_t1}
    s_mul_i32 {s_t0}, {s_t0}, 1152
    s_lshl_b32 {s_t1}, {s_tt}, 7
    s_add_u32 {s_wj}, {s_t0}, {s_t1}""", self.cond(f"s_cmp_ge_u32 {s_tt}, 9", [f"""
    v_lshrrev_b32 {x0}, 5, v{LANE}
    v_bfe_u32 {x1}, v{LANE}, 4, 1
    v_lshl_add_u32 {x0}, {x0}, 2, {x1}
    v_bfe_u32 {x1}, v{LANE}, 3, 1
    v_mad_u32_u24 {x0}, {x0}, 18, {x1}
    s_sub_u32 {s_t0}, {s_tt}, 9
    s_lshl_b32 {s_t0}, {s_t0}, 1
    s_and_b32 {s_t1}, {s_p}, 1
    s_add_u32 {s_t0}, {s_t0}, {s_t1}
    s_lshl_b32 {s_t0}, {s_t0}, 3
    s_and_b32 {s_t1}, {s_p}, 2
    s_add_u32 {s_t0}, {s_t0}, {s_t1}
    s_mul_i32 {s_t0}, {s_t0}, 18
    s_add_u32 {s_t0}, {s_t0}, 16
    s_mul_i32 {s_t0}, {s_t0}, 1152
    s_lshl_b32 {s_t1}, {s_j}, 7
    s_add_u32 {s_wj}, {s_t0}, {s_t1}"""]), f"""
    v_mul_u32_u24 {x0}, 1152, {x0}
    v_add_u32 v{WJD}, v{WJD}, {x0}
    v_bfe_u32 {x0}, v{LANE}, 3, 2
    v_xor_b32 {x0}, {s_p}, {x0}
    v_lshlrev_b32 {x0}, 5, {x0}
    v_and_b32 {x1}, 3, v{LANE}
    v_lshl_add_u32 {x0}, {x1}, 3, {x0}
    v_lshrrev_b32 {x1}, 2, v{LANE}
    v_lshl_add_u32 {x0}, {x1}, 7, {x0}
    v_add_u32 v{WJA}, {WOSCR}, {x0}
    s_add_u32 {s_t0}, {s_tt}, 7
    s_cmp_ge_u32 {s_tt}, 9
    s_cselect_b32 {s_t0}, {s_t0}, {s_j}
    s_cselect_b32 {s_t1}, {s_j}, {s_tt}
    s_lshl_b32 {s_t1}, {s_t1}, 2
    s_add_u32 {s_t1}, {s_t1}, {s_p}
    s_mul_i32 {s_t1}, {s_t1}, 18
    s_add_u32 {s_t0}, {s_t0}, {s_t1}
    s_lshl_b32 {s_t0}, {s_t0}, 10
    s_add_u32 {s_wo}, {s_t0}, {WS_WO:#x}
    s_cmp_lt_u32 {s_j}, 9
    s_cselect_b32 {s_t0}, 11, 9
    s_cmp_lt_u32 {s_tt}, {s_t0}
    s_cselect_b32 {s_wo}, {s_wo}, -1"""]

    def wo_job(self):
        c = f"s_cmp_lg_u32 {s_wo}, -1"
        return (self.cond(c, [f"s_add_u32 m0, {s_m}, {WOSCR}",
                              I(f"buffer_load_dwordx4 v{WJD}, {sWO}, {s_wj} offen lds", tag="wodma")]),
                [f"ds_read_b64_tr_b16 {vr(WJV, 2)}, v{WJA}", f"ds_read_b64_tr_b16 {vr(WJV + 2, 2)}, v{WJA} offset:2048"],
                self.cond(c, [I(f"buffer_store_dwordx4 {vr(WJV, 4)}, v{L16}, {sWS}, {s_wo} offen sc1", tag="wost")]))

    def shift_setup(self):
        x = f"v{T}"
        o = [f"v_max3_f32 {x}, {x}, v{T + 1}, v{T + 2}", f"v_max_f32 {x}, {x}, v{T + 3}"]
        o += [f"v_max_f32_dpp {x}, {x}, {x} row_ror:{n} row_mask:0xf bank_mask:0xf" for n in (8, 4, 2, 1)]
        o += [[f"""
    v_readlane_b32 {s_t0}, {x}, 0
    v_readlane_b32 {s_t1}, {x}, 16
    v_readlane_b32 {s_t2}, {x}, 32
    v_readlane_b32 {s_d1}, {x}, 48
    s_max_u32 {s_t0}, {s_t0}, {s_t1}
    s_max_u32 {s_t2}, {s_t2}, {s_d1}
    v_mov_b32 {x}, {s_t0}
    v_add_f32 {x}, {s_t2}, {x}"""], f"""
    v_mul_f32 {x}, {x}, v{QN2}
    v_sqrt_f32 {x}, {x}
    v_mov_b32 v{T + 1}, {f32(0.01)}
    v_fmamk_f32 {x}, {x}, {f32(1.02)}, v{T + 1}
    v_mov_b32 v{T + 1}, {f32(self.o['thr'] if not self.o['force_slow'] else -1.0)}
    v_cmp_nle_f32 {s_slow}, {x}, v{T + 1}
    v_mov_b32 v{T + 1}, 0
    v_cvt_pk_bf16_f32 {x}, -{x}, v{T + 1}
    v_cmp_gt_u32 vcc, 32, v{LANE}
    v_cndmask_b32 v{QRA + 1}, 0, {x}, vcc
    v_cndmask_b32 v{QRB + 1}, {x}, v{T + 1}, vcc"""]
        return o

    def att_consts(self):
        x = f"v{T}"
        o = [f"""
    v_mov_b32 v{KR + 1}, 0x3f80
    v_mov_b32 v{IDX}, 0xdddddddd
    v_and_b32 {x}, 27, v{LANE}
    v_cmp_eq_u32 vcc, 18, {x}
    v_mov_b32 {x}, 0x3f803f80"""]
        o += [f"v_cndmask_b32 v{VA + i}, 0, {x}, vcc" for i in range(8)]
        o += [f"""
    v_mov_b32 v{AK}, v{L16}
    v_lshlrev_b32 v{AR}, 2, v{LANE}
    v_and_b32 {x}, 31, v{LANE}
    v_lshrrev_b32 v{AV}, 5, v{LANE}
    v_mul_u32_u24 v{AV}, 288, v{AV}
    v_lshl_add_u32 v{AV}, {x}, 4, v{AV}
    v_lshlrev_b32 v{AFP}, 2, {x}
    s_mov_b32 s92, 0x3ffff
    s_mov_b32 s93, 0x3ffff""", [setbase(f"v{AK}"), setbase(f"v{AV}"), setbase(f"v{AR}")]]
        return o

    def wo_flag_addr(self):
        x, y = f"v{T}", f"v{T + 1}"
        return f"""
    s_mul_i32 {s_t0}, {s_cq}, 9
    s_add_u32 {s_t1}, {s_t0}, 8
    s_add_u32 {s_t0}, {s_t0}, {s_w}
    v_and_b32 {x}, 16, v{LANE}
    v_cmp_eq_u32 vcc, 0, {x}
    v_mov_b32 {x}, {s_t0}
    v_mov_b32 {y}, {s_t1}
    v_cndmask_b32 {x}, {y}, {x}, vcc
    v_and_b32 {y}, 15, v{LANE}
    v_lshl_add_u32 v{AFW}, {x}, 5, {y}
    v_and_b32 {y}, 1, v{LANE}
    v_lshl_add_u32 {y}, {y}, 2, 36
    v_and_or_b32 {y}, {x}, 3, {y}
    v_lshrrev_b32 {x}, 2, {x}
    v_lshl_add_u32 {x}, {y}, 5, {x}
    v_cmp_gt_u32 vcc, 32, v{LANE}
    v_cndmask_b32 v{AFW}, {x}, v{AFW}, vcc
    v_lshlrev_b32 v{AFW}, 2, v{AFW}
    v_add_u32 v{AFW}, {WS_F:#x}, v{AFW}"""

    def poison(self, h):
        x = f"v{T + 4}"
        return [[f"v_mov_b32 v{T + i}, -1" for i in range(4)],
                I(f"buffer_store_dwordx4 {vr(T, 4)}, v{L16}, {sWS}, {s_oun} offen sc1"), f"""
    s_lshl2_add_u32 {s_t0}, {s_tt}, {s_p}
    s_mul_i32 {s_t0}, {s_t0}, {OBLK}
    s_lshl_b32 {s_our}, {s_j}, 8
    s_add_u32 {s_our}, {s_our}, {s_t0}
    s_add_u32 {s_our}, {s_our}, {WS_O + 32 * KB + 128 * h:#x}
    s_mov_b64 exec, 0xff""", I(f"buffer_store_dwordx4 {vr(T, 4)}, v{L16}, {sWS}, {s_our} offen sc1"),
                "s_mov_b64 exec, -1"]

    @property
    def START(self):
        return ([f"x{c}" for c in range(9)] + ["r1_0"])[:self.o["nstart"]]

    def x_reads(self, c):
        return [ds(f"ds_read_b128 {vr(X(2 * c + k, t), 4)}, v{HOWN + 2 * t + k}", XREG[c % 4], tag=("xr", c))
                for k in range(2) for t in range(2)]

    @staticmethod
    def g_order():
        return [(R, q) for R in range(2) for q in range(8)] + [(0, 8), (1, 8)] + \
            [(R, q) for R in range(2, 9) for q in range(9)]

    @staticmethod
    def gacc(R):
        return GP + 32 if R == 2 else GACC + 16 * ((R if R < 2 else R - 1) & 1)

    def stream(self, h, where):
        o = self.o
        ops = []

        def tr(buf, i, areg, off, win=False):
            if win:
                areg += 2 * (off >> 16)
            return ds(f"ds_read_b64_tr_b16 {vr(buf + 2 * i, 2)}, v{areg}", off)

        def order(ks):
            out, i = [], 0
            while i < len(ks):
                n = 2 if o["chain"] and ks[i][-1] % 2 == 0 and ks[i + 1:i + 2] == [ks[i][:-1] + (ks[i][-1] + 1,)] else 1
                out += [k + (t,) for t in range(2) for k in ks[i:i + n]]
                i += n
            return out

        ring, nring = [ABUF + 4 * i for i in range(4)], [0]

        def nb():
            nring[0] += 1
            return ring[(nring[0] - 1) % len(ring)]

        def new_ring(extra):
            base = [x for x in ring[nring[0] % len(ring):] + ring[:nring[0] % len(ring)] if x < ABUF + 16]
            ring[:] = extra[:o["nbuf"] - 4] + base
            nring[0] = 0

        for r in range(4):
            if r == 0:
                new_ring([HH, HH + 4])
            for ks, tt2 in order([(k,) for k in range(18)]):
                if True:
                    buf, pc = nb(), ("w", r, ks)
                    op = dict(buf=buf, rd=[tr(buf, i, AW + tt2, where(pc) + 512 * i, True) for i in range(2)], pc=pc,
                              mf=[mf16(ACC + 16 * (r & 1) + 8 * tt2 + 4 * t, buf, X(ks, t)) for t in range(2)], rate=1)
                    if tt2 == 0 and r == 0 and ks % 2 == 0:
                        c = ks // 2
                        op["step"] = f"x{c}"
                        op["pre"] = self.x_reads(c) if c < o["nstart"] else []
                        if c < 2:
                            op["pre"] = [self.bias(h, c, a, t) for a in range(2) for t in range(2)] + op["pre"]
                    if tt2 == 0 and r > 0 and ks % (18 // o["rsteps"]) == 0:
                        op["step"] = f"r{r}_{ks * o['rsteps'] // 18}"
                    ops.append(op)
        h0 = len(ops)
        for ks in range(18):
            buf, pc = nb(), ("h", 0, ks // 2)
            op = dict(buf=buf, rd=[tr(buf, i, AWH, where(pc) + 2048 * (ks & 1) + 256 * i) for i in range(2)], pc=pc,
                      mf=[mf16(ACC + 4 * t, buf, X(ks, t)) for t in range(2)], rate=1)
            if ks in (0, 8):
                op["step"] = f"h{ks // 8}"
            ops.append(op)
        q0 = len(ops)
        for ks, a in order([(k,) for k in range(18)]):
            if (ks, a) == (6, 0):
                new_ring([X(3, 0), X(3, 1)])
            if (ks, a) == (12, 0):
                new_ring([GBUF, GBUF + 4])
            c = "0" if ks == 0 else None
            if True:
                buf, pc = nb(), ("q", 0, ks)
                mf = [mf16(AQ2, buf, X(ks, 0), c)] if a else [mf16(ACC + 8 + 4 * t, buf, X(ks, t), c) for t in range(2)]
                op = dict(buf=buf, rd=[tr(buf, i, AQ + a, where(pc) + 512 * i) for i in range(2)], mf=mf, pc=pc,
                          rate=1 + a, after={6: q0 + 7, 12: q0 + 15}.get(ks, -1))
                if a == 0 and ks % 6 == 0:
                    op["step"] = f"q{ks // 6}"
                ops.append(op)
        for R, q, tt2 in order(self.g_order()):
            if True:
                if True:
                    buf, pc = nb(), ("g", R, q)
                    rd = [tr(buf, i, GADDR + tt2, where(pc) + 2048 * (i ^ (h if q == 8 else 0)), True) for i in range(2)]
                    hb = [HH + 4 * t if q == 8 else HOWN + 8 * (q >> 1) + 4 * t if (q & 1) == h else X(q >> 1, t)
                          for t in range(2)]
                    op = dict(buf=buf, rd=rd, pc=pc, rate=1,
                              mf=[mf16(self.gacc(R) + 8 * tt2 + 4 * t, buf, hb[t], "0" if q == 0 else None)
                                  for t in range(2)])
                    if tt2 == 0 and ((q == 0 and R != 2) or (R, q) == (0, 8)):
                        op["step"] = f"g{R if q == 0 else 2}"
                    ops.append(op)

        for op in ops:
            op["bufs"], op["pcs"] = [op["buf"]], [op["pc"]]
        if o["chain"]:
            ops = self.pair_ops(ops)
        G = [dict(m=[], mem=[])]
        B, use0, lastm, reads = {}, {}, {}, {}
        last_user, prev = {}, []
        for k, op in enumerate(ops):
            prev.append(max(last_user.get(b, -1) for b in op["bufs"]))
            last_user.update({b: k for b in op["bufs"]})
        ro, rr, cur = 0, 0, None

        def issue_one():
            nonlocal ro, rr, cur
            op = ops[ro]
            if rr == 0 and "step" in op:
                cur = op["step"]
                B[cur] = len(G) - 1
                G[-1]["mem"].append(("boundary", cur))
            if rr == 0:
                G[-1]["mem"] += op.get("pre", [])
                for pc in op["pcs"]:
                    assert use0.setdefault(pc, cur) == cur
            x = op["rd"][rr]
            G[-1]["mem"].append(x)
            reads.setdefault(cur, []).append(x[0] if isinstance(x, list) else x)
            rr += 1
            if rr == len(op["rd"]):
                ro, rr = ro + 1, 0

        while (ro, rr) < ((2, 1) if o["chain"] else (o["nbuf"] - 1, 0)):
            issue_one()
        for k, op in enumerate(ops):
            while ro <= k:
                issue_one()
            for mi, m in enumerate(op["mf"]):
                G.append(dict(m=[m], mem=[], last=mi == len(op["mf"]) - 1))
                lastm.update({pc: len(G) - 1 for pc in op["pcs"]})
                if mi == op.get("seen", 0):
                    self.safe.update({pc: len(G) - 1 for pc in op["pcs"]})
                done = k if mi == len(op["mf"]) - 1 else k - 1
                cnt = 0
                while ro < len(ops) and prev[ro] <= (done if o["chain"] else k - 1) and ops[ro].get("after", -1) <= done \
                        and cnt < op["rate"] + (op["rate"] == 1 and ro + 1 < len(ops) and prev[ro + 1] <= k - 1):
                    issue_one()
                    cnt += 1
        return G, B, use0, lastm, reads

    @staticmethod
    def pair_ops(ops):
        out = []
        for a, b in zip(ops[0::2], ops[1::2]):
            assert "step" not in b and len(a["mf"]) == len(b["mf"])
            same = a["mf"][0].W == b["mf"][0].W
            mf = [m for pr in zip(a["mf"], b["mf"]) for m in pr] if same else a["mf"] + b["mf"]
            mf[0].needregs = {("v", b["buf"] + 3)} if same else set()
            c = dict(a, bufs=[a["buf"], b["buf"]], pcs=[a["pc"], b["pc"]], rd=a["rd"] + b["rd"], mf=mf)
            c["seen"] = 0 if same else len(a["mf"])
            c["after"] = max(a.get("after", -1), b.get("after", -1)) // 2
            out.append(c)
        return out

    def dma_code(self, q, mbase=s_m, tag2=None):
        k, a, b = q["pc"]
        m0 = f"s_add_u32 m0, {mbase}, {q['at']}"
        tag = q["pc"] if tag2 is None else ("both", q["pc"], tag2)
        nxt = [f"s_add_u32 {s_rc}, {s_rc}, 1", f"s_cmp_eq_u32 {s_rc}, 9"]
        wrap = [f"s_cselect_b32 {s_rc}, 0, {s_rc}"]
        if k == "q":
            code = [m0, I(f"global_load_lds_dwordx4 {vr(DQ, 2)}, off", tag=tag)]
            if b < 16:
                code = [m0] + nxt + code[1:] + [f"s_cselect_b32 {s_d0}, -8, 1"] + wrap + [
                    f"v_mad_i64_i32 {vr(DQ, 2)}, {s_slow}, v{SQ}, {s_d0}, {vr(DQ, 2)}"]
            return code

        def ld(v, srd, so, aux=""):
            aux = aux or " " + self.o["waux"].replace("+", " ")
            return I(f"buffer_load_dwordx4 v{v}, {srd}, {so} offen{aux} lds", tag=tag)

        if k == "x":
            if b < 2:
                return [m0, f"s_lshl_b32 {s_d1}, {s_rc}, 7", f"s_add_u32 {s_d1}, {s_d1}, {s_xo}", ld(HOWN + 4, sX, s_d1)]
            return [m0, f"s_add_u32 {s_d1}, {s_d1}, {64 * 1152}", ld(HOWN + 4, sX, s_d1)]
        if k == "w" and a == 0:
            tw = s_tw[b // 2]
            return [m0, f"s_mul_i32 {tw}, {s_rc}, {64 * 9216}", f"s_add_u32 {tw}, {tw}, {s_w1o}", ld(DW1, sW1, tw),
                    nxt, wrap]
        v, srd, base, off, aux = {
            "w": (DW1, sW1, s_tw[b // 2 % 9], 128 * a, ""),
            "h": (DWH, sW1, s_tw[b % 9], s_who, ""),
            "g": (DW2, sW2, s_w2a if b < 8 else s_w2b, (32 * b * 1152 if b < 8 else 0) + 128 * a, ""),
            "kv": (L16, sWS, s_m, WS_KV + SL * b, " sc1"),
        }[k]
        return [m0, f"s_add_u32 {s_d0}, {base}, {off}", ld(v, srd, s_d0, aux)]

    def plan(self):
        o = self.o
        G, B, use0, lastm, _ = self.stream(1, lambda pc: 0)
        steps = sorted(B, key=B.get) + ["a0", "a1", "end"]
        idx = {s: i for i, s in enumerate(steps)}
        self.steps, self.idx = steps, idx

        def last_abs(pc):
            return max(idx[s] for s in B if B[s] - (0 if s in self.START else o["hoist"]) < self.safe[pc])

        def slots(lo, n):
            return range(lo // SL, (lo + n + SL - 1) // SL)

        res = [(slots(XREG[i], 4 * SL), -1, idx[f"x{i + 4 if i else 8}"]) for i in range(4)]
        res += [(slots(EX1 + 4 * SL * (2 - r), 4 * SL), idx[f"r{r + 1}_{o['rsteps'] // 3}"], idx["q1"]) for r in range(3)]
        res += [(slots(EX2, 4 * SL), idx["q2"], idx["g0"]), (slots(EX2H, 2 * SL), idx["g1"], idx["g2"]),
                (slots(QSCR, 3 * SL), idx["g0"], idx["g4"])]
        for i, (sa, a0, a1) in enumerate(res):
            for sb, b0, b1 in res[:i]:
                assert not set(sa) & set(sb) or a1 < b0 or b1 < a0
        P = []
        for c in range(9):
            P += [dict(pc=("x", c, q), h=q & 1, at=XREG[c % 4] + SL * q, u0=c, e=c - 3 if c >= 4 else -1) for q in range(4)]
            P += [dict(pc=("w", 0, 2 * c + k), h=k) for k in range(2)]
        P += [dict(pc=("w", r, ks), h=ks & 1) for r in range(1, 4) for ks in range(18)]
        P += [dict(pc=("h", 0, u), h=(u + 1) & 1) for u in range(9)]
        P += [dict(pc=("q", 0, ks), h=ks & 1) for ks in range(18)]
        P += [dict(pc=("g", R, q), h=(n + 1) & 1) for n, (R, q) in enumerate(self.g_order())]
        cap = {"x5": 6, "x6": o["capx"], "x7": o["capx"], "x8": o["capx"], "r1_0": o["capr"], "r1_1": o["capr"],
               "r1_2": o["capr"], "r2_0": o["capr"], "r2_1": o["capr"], "q2": o["capq"], "g0": o["capg"], "g1": o["capg"]}
        free = [-1] * 38
        cur, ptr = -1, 0
        for k, q in enumerate(P):
            fixed = "at" in q
            if not fixed:
                q["u0"], q["u1"] = idx[use0[q["pc"]]], last_abs(q["pc"])
            top = 36 if q["pc"][0] == "g" else o["top"]
            while True:
                ahead = sum(1 for z in P[:k] if z["u0"] > cur)
                ok = ahead < (o["burst"] if cur < idx["x5"] else o["lead"]) and cur >= q.get("e", -1)
                if cur >= 0:
                    ok = ok and sum(1 for z in P[:k] if z["issue"] == cur) < cap.get(steps[cur], 10)
                if ok and not fixed:
                    cand = [x % top for x in range(ptr, ptr + top) if free[x % top] <= cur and not any(
                        x % top in sl and not (b < cur or q["u1"] < a) for sl, a, b in res)]
                    if q["pc"][0] in "hq":
                        mate = [z["at"] // SL for z in P[:k] if z["u0"] == q["u0"]]
                        cand.sort(key=lambda x: max(mate + [x]) - min(mate + [x]) > 15)
                    ok = bool(cand)
                if ok:
                    break
                cur += 1
            if not fixed:
                q["at"], free[cand[0]], ptr = cand[0] * SL, q["u1"] + 1, cand[0] + 1
            q["issue"] = cur
            assert cur < q["u0"], (q, steps[cur])
        for c in range(idx["r1_1"], idx["a0"]):
            here = [q for q in P if q["issue"] == c]
            flex = [q for q in here if q["pc"][0] in "gh"]
            nb_ = (len(here) + 1) // 2 - sum(q["h"] for q in here if q not in flex)
            for n, q in enumerate(flex):
                q["h"] = int(n < nb_ or q["u0"] == c + 1)
        self.tight = [(q["pc"], steps[q["issue"]], q["h"]) for q in P if q["u0"] == q["issue"] + 1]
        nb4 = idx[o["kvpoll"]] + 1
        av = [max([free[x], nb4] + [b + 1 for sl, a, b in res if x in sl]) for x in range(36)]
        self.kv_order = sorted(range(16), key=lambda g: max(av[x] for x in slots(9216 * g, 9216)))
        grp = {x: min(n for n, g in enumerate(self.kv_order) if x in slots(9216 * g, 9216)) for x in range(36)}
        todo = sorted(range(36), key=lambda x: grp[x])
        while todo:
            room = o["kvcap"] - sum(1 for z in P if z["issue"] == cur) if cur < idx["a0"] else 99
            for x in [x for x in todo if av[x] <= cur][:max(room, 0)]:
                todo.remove(x)
                P.append(dict(pc=("kv", 0, x), h=len(todo) & 1, at=x * SL, issue=cur, grp=grp[x]))
            cur += 1
        late = [q["grp"] for q in P if "grp" in q and q["issue"] >= idx["g8"]]
        n0 = max(min(late), o["kv0"])
        for q in P:
            if "grp" in q:
                q["u0"] = idx["a0"] if q["grp"] < n0 else idx["a1"]
                assert q["issue"] < q["u0"]
        self.b1tile = 4 * n0 - 2
        self.P = P
        self.planinfo = " ".join(f"{q['pc'][0]}{q['pc'][1]}.{q['pc'][2]}@{q['at'] // SL}:"
                                 f"{steps[q['issue']] if q['issue'] >= 0 else 'pre'}" for q in P)

    def p_store(self, u):
        R, tt2 = divmod(u, 2)
        d = GP + 8 * (R % 6) + 4 * tt2
        return [f"s_add_u32 {s_d1}, {s_pst}, {(4 * R + tt2) * 16384}",
                I(f"buffer_store_dwordx4 {vr(d, 4)}, v{L16}, {sWS}, {s_d1} offen {self.o['pst'].replace('+', ' ')}",
                  tag=("p", u))]

    def p_pack(self, R, h):
        return [f"v_cvt_pk_bf16_f32 v{GP + 8 * (R % 6) + (i ^ (2 * h))}, v{self.gacc(R) + 2 * i}, "
                f"v{self.gacc(R) + 2 * i + 1}" for i in range(8)]

    def ffn(self, h):
        o = self.o
        steps, idx = self.steps, self.idx
        at = {q["pc"]: q["at"] for q in self.P}
        G, B, use0, lastm, reads = self.stream(h, at.get)
        NG = len(G)
        blk = {s: [] for s in steps}
        head = {s: [] for s in steps}
        post = {s: [] for s in steps}
        mb0 = {s: [] for s in steps}
        mb1 = {s: [] for s in steps}
        need = {s: [q["pc"] for q in self.P if q["h"] == h and steps[q["u0"]] == s] for s in steps}

        def lines(items):
            return [x for e in items for x in (e.strip().split("\n") if isinstance(e, str) else [e])]

        def pos(s):
            return steps[idx[s] - h]

        def split(items, names, wts):
            items, k, acc = lines(items), 0, 0.0
            cost = [2 - (o["mlds"] in (3, 5)) if isinstance(x, list) else 2 if "exp" in x or "rcp" in x else 1 for x in items]
            for nm, w in zip(names, wts):
                acc += w / sum(wts)
                e = min(range(k, len(items) + 1, 2), key=lambda e: abs(sum(cost[:e]) - acc * sum(cost)))
                for x in items[k:e]:
                    if isinstance(x, list) and o["mlds"]:
                        x = list(flat(x))
                        nxt = steps[idx[nm] + 1]
                        mb0[nxt] += [y for y in x[1:] if y.W and o["mlds"] & 1]
                        mb1[nxt] += [y for y in x[1:] if not y.W and o["mlds"] & 2]
                        head[nxt] += [y for y in x[1:] if not y.W and o["mlds"] & 4]
                        x = [x[0]] + [y for y in x[1:] if not o["mlds"] & (1 if y.W else 6)]
                    blk[nm].append(x)
                k = e
            assert k == len(items)

        def exw(text, off, tag):
            return ds(text, off + SL * h, tag=tag)

        for r in range(3):
            items = []
            for t in range(2):
                for tt2 in range(2):
                    items += self.gelu_quad(ACC + 16 * (r & 1) + 8 * tt2 + 4 * t, HOWN + 8 * r + 4 * t + 2 * tt2)
                    if r < 2 or tt2 == 0:
                        items[-1] = [items[-1], self.bias(h, r + 2, tt2, t)]
                    if o["ex64"]:
                        items[-1] = [items[-1], exw(f"ds_write_b64 v{AEXW}, {vr(HOWN + 8 * r + 4 * t + 2 * tt2, 2)}",
                                                    EX1 + U * (4 - 2 * r + t) + 8 * tt2, "ex1")]
                if not o["ex64"]:
                    items[-1] = [items[-1], exw(f"ds_write_b128 v{AEXW}, {vr(HOWN + 8 * r + 4 * t, 4)}",
                                                EX1 + U * (4 - 2 * r + t), "ex1")]
            split(items, [f"r{r + 1}_{i}" for i in range(o["rsteps"])], [1] * o["rsteps"])
        need["q0"].append("ex1")
        items = []
        for t in range(2):
            for tt2 in range(2):
                items += self.gelu_quad(ACC + 16 + 8 * tt2 + 4 * t, HOWN + 24 + 4 * t + 2 * tt2)
        for t in range(2):
            items += self.gelu_quad(ACC + 4 * t, HH + 4 * t)
        hq = ["h0", "h1", "q0", "q1", "q2", "g0", "g1"]
        split(items, hq, [float(x) for x in o["hqb" if h else "hqa"].split("+")])

        def ncvt(last):
            return sum(isinstance(x, str) and "cvt" in x for s in hq[:hq.index(last) + 1] for x in blk[s]) // 2

        assert ncvt("h1") >= 1 and ncvt("q0") <= 4 and ncvt(pos("q2")) >= 4 and ncvt(pos("g1")) == 6
        mb1["q1"] += [ds(f"ds_read_b128 {vr(X(r, t), 4)}, v{AEXW}",
                         EX1 + U * (5 - 2 * r - t) + SL * (1 - h), tag="ex1r") for r in range(3) for t in range(2)]
        need["q2"].append("ex1r")
        blk["q2" if h else "q1"] += [f"v_and_b32 v{GADDR + 6}, 0x300, v{L16}"] + [
            f"v_mad_i32_i24 v{GADDR + i}, v{GADDR + 6}, -2, v{AW + i}" for i in range(4)] + [
            f"v_add_u32 v{GADDR + 4 + i}, 0x20000, v{GADDR + i}" for i in range(2)] + [
            [setbase(f"v{GADDR + i}", 65536 * (i >> 1)) for i in range(6)]]
        assert lastm[("q", 0, 2)] <= B["q1"] and lastm[("q", 0, 5)] <= B["q2"] and lastm[("q", 0, 11)] <= B["g0"]
        assert lastm[("q", 0, 17)] <= B["g1"] and lastm[("h", 0, 8)] <= B["q1"]
        wr = [exw(f"ds_write_b128 v{AEXW}, {vr(HOWN + 24 + 4 * t, 4)}", EX2 + U * t, "ex2") for t in range(2)]
        (blk["q1"] if h else head["q2"] if ncvt("q1") >= 4 else blk["q2"]).extend(wr)
        need["g0"].append("ex2")
        mb0["g0"] += [ds(f"ds_read_b128 {vr(X(3, t), 4)}, v{AEXW}", EX2 + U * (1 - t) + SL * (1 - h), tag="ex2r")
                      for t in range(2)]
        need["g1"].append("ex2r")
        blk[pos("g1")] += [exw(f"ds_write_b64 v{AEXW}, {vr(HH + 4 * t, 2)}", EX2H + 8 * t, "ex3") for t in range(2)]
        need["g2"].append("ex3")
        mb0["g2"] += [ds(f"ds_read_b64 {vr(HH + 4 * t + 2, 2)}, v{AEXW}", EX2H + 8 * (1 - t) + SL * (1 - h), tag="ex3r")
                      for t in range(2)]
        need["g3"].append("ex3r")
        q1, q2, q2r, q3 = self.q_epilogue(h)
        head["g0"] += q1
        blk["g1" if h else "g2"] += lines(q2)
        need["g3"].append("qwr")
        blk["g3"] += lines(q2r)
        need["g5"].append("qrd")
        blk["g4"] += lines(q3)
        blk["g1" if h else "g0"].append(self.poison(h))
        blk["g2" if h else "g6"] += lines([self.wo_flag_addr()])
        blk["g3"] += lines(self.att_consts())
        for c in range(10):
            gm = [mf16(GTA, GTB + 4 * k, X(2 * c - 2 + k, 0), "0" if 2 * c - 2 + k == 0 else None) for k in range(2)]
            gr = [f"ds_read_b128 {vr(GTB + 4 * k, 4)}, v{A16} offset:{L_GATE - MISC + 128 * c + 64 * k}" for k in range(2)]
            where = post[steps[c]] if c < o["nstart"] else head[pos(steps[c])]
            if o["nstart"] <= c < 9:
                where += self.x_reads(c)
                assert h or lastm[("w", 0, 2 * c - 1)] >= B[steps[c + 1]]
            where += [f"s_lshr_b32 {s_t0}, {s_j}, 2", self.cond(
                f"s_cmp_eq_u32 {s_t0}, {s_p}", [gm if c else [], gr if c < 9 else []])]
            if c:
                need[steps[c]].append(("xr", c - 1))
        blk["r1_0"].append([self.gate(h)])
        gst = [[]] + [range(-(-o["nst"] * R // 7), -(-o["nst"] * (R + 1) // 7)) for R in range(7)]
        for R in range(7):
            assert lastm[("g", R, 8)] <= B[f"g{max(R + 2, 3)}"]
            blk[f"g{max(R + 1, 2)}"] += self.p_pack(R, h) + [self.p_store(u) for u in gst[R]]
        if h == 0:
            w1, w2, w3 = self.wo_job()
            wa, wb = o["wojob"].split("+")
            (post if wa in self.START[:-1] else head)[wa].append(w1)
            need[wb].append("wodma")
            mb0[wb] += w2
            blk[wb].append(w3)
            blk["g5"].append([f"s_add_u32 m0, {s_m}, {WOSCR}", f"s_min_u32 {s_d0}, {s_m}, 1024",
                              I(f"buffer_load_dwordx4 v{L16}, {sB2}, {s_d0} offen lds", tag="b2")])
            need["a0"].append("b2")
            first = [f"s_or_b32 {s_t0}, {s_tt}, {s_j}", f"s_or_b32 {s_t0}, {s_t0}, {s_w}", f"s_mov_b32 {s_t1}, {WS_E:#x}"]
            c = f"s_cmp_eq_u32 {s_t0}, 0"
            (post if "x6" in self.START[:-1] else head)["x6"] += [first, self.far(c, self.lane0(I(f"buffer_load_dword v{EPO}, v{L16}, {sWS}, {s_t1} offen sc1")))]
            head["r2_0"] += [first, self.far(c, [f"""
    v_readfirstlane_b32 {s_non}, v{EPO}
    s_mul_i32 {s_non}, {s_non}, 0x9e3779b1
    s_add_u32 {s_non}, {s_non}, 0x7f4a7c15
    v_mov_b32 v{EPO}, {s_non}""", self.lane0(I(f"buffer_store_dword v{EPO}, v{L16}, {sWS}, {s_t1} offen sc1")),
                f"s_or_b32 {s_non}, {s_non}, 1"])]
            post[o["kvsig"]] += [f"s_lshr_b32 {s_t0}, {s_j}, 2", f"s_or_b32 {s_t0}, {s_t0}, {s_w}", self.cond(c, [
                f"s_lshl2_add_u32 {s_t0}, {s_tt}, {s_j}", f"s_lshl_b32 {s_t0}, {s_t0}, 2", f"v_mov_b32 v{AKV}, {s_non}",
                self.lane0(I(f"buffer_store_dword v{AKV}, v{L16}, {sDBG}, {s_t0} offen sc1"))])]
        need[o["kvsig"]].append("kvst")
        assert idx[o["kvsig"]] <= idx["g3"]
        if o["touch"] & 8:
            for k in range(4):
                cold = [q["issue"] for q in self.P if q["pc"] == (("w", 2, h), ("w", 3, h), ("h", 0, 0), ("q", 0, h))[k]]
                head[pos(steps[cold[0]]) if o["tstep"] < 0 else
                     steps[idx["r1_0"] + (o["tstep"] * k + 1 - h) * o["rsteps"] // 3]].append(
                    self.cond(f"s_cmp_eq_u32 {s_p}, {k}", self.touch(TW2, sW2, 0)))
                if o["b"] == 8:
                    head[steps[idx["r1_0"] + k + 5 - h]].append(self.cond(f"s_cmp_eq_u32 {s_p}, {k}", [
                        f"s_mov_b32 {s_t0}, {36 * 1152}", self.touch(TW2, sW2, s_t0)]))
        if o["touch"] & 4:
            (post if o["qtouch"][0] == "x" else head)[o["qtouch"]] += [
                f"s_mov_b32 m0, {L_DUMMY}", f"s_mov_b64 exec, {o['qmask']}",
                I(f"global_load_lds_dword {vr(DQ, 2)}, off"), "s_mov_b64 exec, -1"]
        if o["otouch"]:
            head[o["otouch"]] += ["s_mov_b64 exec, 0xffff", self.touch(TOUT, sOUT, 0), "s_mov_b64 exec, -1"]
        for x in o["ctouch"].split("+"):
            if x in head:
                head[x].append(self.retouch(DW1))
                assert idx["r3_1"] <= idx[x] <= idx["g5"]
        k = idx[o["kvpoll"]]
        load = [f"buffer_load_dword v{T + 4}, v{T + 5}, {sDBG}, 0 offen sc1"]
        head[pos(steps[k])] += [f"v_lshlrev_b32 v{T + 5}, 2, v{LANE}", load]
        head[pos(steps[k + 1])] += [self.spin(load, [f"v_cmp_eq_u32 vcc, 0, v{T + 4}"]),
                                    f"v_readfirstlane_b32 {s_tag}, v{T + 4}", f"s_mov_b32 {s_d1}, {WS_KN}",
                                    I(f"buffer_load_dwordx4 {vr(T, 4)}, v{L16}, {sWS}, {s_d1} offen sc1"),
                                    f"s_andn2_b32 {s_tag}, {s_tag}, 15"]
        blk["g5"] += [f"v_mov_b32 v{OREG + i}, 0" for i in range(16) if OREG + i != DW2]
        blk[pos(steps[k + 2])] += lines(self.shift_setup())
        blk["g7"].append(f"v_mov_b32 v{DW2}, 0")
        su = lines(self.bg_setup())
        sb = "g4" if h else "g5"
        for i, x in enumerate(blk[sb]):
            blk[sb][i] = [x, su[i:i + 1]]
        blk[sb] += su[len(blk[sb]):]
        assert all(q["issue"] <= idx["g7"] - 1 + h for q in self.P if q["pc"][0] == "g" and q["h"] == h)
        assert idx["g4"] < idx[pos(steps[k])] and idx[pos(steps[k + 1])] < idx["g8"]

        dma = {s: [] for s in steps}
        for si in range(-1, idx["a0"] + 1):
            mine = [self.dma_code(q) for q in self.P if q["issue"] == si and q["h"] == h]
            s = steps[si] if si >= 0 else None
            if s is None or s == "a0":
                pass
            elif s in self.START[:-1] or (s == self.START[-1] and h == 1):
                lo, hi = B[s] + 1, B[steps[si + 1]] - (o["hoist"] + 1 if s == self.START[-1] else 0)
                for i, c in enumerate(mine):
                    if hi > lo:
                        G[lo + (i * (hi - lo)) // len(mine)]["mem"].append(c)
                    else:
                        m = G[B[s]]["mem"]
                        m.insert(m.index(("boundary", steps[si + 1])) if hi < lo else len(m), c)
            else:
                n = 0 if idx[s] < idx["r1_0"] else o["mdma"] if idx[s] < idx["q0"] else o["mdmaq"] if s[0] == "q" else \
                    o["mdmag"] if idx[s] <= idx[o["kvpoll"]] else 0
                if h:
                    n = len(mine) - min(n, len(mine))
                    dma[pos(s)] = mine[:n]
                    mb1[s] = mine[n:] + mb1[s]
                else:
                    mb1[s] = mine[:n] + mb1[s]
                    dma[s] = mine[n:]
        for s in steps[:-4]:
            for i, x in enumerate(mb0[s]):
                G[B[s] + 1 + i]["mem"].append(x)
            lo, hi = B[s] + 1 + len(mb0[s]), B[steps[idx[s] + 1]] - o["hoist"] - 1
            one = list(flat(mb1[s]))
            gaps = [i for i in range(lo, hi) if not G[i]["last"] and len(G[i]["mem"]) < 2]
            if len(gaps) < len(one):
                gaps = list(range(lo, hi))
            for i, x in enumerate(one):
                G[gaps[(i * len(gaps)) // len(one)]]["mem"].append(x)

        def sunk(s):
            if s is None or not idx["r1_1"] <= idx[s] <= idx["g0"]:
                return 0
            return o["sink"] if idx[s] <= idx["h0"] else o["sinkq"]

        def gblock(s, nxt):
            items, d = list(blk[s]), dma[s]
            z = s in o["zoom"].split("+")
            out = self.ts(f"z{s}.G") if z else []
            if h and sunk(nxt):
                n = sunk(nxt)
                n = min([n] + [i for i, x in enumerate(items) if any(y.cls != "valu" for y in flat([x]) if y.pseudo is None)])
                out += items[:n] + [barrier(need=need[nxt], drain_lds=False), "s_setprio 1"]
                items = items[n:]
            out += list(head[s])
            wr = [i for i, x in enumerate(items) if any(y.pseudo is None and y.cls == "ds" and not y.W for y in flat([x]))]
            if o["dlast"] and wr and s[0] == "g":
                out += items[:wr[-1] + 1]
                items = items[wr[-1] + 1:]
            sp = o["dsp"] if s[0] != "g" else o["dspg"]
            zz = o["zoom"] == "z" + s
            out = (self.ts("zG") if zz else []) + out
            for i, c in enumerate(d):
                out += self.ts(f"z{i}a") if zz else []
                out.append(c)
                out += self.ts(f"z{i}b") if zz else []
                out += items[(i * len(items)) // (sp * len(d)):((i + 1) * len(items)) // (sp * len(d))]
            out += items[(len(items) // sp if d else 0):]
            out += self.ts(f"z{s}.E") if z or zz else []
            c = 0
            for x in flat(out):
                if x.pseudo is None:
                    c += {"valu": 16 if x.trans else 8, "vm": 24, "ds": 30 if not x.W else 10}.get(x.cls, 3)
            self.gload[(s, h)] = c
            for reg in sorted({x.addr for x in reads.get(nxt, [])}):
                offs = [x.off for x in reads[nxt] if x.addr == reg]
                lo = min(offs) if max(offs) - min(offs) < 65536 else offs[0]
                out.append(rebase(reg, lo & ~4095, max(x for x in offs if x - (lo & ~4095) < 65536)))
            return out

        stamps = {"x0": "x0", "r1_0": "r1", "r2_0": "r2", "h0": "h", "g0": "g0", "g4": "g4"}
        if h:
            for s in steps[:-3]:
                if sunk(s):
                    post[s].append("s_setprio 0")
                elif s not in self.START:
                    z = steps[idx[s] - 1] in o["zoom"].split("+")
                    G[B[s] - o["hoist"]]["mem"].insert(0, [self.ts(f"z{s}.W") if z else [],
                                                           barrier(need=need[s], drain_lds=False)])
                    G[B[s] - o["hoist"] - 1]["mem"].append("s_setprio 1")
                    post[s].append("s_setprio 0")
            G[NG - 2]["mem"] += ["s_setprio 1", barrier(need=need["a0"])]
            for i, x in enumerate(self.p_pack(7, h)):
                G[NG - 10 + i]["mem"].insert(0, x)
        body = []
        for g in G:
            body.append(g["m"])
            for x in g["mem"]:
                if isinstance(x, tuple):
                    s = x[1]
                    if s not in self.START:
                        body.append(gblock(steps[idx[s] - 1], s))
                    if s in self.START:
                        body.append(barrier(need=need[s], drain_lds=s == "x0"))
                    elif h == 0:
                        last = reads[steps[idx[s] - 1]][-1]
                        last.tag = ("rd", s)
                        if steps[idx[s] - 1] in o["zoom"].split("+"):
                            body += [wait(need=need[s] + [last.tag]), self.ts(f"z{s}.W")]
                        body.append(barrier(need=need[s] + [last.tag], drain_lds=False))
                    if o["zoom"] == "pro" and idx[s] < 10:
                        body += self.ts("z" + s)
                    if steps[idx[s] - 1] in o["zoom"].split("+"):
                        body += self.ts(f"z{s}.M")
                    body += [self.ts(stamps[s]) if s in stamps else [], post[s]]
                else:
                    body.append(x)
        if h:
            body += [[self.p_store(u) for u in gst[7]], self.p_pack(8, h), "s_setprio 0"]
        else:
            body += [gblock("g8", None), self.p_pack(7, h), [self.p_store(u) for u in gst[7]], self.p_pack(8, h), barrier(need=need["a0"])]
        return body

    def kv_off(self, t):
        return 9216 * self.kv_order[t // 4], t & 3

    def k_reads(self, t):
        base, q = self.kv_off(t)
        o = [ds(f"ds_read_b128 {vr(KM, 4)}, v{AK}", base + 1024 * q)]
        if q % 2 == 0:
            o.append(ds(f"ds_read_b32 v{KR}, v{AR}", base + 8704 + 128 * q))
        return o

    def v_reads(self, t):
        base, q = self.kv_off(t)
        a = ds(f"ds_read_b128 {vr(VA, 4)}, v{AV}", base + 4096 + 1152 * q)
        a.span = 576
        return [f"s_mov_b64 exec, {s_msk}", a, ds(f"ds_read_b128 {vr(VB, 4)}, v{AV}", base + 4096 + 1152 * q + 576),
                "s_mov_b64 exec, -1"]

    def qk(self, t):
        s = SREG + 16 * (t & 1)
        return (I(f"v_mfma_f32_32x32x8_bf16 {vr(s, 16)}, {vr(KR, 2)}, {vr(QRB if t & 1 else QRA, 2)}, 0",
                  needregs={("v", KM)}),
                I(f"v_mfma_f32_32x32x16_bf16 {vr(s, 16)}, {vr(KM, 4)}, {vr(QM, 4)}, {vr(s, 16)}"))

    def pv(self, t):
        s = SREG + 16 * (t & 1)
        return (I(f"v_smfmac_f32_32x32x32_bf16 {vr(OREG, 16)}, {vr(VA, 4)}, {vr(s, 8)}, v{IDX}", needregs={("v", VB)}),
                I(f"v_smfmac_f32_32x32x32_bf16 {vr(OREG, 16)}, {vr(VB, 4)}, {vr(s + 8, 8)}, v{IDX}"))

    def bg_setup(self):
        return f"""
    s_mul_i32 {s_t2}, {s_cq}, 9
    s_lshr_b32 {s_t0}, {s_j}, 2
    s_lshl_b32 {s_t1}, {s_tt}, 2
    s_add_u32 {s_t0}, {s_t0}, {s_t1}
    s_lshl_b32 {s_fc}, {s_t0}, 7
    s_add_u32 {s_fc}, {s_fc}, {WS_F:#x}
    s_mul_i32 {s_t0}, {s_t0}, 36
    s_add_u32 {s_t0}, {s_t0}, {s_t2}
    s_lshl_b32 {s_t0}, {s_t0}, 14
    s_add_u32 {s_t0}, {s_t0}, {WS_P:#x}
    s_lshl_b32 {s_t1}, {s_w}, 11
    s_add_u32 {s_w1o}, {s_t0}, {s_t1}
    s_add_u32 {s_w1o}, {s_w1o}, {8 * 16384}
    s_lshl_b32 {s_xo}, {s_w}, 14
    s_add_u32 {s_xo}, {s_xo}, {s_t0}
    s_mul_i32 {s_t0}, {s_t2}, {18 * KB}
    s_add_u32 {s_t0}, {s_t0}, {WS_WO:#x}
    s_mul_i32 {s_who}, {s_w}, {18 * KB}
    s_add_u32 {s_who}, {s_who}, {s_t0}
    s_add_u32 {s_t0}, {s_t0}, {8 * 18 * KB}
    s_add_u32 {s_w9}, {s_t0}, {s_t1}
    s_lshl_b32 {s_t1}, {s_w}, 8
    s_add_u32 {s_w9r}, {s_t0}, {s_t1}
    s_add_u32 {s_w9r}, {s_w9r}, {16 * KB}
    s_add_u32 {s_wh2}, {s_who}, {16 * KB}""", [f"""
    s_cmp_lt_u32 {s_cq}, 2
    s_cselect_b32 {s_t0}, {s_xo}, {s_who}
    s_cselect_b32 {s_who}, {s_who}, {s_xo}
    s_cselect_b32 {s_t1}, {s_w1o}, {s_wh2}
    s_cselect_b32 {s_wh2}, {s_wh2}, {s_w1o}
    s_mov_b32 {s_xo}, {s_t0}
    s_mov_b32 {s_w1o}, {s_t1}"""]

    def a0_dma(self):
        at = [q["at"] for q in self.P if self.steps[q["issue"]] == "a0" and q["issue"] >= 0]
        o = []
        for i in range(0, len(at), 2):
            x, y = at[i], at[min(i + 1, len(at) - 1)]
            o.append([f"s_mul_i32 {s_d0}, {s_hf}, {(y - x) & 0xFFFFFFFF:#x}", f"s_add_u32 {s_d0}, {s_d0}, {s_m}",
                      f"s_add_u32 m0, {s_d0}, {x}", f"s_add_u32 {s_d0}, {s_d0}, {WS_KV + x}",
                      I(f"buffer_load_dwordx4 v{L16}, {sWS}, {s_d0} offen sc1 lds", tag="kvl")])
        return o

    def bg_loads(self):
        def ld(reg, sbase, off):
            pre, so = [], sbase
            if off >= 4096:
                pre, so = [f"s_add_u32 {s_d0}, {sbase}, {off & ~4095}"], s_d0
            oo = f" offset:{off % 4096}" if off % 4096 else ""
            return reg, pre + [I(f"buffer_load_dwordx4 {vr(reg, 4)}, v{L16}, {sWS}, {so} offen{oo} sc1")]

        a1, a2 = ([ld(r + 64 + 4 * k, b1, KB * k) for k in range(2)] + [ld(r + 4 * k, b0, KB * k) for k in range(16)]
                  for r, b0, b1 in ((PREG, s_xo, s_w1o), (WREG, s_who, s_wh2)))
        wo = [ld(WREG + 72 + 4 * k, s_w9, KB * k) for k in range(2)]
        wo.append((WREG + 80, [f"v_and_b32 v{WREG + 82}, 0xf0, v{L16}", f"v_lshrrev_b32 v{WREG + 83}, 5, v{LANE}",
                               f"v_lshl_add_u32 v{WREG + 82}, v{WREG + 83}, 3, v{WREG + 82}",
                               I(f"buffer_load_dwordx2 {vr(WREG + 80, 2)}, v{WREG + 82}, {sWS}, {s_w9r} offen sc1")]))
        return a1, a2, wo

    def p_poll(self, val, wo=False, reg=ATM + 1):
        load = [f"buffer_load_dword v{reg}, v{AFW if wo else AFP}, {sWS}, {0 if wo else s_fc} offen sc1"]
        if isinstance(val, tuple):
            pre = [f"s_cmp_lt_u32 {s_cq}, 2", f"s_cselect_b32 {s_t1}, {val[0]}, {val[1]}", f"s_add_u32 {s_t1}, {s_tag}, {s_t1}"]
        else:
            pre = [f"s_add_u32 {s_t1}, {s_tag}, {val}"]
        return load, [pre, self.spin(load, [f"v_subrev_u32 v{reg}, {s_t1}, v{reg}", f"v_cmp_lt_u32 vcc, 8, v{reg}"])]

    def p_flag(self, val, need, reg=ATM - 1):
        return [f"s_add_u32 {s_t1}, {s_tag}, {val}", f"v_mov_b32 v{reg}, {s_t1}", wait(need=need),
                self.lane0(I(f"buffer_store_dword v{reg}, v{L16}, {sWS}, {s_fl} offen sc1"))]

    def attention(self):
        o = self.o
        ex = [([], []) for _ in range(64)]
        used = [0] * 64

        def put(t, code, slot=1, force=False):
            while not force and (ex[t][slot] or (used[t] and t >= o["dbl"])):
                t += 1
            used[t] += 1
            ex[t][slot].append(code)
            return t

        if o["even"]:
            st = {u: put(int(o["st0"] + (u - o["nst"]) * o["pace"]), self.p_store(u)) for u in range(o["nst"], 18)}
        else:
            st = {u: put(0, self.p_store(u)) for u in range(o["nst"], 10)}
        for x in self.a0_dma():
            put(0, x)
        t5 = put(st.get(9, 0) + o["fdelay"], self.p_flag(5, [("p", 9)]))
        u0 = max(o["nst"], 10)
        (pa, pb), (pc, pd) = self.p_poll((5, 1)), self.p_poll(1, True, ATM)
        tx = put(o["xwin"] - 1 - o["pdist"], pa)
        tx = put(tx, pc) + o["pdist"]
        ex[tx - 1][0].append(pb)
        ex[tx][0].append(pd)
        st.update({u: put(int(o["st0"] + (u - u0) * o["pace"]), self.p_store(u)) for u in range(u0, 18) if u not in st})
        t9 = put(st[17] + o["fdelay"], self.p_flag(9, [("p", 17)]))
        pa, pb = self.p_poll((5, 9))
        ty = put(o["ywin"] - 2, pa) + 2
        assert t5 < tx - o["pdist"] - 1 and t9 < ty - 2
        ex[ty][0].append(pb)
        a1, a2, wo = self.bg_loads()
        l2 = [put(ty + i * (o["plast"] - ty) // 17, x[1], force=True) for i, x in enumerate(a2)]
        l1 = [put(tx + i * (ty - 1 - tx) // 18, x[1]) for i, x in enumerate(a1)]
        l3 = [put(max(tx, st[17] + 1), x[1]) if used[max(tx, st[17] + 1):62].count(0) else put(ty - 4 - 2 * i, x[1], 0, True)
              for i, x in enumerate(wo)]
        for x in o["ctouch"].split("+"):
            if x.isdigit():
                put(int(x), self.retouch(55), 0, True)
        self.planinfo += f" | stores {st} | flags {t5} {t9} checks {tx} {ty} | loads {l1} {l2} {l3} | used {used}"
        p = [self.k_reads(0), self.qk(0), self.k_reads(1)]
        sch = o["asch"]
        for t in range(64):
            e = [f"v_exp_f32 v{SREG + 16 * (t & 1) + i}, v{SREG + 16 * (t & 1) + i}" for i in range(16)]
            if t == self.b1tile:
                b1 = barrier(need=["kvl"], drain_lds=False)
                p += [self.cond(f"s_cmp_eq_u32 {s_hf}, 0", [b1]) if o["b1split"] else b1, self.ts("b1")]
            if o["zoom"] == "att" and t % 5 == 0:
                p += self.ts(f"z{t}")
            k = 0
            for c in sch:
                if c.isdigit():
                    p += e[k:k + int(c)]
                    k += int(c)
                elif c in "aB" and t > 0:
                    p.append(self.pv(t - 1)[c == "B"])
                elif c == "A":
                    p.append(self.pv(t)[0])
                elif c in "RM" and t < 63:
                    p.append(self.qk(t + 1)[c == "M"])
                elif c == "v":
                    p += self.v_reads(t)
                elif c == "k" and t < 62:
                    p += self.k_reads(t + 2)
                elif c in "ef":
                    p += ex[t][c == "f"]
                elif c == "L" and t == self.b1tile - 1 and o["b1split"]:
                    p += [self.cond(f"s_cmp_eq_u32 {s_hf}, 1", [barrier(need=["kvl"], drain_lds=False)]), "s_setprio 0"]
                elif c in "LHX":
                    p.append(f"s_setprio {'LHX'.index(c)}")
            assert k == 16
        if "a" in sch:
            p += [self.pv(63)[0], "s_setprio 2"]
        p += [self.pv(63)[1]]
        return p

    def slow_path(self):
        S = SREG
        mx, ak, av, ar = f"v{ATM}", f"v{AK}", f"v{AV}", f"v{AR}"

        def qk(q):
            o = f"    ds_read_b128 {vr(KM, 4)}, {ak} offset:{1024 * q}\n"
            o += f"    ds_read_b32 v{KR}, {ar} offset:{8704 + 256 * (q >> 1)}\n"
            o += "    s_waitcnt lgkmcnt(0)\n"
            o += "    " + self.qk(q)[0].text.replace(vr(S + 16, 16), vr(S, 16)) + "\n"
            o += "    " + self.qk(0)[1].text + "\n    s_nop 15\n"
            return o

        adv = f"""    v_add_u32 {ak}, 9216, {ak}
    v_add_u32 {av}, 9216, {av}
    v_add_u32 {ar}, 9216, {ar}
    s_sub_u32 {s_t0}, {s_t0}, 1
    s_cmp_lg_u32 {s_t0}, 0
"""
        s = f"""    v_mov_b32 v{QRA + 1}, 0
    v_mov_b32 v{QRB + 1}, 0
    v_mov_b32 {mx}, 0xff800000
    s_mov_b32 {s_t0}, 16
L_slow1:
"""
        for q in range(4):
            s += qk(q)
            for i in range(8):
                s += f"    v_max3_f32 {mx}, {mx}, v{S + 2 * i}, v{S + 2 * i + 1}\n"
        s += adv + f"""    s_cbranch_scc1 L_slow1
    v_mov_b32 v{ATM + 1}, {mx}
    s_nop 1
    v_permlane32_swap_b32 v{ATM + 1}, {mx}
    s_nop 1
    v_max_f32 {mx}, {mx}, v{ATM + 1}
    v_subrev_u32 {ak}, {16 * 9216}, {ak}
    v_subrev_u32 {av}, {16 * 9216}, {av}
    v_subrev_u32 {ar}, {16 * 9216}, {ar}
    s_mov_b32 {s_t0}, 16
L_slow2:
"""
        for q in range(4):
            s += f"""    s_mov_b64 exec, {s_msk}
    ds_read_b128 {vr(VA, 4)}, {av} offset:{4096 + 1152 * q}
    ds_read_b128 {vr(VB, 4)}, {av} offset:{4096 + 1152 * q + 576}
    s_mov_b64 exec, -1
"""
            s += qk(q)
            for i in range(16):
                s += f"    v_sub_f32 v{S + i}, v{S + i}, {mx}\n"
            for i in range(16):
                s += f"    v_exp_f32 v{S + i}, v{S + i}\n"
            s += "    s_nop 1\n    " + self.pv(0)[0].text + "\n    " + self.pv(0)[1].text + "\n    s_nop 3\n"
        s += adv + "    s_cbranch_scc1 L_slow2\n"
        pa, pb = self.p_poll(9), self.p_poll(1, True)
        return [label("L_slow"), self.a0_dma(), [self.p_store(u) for u in range(self.o["nst"], 18)],
                raw("    s_waitcnt vmcnt(0) lgkmcnt(0)\n    s_barrier"), self.p_flag(9, []), raw(s),
                pa, pb, [c for l in self.bg_loads() for _, c in l],
                raw("    s_waitcnt vmcnt(0) lgkmcnt(0)\n    s_nop 15\n    s_branch L_att_done")]

    def final(self, PB, WB):
        O, ost = OREG, self.o["ost"].replace("+", " ")
        tok, g, x0, x1 = "v34", "v35", "v36", "v37"
        SEL, SIX, GG, G1 = 24, 32, 2, 58
        AB, AA, NB_, NA = 64, 72, 80, 88
        BB, OL, W9 = PB, 40, WREG + 80
        p = [f"""
    v_and_b32 {tok}, 15, v{LANE}
    v_lshrrev_b32 {g}, 4, v{LANE}
    v_lshlrev_b32 {x0}, 3, {tok}
    v_lshl_add_u32 {x0}, {g}, 2, {x0}
    s_lshr_b32 {s_t0}, {s_j}, 2
    s_lshl2_add_u32 {s_t0}, {s_tt}, {s_t0}
    s_mul_i32 {s_t0}, {s_t0}, {OBLK}
    s_add_u32 {s_t0}, {s_t0}, {WS_O:#x}
    s_lshl_b32 {s_t1}, {s_w}, 9
    s_lshl3_add_u32 {s_d0}, {s_t1}, {s_t0}
    s_add_u32 {s_d1}, {s_t1}, {s_t0}
    s_add_u32 {s_d1}, {s_d1}, {32 * KB}
    v_rcp_f32 v{O + 10}, v{O + 10}"""]
        p += [f"v_mul_f32 v{O + i}, v{O + i}, v{O + 10}" for i in range(8)]
        p += [f"v_cvt_pk_bf16_f32 v{O + 12 + i}, v{O + 2 * i}, v{O + 2 * i + 1}" for i in range(4)]
        p += [I(f"buffer_store_dwordx4 {vr(O + 12, 4)}, v{L16}, {sWS}, {s_oun} offen sc1"),
              [f"v_mul_f32 v{O + i}, v{O + i}, v{O + 10}" for i in (8, 9)],
              f"v_cvt_pk_bf16_f32 v{O + 11}, v{O + 8}, v{O + 9}",
              "s_mov_b32 exec_hi, 0",
              I(f"buffer_store_dword v{O + 11}, {x0}, {sWS}, {s_our} offen sc1"),
              "s_mov_b64 exec, -1", "s_setprio 0", self.ts("oflag")]
        l8, aw, ar, ast, an9 = "v4", "v5", "v38", "v39", "v1"
        awr, ard, a9r, go, go9 = (f"v{O + i}" for i in range(5))
        p += [f"""
    s_mul_i32 {s_t0}, {s_cq}, 288
    s_add_u32 {s_t0}, {s_t0}, {WOSCR}
    v_lshl_add_u32 {x1}, {g}, 3, {s_t0}
    s_lshl_b32 {s_t1}, {s_w}, 5
    v_add_u32 {x0}, {s_t1}, {x1}
    s_lshr_b32 {s_t1}, {s_j}, 2
    s_lshl_b32 {s_t1}, {s_t1}, 7
    s_add_u32 {s_t1}, {s_t1}, {L_GT}
    v_lshl_add_u32 {l8}, {tok}, 2, {s_t1}
    ds_read_b64 {vr(BIA, 2)}, {x0}
    ds_read_b64 {vr(BI9, 2)}, {x1} offset:256
    ds_read2_b32 {vr(GG, 2)}, {l8} offset0:0 offset1:16
    v_lshrrev_b32 {x0}, 2, {tok}
    v_and_b32 {x1}, 1, {g}
    v_lshlrev_b32 {x1}, 1, {x1}
    v_cmp_eq_u32 vcc, {x0}, {x1}
    v_mov_b32 {l8}, 0x3f80
    v_add_u32 {x1}, 1, {x1}
    v_cndmask_b32 v{SEL}, 0, {l8}, vcc
    v_cndmask_b32 v{SEL + 5}, 0, {l8}, vcc
    v_cmp_eq_u32 vcc, {x0}, {x1}
    v_and_b32 {x0}, 3, {tok}
    v_mul_u32_u24 v{SIX}, 0x5555, {x0}
    v_cndmask_b32 v{SEL + 2}, 0, {l8}, vcc
    v_cndmask_b32 v{SEL + 7}, 0, {l8}, vcc
    v_cmp_eq_u32 vcc, 1, {x1}
    v_mov_b32 v{SEL + 1}, 0
    v_mov_b32 v{SEL + 3}, 0
    v_mov_b32 v{SEL + 4}, 0
    v_mov_b32 v{SEL + 6}, 0
    v_lshlrev_b32 {l8}, 3, v{LANE}
    s_cmp_eq_u32 {s_w}, 0
    s_cselect_b32 {s_t0}, -1, 0""", barrier(drain_lds=False), self.ts("t_b2")]
        common, p = p, []
        init = []
        for acc, b, m in ((AB, BIA, None), (NB_, BI9, s_t0)):
            if m:
                init += [f"v_and_b32 v{b + i}, {m}, v{b + i}" for i in range(2)]
            for t in range(2):
                for i in range(2):
                    init += [f"v_lshlrev_b32 v{acc + 4 * t + 2 * i}, 16, v{b + i}",
                             f"v_and_b32 v{acc + 4 * t + 2 * i + 1}, 0xffff0000, v{b + i}"]
        sums = [I(f"v_smfmac_f32_16x16x64_bf16 {vr((AB if k < 8 else NB_) + 4 * t, 4)}, {vr(SEL + 4 * t, 4)}, "
                  f"{vr(PB + 8 * k, 8)}, v{SIX}") for k in range(9) for t in range(2)]
        load = [f"buffer_load_dwordx4 {vr(OL + 4 * k, 4)}, v{L16}, {sWS}, {s_d0} offen offset:{KB * k} sc1" for k in range(4)]
        load.append(f"buffer_load_dwordx2 {vr(OL + 16, 2)}, {l8}, {sWS}, {s_d1} offen sc1")
        test = [f"v_max3_u32 {x0}, v{OL}, v{OL + 1}, v{OL + 2}", f"v_max3_u32 {x1}, v{OL + 3}, v{OL + 4}, v{OL + 5}"]
        test += [f"v_max3_u32 {(x0, x1)[i & 1]}, {(x0, x1)[i & 1]}, v{OL + 6 + 2 * i}, v{OL + 7 + 2 * i}" for i in range(6)]
        test += [f"v_max_u32 {x0}, {x0}, {x1}", f"v_cmp_eq_u32 vcc, -1, {x0}"]
        addr = f"""
    v_cndmask_b32 v{W9 + 2}, v{W9}, v{SEL + 1}, vcc
    v_cndmask_b32 v{W9 + 3}, v{W9 + 1}, v{SEL + 1}, vcc
    v_cndmask_b32 v{W9}, 0, v{W9}, vcc
    v_cndmask_b32 v{W9 + 1}, 0, v{W9 + 1}, vcc
    v_sub_f32 v{G1}, 1.0, v{GG}
    v_sub_f32 v{G1 + 1}, 1.0, v{GG + 1}
    s_lshl_b32 {s_t1}, {s_w}, 12
    v_add_u32 {aw}, {s_t1}, v{L16}
    s_lshl_b32 {s_t1}, {s_w}, 9
    v_add_u32 {awr}, {s_t1}, {l8}
    v_lshlrev_b32 {ar}, 9, {g}
    v_lshl_add_u32 {ar}, {tok}, 3, {ar}
    v_mul_u32_u24 {ast}, 272, {tok}
    v_lshl_add_u32 {ast}, {g}, 3, {ast}
    s_lshl_b32 {s_t1}, {s_w}, 5
    v_add_u32 {ast}, {s_t1}, {ast}
    v_lshlrev_b32 {an9}, 6, {tok}
    v_lshl_add_u32 {an9}, {g}, 4, {an9}
    s_lshl_b32 {s_t1}, {s_w}, 11
    v_add_u32 {an9}, {s_t1}, {an9}
    s_lshl_b32 {s_t1}, {s_w}, 2
    v_add_u32 {go}, {s_t1}, {g}
    v_mul_u32_u24 {ard}, 272, {go}
    v_lshl_add_u32 {ard}, {tok}, 4, {ard}
    s_lshl_b32 {s_t1}, {s_w}, 8
    s_add_u32 {s_t1}, {s_t1}, {L_N9}
    v_lshl_add_u32 {a9r}, v{LANE}, 2, {s_t1}
    v_mul_u32_u24 {go}, 1152, {go}
    v_lshl_add_u32 {go9}, {tok}, 1, {go}
    v_lshl_add_u32 {go}, {tok}, 4, {go}
    s_lshr_b32 {s_t0}, {s_j}, 2
    s_lshl2_add_u32 {s_t0}, {s_tt}, {s_t0}
    s_mul_i32 {s_t0}, {s_t0}, {32 * 1152}
    s_mul_i32 {s_t1}, {s_cq}, 288
    s_add_u32 {s_t0}, {s_t0}, {s_t1}""".strip().split("\n")
        n0, od = self.o["oearly"], self.o["odma"]
        back, first = [], load
        if od:
            load = [f"buffer_load_dwordx4 v{L16}, {sWS}, {s_d0} offen offset:{KB * k} sc1 lds" for k in range(4)] + load[4:]
            first = [f"s_lshl_b32 m0, {s_w}, 12"] + [I(x, tag="od") for x in load]
            back = [f"ds_read_b128 {vr(OL + 4 * k, 4)}, {aw} offset:{KB * k}" for k in range(4)]
        scale = [[f"v_mul_f32 v{a + 4 * t + i}, v{a + 4 * t + i}, v{G1 + t}" for t in range(2) for i in range(4)]
                 for a in (AB, NB_)]
        late = []
        if self.o["olate"]:
            k = next(i for i, x in enumerate(addr) if f"{ast}, 272" in x)
            k2 = next(i for i, x in enumerate(addr) if f"{s_w}, 2" in x and x.endswith(", 2"))
            keep = [x for x in addr[k2:] if a9r in x or f"{s_w}, 8" in x or str(L_N9) in x]
            late = addr[k:k + 4] + [x for x in addr[k2:] if x not in keep] + scale[0]
            addr = addr[:k] + addr[k + 4:k2] + keep
            scale[0] = []
            sums = sums[16:] + sums[:16]
            init = init[8:] + init[:8]
        n1 = 10 if self.o["olate"] else 8
        fill = init[n1:] + addr
        p += init[:n1]
        if self.o["olate"]:
            p += [sums[0], fill[:4], sums[1], fill[4:8]]
            sums, fill = sums[2:], fill[8:] + scale[1]
            scale[1] = []
        for i, m in enumerate(sums):
            p += [first if i == n0 else [], m, fill[2 * i:2 * i + 2]]
        p += [first if n0 >= len(sums) else [], fill[2 * len(sums):], scale]
        p += [self.ts("t_sum"), wait(need=["od"] if od else []), back,
              self.spin(load, test, sleep=1, far=False, mid=back), self.ts("opoll")]
        p += [I(f"v_mfma_f32_16x16x16_bf16 {vr(NA + 4 * t, 4)}, {vr(W9 + 2 * t, 2)}, {vr(OL + 16, 2)}, 0") for t in range(2)]
        for k in range(4):
            p += [mf16(NA + 4 * (k & 1), WREG + 72 + 4 * (k >> 1), OL + 4 * k)]
        p += [f"ds_write_b128 {aw}, {vr(OL + 4 * k, 4)} offset:{KB * k}" for k in range(4) if not od]
        p += [f"ds_write_b64 {awr}, {vr(OL + 16, 2)} offset:{32 * KB}"]
        for t in range(2):
            p += [f"v_fmac_f32 v{NB_ + 4 * t + i}, v{NA + 4 * t + i}, v{GG + t}" for i in range(4)]
            p.append(f"ds_write_b128 {an9}, {vr(NB_ + 4 * t, 4)} offset:{L_N9 + 1024 * t}")
        p += [barrier(), self.ts("oland")]
        seq = []
        NBUF, N9 = 10, NB_
        for k in range(18):
            for t in range(2):
                b = BB + 4 * (len(seq) % NBUF)
                m = mf16(AA + 4 * t, WB + 4 * k, b, "0" if k == 0 else None)
                if t == 0:
                    m.needregs = {("v", b + 7)}
                if k < 16:
                    seq.append(([f"ds_read_b128 {vr(b, 4)}, v{L16} offset:{2048 * k + 1024 * t}"], m))
                else:
                    seq.append(([f"ds_read_b64 {vr(b + 2 * i, 2)}, {ar} offset:{2048 * k + 128 * t + 256 * i}"
                                 for i in range(2)], m))
        nine = [f"v_add_f32 v{N9 + 2 * i}, v{N9 + 2 * i}, v{N9 + 1 + 2 * i}" for i in range(4)]
        nine += [f"v_add_f32 v{N9}, v{N9}, v{N9 + 2}", f"v_add_f32 v{N9 + 4}, v{N9 + 4}, v{N9 + 6}",
                 f"v_add_f32 v{N9}, v{N9}, v{N9 + 4}", f"v_cvt_pk_bf16_f32 v{N9}, v{N9}, v{N9}",
                 I(f"buffer_store_short v{N9}, {go9}, {sOUT}, {s_t0} offen offset:256 {ost}")]
        rd = [x[0] for x in seq]
        p += rd[:NBUF]
        p += [f"ds_read2st64_b32 {vr(N9 + 2 * i, 2)}, {a9r} offset0:{16 * i} offset1:{16 * i + 8}" for i in range(4)]
        p += late
        for i in range(len(seq)):
            p += [seq[i][1], rd[i + NBUF:i + NBUF + 1], nine[i - 27:i - 26] if i >= 27 else []]
        p += self.ts("t_mm")
        for t in range(2):
            p += [f"v_fmac_f32 v{AB + 4 * t + i}, v{AA + 4 * t + i}, v{GG + t}" for i in range(4)]
            p += [f"v_cvt_pk_bf16_f32 v{AA + 4 * t + i}, v{AB + 4 * t + 2 * i}, v{AB + 4 * t + 2 * i + 1}" for i in range(2)]
            p.append(f"ds_write_b64 {ast}, {vr(AA + 4 * t, 2)} offset:{L_STG + 16 * 272 * t}")
        p += [self.ts("t_wr"), barrier(), self.ts("t_b4"), f"ds_read_b128 {vr(OL, 4)}, {ard} offset:{L_STG}",
              I(f"buffer_store_dwordx4 {vr(OL, 4)}, {go}, {sOUT}, {s_t0} offen {ost}"), self.ts("t_st")]
        return common, p

    def diag_dump(self):
        if self.o["x_skew"]:
            op = "min" if self.o["x_skew"] == 1 else "max"
            t = f"""    s_mov_b32 {s_t0}, {WS_DIAG:#x}
    buffer_load_dwordx4 v[4:7], v{L16}, {sWS}, {s_t0} offen sc1
    s_waitcnt vmcnt(0)
"""
            for i in range(4):
                t += f"    v_subrev_u32 v{4 + i}, s96, v{4 + i}\n"
            t += f"    v_{op}3_i32 v4, v4, v5, v6\n    v_{op}_i32 v4, v4, v7\n    s_nop 1\n    s_mov_b32 {s_t1}, 0\n"
            t += f"    v_readlane_b32 {s_t1}, v4, 0\n    s_nop 1\n"
            for i in range(1, 64):
                t += f"    v_readlane_b32 {s_t0}, v4, {i}\n    s_nop 1\n    s_{op}_i32 {s_t1}, {s_t1}, {s_t0}\n"
            t += f"    s_add_u32 s96, s96, {s_t1}\n"
            return [raw(t), self.ts("end")]
        if not self.o["diag"]:
            return self.ts("end")
        s = "    s_waitcnt vmcnt(0)\n"
        p = [raw(s), self.ts("end")]
        s = f"""    s_memtime s[100:101]
    s_waitcnt lgkmcnt(0)
    s_sub_u32 s100, s100, s98
    s_lshl_b32 {s_t0}, s2, 3
    s_add_u32 {s_t0}, {s_t0}, {s_w}
    s_lshl_b32 {s_t0}, {s_t0}, 6
    s_add_u32 {s_t0}, {s_t0}, {WS_DIAG:#x}
    s_mov_b64 exec, 1
"""
        srcs = ["s98" if self.o["diag"] == 2 else "s96", "s100"] + [f"s{4 + 2 * k}" for k in range(self.nts)]
        for i, r in enumerate(srcs):
            s += f"    v_mov_b32 v1, {r}\n    buffer_store_dword v1, v{L16}, {sWS}, {s_t0} offen offset:{4 * i}\n"
        return p + [raw(s)]

    def experiments(self, text):
        o = self.o
        out = []
        nb = 0
        for l in text.split("\n"):
            if "s_barrier" in l:
                nb += 1
            if o["x_nodma"] and nb > 9 and (" lds" in l or "load_lds" in l):
                continue
            if o["x_nost"] and nb > 9 and "buffer_store_dwordx4" in l:
                continue
            if nb < 10 and any(o["x_s"] >> i & 1 and k in l for i, k in enumerate(("mfma", "read_b128", "_tr_", " lds"))):
                continue
            if o["x_noex"] and nb < 20 and "ds_write_b" in l and nb > 9:
                continue
            if o["x_nogelu"] and nb < 25 and any(f" v{TMP + i}," in l for i in range(4)) and l.strip().startswith("v_") \
                    and "mfma" not in l:
                continue
            out.append(l)
        return "\n".join(out)

    def build(self):
        self.plan()
        side = []
        t0, f0 = finalize([self.prologue(), f"s_cmp_eq_u32 {s_hf}, 0", "s_cbranch_scc1 L_half0"], want_state=True)
        th, fh = [], []
        for h in (1, 0):
            t, f = finalize([label(f"L_half{h}"), self.ffn(h), "s_branch L_join" if h else []],
                            init=[f0], want_state=True, side=side)
            th.append(self.experiments(t))
            fh.append(f)
        slow = [] if self.o["x_fast"] else [f"s_cmp_lg_u64 {s_slow}, 0", "s_cbranch_scc1 L_slow"]
        t1, f1 = finalize([label("L_join"), self.ts("a0"), slow, self.attention(), label("L_att_done"), self.ts("aend"),
                           self.final(PREG, WREG)[0], f"s_cmp_lt_u32 {s_cq}, 2", "s_cbranch_scc0 L_fin2"],
                          init=fh, want_state=True, side=side)
        ta, _ = finalize([self.final(PREG, WREG)[1], "s_branch L_out" if self.o["diag"] or self.o["x_pad"] else "s_endpgm"],
                         init=[f1])
        tb, stats = finalize([label("L_fin2"), self.final(WREG, PREG)[1], label("L_out"), self.diag_dump(),
                              label("L_end"), "s_endpgm"], init=[f1])
        t1 += ta + tb
        text = t0 + th[0] + th[1] + t1
        text2, _ = finalize(self.slow_path(), side=side)
        text2 = "\n".join(side) + "\n" + text2
        self.stats = stats
        ref = open(f"cdna_kernels/{NAME}.s.ref").read().split("\n")
        head = [l for l in ref if l.startswith(";") and "@launch" not in l and "Override launch" not in l
                and "grid=ceil" not in l]
        out = "\n".join(head) + f"""
; @launch grid=(256,1,1) block=(512,1,1) lds=163840
; Generated by gen/gen.py. One workgroup per CU: 128 tokens x (288 hidden units, 2 heads).
.amdgcn_target "amdgcn-amd-amdhsa--gfx950"
.text
.globl {NAME}_kernel
.p2align 8
.type {NAME}_kernel,@function
{NAME}_kernel:
{text}{text2}L_pad:
.if L_pad - {NAME}_kernel < 65536 + 256
    .fill (65536 + 256 - (L_pad - {NAME}_kernel) + 3) / 4, 4, 0xbf810000
.endif
.section .rodata,"a"
.p2align 6
.amdhsa_kernel {NAME}_kernel
  .amdhsa_next_free_vgpr 256
  .amdhsa_next_free_sgpr 102
  .amdhsa_accum_offset 256
  .amdhsa_group_segment_fixed_size 0
  .amdhsa_kernarg_size 112
  .amdhsa_user_sgpr_count 2
  .amdhsa_user_sgpr_kernarg_segment_ptr 1
  .amdhsa_system_sgpr_workgroup_id_x 1
.end_amdhsa_kernel
"""
        return out


def parse_opts(args):
    kw = {}
    for a in args:
        k, v = a.split("=", 1)
        d = DEFAULTS[k]
        kw[k] = type(d)(v)
    return kw


if __name__ == "__main__":
    out = sys.argv[1]
    g = Gen(**parse_opts(sys.argv[2:]))
    open(out, "w").write(g.build())
    print(g.stats, g.tsnames)
```

```python
from rt import *
def kern(body, block, iters, nfv=256):
    pre = f"""
    s_cmp_ge_u32 s2, 256
    s_cbranch_scc1 L_end
    s_load_dwordx2 s[4:5], s[0:1], 0
    s_load_dwordx2 s[6:7], s[0:1], 8
    s_waitcnt lgkmcnt(0)
    s_mov_b32 s8, s4
    s_mov_b32 s9, s5
    s_mov_b32 s10, 0x100000
    s_mov_b32 s11, 0x20000
    s_mov_b32 s12, s6
    s_mov_b32 s13, s7
    s_mov_b32 s14, 0x100000
    s_mov_b32 s15, 0x20000
    v_lshlrev_b32 v1, 4, v0
    s_mov_b32 s3, 0
"""
    for r in range(4, 252, 4):
        pre += f"    buffer_load_dwordx4 v[{r}:{r+3}], v1, s[8:11], s3 offen\n s_add_u32 s3, s3, 8192\n"
    pre += "s_waitcnt vmcnt(0)\n v_and_b32 v2, 255, v0\n v_lshlrev_b32 v2, 4, v2\n"
    for i in range(16):
        pre += f"ds_write_b128 v2, v[{4+4*i}:{7+4*i}] offset:{4096*i}\n"
    pre += """
    v_mov_b32 v255, v0
    v_and_b32 v253, 63, v0
    v_lshlrev_b32 v254, 4, v253
    v_lshlrev_b32 v253, 3, v253
    v_mov_b32 v252, 0xdddddddd
    s_mov_b32 s40, 0xbdd2d3e8
    s_mov_b32 s41, 0xc0135761
    s_waitcnt lgkmcnt(0)
    s_barrier
    s_memtime s[20:21]
    s_memrealtime s[24:25]
    s_waitcnt lgkmcnt(0)
    s_mov_b32 s16, %d
    .p2align 6
L_loop:
""" % iters
    post = """
    s_sub_u32 s16, s16, 1
    s_cmp_lg_u32 s16, 0
    s_cbranch_scc1 L_loop
    s_nop 15
    s_nop 15
    s_memtime s[22:23]
    s_memrealtime s[26:27]
    s_waitcnt lgkmcnt(0)
    s_sub_u32 s22, s22, s20
    s_sub_u32 s26, s26, s24
    v_mov_b32 v2, s22
    v_mov_b32 v3, s26
    v_lshrrev_b32 v4, 6, v255
    s_lshl_b32 s3, s2, 4
    v_add_u32 v4, s3, v4
    v_lshlrev_b32 v4, 3, v4
    buffer_store_dwordx2 v[2:3], v4, s[12:15], 0 offen
    s_waitcnt vmcnt(0)
L_end:
"""
    return wrap(pre + body + post, block=block, nfv=nfv, acc=256)
def gelu_ops(src, n, tmp, dst):
    o = []
    for i in range(0, n, 2):
        a, b = src + i, src + i + 1; t, u = tmp, tmp + 1
        o += [f"v_mul_f32 v{t}, v{a}, v{a}", f"v_mul_f32 v{u}, v{b}, v{b}",
              f"v_fma_f32 v{t}, v{t}, s40, v250", f"v_fma_f32 v{u}, v{u}, s40, v250",
              f"v_mul_f32 v{t}, v{t}, v{a}", f"v_mul_f32 v{u}, v{u}, v{b}",
              f"v_exp_f32 v{t}, v{t}", f"v_exp_f32 v{u}, v{u}",
              f"v_add_f32 v{t}, 1.0, v{t}", f"v_add_f32 v{u}, 1.0, v{u}",
              f"v_rcp_f32 v{t}, v{t}", f"v_rcp_f32 v{u}, v{u}",
              f"v_mul_f32 v{t}, v{t}, v{a}", f"v_mul_f32 v{u}, v{u}, v{b}",
              f"v_cvt_pk_bf16_f32 v{dst + i//2}, v{t}, v{u}"]
    return o
def loop(shape, nk, gelu, rd="tr", depth=3):
    o = []
    nb = 4
    def rdop(step):
        buf = 200 + 4 * (step % nb); off = (step * 1024) % 65536
        if rd == "tr":
            return [f"ds_read_b64_tr_b16 v[{buf}:{buf+1}], v253 offset:{off}", f"ds_read_b64_tr_b16 v[{buf+2}:{buf+3}], v253 offset:{off+512}"]
        return [f"ds_read_b128 v[{buf}:{buf+3}], v254 offset:{off}"]
    per = 2 if rd == "tr" else 1
    total = 2 * nk
    assert total % nb == 0
    for t in range(2):
        acc = 160 + 16 * t; prev = 160 + 16 * (1 - t)
        if gelu == 1: v = gelu_ops(prev, 16, 216, 220)
        elif gelu == 2: v = [f"v_cvt_pk_bf16_f32 v{220+i}, v{prev+2*i}, v{prev+2*i+1}" for i in range(8)]
        else: v = []
        k = 0
        for s in range(nk):
            step = t * nk + s
            buf = 200 + 4 * (step % nb)
            o.append(f"s_waitcnt lgkmcnt({per*(depth-1)})")
            lo = 3
            def take(frac):
                nonlocal k
                e = int(len(v) * max(0.0, min(1.0, (frac - lo) / (nk - lo))) + 1e-9)
                r = v[k:e]; k = max(k, e); return r
            if shape == 32:
                c = "0" if s == 0 else f"v[{acc}:{acc+15}]"
                o.append(f"v_mfma_f32_32x32x16_bf16 v[{acc}:{acc+15}], v[{buf}:{buf+3}], v[{4+4*s}:{7+4*s}], {c}")
                o += rdop(step + depth)
                o += take(s + 1)
            else:
                at = s % 2; ks = s // 2
                r = rdop(step + depth)
                for tt in range(2):
                    d = acc + 8 * at + 4 * tt
                    c = "0" if ks == 0 else f"v[{d}:{d+3}]"
                    b = 4 + 8 * ks + 4 * tt
                    o.append(f"v_mfma_f32_16x16x32_bf16 v[{d}:{d+3}], v[{buf}:{buf+3}], v[{b}:{b+3}], {c}")
                    if per == 2: o.append(r[tt])
                    elif tt == 0: o += r
                    o += take(s + 0.5 * (tt + 1))
    return o, total
tests = {}
for shape in (32, 16):
    tests[f"g2 {shape} tr"] = loop(shape, 18, 2)
    tests[f"g2 {shape} b128"] = loop(shape, 18, 2, rd="b128")
    tests[f"g1 {shape} tr"] = loop(shape, 36, 1)
    tests[f"g1nogelu {shape} tr"] = loop(shape, 36, 0)
if __name__ == "__main__":
    rng = np.random.default_rng(0)
    for scale in (0.1, 0.0):
        f = (rng.standard_normal(1 << 19) * scale).astype(np.float32)
        h = (f.view(np.uint32) >> 16).astype(np.uint16)
        din = DeviceBuffer.from_numpy(h); dout = DeviceBuffer(1 << 20)
        ka = pack_ptr_kernargs([din.ptr, dout.ptr])
        for name, (body, total) in tests.items():
            res = []
            for block in (256, 512):
                iters = 720 // total
                k = load(kern("\n".join(body) + "\n", block, iters), "k_kernel", 2, tag="mb7")
                for _ in range(3):
                    k.launch((256, 1, 1), (block, 1, 1), ka, shared_mem=65536 + 4096); sync()
                o = dout.to_numpy(np.uint32, (256, 16, 2))[:, :block // 64]
                cyc = np.median(o[..., 0].max(1)) / iters / total * 4; rt_ = np.median(o[..., 1].max(1))
                nw = block // 256
                res.append(f"{cyc/nw:7.1f} cyc/4mf ({np.median(o[...,0].max(1))/rt_*0.1:.2f}GHz {rt_*10/iters/total*4/nw:.1f}ns)")
                k.unload()
            print(f"scale {scale} {name:20s}", " | ".join(res), flush=True)
```

```python
from rt import *
import mb7
from mb7 import kern
def loop(ca="v", ab="v", boff=0, coff=0):
    o = []; nk = 6; chain = 2
    seq = [(at, tt, k) for k0 in range(0, nk, chain) for at in range(2) for tt in range(2) for k in range(k0, k0 + chain)]
    for at, tt, k in seq:
        d = (104 if ca == "v" else 0) + coff + 8 * at + 4 * tt
        c = "0" if k == 0 else f"{ca}[{d}:{d+3}]"
        a = 4 + 8 * k + 4 * at; b = (52 if ab == "v" else 32) + boff + 8 * k + 4 * tt
        o.append(f"v_mfma_f32_16x16x32_bf16 {ca}[{d}:{d+3}], v[{a}:{a+3}], {ab}[{b}:{b+3}], {c}")
    return o * 3
tests = {"vvv": loop(), "C in a": loop(ca="a"), "B in a": loop(ab="a"), "B,C in a": loop("a", "a"), "B+2": loop(boff=2), "C+2": loop(coff=2), "vvv again": loop()}
def src(body):
    k = kern("\n".join(body) + "\n", 512, 11)
    import re
    k = "\n".join(l for l in k.split("\n") if not (l.strip().startswith("buffer_load_dwordx4 v[") and int(re.search(r"v\[(\d+)", l).group(1)) >= 120))
    k = k.replace("v255", "v127").replace("v253", "v125").replace("v254", "v126").replace("v252", "v124")
    k = k.replace("s_mov_b32 s40, 0xbdd2d3e8", "\n".join(f"v_accvgpr_write_b32 a{32+i}, v{52+i}" for i in range(52)) + "\ns_mov_b32 s40, 0xbdd2d3e8")
    return k.replace("accum_offset 256", "accum_offset 128")
if __name__ == "__main__":
    dry = not os.path.exists("/dev/kfd")
    rng = np.random.default_rng(0)
    f = (rng.standard_normal(1 << 19) * 0.1).astype(np.float32)
    h = (f.view(np.uint32) >> 16).astype(np.uint16)
    if not dry:
        din = DeviceBuffer.from_numpy(h); dout = DeviceBuffer(1 << 20)
        ka = pack_ptr_kernargs([din.ptr, dout.ptr])
    ks = {}
    for name, body in tests.items():
        co = build(src(body), "k_kernel", 2, tag="mb26_" + str(len(ks)))
        if not dry: ks[name] = AsmKernel(co, "k_kernel")
    res = {n: [] for n in ks}
    import random
    for rep in range(200):
        for name in random.sample(list(ks), len(ks)):
            ks[name].launch((256, 1, 1), (512, 1, 1), ka, shared_mem=65536 + 4096); sync()
            o = dout.to_numpy(np.uint32, (256, 16, 2))[:, :8]
            res[name].append((np.median(o[..., 0].max(1)) / 198, np.mean(o[..., 1].max(1)) * 10 / 198))
    for n, r in res.items():
        r = np.array(r[2:]); print(f"{n:28s} {np.median(r[:,0]):.1f} cyc  {np.median(r[:,1]):.2f} ns")
```
